```python
import torch

def _softmax(x, axis=-1):
    return torch.softmax(x, dim=axis)
def _gelu(x):
    return torch.nn.functional.gelu(x, approximate="tanh")
def _silu(x):
    return torch.nn.functional.silu(x)
def _sigmoid(x):
    return torch.sigmoid(x)
def _layernorm(x, axis=-1, eps=1e-5):
    m = x.mean(dim=axis, keepdim=True)
    v = x.var(dim=axis, keepdim=True, unbiased=False)
    return (x - m) / torch.sqrt(v + eps)
def _scatter_add(tgt, idx, src, axis=0):
    return tgt.clone().index_add_(axis, idx, src)
def _segment_sum(src, seg, n):
    out = torch.zeros((n,) + src.shape[1:], dtype=src.dtype)
    return out.index_add_(0, seg, src)
def _pad(x, pw):
    flat = tuple(v for pair in reversed(pw) for v in pair)
    return torch.nn.functional.pad(x, flat)

kernel_name = 'concat_heads__sliding_local_dilated__sliding_block__prompt'

def setup_inputs():

    _w = (lambda a: (lambda t: t.to(torch.bfloat16) if t.is_floating_point() else t)(torch.as_tensor(a)))
    def _A_setup():
        B, S, D = 1, 2048, 512
        return {
            "x": _w((lambda *s: torch.randn(*s, dtype=torch.bfloat16) * 0.2)(B, S, D)),
            "wqkv": _w((lambda *s: torch.randn(*s, dtype=torch.bfloat16) * 0.2)(D, 3 * D)),
            "wo": _w((lambda *s: torch.randn(*s, dtype=torch.bfloat16) * 0.05)(D, D)),
        }
    _A_in = _A_setup()

    def _B_setup():
        B, S, D = 1, 2048, 512
        return {
            "x": _w((lambda *s: torch.randn(*s, dtype=torch.bfloat16) * 0.2)(B, S, D)),
            "wqkv": _w((lambda *s: torch.randn(*s, dtype=torch.bfloat16) * 0.2)(D, 3 * D)),
            "wo": _w((lambda *s: torch.randn(*s, dtype=torch.bfloat16) * 0.05)(D, D)),
        }
    _B_in = _B_setup()

    return {
        "A_x": _A_in["x"],
        "A_wqkv": _A_in["wqkv"],
        "A_wo": _A_in["wo"],
        "B_x": _B_in["x"],
        "B_wqkv": _B_in["wqkv"],
        "B_wo": _B_in["wo"],
    }

def reference(A_x, A_wqkv, A_wo, B_x, B_wqkv, B_wo):
    def _A_ref(x, wqkv, wo):
        B, S, D = x.shape
        H = 32; Dh = D // H
        W, dil = 8, 2
        qkv = (lambda x, *d: x.permute(*d))((x @ wqkv).reshape(B, S, 3, H, Dh), 2, 0, 3, 1, 4)
        q, k, v = qkv[0], qkv[1], qkv[2]
        scale = Dh ** -0.5
        pos = torch.arange(S)
        off = torch.arange(W) * dil
        idx = pos[:, None] - off[None, :]
        mask = idx >= 0
        idx_c = torch.where(mask, idx, 0).reshape(-1)
        kg = k[:, :, idx_c, :].reshape(B, H, S, W, Dh)
        vg = v[:, :, idx_c, :].reshape(B, H, S, W, Dh)
        logits = torch.einsum("bhsd,bhswd->bhsw", q, kg) * scale
        logits = torch.where(mask[None, None, :, :], logits, -1e9)
        attn = _softmax(logits, axis=-1)
        o = torch.einsum("bhsw,bhswd->bhsd", attn, vg)
        return (lambda x, *d: x.permute(*d))(o, 0, 2, 1, 3).reshape(B, S, D) @ wo

    def _B_ref(x, wqkv, wo):
        B, S, D = x.shape
        H = 32; Dh = D // H; W = 256
        qkv = (lambda x, *d: x.permute(*d))((x @ wqkv).reshape(B, S, 3, H, Dh), 2, 0, 3, 1, 4)
        q, k, v = qkv[0], qkv[1], qkv[2]
        scores = torch.einsum("bhqd,bhkd->bhqk", q, k) * (Dh ** -0.5)
        idx = torch.arange(S)
        mask = (idx[:, None] - idx[None, :] >= 0) & (idx[:, None] - idx[None, :] < W)
        scores = torch.where(mask[None, None], scores, -1e9)
        p = _softmax(scores, axis=-1)
        o = torch.einsum("bhqk,bhkd->bhqd", p, v)
        return (lambda x, *d: x.permute(*d))(o, 0, 2, 1, 3).reshape(B, S, D) @ wo

    a = _A_ref(A_x, A_wqkv, A_wo)
    b = _B_ref(B_x, B_wqkv, B_wo)
    return torch.concatenate([a, b], axis=-1)
```

```python
import sys, math
NAME = "concat_heads__sliding_local_dilated__sliding_block__prompt"

class Opt:
    stamps = False
    depth = 3
    rot = True
    prio = True
    kstore_early = True
    force_slow = False
    nt = False
    pollmax = 400000
O = Opt()
for a in sys.argv[2:]:
    k, v = a.split("=")
    setattr(O, k, type(getattr(O, k))(int(v)))

WS_KV = 0
WS_O = 8 << 20
WS_F1 = 12 << 20
WS_F2 = WS_F1 + 16384
WS_ST = 13 << 20
WS_BYTES = 14 << 20
LDS_Q = 65536
LDS_BYTES = 73728

class E:
    def __init__(s):
        s.L = []; s.vq = []; s.nst = 0; s.lab = 0
    def __call__(s, t): s.L.append("    " + t)
    def label(s, n): s.L.append(n + ":")
    def c(s, t): s.L.append("    ; " + t)
    def vm(s, t, tag): s(t); s.vq.append(tag)
    def wait_vm(s, tag):
        if tag not in s.vq: return
        idx = max(i for i, x in enumerate(s.vq) if x == tag)
        n = len(s.vq) - 1 - idx
        assert n <= 63
        s(f"s_waitcnt vmcnt({n})"); s.vq = s.vq[idx + 1:]
    def wait_all(s): s("s_waitcnt vmcnt(0)"); s.vq = []
    def stamp(s, i):
        if O.stamps: s(f"s_memtime s[{64+2*i}:{65+2*i}]")
    def newlab(s, p): s.lab += 1; return f"{p}_{s.lab}"
e = E()
def vr(a, n): return f"v[{a}:{a+n-1}]"

SX, SW, SWO, SOUT, SWS, SDBG = 8, 12, 16, 20, 24, 28
def srd(a): return f"s[{a}:{a+3}]"
sBR, sTB, sG, sW, sM0, sT0, sT1, sT2 = 3, 4, 5, 6, 7, 50, 51, 52
sCX = 32
sCW = 40
sNON = 48
sJ = 53; sHEAD = 54; sCNT = 55; sEX = 56
sKV = 58; sTB3 = 59; sCB = 60; sXCD = 61; sSLOW = 62; sT3 = 63
vL, vX0, vX1, vW0, vW1, vWR = 1, 2, 3, 4, 5, 6
vXR = 8
vL16, vVST, vT0, vT1 = 7, 12, 13, 14
vT2 = 15
vQ, vP, vML, vMF, vS, vO, vK, vV = 16, 24, 40, 56, 72, 104, 136, 176
vXF = 128
accA, accB = 72, 88
WF = [104, 108, 112, 116, 120, 124, 16, 20]
vCV = 24
NEG = "0xff800000"
LD = " nt" if O.nt else ""

def mfma(d, a, b, c): e(f"v_mfma_f32_32x32x16_bf16 {vr(d,16)}, {vr(a,4)}, {vr(b,4)}, {c if isinstance(c,str) else vr(c,16)}")

def prologue():
    e("s_cmp_ge_u32 s2, 512"); e("s_cbranch_scc1 L_end")
    if O.stamps: e("s_memtime s[64:65]"); e("s_memrealtime s[96:97]")
    e("s_load_dwordx16 s[32:47], s[0:1], 0"); e("s_load_dwordx2 s[24:25], s[0:1], 64")
    e(f"v_lshrrev_b32 v{vT0}, 6, v0"); e(f"v_and_b32 v{vL}, 63, v0")
    e(f"v_readfirstlane_b32 s{sW}, v{vT0}")
    e(f"s_and_b32 s{sXCD}, s2, 7"); e(f"s_bfe_u32 s{sJ}, s2, 0x50003")
    e(f"s_lshr_b32 s{sT0}, s{sXCD}, 1"); e(f"s_lshl_b32 s{sT0}, s{sT0}, 3"); e(f"s_lshr_b32 s{sT1}, s{sJ}, 2")
    e(f"s_add_u32 s{sTB}, s{sT0}, s{sT1}")
    e(f"s_and_b32 s{sT0}, s{sXCD}, 1"); e(f"s_lshl_b32 s{sT0}, s{sT0}, 2"); e(f"s_and_b32 s{sT2}, s{sJ}, 3")
    e(f"s_add_u32 s{sG}, s{sT0}, s{sT2}")
    e(f"s_lshl_b32 s{sT2}, s{sT2}, 1"); e(f"s_add_u32 s{sT3}, s{sT1}, s{sT2}")
    if not O.rot: e(f"s_mov_b32 s{sT3}, 0")
    e(f"s_lshl_b32 s{sM0}, s{sW}, 10")
    e(f"v_lshrrev_b32 v{vT0}, 4, v{vL}")
    e(f"s_and_b32 s{sT0}, s{sW}, 1"); e(f"s_lshl_b32 s{sT0}, s{sT0}, 2")
    e(f"v_add_u32 v{vT0}, s{sT0}, v{vT0}")
    e(f"v_and_b32 v{vT1}, 7, v{vL}"); e(f"v_xor_b32 v{vT0}, v{vT0}, v{vT1}"); e(f"v_lshlrev_b32 v{vT0}, 4, v{vT0}")
    e(f"v_lshrrev_b32 v{vT1}, 3, v{vL}"); e(f"v_lshl_add_u32 v{vX0}, v{vT1}, 10, v{vT0}")
    e(f"s_lshl_b32 s{sT0}, s{sW}, 13"); e(f"v_add_u32 v{vX0}, s{sT0}, v{vX0}"); e(f"v_add_u32 v{vX1}, 0x8000, v{vX0}")
    e(f"v_bfe_u32 v{vT0}, v{vL}, 2, 3")
    e(f"s_lshl_b32 s{sT0}, s{sW}, 3"); e(f"v_add_u32 v{vT0}, s{sT0}, v{vT0}")
    e(f"v_lshrrev_b32 v{vT1}, 5, v{vL}"); e(f"v_lshlrev_b32 v{vT1}, 6, v{vT1}")
    e(f"v_and_b32 v{vT2}, 3, v{vL}"); e(f"v_lshl_add_u32 v{vT1}, v{vT2}, 4, v{vT1}")
    e(f"v_mul_u32_u24 v{vW0}, 3072, v{vT0}"); e(f"v_add_u32 v{vW0}, v{vW0}, v{vT1}"); e(f"v_add_u32 v{vW1}, {32*3072}, v{vW0}")
    e(f"s_cmp_lt_u32 s2, 256"); e(f"s_cselect_b32 s{sBR}, 1, 0")
    e("s_waitcnt lgkmcnt(0)")
    e(f"s_cselect_b64 s[{SX}:{SX+1}], s[38:39], s[32:33]")
    e(f"s_cselect_b64 s[{SW}:{SW+1}], s[40:41], s[34:35]")
    e(f"s_cselect_b64 s[{SWO}:{SWO+1}], s[42:43], s[36:37]")
    e(f"s_mov_b64 s[{SOUT}:{SOUT+1}], s[44:45]"); e(f"s_mov_b64 s[{SDBG}:{SDBG+1}], s[46:47]")
    e(f"s_mov_b32 s{SX+2}, {2048*1024}"); e(f"s_mov_b32 s{SX+3}, 0x20000")
    e(f"s_mov_b32 s{SW+2}, {512*3072}"); e(f"s_mov_b32 s{SW+3}, 0x20000")
    e(f"s_lshl_b32 s{sT0}, s{sTB}, 16"); e(f"s_lshl_b32 s{sT1}, s{sG}, 7"); e(f"s_add_u32 s{sT1}, s{sT1}, 1024")
    def chunk(t):
        e(f"s_add_u32 s{sT2}, s{sT3}, {t}"); e(f"s_and_b32 s{sT2}, s{sT2}, 7")
        e(f"s_lshl_b32 s{sCX+t}, s{sT2}, 7"); e(f"s_add_u32 s{sCX+t}, s{sCX+t}, s{sT0}")
        e(f"s_mul_i32 s{sCW+t}, s{sT2}, {64*3072}"); e(f"s_add_u32 s{sCW+t}, s{sCW+t}, s{sT1}")
    if O.prio:
        e(f"s_cmp_eq_u32 s{sBR}, 0"); e("s_cbranch_scc1 L_noprio"); e("s_setprio 2"); e.label("L_noprio")
    for t in range(O.depth):
        chunk(t); dma_stage(t)
    for t in range(O.depth, 8): chunk(t)
    e(f"s_mov_b32 s{SWO+2}, {512*1024}"); e(f"s_mov_b32 s{SWO+3}, 0x20000")
    e(f"s_mov_b32 s{SOUT+2}, {2048*2048}"); e(f"s_mov_b32 s{SOUT+3}, 0x20000")
    e(f"s_mov_b32 s{SWS+2}, {WS_BYTES}"); e(f"s_mov_b32 s{SWS+3}, 0x20000")
    e(f"s_mov_b32 s{SDBG+2}, 256"); e(f"s_mov_b32 s{SDBG+3}, 0x20000")
    e(f"s_or_b32 s{sT0}, s2, s{sW}"); e(f"s_cmp_lg_u32 s{sT0}, 0"); e("s_cbranch_scc1 L_nononce")
    e(f"s_memrealtime s[{sNON}:{sNON+1}]"); e("s_waitcnt lgkmcnt(0)")
    e(f"s_or_b32 s{sNON+1}, s{sNON+1}, 0x80000000")
    e(f"v_mov_b32 v{vCV}, s{sNON}"); e(f"v_mov_b32 v{vCV+1}, s{sNON+1}"); e(f"v_mov_b32 v{vT0}, 0")
    e("s_mov_b64 exec, 1")
    e(f"buffer_store_dwordx2 {vr(vCV,2)}, v{vT0}, {srd(SDBG)}, 0 offen sc1")
    e("s_mov_b64 exec, -1")
    e("s_waitcnt vmcnt(0)")
    e.label("L_nononce")
    e(f"v_and_b32 v{vT0}, 31, v{vL}"); e(f"v_lshrrev_b32 v{vT1}, 5, v{vL}")
    e(f"v_bfe_u32 v{vT2}, v{vL}, 1, 3"); e(f"v_xor_b32 v{vT2}, v{vT2}, v{vT1}"); e(f"v_lshlrev_b32 v{vT2}, 4, v{vT2}")
    e(f"v_lshl_add_u32 v{vXR}, v{vT0}, 7, v{vT2}")
    e(f"s_and_b32 s{sT0}, s{sW}, 1"); e(f"s_lshl_b32 s{sT0}, s{sT0}, 12"); e(f"v_add_u32 v{vXR}, s{sT0}, v{vXR}")
    for s_ in range(1, 4): e(f"v_xor_b32 v{vXR+s_}, {s_*32}, v{vXR}")
    e(f"v_bfe_u32 v{vT2}, v{vL}, 2, 2"); e(f"v_lshlrev_b32 v{vWR}, 6, v{vT2}")
    e(f"v_bfe_u32 v{vT2}, v{vL}, 4, 1"); e(f"v_lshl_add_u32 v{vWR}, v{vT2}, 5, v{vWR}")
    e(f"v_and_b32 v{vT2}, 3, v{vL}"); e(f"v_lshl_add_u32 v{vWR}, v{vT2}, 3, v{vWR}")
    e(f"v_lshl_add_u32 v{vWR}, v{vT1}, 10, v{vWR}")
    e(f"s_lshr_b32 s{sT0}, s{sW}, 1"); e(f"s_lshl_b32 s{sT0}, s{sT0}, 9"); e(f"v_add_u32 v{vWR}, s{sT0}, v{vWR}")
    e(f"v_lshlrev_b32 v{vL16}, 4, v{vL}")
    e(f"v_bfe_u32 v{vT2}, v{vL}, 4, 1"); e(f"v_lshlrev_b32 v{vVST}, 17, v{vT2}")
    e(f"v_lshl_add_u32 v{vVST}, v{vT1}, 8, v{vVST}")
    e(f"v_and_b32 v{vT2}, 15, v{vL}"); e(f"v_lshl_add_u32 v{vVST}, v{vT2}, 4, v{vVST}")
    e(f"s_lshl_b32 s{sT0}, s{sBR}, 3"); e(f"s_add_u32 s{sT0}, s{sT0}, s{sG}"); e(f"s_lshl_b32 s{sT0}, s{sT0}, 2")
    e(f"s_add_u32 s{sHEAD}, s{sT0}, s{sW}")
    e(f"s_and_b32 s{sT1}, s{sW}, 2"); e(f"s_add_u32 s{sT0}, s{sT0}, s{sT1}"); e(f"s_lshl_b32 s{sT0}, s{sT0}, 6")
    e(f"s_lshl_b32 s{sT1}, s{sTB}, 1"); e(f"s_add_u32 s{sT0}, s{sT0}, s{sT1}")
    e(f"s_and_b32 s{sT1}, s{sW}, 1"); e(f"s_add_u32 s{sT0}, s{sT0}, s{sT1}"); e(f"s_lshl_b32 s{sKV}, s{sT0}, 11")
    e(f"v_lshlrev_b32 v{vT1}, 2, v{vT1}"); e(f"v_sub_u32 v{vT0}, v{vT0}, v{vT1}")
    e(f"s_cmp_eq_u32 s{sBR}, 0"); e("s_cbranch_scc1 L_maskA")
    for r in range(16):
        c = 8*(r >> 2) + (r & 3)
        e(f"v_subrev_u32 v{vT1}, {c}, v{vT0}"); e(f"v_and_b32 v{vML+r}, {NEG}, v{vT1}"); e(f"v_xor_b32 v{vMF+r}, {NEG}, v{vML+r}")
    e("s_branch L_maskdone")
    e.label("L_maskA")
    e(f"s_mov_b32 s{sT0}, 0xf149f2ca")
    for r in range(16):
        c = 8*(r >> 2) + (r & 3)
        e(f"v_subrev_u32 v{vT1}, {c}, v{vT0}"); e(f"v_and_b32 v{vT1}, -15, v{vT1}"); e(f"v_cvt_f32_u32 v{vT1}, v{vT1}"); e(f"v_mul_f32 v{vML+r}, s{sT0}, v{vT1}")
        if r >= 8:
            e(f"v_add_u32 v{vT1}, {32-c}, v{vT0}"); e(f"v_and_b32 v{vT1}, -15, v{vT1}"); e(f"v_cvt_f32_u32 v{vT1}, v{vT1}"); e(f"v_mul_f32 v{vMF+r}, s{sT0}, v{vT1}")
        else:
            e(f"v_mov_b32 v{vMF+r}, s{sT0}")
    e.label("L_maskdone")

def dma(v, s_, soff, ldsdst, tag):
    e(f"s_add_u32 m0, s{sM0}, {ldsdst}"); e("s_nop 0")
    e.vm(f"buffer_load_dwordx4 v{v}, {srd(s_)}, s{soff} offen{LD} lds", tag)

def dma_stage(t):
    slot = (t % 4) * 16384
    tag = f"st{t}"
    if t < 8:
        dma(vX0, SX, sCX+t, slot, tag); dma(vW0, SW, sCW+t, slot+8192, tag)
        dma(vX1, SX, sCX+t, slot+4096, tag); dma(vW1, SW, sCW+t, slot+8192+4096, tag)
    else:
        if t == 8:
            e(f"s_add_u32 s{SW}, s{SW}, 1024"); e(f"s_addc_u32 s{SW+1}, s{SW+1}, 0"); e(f"s_sub_u32 s{SW+2}, s{SW+2}, 1024")
        if t == 12:
            e(f"s_sub_u32 s{SW}, s{SW}, 1024"); e(f"s_subb_u32 s{SW+1}, s{SW+1}, 0"); e(f"s_add_u32 s{SW+2}, s{SW+2}, 1024")
            for i in range(8): e(f"s_sub_u32 s{sCW+i}, s{sCW+i}, 1024")
        c0 = 2 * (t % 4)
        for b in range(2):
            dma(vW0, SW, sCW+c0+b, slot+b*8192, tag); dma(vW1, SW, sCW+c0+b, slot+b*8192+4096, tag)

def wfrag_read(dst, off):
    e(f"ds_read_b64_tr_b16 {vr(dst,2)}, v{vWR} offset:{off}")
    e(f"ds_read_b64_tr_b16 {vr(dst+2,2)}, v{vWR} offset:{off+256}")

def cvt8(dst, src, n=4):
    for i in range(n): e(f"v_cvt_pk_bf16_f32 v{dst+i}, v{src+2*i}, v{src+2*i+1}")

def store_K():
    e.vm(f"buffer_store_dwordx4 {vr(vCV,4)}, v{vL16}, {srd(SWS)}, s{sKV} offen sc1", "kst")
    e(f"s_add_u32 s{sT0}, s{sKV}, 0x20000")
    e.vm(f"buffer_store_dwordx4 {vr(vCV+4,4)}, v{vL16}, {srd(SWS)}, s{sT0} offen sc1", "kst")

def p1():
    for t in range(16):
        slot = (t % 4) * 16384
        e.c(f"---- P1 stage {t}")
        e.wait_vm(f"st{t}"); e("s_barrier")
        if t in (0, 8, 12): e.stamp({0: 1, 8: 2, 12: 3}[t])
        if t < 8:
            for s_ in range(4):
                e(f"ds_read_b128 {vr(vXF+16*t+4*s_,4)}, v{vXR+s_} offset:{slot}")
                wfrag_read(WF[s_], slot + 8192 + s_*2048)
            nks = 4; per = 3
        else:
            for s_ in range(7): wfrag_read(WF[s_], slot + s_*2048)
            nks = 8; per = 2
        if t + O.depth < 16: dma_stage(t + O.depth)
        if t == 8:
            cvt8(vCV, accA, 8)
            if O.kstore_early: store_K()
            e(f"v_mov_b32 v{vT0}, 0")
        if t == 12:
            cvt8(vCV+8, accB, 8)
            if not O.kstore_early: store_K()
            e.vm(f"buffer_store_dwordx4 {vr(vCV+8,4)}, v{vVST}, {srd(SWS)}, s{sKV} offen offset:1024 sc1", "vst")
            e.vm(f"buffer_store_dwordx4 {vr(vCV+12,4)}, v{vVST}, {srd(SWS)}, s{sKV} offen offset:1536 sc1", "vst")
        acc = accB if 8 <= t < 12 else accA
        issued = nks if t < 8 else 7
        for s_ in range(nks):
            if t >= 8 and s_ == 1:
                wfrag_read(WF[7], slot + 7*2048); issued = 8
            e(f"s_waitcnt lgkmcnt({(issued-1-s_)*per})")
            ks = 4*t + s_ if t < 8 else 8*(t % 4) + s_
            first = (ks == 0)
            c = "0" if first else acc
            if 8 <= t < 12: mfma(acc, vXF+4*ks, WF[s_], c)
            else: mfma(acc, WF[s_], vXF+4*ks, c)

def poll(voff, soff, base, name, mask=None):
    L = e.newlab("L_poll"); D = e.newlab("L_polled")
    e(f"s_mov_b32 s{sCNT}, 0")
    if mask: e(f"s_mov_b64 exec, {mask}")
    e.label(L)
    e(f"buffer_load_dwordx2 {vr(vT1,2)}, v{voff}, {srd(base)}, {soff} offen sc1")
    e(f"s_add_u32 s{sCNT}, s{sCNT}, 1")
    e.wait_all()
    e(f"v_cmp_ne_u64 vcc, s[{sNON}:{sNON+1}], {vr(vT1,2)}")
    e(f"s_cmp_gt_u32 s{sCNT}, {O.pollmax}"); e(f"s_cbranch_scc1 {D}")
    e(f"s_cbranch_vccnz {L}")
    e.label(D)
    if mask: e("s_mov_b64 exec, -1")

def flag_store(soff):
    e(f"v_mov_b32 v{vT1}, s{sNON}"); e(f"v_mov_b32 v{vT2}, s{sNON+1}"); e(f"v_mov_b32 v{vT0}, 0")
    e("s_mov_b64 exec, 1")
    e.vm(f"buffer_store_dwordx2 {vr(vT1,2)}, v{vT0}, {srd(SWS)}, s{soff} offen sc1", "flag")
    e("s_mov_b64 exec, -1")

def post_p1():
    e.c("---- Q epilogue / exchange, nonce, KV flag")
    e.stamp(4)
    L = e.newlab("L_nonce"); D = e.newlab("L_nonced")
    e(f"v_mov_b32 v{vT0}, 0")
    e.vm(f"buffer_load_dwordx2 {vr(vT1,2)}, v{vT0}, {srd(SDBG)}, 0 offen sc1", "non")
    e(f"s_mov_b32 s{sT0}, 0x3eb8aa3b")
    e("s_nop 7")
    e("s_nop 3")
    for i in range(16): e(f"v_mul_f32 v{accA+i}, s{sT0}, v{accA+i}")
    cvt8(vS+16, accA, 8)
    e(f"s_and_b32 s{sT0}, s{sW}, 2"); e(f"s_lshl_b32 s{sT0}, s{sT0}, 1"); e(f"s_and_b32 s{sT1}, s{sW}, 1"); e(f"s_add_u32 s{sT0}, s{sT0}, s{sT1}")
    e(f"s_lshl_b32 s{sT0}, s{sT0}, 10"); e(f"s_add_u32 s{sT0}, s{sT0}, {LDS_Q}")
    e(f"v_add_u32 v{vX0}, s{sT0}, v{vL16}")
    e(f"ds_write_b128 v{vX0}, {vr(vS+16,4)}"); e(f"ds_write_b128 v{vX0}, {vr(vS+20,4)} offset:2048")
    e(f"s_lshl_b32 s{sT0}, s{sW}, 11"); e(f"s_add_u32 s{sT0}, s{sT0}, {LDS_Q}")
    e(f"v_add_u32 v{vX0}, s{sT0}, v{vL16}")
    e(f"s_mov_b32 s{sCNT}, 0")
    e.wait_all()
    e.label(L)
    e(f"v_readfirstlane_b32 s{sNON}, v{vT1}"); e(f"v_readfirstlane_b32 s{sNON+1}, v{vT2}")
    e(f"s_add_u32 s{sCNT}, s{sCNT}, 1")
    e(f"s_cmp_gt_u32 s{sCNT}, {O.pollmax}"); e(f"s_cbranch_scc1 {D}")
    e(f"s_cmp_lg_u32 s{sNON+1}, 0"); e(f"s_cbranch_scc1 {D}")
    e(f"buffer_load_dwordx2 {vr(vT1,2)}, v{vT0}, {srd(SDBG)}, 0 offen sc1"); e("s_waitcnt vmcnt(0)")
    e(f"s_branch {L}")
    e.label(D)
    e(f"s_lshr_b32 s{sT2}, s{sHEAD}, 1"); e(f"s_lshl_b32 s{sT2}, s{sT2}, 9"); e(f"s_add_u32 s{sT2}, s{sT2}, {WS_F1}")
    e(f"s_lshl_b32 s{sT1}, s{sTB}, 4"); e(f"s_add_u32 s{sT2}, s{sT2}, s{sT1}")
    e(f"s_and_b32 s{sT1}, s{sW}, 1"); e(f"s_lshl_b32 s{sT1}, s{sT1}, 3"); e(f"s_add_u32 s{sT1}, s{sT1}, s{sT2}")
    flag_store(sT1)
    e.stamp(5)
    e("s_waitcnt lgkmcnt(0)"); e("s_barrier")
    e(f"ds_read_b128 {vr(vQ,4)}, v{vX0}"); e(f"ds_read_b128 {vr(vQ+4,4)}, v{vX0} offset:1024")
    e(f"s_lshl_b32 s{sKV}, s{sHEAD}, 6"); e(f"s_lshl_b32 s{sT1}, s{sTB}, 1"); e(f"s_add_u32 s{sKV}, s{sKV}, s{sT1}"); e(f"s_lshl_b32 s{sKV}, s{sKV}, 11")
    e(f"v_and_b32 v{vVST}, 0x1ffff, v{vVST}")
    e(f"v_lshlrev_b32 v{vX1}, 3, v{vL}")
    e(f"s_lshl_b32 s{sTB3}, s{sXCD}, 2"); e(f"s_lshr_b32 s{sT1}, s{sJ}, 3"); e(f"s_add_u32 s{sTB3}, s{sTB3}, s{sT1}")
    e(f"s_and_b32 s{sCB}, s{sJ}, 7")
    e(f"v_bfe_u32 v{vT0}, v{vL}, 2, 3"); e(f"s_lshl_b32 s{sT0}, s{sW}, 3"); e(f"v_add_u32 v{vT0}, s{sT0}, v{vT0}")
    e(f"v_lshrrev_b32 v{vW1}, 5, v{vL}"); e(f"v_lshlrev_b32 v{vW1}, 6, v{vW1}")
    e(f"v_and_b32 v{vW0}, 3, v{vL}"); e(f"v_lshl_add_u32 v{vW1}, v{vW0}, 4, v{vW1}")
    e(f"v_lshl_add_u32 v{vW0}, v{vT0}, 10, v{vW1}")
    e(f"s_lshl_b32 s{sT0}, s{sCB}, 7"); e(f"v_add_u32 v{vW0}, s{sT0}, v{vW0}")

def wo_dma(i):
    e(f"s_mov_b32 s{sT0}, {i*32*1024}")
    dma(vW0, SWO, sT0, i*4096, "wo")

def load_kv(js, jown, vonly_hi=()):
    for j in js:
        d = (j - jown) * 2048
        if d >= 0: e(f"s_add_u32 s{sT0}, s{sKV}, {d}")
        else: e(f"s_sub_u32 s{sT0}, s{sKV}, {-d}")
        e.vm(f"buffer_load_dwordx4 {vr(vK+4*j,4)}, v{vL16}, {srd(SWS)}, s{sT0} offen sc1", f"k{j}")
        e(f"s_mov_b64 exec, s[{sEX}:{sEX+1}]")
        if j not in vonly_hi:
            e.vm(f"buffer_load_dwordx4 {vr(vV+8*j,4)}, v{vVST}, {srd(SWS)}, s{sT0} offen offset:1024 sc1", f"v{j}")
        e.vm(f"buffer_load_dwordx4 {vr(vV+8*j+4,4)}, v{vVST}, {srd(SWS)}, s{sT0} offen offset:1536 sc1", f"v{j}")
        e("s_mov_b64 exec, -1")

def o_epilogue(slowlab):
    e("s_nop 7"); e("s_nop 3")
    for q in range(2):
        o = vO + 16*q
        e(f"v_rcp_f32 v{o+9}, v{o+8}")
        for i in range(8): e(f"v_fma_f32 v{o+8}, v{o+i}, 0, v{o+8}")
        for i in range(8): e(f"v_mul_f32 v{o+i}, v{o+i}, v{o+9}")
        cvt8(vP+4*q, o)
    if slowlab:
        e(f"s_mov_b32 s{sT0}, 0x2b800000"); e(f"s_mov_b32 s{sT1}, 0x53800000")
        e(f"v_cmp_nle_f32 vcc, s{sT0}, v{vO+8}"); e(f"v_cmp_nge_f32 s[{sEX}:{sEX+1}], s{sT1}, v{vO+8}")
        e(f"s_or_b64 s[{sEX}:{sEX+1}], s[{sEX}:{sEX+1}], vcc")
        e(f"v_cmp_nle_f32 vcc, s{sT0}, v{vO+24}"); e(f"s_or_b64 s[{sEX}:{sEX+1}], s[{sEX}:{sEX+1}], vcc")
        e(f"v_cmp_nge_f32 vcc, s{sT1}, v{vO+24}"); e(f"s_or_b64 s[{sEX}:{sEX+1}], s[{sEX}:{sEX+1}], vcc")
        if O.force_slow: e(f"s_branch {slowlab}")
        else: e(f"s_cbranch_scc1 {slowlab}")

def attn_tasks(tasks, exits, slow, hooks=None, waits=True):
    hooks = hooks or {}
    started = [False, False]
    seenk = set(); seenv = set()
    def qk(n):
        j, q, m, half = tasks[n]
        if waits and j not in seenk: e.wait_vm(f"k{j}"); seenk.add(j)
        mfma(vS + 16*(n % 2), vK+4*j, vQ+4*q, m if m is not None else "0")
    def pv(n, kb):
        j, q, m, half = tasks[n]
        if waits and j not in seenv: e.wait_vm(f"v{j}"); seenv.add(j)
        mfma(vO+16*q, vV+8*j+4*kb, vP+4*kb, (vO+16*q) if started[q] else "0"); started[q] = True
    def ex(n, i):
        s_ = vS + 16*(n % 2) + i
        if slow: e(f"v_sub_f32 v{s_}, v{s_}, v{vX0 + tasks[n][1]}")
        e(f"v_exp_f32 v{s_}, v{s_}")
    qk(0); e("s_nop 7"); e("s_nop 3")
    pend = None
    out_of_line = []
    for n in range(len(tasks)):
        j, q, m, half = tasks[n]
        s_ = vS + 16*(n % 2)
        if n + 1 < len(tasks): qk(n+1)
        if n in hooks: hooks[n]()
        if not half:
            for i in range(4): ex(n, i)
            if pend is not None: pv(*pend); pend = None
            for i in range(4, 8): ex(n, i)
            cvt8(vP, s_)
            for i in range(8, 10): ex(n, i)
            pv(n, 0)
            for i in range(10, 16): ex(n, i)
        else:
            for i in range(8, 12): ex(n, i)
            if pend is not None: pv(*pend); pend = None
            for i in range(12, 16): ex(n, i)
        cvt8(vP+4, s_+8)
        pend = (n, 1)
        if n in exits:
            cond, lab, dest = exits[n]
            cond(); e(f"s_cbranch_scc1 {lab}")
            out_of_line.append((lab, vO+16*q, vV+8*j+4, started[q], dest))
    e("s_nop 1"); pv(*pend)
    return out_of_line

def max_pass(tasks, exits):
    D = e.newlab("L_maxdone")
    e(f"v_mov_b32 v{vX0}, {NEG}"); e(f"v_mov_b32 v{vX0+1}, {NEG}")
    for n, (j, q, m, half) in enumerate(tasks):
        mfma(vS, vK+4*j, vQ+4*q, m if m is not None else "0")
        e("s_nop 7"); e("s_nop 3")
        for i in range(8 if half else 0, 16, 2): e(f"v_max3_f32 v{vX0+q}, v{vX0+q}, v{vS+i}, v{vS+i+1}")
        if n in exits: exits[n][0](); e(f"s_cbranch_scc1 {D}")
    e.label(D)
    for q in range(2):
        e(f"v_mov_b32 v{vT0}, v{vX0+q}"); e("s_nop 1")
        e(f"v_permlane32_swap_b32 v{vT0}, v{vX0+q}"); e("s_nop 1")
        e(f"v_max_f32 v{vX0+q}, v{vX0+q}, v{vT0}")

def emit_ool(ool):
    for lab, o, v, st, dest in ool:
        e.label(lab); e("s_nop 1"); mfma(o, v, vP+4, o if st else "0"); e(f"s_branch {dest}")

def prefill_v(js):
    e(f"s_mov_b32 s{sT0}, 0x3f803f80")
    for j in js:
        for i in range(8): e(f"v_mov_b32 v{vV+8*j+i}, s{sT0}")
    e(f"s_mov_b32 s{sEX}, 0xffff"); e(f"s_mov_b32 s{sEX+1}, 0xffff")

tasksB = [(9,1,vML,False),(8,1,None,False),(8,0,vML,False)]
for j in range(7, 1, -1): tasksB += [(j,1,None,False),(j,0,None,False)]
tasksB += [(1,1,vMF,False),(1,0,None,False),(0,0,vMF,False)]
tasksA = [(2,1,vML,False),(1,1,vMF,True),(1,0,vML,False),(0,0,vMF,True)]
def cmp_tb(v): return lambda: e(f"s_cmp_eq_u32 s{sTB}, {v}")

def attention():
    e(f"s_cmp_eq_u32 s{sBR}, 0"); e("s_cbranch_scc1 L_attnA")
    saved = list(e.vq)
    e.c("---- attention B")
    prefill_v(range(10))
    e(f"s_lshl_b32 s{sT0}, s{sTB}, 1"); e(f"s_sub_i32 s{sT0}, 8, s{sT0}"); e(f"s_max_i32 s{sT0}, s{sT0}, 0")
    e(f"s_lshl_b32 s{sT1}, -1, s{sT0}"); e(f"s_and_b32 s{sCX}, s{sT1}, 0x3ff"); e(f"s_mov_b32 s{sCX+1}, 0")
    e(f"s_sub_u32 s{sT2}, s{sT2}, 64")
    poll(vX1, f"s{sT2}", SWS, "kv", mask=f"s[{sCX}:{sCX+1}]")
    e.stamp(6)
    load_kv([9, 8], 8)
    vq_marks = []
    for jj in (6, 4, 2, 0):
        e(f"s_cmp_eq_u32 s{sTB}, {(6-jj)//2}"); e("s_cbranch_scc1 L_B_clip")
        load_kv([jj+1, jj], 8)
    e("s_branch L_B_go")
    e.label("L_B_clip"); e("s_waitcnt vmcnt(0)")
    e.label("L_B_go")
    e("s_waitcnt lgkmcnt(0)")
    exits = {}
    for n, (j, q, m, h) in enumerate(tasksB):
        if q == 0 and j in (8, 6, 4, 2): exits[n] = (cmp_tb((8-j)//2), f"L_Bx{j}", "L_B_epi_clip")
    def wo_all():
        for i in range(16): wo_dma(i)
    hooks = {}
    for i in range(8): hooks[9+i] = (lambda i=i: (wo_dma(2*i), wo_dma(2*i+1)))
    ool = attn_tasks(tasksB, exits, False, hooks)
    e.label("L_B_epi")
    o_epilogue("L_B_slow")
    e("s_branch L_attn_done")
    emit_ool(ool)
    e.label("L_B_epi_clip")
    q2 = list(e.vq); wo_all(); e.vq = q2
    e("s_branch L_B_epi")
    endq = list(e.vq)
    e.c("---- attention A")
    e.label("L_attnA")
    e.vq = list(saved)
    for i in range(16): wo_dma(i)
    prefill_v(range(3))
    e(f"s_cmp_eq_u32 s{sTB}, 0"); e(f"s_cselect_b32 s{sCX}, 6, 7"); e(f"s_mov_b32 s{sCX+1}, 0")
    e(f"s_sub_u32 s{sT2}, s{sT2}, 8")
    poll(vX1, f"s{sT2}", SWS, "kv", mask=f"s[{sCX}:{sCX+1}]")
    e.stamp(6)
    load_kv([2, 1], 1)
    e(f"s_cmp_eq_u32 s{sTB}, 0"); e("s_cbranch_scc1 L_A_clip")
    load_kv([0], 1, vonly_hi=(0,))
    e("s_branch L_A_go")
    e.label("L_A_clip"); e("s_waitcnt vmcnt(0)")
    e.label("L_A_go")
    e("s_waitcnt lgkmcnt(0)")
    exitsA = {2: (cmp_tb(0), "L_Ax", "L_A_epi")}
    oolA = attn_tasks(tasksA, exitsA, False)
    e.label("L_A_epi")
    o_epilogue("L_A_slow")
    e.label("L_attn_done")
    e.vq = ["wo"]
    return exits, exitsA, oolA

def slow_paths(exits, exitsA, oolA):
    emit_ool(oolA)
    e.c("---- rare path: the stand-in max was unsafe, redo with the true row max")
    for nm, tasks, ex in (("B", tasksB, exits), ("A", tasksA, exitsA)):
        e.label(f"L_{nm}_slow")
        max_pass(tasks, ex)
        ex2 = {n: (c, lab + "s", f"L_{nm}_sepi") for n, (c, lab, d) in ex.items()}
        ool = attn_tasks(tasks, ex2, True, waits=False)
        e.label(f"L_{nm}_sepi")
        o_epilogue(None)
        e("s_branch L_attn_done")
        emit_ool(ool)

def p3():
    e.c("---- publish O, P3")
    e.stamp(7)
    e(f"s_lshl_b32 s{sT0}, s{sBR}, 6"); e(f"s_lshl_b32 s{sT1}, s{sTB}, 1"); e(f"s_add_u32 s{sT0}, s{sT0}, s{sT1}"); e(f"s_lshl_b32 s{sT0}, s{sT0}, 5")
    e(f"s_and_b32 s{sT1}, s{sHEAD}, 31"); e(f"s_add_u32 s{sT0}, s{sT0}, s{sT1}"); e(f"s_lshl_b32 s{sT0}, s{sT0}, 10"); e(f"s_add_u32 s{sT0}, s{sT0}, {WS_O}")
    e.vm(f"buffer_store_dwordx4 {vr(vP,4)}, v{vL16}, {srd(SWS)}, s{sT0} offen sc1", "ost")
    e(f"s_add_u32 s{sT0}, s{sT0}, 0x8000")
    e.vm(f"buffer_store_dwordx4 {vr(vP+4,4)}, v{vL16}, {srd(SWS)}, s{sT0} offen sc1", "ost")
    e(f"v_bfe_u32 v{vT2}, v{vL}, 2, 2"); e(f"v_lshlrev_b32 v{vWR}, 6, v{vT2}")
    e(f"v_and_b32 v{vT2}, 1, v{vL}"); e(f"v_lshl_add_u32 v{vWR}, v{vT2}, 5, v{vWR}")
    e(f"v_bfe_u32 v{vT2}, v{vL}, 4, 1"); e(f"v_lshl_add_u32 v{vWR}, v{vT2}, 4, v{vWR}")
    e(f"v_bfe_u32 v{vT2}, v{vL}, 1, 1"); e(f"v_lshl_add_u32 v{vWR}, v{vT2}, 3, v{vWR}")
    e(f"v_lshrrev_b32 v{vT2}, 5, v{vL}"); e(f"v_lshl_add_u32 v{vWR}, v{vT2}, 8, v{vWR}")
    e(f"s_lshr_b32 s{sT1}, s{sW}, 1"); e(f"s_lshl_b32 s{sT1}, s{sT1}, 9"); e(f"v_add_u32 v{vWR}, s{sT1}, v{vWR}")
    e.wait_vm("wo"); e("s_barrier")
    for hd in range(32):
        e(f"ds_read_b64_tr_b16 {vr(vXF+4*hd,2)}, v{vWR} offset:{hd*2048}")
        e(f"ds_read_b64_tr_b16 {vr(vXF+4*hd+2,2)}, v{vWR} offset:{hd*2048+1024}")
    e(f"s_lshl_b32 s{sT0}, s{sBR}, 5"); e(f"s_add_u32 s{sT1}, s{sT0}, s{sTB}"); e(f"s_lshl_b32 s{sT1}, s{sT1}, 5")
    e(f"s_and_b32 s{sT2}, s{sHEAD}, 31"); e(f"s_add_u32 s{sT1}, s{sT1}, s{sT2}"); e(f"s_lshl_b32 s{sT1}, s{sT1}, 3"); e(f"s_add_u32 s{sT1}, s{sT1}, {WS_F2}")
    e(f"s_add_u32 s{sT2}, s{sT0}, s{sTB3}"); e(f"s_lshl_b32 s{sT2}, s{sT2}, 8"); e(f"s_add_u32 s{sT2}, s{sT2}, {WS_F2}")
    e.wait_vm("ost")
    flag_store(sT1)
    e.stamp(8)
    e(f"v_lshlrev_b32 v{vX1}, 3, v{vL}")
    e(f"s_lshl_b32 s{sT0}, s{sBR}, 5"); e(f"s_add_u32 s{sT0}, s{sT0}, s{sTB3}"); e(f"s_lshl_b32 s{sKV}, s{sT0}, 16")
    e(f"s_lshl_b32 s{sT1}, s{sW}, 11"); e(f"s_add_u32 s{sKV}, s{sKV}, s{sT1}"); e(f"s_add_u32 s{sKV}, s{sKV}, {WS_O}")
    e(f"s_lshl_b32 s{sM0}, s{sW}, 11")
    e(f"s_and_b32 s{sT1}, s{sW}, 1"); e(f"s_lshl_b32 s{sT1}, s{sT1}, 15"); e(f"v_add_u32 v{vXR}, s{sT1}, v{vL16}")
    e(f"v_and_b32 v{vX0}, 31, v{vL}"); e(f"v_lshlrev_b32 v{vX0}, 11, v{vX0}")
    e(f"v_lshrrev_b32 v{vT2}, 5, v{vL}"); e(f"v_lshl_add_u32 v{vX0}, v{vT2}, 5, v{vX0}")
    e(f"s_lshl_b32 s{sCX+2}, s{sTB3}, 1"); e(f"s_and_b32 s{sT1}, s{sW}, 1"); e(f"s_add_u32 s{sCX+2}, s{sCX+2}, s{sT1}"); e(f"s_lshl_b32 s{sCX+2}, s{sCX+2}, 16")
    e(f"s_lshl_b32 s{sT1}, s{sBR}, 10"); e(f"s_add_u32 s{sCX+2}, s{sCX+2}, s{sT1}")
    e(f"s_lshl_b32 s{sT1}, s{sCB}, 7"); e(f"s_add_u32 s{sCX+2}, s{sCX+2}, s{sT1}")
    e(f"s_lshr_b32 s{sT1}, s{sW}, 1"); e(f"s_lshl_b32 s{sT1}, s{sT1}, 6"); e(f"s_add_u32 s{sCX+2}, s{sCX+2}, s{sT1}")
    e("s_waitcnt lgkmcnt(0)"); e("s_barrier")
    e(f"s_mov_b32 s{sEX}, -1"); e(f"s_mov_b32 s{sEX+1}, 0")
    poll(vX1, f"s{sT2}", SWS, "o", mask=f"s[{sEX}:{sEX+1}]")
    e.stamp(9)
    for G in range(4):
        for tt in range(2):
            e(f"s_add_u32 s{sT0}, s{sKV}, {tt*32768 + G*8192}")
            e(f"s_add_u32 m0, s{sM0}, {tt*32768 + G*8192}"); e("s_nop 0")
            e.vm(f"buffer_load_dwordx4 v{vL16}, {srd(SWS)}, s{sT0} offen sc1 lds", f"o{G}")
            e.vm(f"buffer_load_dwordx4 v{vL16}, {srd(SWS)}, s{sT0} offen offset:1024 sc1 lds", f"o{G}")
    for G in range(4):
        e.wait_vm(f"o{G}"); e("s_barrier")
        b = 16 + 32*(G % 2)
        for i in range(8): e(f"ds_read_b128 {vr(b+4*i,4)}, v{vXR} offset:{(8*G+i)*1024}")
        for i in range(8):
            e(f"s_waitcnt lgkmcnt({7-i})")
            mfma(96, vXF+4*(8*G+i), b+4*i, "0" if (G == 0 and i == 0) else 96)
    e("s_nop 7"); e("s_nop 3")
    cvt8(112, 96, 8)
    e(f"buffer_store_dwordx4 {vr(112,4)}, v{vX0}, {srd(SOUT)}, s{sCX+2} offen")
    e(f"buffer_store_dwordx4 {vr(116,4)}, v{vX0}, {srd(SOUT)}, s{sCX+2} offen offset:16")
    if O.stamps:
        e.stamp(10); e("s_waitcnt vmcnt(0)"); e.stamp(11); e("s_memrealtime s[98:99]"); e("s_waitcnt lgkmcnt(0)")
        e(f"s_lshl_b32 s{sT0}, s2, 2"); e(f"s_add_u32 s{sT0}, s{sT0}, s{sW}"); e(f"s_lshl_b32 s{sT0}, s{sT0}, 6"); e(f"s_add_u32 s{sT0}, s{sT0}, {WS_ST}")
        e(f"v_mov_b32 v{vT0}, 0"); e("s_mov_b64 exec, 1")
        for i in range(1, 12):
            e(f"s_sub_u32 s{sT1}, s{64+2*i}, s64"); e(f"v_mov_b32 v{vT1}, s{sT1}")
            e(f"buffer_store_dword v{vT1}, v{vT0}, {srd(SWS)}, s{sT0} offen offset:{4*i}")
        e(f"v_mov_b32 v{vT1}, s96"); e(f"buffer_store_dword v{vT1}, v{vT0}, {srd(SWS)}, s{sT0} offen offset:56")
        e(f"v_mov_b32 v{vT1}, s98"); e(f"buffer_store_dword v{vT1}, v{vT0}, {srd(SWS)}, s{sT0} offen offset:60")
    e.label("L_end")
    e("s_endpgm")

prologue(); p1(); post_p1()
ex = attention(); p3(); slow_paths(*ex)
e("s_endpgm")

hdr = open("cdna_kernels/" + NAME + ".s.ref").read().split("; Override launch geometry")[0]
out = hdr + f"; @launch grid=(512,1,1) block=(256,1,1) lds={LDS_BYTES}\n"
out += f""".amdgcn_target "amdgcn-amd-amdhsa--gfx950"
.text
.globl {NAME}_kernel
.p2align 8
.type {NAME}_kernel,@function
{NAME}_kernel:
""" + "\n".join(e.L) + f"""
.section .rodata,"a"
.p2align 6
.amdhsa_kernel {NAME}_kernel
  .amdhsa_next_free_vgpr 256
  .amdhsa_next_free_sgpr {102 if O.stamps else 64}
  .amdhsa_accum_offset 256
  .amdhsa_group_segment_fixed_size 0
  .amdhsa_kernarg_size 72
  .amdhsa_user_sgpr_count 2
  .amdhsa_user_sgpr_kernarg_segment_ptr 1
  .amdhsa_system_sgpr_workgroup_id_x 1
.end_amdhsa_kernel
"""
open(sys.argv[1], "w").write(out)
```

```python
import sys, math
NAME = "concat_heads__sliding_local_dilated__sliding_block__prompt"

class Opt:
    stamps = False
    depth = 3
    rot = True
    prio = True
    kstore_early = True
    force_slow = False
    nt = False
    pollmax = 400000
    only = 0
    spin = 0
O = Opt()
for a in sys.argv[2:]:
    k, v = a.split("=")
    setattr(O, k, type(getattr(O, k))(int(v)))

WS_KV = 0
WS_O = 8 << 20
WS_F1 = 12 << 20
WS_F2 = WS_F1 + 16384
WS_ST = 13 << 20
WS_BYTES = 14 << 20
LDS_Q = 65536
LDS_BYTES = 73728

class E:
    def __init__(s):
        s.L = []; s.vq = []; s.nst = 0; s.lab = 0
    def __call__(s, t): s.L.append("    " + t)
    def label(s, n): s.L.append(n + ":")
    def c(s, t): s.L.append("    ; " + t)
    def vm(s, t, tag): s(t); s.vq.append(tag)
    def wait_vm(s, tag):
        if tag not in s.vq: return
        idx = max(i for i, x in enumerate(s.vq) if x == tag)
        n = len(s.vq) - 1 - idx
        assert n <= 63
        s(f"s_waitcnt vmcnt({n})"); s.vq = s.vq[idx + 1:]
    def wait_all(s): s("s_waitcnt vmcnt(0)"); s.vq = []
    def stamp(s, i):
        if O.stamps: s(f"s_memtime s[{64+2*i}:{65+2*i}]")
    def newlab(s, p): s.lab += 1; return f"{p}_{s.lab}"
e = E()
def vr(a, n): return f"v[{a}:{a+n-1}]"

SX, SW, SWO, SOUT, SWS, SDBG = 8, 12, 16, 20, 24, 28
def srd(a): return f"s[{a}:{a+3}]"
sBR, sTB, sG, sW, sM0, sT0, sT1, sT2 = 3, 4, 5, 6, 7, 50, 51, 52
sCX = 32
sCW = 40
sNON = 48
sJ = 53; sHEAD = 54; sCNT = 55; sEX = 56
sKV = 58; sTB3 = 59; sCB = 60; sXCD = 61; sSLOW = 62; sT3 = 63
vL, vX0, vX1, vW0, vW1, vWR = 1, 2, 3, 4, 5, 6
vXR = 8
vL16, vVST, vT0, vT1 = 7, 12, 13, 14
vT2 = 15
vQ, vP, vML, vMF, vS, vO, vK, vV = 16, 24, 40, 56, 72, 104, 136, 176
vXF = 128
accA, accB = 72, 88
WF = [104, 108, 112, 116, 120, 124, 16, 20]
vCV = 24
NEG = "0xff800000"
LD = " nt" if O.nt else ""

def mfma(d, a, b, c): e(f"v_mfma_f32_32x32x16_bf16 {vr(d,16)}, {vr(a,4)}, {vr(b,4)}, {c if isinstance(c,str) else vr(c,16)}")

def prologue():
    e("s_cmp_ge_u32 s2, 512"); e("s_cbranch_scc1 L_end")
    if O.only == 1: e("s_cmp_ge_u32 s2, 256"); e("s_cbranch_scc1 L_end")
    if O.stamps: e("s_memtime s[64:65]"); e("s_memrealtime s[96:97]")
    if O.spin: e("s_memrealtime s[64:65]")
    e("s_load_dwordx16 s[32:47], s[0:1], 0"); e("s_load_dwordx2 s[24:25], s[0:1], 64")
    e(f"v_lshrrev_b32 v{vT0}, 6, v0"); e(f"v_and_b32 v{vL}, 63, v0")
    e(f"v_readfirstlane_b32 s{sW}, v{vT0}")
    e(f"s_and_b32 s{sXCD}, s2, 7"); e(f"s_bfe_u32 s{sJ}, s2, 0x50003")
    e(f"s_lshr_b32 s{sT0}, s{sXCD}, 1"); e(f"s_lshl_b32 s{sT0}, s{sT0}, 3"); e(f"s_lshr_b32 s{sT1}, s{sJ}, 2")
    e(f"s_add_u32 s{sTB}, s{sT0}, s{sT1}")
    e(f"s_and_b32 s{sT0}, s{sXCD}, 1"); e(f"s_lshl_b32 s{sT0}, s{sT0}, 2"); e(f"s_and_b32 s{sT2}, s{sJ}, 3")
    e(f"s_add_u32 s{sG}, s{sT0}, s{sT2}")
    e(f"s_lshl_b32 s{sT2}, s{sT2}, 1"); e(f"s_add_u32 s{sT3}, s{sT1}, s{sT2}")
    if not O.rot: e(f"s_mov_b32 s{sT3}, 0")
    e(f"s_lshl_b32 s{sM0}, s{sW}, 10")
    e(f"v_lshrrev_b32 v{vT0}, 4, v{vL}")
    e(f"s_and_b32 s{sT0}, s{sW}, 1"); e(f"s_lshl_b32 s{sT0}, s{sT0}, 2")
    e(f"v_add_u32 v{vT0}, s{sT0}, v{vT0}")
    e(f"v_and_b32 v{vT1}, 7, v{vL}"); e(f"v_xor_b32 v{vT0}, v{vT0}, v{vT1}"); e(f"v_lshlrev_b32 v{vT0}, 4, v{vT0}")
    e(f"v_lshrrev_b32 v{vT1}, 3, v{vL}"); e(f"v_lshl_add_u32 v{vX0}, v{vT1}, 10, v{vT0}")
    e(f"s_lshl_b32 s{sT0}, s{sW}, 13"); e(f"v_add_u32 v{vX0}, s{sT0}, v{vX0}"); e(f"v_add_u32 v{vX1}, 0x8000, v{vX0}")
    e(f"v_bfe_u32 v{vT0}, v{vL}, 2, 3")
    e(f"s_lshl_b32 s{sT0}, s{sW}, 3"); e(f"v_add_u32 v{vT0}, s{sT0}, v{vT0}")
    e(f"v_lshrrev_b32 v{vT1}, 5, v{vL}"); e(f"v_lshlrev_b32 v{vT1}, 6, v{vT1}")
    e(f"v_and_b32 v{vT2}, 3, v{vL}"); e(f"v_lshl_add_u32 v{vT1}, v{vT2}, 4, v{vT1}")
    e(f"v_mul_u32_u24 v{vW0}, 3072, v{vT0}"); e(f"v_add_u32 v{vW0}, v{vW0}, v{vT1}"); e(f"v_add_u32 v{vW1}, {32*3072}, v{vW0}")
    e(f"s_cmp_lt_u32 s2, 256"); e(f"s_cselect_b32 s{sBR}, 1, 0")
    e("s_waitcnt lgkmcnt(0)")
    e(f"s_cselect_b64 s[{SX}:{SX+1}], s[38:39], s[32:33]")
    e(f"s_cselect_b64 s[{SW}:{SW+1}], s[40:41], s[34:35]")
    e(f"s_cselect_b64 s[{SWO}:{SWO+1}], s[42:43], s[36:37]")
    e(f"s_mov_b64 s[{SOUT}:{SOUT+1}], s[44:45]"); e(f"s_mov_b64 s[{SDBG}:{SDBG+1}], s[46:47]")
    e(f"s_mov_b32 s{SX+2}, {2048*1024}"); e(f"s_mov_b32 s{SX+3}, 0x20000")
    e(f"s_mov_b32 s{SW+2}, {512*3072}"); e(f"s_mov_b32 s{SW+3}, 0x20000")
    e(f"s_lshl_b32 s{sT0}, s{sTB}, 16"); e(f"s_lshl_b32 s{sT1}, s{sG}, 7"); e(f"s_add_u32 s{sT1}, s{sT1}, 1024")
    def chunk(t):
        e(f"s_add_u32 s{sT2}, s{sT3}, {t}"); e(f"s_and_b32 s{sT2}, s{sT2}, 7")
        e(f"s_lshl_b32 s{sCX+t}, s{sT2}, 7"); e(f"s_add_u32 s{sCX+t}, s{sCX+t}, s{sT0}")
        e(f"s_mul_i32 s{sCW+t}, s{sT2}, {64*3072}"); e(f"s_add_u32 s{sCW+t}, s{sCW+t}, s{sT1}")
    if O.prio:
        e(f"s_cmp_eq_u32 s{sBR}, 0"); e("s_cbranch_scc1 L_noprio"); e("s_setprio 2"); e.label("L_noprio")
    for t in range(O.depth):
        chunk(t); dma_stage(t)
    for t in range(O.depth, 8): chunk(t)
    e(f"s_mov_b32 s{SWO+2}, {512*1024}"); e(f"s_mov_b32 s{SWO+3}, 0x20000")
    e(f"s_mov_b32 s{SOUT+2}, {2048*2048}"); e(f"s_mov_b32 s{SOUT+3}, 0x20000")
    e(f"s_mov_b32 s{SWS+2}, {WS_BYTES}"); e(f"s_mov_b32 s{SWS+3}, 0x20000")
    e(f"s_mov_b32 s{SDBG+2}, 256"); e(f"s_mov_b32 s{SDBG+3}, 0x20000")
    e(f"s_or_b32 s{sT0}, s2, s{sW}"); e(f"s_cmp_lg_u32 s{sT0}, 0"); e("s_cbranch_scc1 L_nononce")
    e(f"s_memrealtime s[{sNON}:{sNON+1}]"); e("s_waitcnt lgkmcnt(0)")
    e(f"s_or_b32 s{sNON+1}, s{sNON+1}, 0x80000000")
    e(f"v_mov_b32 v{vCV}, s{sNON}"); e(f"v_mov_b32 v{vCV+1}, s{sNON+1}"); e(f"v_mov_b32 v{vT0}, 0")
    e("s_mov_b64 exec, 1")
    e(f"buffer_store_dwordx2 {vr(vCV,2)}, v{vT0}, {srd(SDBG)}, 0 offen sc1")
    e("s_mov_b64 exec, -1")
    e("s_waitcnt vmcnt(0)")
    e.label("L_nononce")
    e(f"v_and_b32 v{vT0}, 31, v{vL}"); e(f"v_lshrrev_b32 v{vT1}, 5, v{vL}")
    e(f"v_bfe_u32 v{vT2}, v{vL}, 1, 3"); e(f"v_xor_b32 v{vT2}, v{vT2}, v{vT1}"); e(f"v_lshlrev_b32 v{vT2}, 4, v{vT2}")
    e(f"v_lshl_add_u32 v{vXR}, v{vT0}, 7, v{vT2}")
    e(f"s_and_b32 s{sT0}, s{sW}, 1"); e(f"s_lshl_b32 s{sT0}, s{sT0}, 12"); e(f"v_add_u32 v{vXR}, s{sT0}, v{vXR}")
    for s_ in range(1, 4): e(f"v_xor_b32 v{vXR+s_}, {s_*32}, v{vXR}")
    e(f"v_bfe_u32 v{vT2}, v{vL}, 2, 2"); e(f"v_lshlrev_b32 v{vWR}, 6, v{vT2}")
    e(f"v_bfe_u32 v{vT2}, v{vL}, 4, 1"); e(f"v_lshl_add_u32 v{vWR}, v{vT2}, 5, v{vWR}")
    e(f"v_and_b32 v{vT2}, 3, v{vL}"); e(f"v_lshl_add_u32 v{vWR}, v{vT2}, 3, v{vWR}")
    e(f"v_lshl_add_u32 v{vWR}, v{vT1}, 10, v{vWR}")
    e(f"s_lshr_b32 s{sT0}, s{sW}, 1"); e(f"s_lshl_b32 s{sT0}, s{sT0}, 9"); e(f"v_add_u32 v{vWR}, s{sT0}, v{vWR}")
    e(f"v_lshlrev_b32 v{vL16}, 4, v{vL}")
    e(f"v_bfe_u32 v{vT2}, v{vL}, 4, 1"); e(f"v_lshlrev_b32 v{vVST}, 17, v{vT2}")
    e(f"v_lshl_add_u32 v{vVST}, v{vT1}, 8, v{vVST}")
    e(f"v_and_b32 v{vT2}, 15, v{vL}"); e(f"v_lshl_add_u32 v{vVST}, v{vT2}, 4, v{vVST}")
    e(f"s_lshl_b32 s{sT0}, s{sBR}, 3"); e(f"s_add_u32 s{sT0}, s{sT0}, s{sG}"); e(f"s_lshl_b32 s{sT0}, s{sT0}, 2")
    e(f"s_add_u32 s{sHEAD}, s{sT0}, s{sW}")
    e(f"s_and_b32 s{sT1}, s{sW}, 2"); e(f"s_add_u32 s{sT0}, s{sT0}, s{sT1}"); e(f"s_lshl_b32 s{sT0}, s{sT0}, 6")
    e(f"s_lshl_b32 s{sT1}, s{sTB}, 1"); e(f"s_add_u32 s{sT0}, s{sT0}, s{sT1}")
    e(f"s_and_b32 s{sT1}, s{sW}, 1"); e(f"s_add_u32 s{sT0}, s{sT0}, s{sT1}"); e(f"s_lshl_b32 s{sKV}, s{sT0}, 11")
    e(f"v_lshlrev_b32 v{vT1}, 2, v{vT1}"); e(f"v_sub_u32 v{vT0}, v{vT0}, v{vT1}")
    e(f"s_cmp_eq_u32 s{sBR}, 0"); e("s_cbranch_scc1 L_maskA")
    for r in range(16):
        c = 8*(r >> 2) + (r & 3)
        e(f"v_subrev_u32 v{vT1}, {c}, v{vT0}"); e(f"v_and_b32 v{vML+r}, {NEG}, v{vT1}"); e(f"v_xor_b32 v{vMF+r}, {NEG}, v{vML+r}")
    e("s_branch L_maskdone")
    e.label("L_maskA")
    e(f"s_mov_b32 s{sT0}, 0xf149f2ca")
    for r in range(16):
        c = 8*(r >> 2) + (r & 3)
        e(f"v_subrev_u32 v{vT1}, {c}, v{vT0}"); e(f"v_and_b32 v{vT1}, -15, v{vT1}"); e(f"v_cvt_f32_u32 v{vT1}, v{vT1}"); e(f"v_mul_f32 v{vML+r}, s{sT0}, v{vT1}")
        if r >= 8:
            e(f"v_add_u32 v{vT1}, {32-c}, v{vT0}"); e(f"v_and_b32 v{vT1}, -15, v{vT1}"); e(f"v_cvt_f32_u32 v{vT1}, v{vT1}"); e(f"v_mul_f32 v{vMF+r}, s{sT0}, v{vT1}")
        else:
            e(f"v_mov_b32 v{vMF+r}, s{sT0}")
    e.label("L_maskdone")

def dma(v, s_, soff, ldsdst, tag):
    e(f"s_add_u32 m0, s{sM0}, {ldsdst}"); e("s_nop 0")
    e.vm(f"buffer_load_dwordx4 v{v}, {srd(s_)}, s{soff} offen{LD} lds", tag)

def dma_stage(t):
    slot = (t % 4) * 16384
    tag = f"st{t}"
    if t < 8:
        dma(vX0, SX, sCX+t, slot, tag); dma(vW0, SW, sCW+t, slot+8192, tag)
        dma(vX1, SX, sCX+t, slot+4096, tag); dma(vW1, SW, sCW+t, slot+8192+4096, tag)
    else:
        if t == 8:
            e(f"s_add_u32 s{SW}, s{SW}, 1024"); e(f"s_addc_u32 s{SW+1}, s{SW+1}, 0"); e(f"s_sub_u32 s{SW+2}, s{SW+2}, 1024")
        if t == 12:
            e(f"s_sub_u32 s{SW}, s{SW}, 1024"); e(f"s_subb_u32 s{SW+1}, s{SW+1}, 0"); e(f"s_add_u32 s{SW+2}, s{SW+2}, 1024")
            for i in range(8): e(f"s_sub_u32 s{sCW+i}, s{sCW+i}, 1024")
        c0 = 2 * (t % 4)
        for b in range(2):
            dma(vW0, SW, sCW+c0+b, slot+b*8192, tag); dma(vW1, SW, sCW+c0+b, slot+b*8192+4096, tag)

def wfrag_read(dst, off):
    e(f"ds_read_b64_tr_b16 {vr(dst,2)}, v{vWR} offset:{off}")
    e(f"ds_read_b64_tr_b16 {vr(dst+2,2)}, v{vWR} offset:{off+256}")

def cvt8(dst, src, n=4):
    for i in range(n): e(f"v_cvt_pk_bf16_f32 v{dst+i}, v{src+2*i}, v{src+2*i+1}")

def store_K():
    e.vm(f"buffer_store_dwordx4 {vr(vCV,4)}, v{vL16}, {srd(SWS)}, s{sKV} offen sc1", "kst")
    e(f"s_add_u32 s{sT0}, s{sKV}, 0x20000")
    e.vm(f"buffer_store_dwordx4 {vr(vCV+4,4)}, v{vL16}, {srd(SWS)}, s{sT0} offen sc1", "kst")

def p1():
    e.stamp(12)
    for t in range(16):
        slot = (t % 4) * 16384
        e.c(f"---- P1 stage {t}")
        e.wait_vm(f"st{t}"); e("s_barrier")
        if t in (0, 8, 12): e.stamp({0: 1, 8: 2, 12: 3}[t])
        if t < 8:
            for s_ in range(4):
                e(f"ds_read_b128 {vr(vXF+16*t+4*s_,4)}, v{vXR+s_} offset:{slot}")
                wfrag_read(WF[s_], slot + 8192 + s_*2048)
            nks = 4; per = 3
        else:
            for s_ in range(7): wfrag_read(WF[s_], slot + s_*2048)
            nks = 8; per = 2
        if t + O.depth < 16: dma_stage(t + O.depth)
        if t == 8:
            cvt8(vCV, accA, 8)
            if O.kstore_early: store_K()
            e(f"v_mov_b32 v{vT0}, 0")
        if t == 12:
            cvt8(vCV+8, accB, 8)
            if not O.kstore_early: store_K()
            e.vm(f"buffer_store_dwordx4 {vr(vCV+8,4)}, v{vVST}, {srd(SWS)}, s{sKV} offen offset:1024 sc1", "vst")
            e.vm(f"buffer_store_dwordx4 {vr(vCV+12,4)}, v{vVST}, {srd(SWS)}, s{sKV} offen offset:1536 sc1", "vst")
        acc = accB if 8 <= t < 12 else accA
        issued = nks if t < 8 else 7
        for s_ in range(nks):
            if t >= 8 and s_ == 1:
                wfrag_read(WF[7], slot + 7*2048); issued = 8
            e(f"s_waitcnt lgkmcnt({(issued-1-s_)*per})")
            ks = 4*t + s_ if t < 8 else 8*(t % 4) + s_
            first = (ks == 0)
            c = "0" if first else acc
            if 8 <= t < 12: mfma(acc, vXF+4*ks, WF[s_], c)
            else: mfma(acc, WF[s_], vXF+4*ks, c)

def poll(voff, soff, base, name, mask=None):
    L = e.newlab("L_poll"); D = e.newlab("L_polled")
    e(f"s_mov_b32 s{sCNT}, 0")
    if mask: e(f"s_mov_b64 exec, {mask}")
    e.label(L)
    e(f"buffer_load_dwordx2 {vr(vT1,2)}, v{voff}, {srd(base)}, {soff} offen sc1")
    e(f"s_add_u32 s{sCNT}, s{sCNT}, 1")
    e.wait_all()
    e(f"v_cmp_ne_u64 vcc, s[{sNON}:{sNON+1}], {vr(vT1,2)}")
    e(f"s_cmp_gt_u32 s{sCNT}, {O.pollmax}"); e(f"s_cbranch_scc1 {D}")
    e(f"s_cbranch_vccnz {L}")
    e.label(D)
    if mask: e("s_mov_b64 exec, -1")

def flag_store(soff):
    e(f"v_mov_b32 v{vT1}, s{sNON}"); e(f"v_mov_b32 v{vT2}, s{sNON+1}"); e(f"v_mov_b32 v{vT0}, 0")
    e("s_mov_b64 exec, 1")
    e.vm(f"buffer_store_dwordx2 {vr(vT1,2)}, v{vT0}, {srd(SWS)}, s{soff} offen sc1", "flag")
    e("s_mov_b64 exec, -1")

def post_p1():
    e.c("---- Q epilogue / exchange, nonce, KV flag")
    e.stamp(4)
    L = e.newlab("L_nonce"); D = e.newlab("L_nonced")
    e(f"v_mov_b32 v{vT0}, 0")
    e.vm(f"buffer_load_dwordx2 {vr(vT1,2)}, v{vT0}, {srd(SDBG)}, 0 offen sc1", "non")
    e(f"s_mov_b32 s{sT0}, 0x3eb8aa3b")
    e("s_nop 7")
    e("s_nop 3")
    for i in range(16): e(f"v_mul_f32 v{accA+i}, s{sT0}, v{accA+i}")
    cvt8(vS+16, accA, 8)
    e(f"s_and_b32 s{sT0}, s{sW}, 2"); e(f"s_lshl_b32 s{sT0}, s{sT0}, 1"); e(f"s_and_b32 s{sT1}, s{sW}, 1"); e(f"s_add_u32 s{sT0}, s{sT0}, s{sT1}")
    e(f"s_lshl_b32 s{sT0}, s{sT0}, 10"); e(f"s_add_u32 s{sT0}, s{sT0}, {LDS_Q}")
    e(f"v_add_u32 v{vX0}, s{sT0}, v{vL16}")
    e(f"ds_write_b128 v{vX0}, {vr(vS+16,4)}"); e(f"ds_write_b128 v{vX0}, {vr(vS+20,4)} offset:2048")
    e(f"s_lshl_b32 s{sT0}, s{sW}, 11"); e(f"s_add_u32 s{sT0}, s{sT0}, {LDS_Q}")
    e(f"v_add_u32 v{vX0}, s{sT0}, v{vL16}")
    e(f"s_mov_b32 s{sCNT}, 0")
    e.wait_all()
    e.label(L)
    e(f"v_readfirstlane_b32 s{sNON}, v{vT1}"); e(f"v_readfirstlane_b32 s{sNON+1}, v{vT2}")
    e(f"s_add_u32 s{sCNT}, s{sCNT}, 1")
    e(f"s_cmp_gt_u32 s{sCNT}, {O.pollmax}"); e(f"s_cbranch_scc1 {D}")
    e(f"s_cmp_lg_u32 s{sNON+1}, 0"); e(f"s_cbranch_scc1 {D}")
    e(f"buffer_load_dwordx2 {vr(vT1,2)}, v{vT0}, {srd(SDBG)}, 0 offen sc1"); e("s_waitcnt vmcnt(0)")
    e(f"s_branch {L}")
    e.label(D)
    e(f"s_lshr_b32 s{sT2}, s{sHEAD}, 1"); e(f"s_lshl_b32 s{sT2}, s{sT2}, 9"); e(f"s_add_u32 s{sT2}, s{sT2}, {WS_F1}")
    e(f"s_lshl_b32 s{sT1}, s{sTB}, 4"); e(f"s_add_u32 s{sT2}, s{sT2}, s{sT1}")
    e(f"s_and_b32 s{sT1}, s{sW}, 1"); e(f"s_lshl_b32 s{sT1}, s{sT1}, 3"); e(f"s_add_u32 s{sT1}, s{sT1}, s{sT2}")
    flag_store(sT1)
    e.stamp(5)
    e("s_waitcnt lgkmcnt(0)"); e("s_barrier")
    e(f"ds_read_b128 {vr(vQ,4)}, v{vX0}"); e(f"ds_read_b128 {vr(vQ+4,4)}, v{vX0} offset:1024")
    e(f"s_lshl_b32 s{sKV}, s{sHEAD}, 6"); e(f"s_lshl_b32 s{sT1}, s{sTB}, 1"); e(f"s_add_u32 s{sKV}, s{sKV}, s{sT1}"); e(f"s_lshl_b32 s{sKV}, s{sKV}, 11")
    e(f"v_and_b32 v{vVST}, 0x1ffff, v{vVST}")
    e(f"v_lshlrev_b32 v{vX1}, 3, v{vL}")
    e(f"s_lshl_b32 s{sTB3}, s{sXCD}, 2"); e(f"s_lshr_b32 s{sT1}, s{sJ}, 3"); e(f"s_add_u32 s{sTB3}, s{sTB3}, s{sT1}")
    e(f"s_and_b32 s{sCB}, s{sJ}, 7")
    e(f"v_bfe_u32 v{vT0}, v{vL}, 2, 3"); e(f"s_lshl_b32 s{sT0}, s{sW}, 3"); e(f"v_add_u32 v{vT0}, s{sT0}, v{vT0}")
    e(f"v_lshrrev_b32 v{vW1}, 5, v{vL}"); e(f"v_lshlrev_b32 v{vW1}, 6, v{vW1}")
    e(f"v_and_b32 v{vW0}, 3, v{vL}"); e(f"v_lshl_add_u32 v{vW1}, v{vW0}, 4, v{vW1}")
    e(f"v_lshl_add_u32 v{vW0}, v{vT0}, 10, v{vW1}")
    e(f"s_lshl_b32 s{sT0}, s{sCB}, 7"); e(f"v_add_u32 v{vW0}, s{sT0}, v{vW0}")

def wo_dma(i):
    e(f"s_mov_b32 s{sT0}, {i*32*1024}")
    dma(vW0, SWO, sT0, i*4096, "wo")

def load_kv(js, jown, vonly_hi=()):
    for j in js:
        d = (j - jown) * 2048
        if d >= 0: e(f"s_add_u32 s{sT0}, s{sKV}, {d}")
        else: e(f"s_sub_u32 s{sT0}, s{sKV}, {-d}")
        e.vm(f"buffer_load_dwordx4 {vr(vK+4*j,4)}, v{vL16}, {srd(SWS)}, s{sT0} offen sc1", f"k{j}")
        e(f"s_mov_b64 exec, s[{sEX}:{sEX+1}]")
        if j not in vonly_hi:
            e.vm(f"buffer_load_dwordx4 {vr(vV+8*j,4)}, v{vVST}, {srd(SWS)}, s{sT0} offen offset:1024 sc1", f"v{j}")
        e.vm(f"buffer_load_dwordx4 {vr(vV+8*j+4,4)}, v{vVST}, {srd(SWS)}, s{sT0} offen offset:1536 sc1", f"v{j}")
        e("s_mov_b64 exec, -1")

def o_epilogue(slowlab):
    e("s_nop 7"); e("s_nop 3")
    for q in range(2):
        o = vO + 16*q
        e(f"v_rcp_f32 v{o+9}, v{o+8}")
        for i in range(8): e(f"v_fma_f32 v{o+8}, v{o+i}, 0, v{o+8}")
        for i in range(8): e(f"v_mul_f32 v{o+i}, v{o+i}, v{o+9}")
        cvt8(vP+4*q, o)
    if slowlab:
        e(f"s_mov_b32 s{sT0}, 0x2b800000"); e(f"s_mov_b32 s{sT1}, 0x53800000")
        e(f"v_cmp_nle_f32 vcc, s{sT0}, v{vO+8}"); e(f"v_cmp_nge_f32 s[{sEX}:{sEX+1}], s{sT1}, v{vO+8}")
        e(f"s_or_b64 s[{sEX}:{sEX+1}], s[{sEX}:{sEX+1}], vcc")
        e(f"v_cmp_nle_f32 vcc, s{sT0}, v{vO+24}"); e(f"s_or_b64 s[{sEX}:{sEX+1}], s[{sEX}:{sEX+1}], vcc")
        e(f"v_cmp_nge_f32 vcc, s{sT1}, v{vO+24}"); e(f"s_or_b64 s[{sEX}:{sEX+1}], s[{sEX}:{sEX+1}], vcc")
        if O.force_slow: e(f"s_branch {slowlab}")
        else: e(f"s_cbranch_scc1 {slowlab}")

def attn_tasks(tasks, exits, slow, hooks=None, waits=True):
    hooks = hooks or {}
    started = [False, False]
    seenk = set(); seenv = set()
    def qk(n):
        j, q, m, half = tasks[n]
        if waits and j not in seenk: e.wait_vm(f"k{j}"); seenk.add(j)
        mfma(vS + 16*(n % 2), vK+4*j, vQ+4*q, m if m is not None else "0")
    def pv(n, kb):
        j, q, m, half = tasks[n]
        if waits and j not in seenv: e.wait_vm(f"v{j}"); seenv.add(j)
        mfma(vO+16*q, vV+8*j+4*kb, vP+4*kb, (vO+16*q) if started[q] else "0"); started[q] = True
    def ex(n, i):
        s_ = vS + 16*(n % 2) + i
        if slow: e(f"v_sub_f32 v{s_}, v{s_}, v{vX0 + tasks[n][1]}")
        e(f"v_exp_f32 v{s_}, v{s_}")
    qk(0); e("s_nop 7"); e("s_nop 3")
    if not slow: e.stamp(13)
    pend = None
    out_of_line = []
    for n in range(len(tasks)):
        j, q, m, half = tasks[n]
        s_ = vS + 16*(n % 2)
        if n + 1 < len(tasks): qk(n+1)
        if n in hooks: hooks[n]()
        if not half:
            for i in range(4): ex(n, i)
            if pend is not None: pv(*pend); pend = None
            for i in range(4, 8): ex(n, i)
            cvt8(vP, s_)
            for i in range(8, 10): ex(n, i)
            pv(n, 0)
            for i in range(10, 16): ex(n, i)
        else:
            for i in range(8, 12): ex(n, i)
            if pend is not None: pv(*pend); pend = None
            for i in range(12, 16): ex(n, i)
        cvt8(vP+4, s_+8)
        pend = (n, 1)
        if n in exits:
            cond, lab, dest = exits[n]
            cond(); e(f"s_cbranch_scc1 {lab}")
            out_of_line.append((lab, vO+16*q, vV+8*j+4, started[q], dest))
    e("s_nop 1"); pv(*pend)
    return out_of_line

def max_pass(tasks, exits):
    D = e.newlab("L_maxdone")
    e(f"v_mov_b32 v{vX0}, {NEG}"); e(f"v_mov_b32 v{vX0+1}, {NEG}")
    for n, (j, q, m, half) in enumerate(tasks):
        mfma(vS, vK+4*j, vQ+4*q, m if m is not None else "0")
        e("s_nop 7"); e("s_nop 3")
        for i in range(8 if half else 0, 16, 2): e(f"v_max3_f32 v{vX0+q}, v{vX0+q}, v{vS+i}, v{vS+i+1}")
        if n in exits: exits[n][0](); e(f"s_cbranch_scc1 {D}")
    e.label(D)
    for q in range(2):
        e(f"v_mov_b32 v{vT0}, v{vX0+q}"); e("s_nop 1")
        e(f"v_permlane32_swap_b32 v{vT0}, v{vX0+q}"); e("s_nop 1")
        e(f"v_max_f32 v{vX0+q}, v{vX0+q}, v{vT0}")

def emit_ool(ool):
    for lab, o, v, st, dest in ool:
        e.label(lab); e("s_nop 1"); mfma(o, v, vP+4, o if st else "0"); e(f"s_branch {dest}")

def prefill_v(js):
    e(f"s_mov_b32 s{sT0}, 0x3f803f80")
    for j in js:
        for i in range(8): e(f"v_mov_b32 v{vV+8*j+i}, s{sT0}")
    e(f"s_mov_b32 s{sEX}, 0xffff"); e(f"s_mov_b32 s{sEX+1}, 0xffff")

tasksB = [(9,1,vML,False),(8,1,None,False),(8,0,vML,False)]
for j in range(7, 1, -1): tasksB += [(j,1,None,False),(j,0,None,False)]
tasksB += [(1,1,vMF,False),(1,0,None,False),(0,0,vMF,False)]
tasksA = [(2,1,vML,False),(1,1,vMF,True),(1,0,vML,False),(0,0,vMF,True)]
def cmp_tb(v): return lambda: e(f"s_cmp_eq_u32 s{sTB}, {v}")

def attention():
    e(f"s_cmp_eq_u32 s{sBR}, 0"); e("s_cbranch_scc1 L_attnA")
    saved = list(e.vq)
    e.c("---- attention B")
    prefill_v(range(10))
    e(f"s_lshl_b32 s{sT0}, s{sTB}, 1"); e(f"s_sub_i32 s{sT0}, 8, s{sT0}"); e(f"s_max_i32 s{sT0}, s{sT0}, 0")
    e(f"s_lshl_b32 s{sT1}, -1, s{sT0}"); e(f"s_and_b32 s{sCX}, s{sT1}, 0x3ff"); e(f"s_mov_b32 s{sCX+1}, 0")
    e(f"s_sub_u32 s{sT2}, s{sT2}, 64")
    poll(vX1, f"s{sT2}", SWS, "kv", mask=f"s[{sCX}:{sCX+1}]")
    e.stamp(6)
    load_kv([9, 8], 8)
    vq_marks = []
    for jj in (6, 4, 2, 0):
        e(f"s_cmp_eq_u32 s{sTB}, {(6-jj)//2}"); e("s_cbranch_scc1 L_B_clip")
        load_kv([jj+1, jj], 8)
    e("s_branch L_B_go")
    e.label("L_B_clip"); e("s_waitcnt vmcnt(0)")
    e.label("L_B_go")
    e("s_waitcnt lgkmcnt(0)")
    exits = {}
    for n, (j, q, m, h) in enumerate(tasksB):
        if q == 0 and j in (8, 6, 4, 2): exits[n] = (cmp_tb((8-j)//2), f"L_Bx{j}", "L_B_epi_clip")
    def wo_all():
        for i in range(16): wo_dma(i)
    hooks = {}
    for i in range(8): hooks[9+i] = (lambda i=i: (wo_dma(2*i), wo_dma(2*i+1)))
    ool = attn_tasks(tasksB, exits, False, hooks)
    e.label("L_B_epi")
    o_epilogue("L_B_slow")
    e("s_branch L_attn_done")
    emit_ool(ool)
    e.label("L_B_epi_clip")
    q2 = list(e.vq); wo_all(); e.vq = q2
    e("s_branch L_B_epi")
    endq = list(e.vq)
    e.c("---- attention A")
    e.label("L_attnA")
    e.vq = list(saved)
    for i in range(16): wo_dma(i)
    prefill_v(range(3))
    e(f"s_cmp_eq_u32 s{sTB}, 0"); e(f"s_cselect_b32 s{sCX}, 6, 7"); e(f"s_mov_b32 s{sCX+1}, 0")
    e(f"s_sub_u32 s{sT2}, s{sT2}, 8")
    poll(vX1, f"s{sT2}", SWS, "kv", mask=f"s[{sCX}:{sCX+1}]")
    e.stamp(6)
    load_kv([2, 1], 1)
    e(f"s_cmp_eq_u32 s{sTB}, 0"); e("s_cbranch_scc1 L_A_clip")
    load_kv([0], 1, vonly_hi=(0,))
    e("s_branch L_A_go")
    e.label("L_A_clip"); e("s_waitcnt vmcnt(0)")
    e.label("L_A_go")
    e("s_waitcnt lgkmcnt(0)")
    exitsA = {2: (cmp_tb(0), "L_Ax", "L_A_epi")}
    oolA = attn_tasks(tasksA, exitsA, False)
    e.label("L_A_epi")
    o_epilogue("L_A_slow")
    e.label("L_attn_done")
    e.vq = ["wo"]
    return exits, exitsA, oolA

def slow_paths(exits, exitsA, oolA):
    emit_ool(oolA)
    e.c("---- rare path: the stand-in max was unsafe, redo with the true row max")
    for nm, tasks, ex in (("B", tasksB, exits), ("A", tasksA, exitsA)):
        e.label(f"L_{nm}_slow")
        max_pass(tasks, ex)
        ex2 = {n: (c, lab + "s", f"L_{nm}_sepi") for n, (c, lab, d) in ex.items()}
        ool = attn_tasks(tasks, ex2, True, waits=False)
        e.label(f"L_{nm}_sepi")
        o_epilogue(None)
        e("s_branch L_attn_done")
        emit_ool(ool)

def p3():
    e.c("---- publish O, P3")
    e.stamp(7)
    e(f"s_lshl_b32 s{sT0}, s{sBR}, 6"); e(f"s_lshl_b32 s{sT1}, s{sTB}, 1"); e(f"s_add_u32 s{sT0}, s{sT0}, s{sT1}"); e(f"s_lshl_b32 s{sT0}, s{sT0}, 5")
    e(f"s_and_b32 s{sT1}, s{sHEAD}, 31"); e(f"s_add_u32 s{sT0}, s{sT0}, s{sT1}"); e(f"s_lshl_b32 s{sT0}, s{sT0}, 10"); e(f"s_add_u32 s{sT0}, s{sT0}, {WS_O}")
    e.vm(f"buffer_store_dwordx4 {vr(vP,4)}, v{vL16}, {srd(SWS)}, s{sT0} offen sc1", "ost")
    e(f"s_add_u32 s{sT0}, s{sT0}, 0x8000")
    e.vm(f"buffer_store_dwordx4 {vr(vP+4,4)}, v{vL16}, {srd(SWS)}, s{sT0} offen sc1", "ost")
    e(f"v_bfe_u32 v{vT2}, v{vL}, 2, 2"); e(f"v_lshlrev_b32 v{vWR}, 6, v{vT2}")
    e(f"v_and_b32 v{vT2}, 1, v{vL}"); e(f"v_lshl_add_u32 v{vWR}, v{vT2}, 5, v{vWR}")
    e(f"v_bfe_u32 v{vT2}, v{vL}, 4, 1"); e(f"v_lshl_add_u32 v{vWR}, v{vT2}, 4, v{vWR}")
    e(f"v_bfe_u32 v{vT2}, v{vL}, 1, 1"); e(f"v_lshl_add_u32 v{vWR}, v{vT2}, 3, v{vWR}")
    e(f"v_lshrrev_b32 v{vT2}, 5, v{vL}"); e(f"v_lshl_add_u32 v{vWR}, v{vT2}, 8, v{vWR}")
    e(f"s_lshr_b32 s{sT1}, s{sW}, 1"); e(f"s_lshl_b32 s{sT1}, s{sT1}, 9"); e(f"v_add_u32 v{vWR}, s{sT1}, v{vWR}")
    e.wait_vm("wo"); e("s_barrier")
    for hd in range(32):
        e(f"ds_read_b64_tr_b16 {vr(vXF+4*hd,2)}, v{vWR} offset:{hd*2048}")
        e(f"ds_read_b64_tr_b16 {vr(vXF+4*hd+2,2)}, v{vWR} offset:{hd*2048+1024}")
    e(f"s_lshl_b32 s{sT0}, s{sBR}, 5"); e(f"s_add_u32 s{sT1}, s{sT0}, s{sTB}"); e(f"s_lshl_b32 s{sT1}, s{sT1}, 5")
    e(f"s_and_b32 s{sT2}, s{sHEAD}, 31"); e(f"s_add_u32 s{sT1}, s{sT1}, s{sT2}"); e(f"s_lshl_b32 s{sT1}, s{sT1}, 3"); e(f"s_add_u32 s{sT1}, s{sT1}, {WS_F2}")
    e(f"s_add_u32 s{sT2}, s{sT0}, s{sTB3}"); e(f"s_lshl_b32 s{sT2}, s{sT2}, 8"); e(f"s_add_u32 s{sT2}, s{sT2}, {WS_F2}")
    e.wait_vm("ost")
    flag_store(sT1)
    e.stamp(8)
    e(f"v_lshlrev_b32 v{vX1}, 3, v{vL}")
    e(f"s_lshl_b32 s{sT0}, s{sBR}, 5"); e(f"s_add_u32 s{sT0}, s{sT0}, s{sTB3}"); e(f"s_lshl_b32 s{sKV}, s{sT0}, 16")
    e(f"s_lshl_b32 s{sT1}, s{sW}, 11"); e(f"s_add_u32 s{sKV}, s{sKV}, s{sT1}"); e(f"s_add_u32 s{sKV}, s{sKV}, {WS_O}")
    e(f"s_lshl_b32 s{sM0}, s{sW}, 11")
    e(f"s_and_b32 s{sT1}, s{sW}, 1"); e(f"s_lshl_b32 s{sT1}, s{sT1}, 15"); e(f"v_add_u32 v{vXR}, s{sT1}, v{vL16}")
    e(f"v_and_b32 v{vX0}, 31, v{vL}"); e(f"v_lshlrev_b32 v{vX0}, 11, v{vX0}")
    e(f"v_lshrrev_b32 v{vT2}, 5, v{vL}"); e(f"v_lshl_add_u32 v{vX0}, v{vT2}, 5, v{vX0}")
    e(f"s_lshl_b32 s{sCX+2}, s{sTB3}, 1"); e(f"s_and_b32 s{sT1}, s{sW}, 1"); e(f"s_add_u32 s{sCX+2}, s{sCX+2}, s{sT1}"); e(f"s_lshl_b32 s{sCX+2}, s{sCX+2}, 16")
    e(f"s_lshl_b32 s{sT1}, s{sBR}, 10"); e(f"s_add_u32 s{sCX+2}, s{sCX+2}, s{sT1}")
    e(f"s_lshl_b32 s{sT1}, s{sCB}, 7"); e(f"s_add_u32 s{sCX+2}, s{sCX+2}, s{sT1}")
    e(f"s_lshr_b32 s{sT1}, s{sW}, 1"); e(f"s_lshl_b32 s{sT1}, s{sT1}, 6"); e(f"s_add_u32 s{sCX+2}, s{sCX+2}, s{sT1}")
    e("s_waitcnt lgkmcnt(0)"); e("s_barrier")
    e(f"s_mov_b32 s{sEX}, -1"); e(f"s_mov_b32 s{sEX+1}, 0")
    poll(vX1, f"s{sT2}", SWS, "o", mask=f"s[{sEX}:{sEX+1}]")
    e.stamp(9)
    for G in range(4):
        for tt in range(2):
            e(f"s_add_u32 s{sT0}, s{sKV}, {tt*32768 + G*8192}")
            e(f"s_add_u32 m0, s{sM0}, {tt*32768 + G*8192}"); e("s_nop 0")
            e.vm(f"buffer_load_dwordx4 v{vL16}, {srd(SWS)}, s{sT0} offen sc1 lds", f"o{G}")
            e.vm(f"buffer_load_dwordx4 v{vL16}, {srd(SWS)}, s{sT0} offen offset:1024 sc1 lds", f"o{G}")
    for G in range(4):
        e.wait_vm(f"o{G}"); e("s_barrier")
        b = 16 + 32*(G % 2)
        for i in range(8): e(f"ds_read_b128 {vr(b+4*i,4)}, v{vXR} offset:{(8*G+i)*1024}")
        for i in range(8):
            e(f"s_waitcnt lgkmcnt({7-i})")
            mfma(96, vXF+4*(8*G+i), b+4*i, "0" if (G == 0 and i == 0) else 96)
    e("s_nop 7"); e("s_nop 3")
    cvt8(112, 96, 8)
    e(f"buffer_store_dwordx4 {vr(112,4)}, v{vX0}, {srd(SOUT)}, s{sCX+2} offen")
    e(f"buffer_store_dwordx4 {vr(116,4)}, v{vX0}, {srd(SOUT)}, s{sCX+2} offen offset:16")
    if O.stamps:
        e.stamp(10); e("s_waitcnt vmcnt(0)"); e.stamp(11); e("s_memrealtime s[98:99]"); e("s_waitcnt lgkmcnt(0)")
        e(f"s_lshl_b32 s{sT0}, s2, 2"); e(f"s_add_u32 s{sT0}, s{sT0}, s{sW}"); e(f"s_lshl_b32 s{sT0}, s{sT0}, 6"); e(f"s_add_u32 s{sT0}, s{sT0}, {WS_ST}")
        e(f"v_mov_b32 v{vT0}, 0"); e("s_mov_b64 exec, 1")
        for i in range(1, 14):
            e(f"s_sub_u32 s{sT1}, s{64+2*i}, s64"); e(f"v_mov_b32 v{vT1}, s{sT1}")
            e(f"buffer_store_dword v{vT1}, v{vT0}, {srd(SWS)}, s{sT0} offen offset:{4*i}")
        e(f"v_mov_b32 v{vT1}, s96"); e(f"buffer_store_dword v{vT1}, v{vT0}, {srd(SWS)}, s{sT0} offen offset:56")
        e(f"v_mov_b32 v{vT1}, s98"); e(f"buffer_store_dword v{vT1}, v{vT0}, {srd(SWS)}, s{sT0} offen offset:60")
    if O.spin:
        e.label("L_spin"); e("s_memrealtime s[66:67]"); e("s_waitcnt lgkmcnt(0)"); e("s_sub_u32 s66, s66, s64")
        e(f"s_cmp_lt_u32 s66, {O.spin}"); e("s_cbranch_scc1 L_spin")
    e.label("L_end")
    e("s_endpgm")

prologue(); p1(); post_p1()
ex = attention(); p3(); slow_paths(*ex)
e("s_endpgm")

hdr = open("cdna_kernels/" + NAME + ".s.ref").read().split("; Override launch geometry")[0]
out = hdr + f"; @launch grid=(512,1,1) block=(256,1,1) lds={LDS_BYTES}\n"
out += f""".amdgcn_target "amdgcn-amd-amdhsa--gfx950"
.text
.globl {NAME}_kernel
.p2align 8
.type {NAME}_kernel,@function
{NAME}_kernel:
""" + "\n".join(e.L) + f"""
.section .rodata,"a"
.p2align 6
.amdhsa_kernel {NAME}_kernel
  .amdhsa_next_free_vgpr 256
  .amdhsa_next_free_sgpr {102 if O.stamps else 72}
  .amdhsa_accum_offset 256
  .amdhsa_group_segment_fixed_size 0
  .amdhsa_kernarg_size 72
  .amdhsa_user_sgpr_count 2
  .amdhsa_user_sgpr_kernarg_segment_ptr 1
  .amdhsa_system_sgpr_workgroup_id_x 1
.end_amdhsa_kernel
"""
open(sys.argv[1], "w").write(out)
```

```python
import sys
NAME = "concat_heads__sliding_local_dilated__sliding_block__prompt"

class Opt:
    stamps = 0
    force_slow = 0
    pollmax = 400000
    only = 0
    delayA = 7
    lag = 6
    kflag = 50
    kchk = 65
    imp = 87
    oflag = 2
    vpos = 2
    uni = 0
    xspan = 1
    torder = 0
    tseq = 0
    tn = 10
    tnt = 0
    rotA = 1
    yprio = 0
    prew = 52
    imp1 = 77
    fair = 1
    tpose = 1
    pdelay = 0
    smp_at = 7
    wo_at = 5
    tch_at = 4
    quiet = 1
    prio = 0
    outsc = 0
    stag = 0
    sleep = 0
O = Opt()
for a in sys.argv[2:]:
    k, v = a.split("="); assert hasattr(O, k), k
    setattr(O, k, int(v))

WS_O = 8 << 20
WS_F1 = 12 << 20
F1V = 262144
WS_F2 = WS_F1 + 524288
WS_ST = 13 << 20
WS_BYTES = 14 << 20
LDS_BYTES = 163840
L_WV = 65536; L_WK = 131072; L_KV = 65536

class E:
    def __init__(s): s.L = []; s.vq = []; s.lq = []; s.lab = 0; s.ool = []
    def __call__(s, t): s.L.append("    " + t)
    def label(s, n): s.L.append(n + ":")
    def c(s, t): s.L.append("    ; " + t)
    def vm(s, t, tag): s(t); s.vq.append(tag)
    def ds(s, t, tag): s(t); s.lq.append(tag)
    def _n(s, q, tag): return len(q) - 1 - max(i for i, x in enumerate(q) if x == tag)
    def wait_vm(s, tag):
        if tag not in s.vq: return
        n = s._n(s.vq, tag); assert n <= 63
        s(f"s_waitcnt vmcnt({n})"); s.vq = s.vq[len(s.vq)-n:]
    def wait_ds(s, tag):
        if tag not in s.lq: return
        n = s._n(s.lq, tag); assert n <= 15
        s(f"s_waitcnt lgkmcnt({n})"); s.lq = s.lq[len(s.lq)-n:]
    def wait_all(s): s("s_waitcnt vmcnt(0)"); s.vq = []
    def ds_all(s): s("s_waitcnt lgkmcnt(0)"); s.lq = []
    def stamp(s, i, mode=1):
        if O.stamps == mode: s(f"s_memtime s[{ST0+2*i}:{ST0+1+2*i}]")
    def newlab(s, p): s.lab += 1; return f"{p}_{s.lab}"
    def cond(s, cmp_, body):
        L = s.newlab("L_c"); s(cmp_); s(f"s_cbranch_scc1 {L}"); s.label(L + "r")
        s.ool.append((L, body))
    def flush(s):
        while s.ool:
            L, body = s.ool.pop(0)
            s.label(L); body(); s(f"s_branch {L}r")
e = E()
def vr(a, n): return f"v[{a}:{a+n-1}]"
def sr(a): return f"s[{a}:{a+1}]"
def srd(a): return f"s[{a}:{a+3}]"

SX, SW, SWO, SOUT, SWS, SDBG = 8, 12, 16, 20, 24, 28
SEXP = 8
SOWO = 28
sF1, sKV = 0, 1
sBR, sRB, sG, sW, sM0 = 3, 4, 5, 6, 7
sCX = 32; sCW = 40; sVMK = 32
sNON = 48
sT0, sT1, sT2, sT3 = 50, 51, 52, 53
sJ, sXCD, sTT, sFT, sCNT, sT = 54, 55, 56, 57, 58, 59
sEX = 60; sVM = 62
sIG, sIF, sIMP, sPEND = 64, 65, 66, 67
sOA, sF2 = 68, 69
sOW = 70
sU = 53
sT3P = 55
ST0 = 72
SOTH = 20
SIMP = 12
SDUM = 12
vL, vX0, vX1, vW0, vWR, vWR1, vWR2, vXR, vL16 = 1, 2, 3, 4, 5, 6, 7, 8, 12
vT0, vT1, vT2 = 13, 14, 15
vNON = 14
vEXP = 0
vKA, vVA, vKA8, vVA8 = 2, 3, 0, 7
vWO = 4
vFL = 8
vQ2 = 16; vCV = 24; vP = 24; vQ = 32
vML, vMF = 40, 56
accA, accB = 72, 88
vS = 72
WF = [104, 108, 112, 116, 120, 124, 16, 20]
vXF = 128
vO = 104; vK = 136; vV = 144; PB = 160; PZ = 240
vU0, vU1, vU2 = 36, 37, 38
vL8 = 13
NEG = "0xff800000"

def mfma(d, a, b, c): e(f"v_mfma_f32_32x32x16_bf16 {vr(d,16)}, {vr(a,4)}, {vr(b,4)}, {c if isinstance(c,str) else vr(c,16)}")
def dma(v, s_, soff, ldsdst, tag):
    e(f"s_add_u32 m0, s{sM0}, {ldsdst}"); e("s_nop 0")
    e.vm(f"buffer_load_dwordx4 v{v}, {srd(s_)}, s{soff} offen lds", tag)
def st_pieces(t):
    sl = t % 4
    return [lambda: dma(vX0, SX, sCX+t, sl*16384, f"st{t}"),
            lambda: dma(vW0, SW, sCW+t, L_WK + sl*8192, f"st{t}"),
            lambda: dma(vX1, SX, sCX+t, sl*16384 + 8192, f"st{t}")]
def cvt(dst, src, i): e(f"v_cvt_pk_bf16_f32 v{dst+i}, v{src+2*i}, v{src+2*i+1}")
def cvt8(dst, src, n=4):
    for i in range(n): cvt(dst, src, i)

def masks(kind):
    e(f"v_and_b32 v{vT0}, 31, v{vL}"); e(f"v_lshrrev_b32 v{vT1}, 5, v{vL}")
    e(f"v_lshlrev_b32 v{vT1}, 2, v{vT1}"); e(f"v_sub_u32 v{vT0}, v{vT0}, v{vT1}")
    if kind == "B":
        e(f"s_mov_b32 s{sT0}, {NEG}")
        for r in range(16):
            c = 8*(r >> 2) + (r & 3)
            e(f"v_subrev_u32 v{vT1}, {c}, v{vT0}"); e(f"v_and_b32 v{vML+r}, s{sT0}, v{vT1}"); e(f"v_xor_b32 v{vMF+r}, s{sT0}, v{vML+r}")
    else:
        e(f"s_mov_b32 s{sT0}, 0xf149f2ca")
        for r in range(16):
            c = 8*(r >> 2) + (r & 3)
            e(f"v_subrev_u32 v{vT1}, {c}, v{vT0}"); e(f"v_and_b32 v{vT1}, -15, v{vT1}"); e(f"v_cvt_f32_u32 v{vT1}, v{vT1}"); e(f"v_mul_f32 v{vML+r}, s{sT0}, v{vT1}")
            if r >= 8:
                e(f"v_add_u32 v{vT1}, {32-c}, v{vT0}"); e(f"v_and_b32 v{vT1}, -15, v{vT1}"); e(f"v_cvt_f32_u32 v{vT1}, v{vT1}"); e(f"v_mul_f32 v{vMF+r}, s{sT0}, v{vT1}")
            else:
                e(f"v_mov_b32 v{vMF+r}, s{sT0}")

def prologue():
    e("s_cmp_ge_u32 s2, 256"); e("s_cbranch_scc1 L_end")
    if O.only == 1: e("s_cmp_ge_u32 s2, 128"); e("s_cbranch_scc1 L_end")
    if O.stamps: e(f"s_memtime {sr(ST0)}"); e("s_memrealtime s[100:101]")
    e("s_load_dwordx16 s[32:47], s[0:1], 0"); e("s_load_dwordx2 s[24:25], s[0:1], 64")
    e(f"v_lshrrev_b32 v{vT0}, 6, v0"); e(f"v_and_b32 v{vL}, 63, v0")
    e(f"v_readfirstlane_b32 s{sW}, v{vT0}")
    e(f"s_and_b32 s{sXCD}, s2, 7"); e(f"s_lshr_b32 s{sJ}, s2, 3")
    e(f"s_lshr_b32 s{sT0}, s{sXCD}, 1"); e(f"s_lshl_b32 s{sT0}, s{sT0}, 2"); e(f"s_bfe_u32 s{sT1}, s{sJ}, 0x20002")
    e(f"s_add_u32 s{sRB}, s{sT0}, s{sT1}")
    e(f"s_and_b32 s{sT0}, s{sXCD}, 1"); e(f"s_lshl_b32 s{sT0}, s{sT0}, 2"); e(f"s_and_b32 s{sT2}, s{sJ}, 3")
    e(f"s_add_u32 s{sG}, s{sT0}, s{sT2}")
    e(f"s_add_u32 s{sT3}, s{sT1}, s{sT2}"); e(f"s_lshl_b32 s{sT3}, s{sT3}, 1")
    e(f"s_lshl_b32 s{sM0}, s{sW}, 10")
    e(f"v_lshrrev_b32 v{vT0}, 4, v{vL}")
    e(f"s_and_b32 s{sT0}, s{sW}, 1"); e(f"s_lshl_b32 s{sT0}, s{sT0}, 2")
    e(f"v_add_u32 v{vT0}, s{sT0}, v{vT0}")
    e(f"v_and_b32 v{vT1}, 7, v{vL}"); e(f"v_xor_b32 v{vT0}, v{vT0}, v{vT1}"); e(f"v_lshlrev_b32 v{vT0}, 4, v{vT0}")
    e(f"v_lshrrev_b32 v{vT1}, 3, v{vL}"); e(f"v_lshl_add_u32 v{vX0}, v{vT1}, 10, v{vT0}")
    e(f"s_lshl_b32 s{sT0}, s{sW}, 13"); e(f"v_add_u32 v{vX0}, s{sT0}, v{vX0}"); e(f"v_add_u32 v{vX1}, 0x10000, v{vX0}")
    e(f"v_bfe_u32 v{vT0}, v{vL}, 2, 3")
    e(f"s_lshl_b32 s{sT0}, s{sW}, 3"); e(f"v_add_u32 v{vT0}, s{sT0}, v{vT0}")
    e(f"v_lshrrev_b32 v{vT1}, 5, v{vL}"); e(f"v_lshlrev_b32 v{vT1}, 6, v{vT1}")
    e(f"v_and_b32 v{vT2}, 3, v{vL}"); e(f"v_lshl_add_u32 v{vT1}, v{vT2}, 4, v{vT1}")
    e(f"v_mul_u32_u24 v{vW0}, 3072, v{vT0}"); e(f"v_add_u32 v{vW0}, v{vW0}, v{vT1}"); e(f"v_add_u32 v{vW0}, 0x400, v{vW0}")
    e(f"s_mov_b32 s{SX+2}, {2048*1024}"); e(f"s_mov_b32 s{SX+3}, 0x20000")
    e(f"s_mov_b32 s{SW+2}, {512*3072}"); e(f"s_mov_b32 s{SW+3}, 0x20000")
    e(f"s_mov_b32 s{SOTH+3}, 0x20000")
    e(f"s_lshl_b32 s{sT0}, s{sRB}, 17"); e(f"s_lshl_b32 s{sT1}, s{sG}, 7")
    e(f"s_cmp_lt_u32 s2, 128"); e(f"s_cselect_b32 s{sBR}, 1, 0")
    e(f"s_cselect_b32 s{sT3}, 0, s{sT3}")
    e("s_waitcnt lgkmcnt(0)")
    e(f"s_cselect_b64 {sr(SX)}, s[38:39], s[32:33]")
    e(f"s_cselect_b64 {sr(SW)}, s[40:41], s[34:35]")
    e(f"s_cselect_b64 {sr(SWO)}, s[42:43], s[36:37]")
    e(f"s_cselect_b64 {sr(sOW)}, s[36:37], s[42:43]")
    e(f"s_mov_b64 {sr(SDBG)}, s[46:47]")
    e("s_cbranch_scc1 L_notouch")
    sp = O.xspan
    e(f"v_lshrrev_b32 v{vT0}, {sp}, v{vL}"); e(f"v_lshlrev_b32 v{vT0}, 10, v{vT0}")
    e(f"v_and_b32 v{vT1}, {(1 << sp) - 1}, v{vL}"); e(f"v_lshl_add_u32 v{vT0}, v{vT1}, 7, v{vT0}")
    e(f"v_lshrrev_b32 v{vT1}, 4, v{vL}"); e(f"v_bfe_u32 v{vT2}, v{vL}, 2, 2"); e(f"v_lshl_add_u32 v{vT1}, v{vT1}, 6, v{vT2}")
    e(f"v_mul_u32_u24 v{vT1}, 3072, v{vT1}"); e(f"v_and_b32 v{vT2}, 3, v{vL}"); e(f"v_lshl_add_u32 v{vT1}, v{vT2}, 7, v{vT1}")
    sXB, sWB = sIG, sIF
    e(f"s_and_b32 s{sXB}, s{sG}, 3"); e(f"s_lshl_b32 s{sXB}, s{sXB}, 15"); e(f"s_add_u32 s{sXB}, s{sXB}, s{sT0}")
    e(f"s_and_b32 s{sWB}, s{sJ}, 15"); e(f"s_mul_i32 s{sWB}, s{sWB}, {4*3072}"); e(f"s_and_b32 s{sT2}, s{sT1}, 512"); e(f"s_add_u32 s{sWB}, s{sWB}, s{sT2}")
    code = {0: [8, 2, 9, 10, 3, 11, 4, 5, 0, 1], 1: [8, 9, 10, 11, 2, 3, 4, 5, 0, 1]}[O.torder]
    items = [(1, c) for c in code] + [(0, c) for c in code]
    if O.tseq == 1:
        items = [(1, c) for c in code[:8]] + [(0, c) for c in code[:6]] + [(1, c) for c in code[8:]] + [(0, c) for c in code[6:]]
    items = items[:O.tn]
    for r in range((len(items) + 7) // 8):
        rnd = items[8*r:8*r+8]
        pk = sum(c << (4*i) for i, (b_, c) in enumerate(rnd)); bm = sum(b_ << i for i, (b_, c) in enumerate(rnd))
        if len(rnd) < 8: e(f"s_cmp_ge_u32 s{sW}, {len(rnd)}"); e(f"s_cbranch_scc1 L_t{r}d")
        e(f"s_lshl_b32 s{sT2}, s{sW}, 2"); e(f"s_lshr_b32 s{sT2}, {pk:#x}, s{sT2}")
        e(f"s_bitcmp1_b32 s{sT2}, 3"); e(f"s_cbranch_scc1 L_t{r}x")
        e(f"s_bitcmp1_b32 {bm:#x}, s{sW}"); e(f"s_cselect_b64 {sr(SOTH)}, s[40:41], s[34:35]"); e(f"s_mov_b32 s{SOTH+2}, {512*3072}")
        e(f"s_and_b32 s{sCNT}, s{sT2}, 1"); e(f"s_mul_i32 s{sCNT}, s{sCNT}, {256*3072}"); e(f"s_add_u32 s{sCNT}, s{sCNT}, s{sWB}")
        e(f"s_and_b32 s{sT2}, s{sT2}, 6"); e(f"s_lshl_b32 s{sT2}, s{sT2}, 9"); e(f"s_add_u32 s{sCNT}, s{sCNT}, s{sT2}")
        e(f"buffer_load_dword v{250+r}, v{vT1}, {srd(SOTH)}, s{sCNT} offen{' nt' if O.tnt else ''}")
        e(f"s_branch L_t{r}d")
        e.label(f"L_t{r}x")
        e(f"s_bitcmp1_b32 {bm:#x}, s{sW}"); e(f"s_cselect_b64 {sr(SOTH)}, s[38:39], s[32:33]"); e(f"s_mov_b32 s{SOTH+2}, {2048*1024}")
        e(f"s_and_b32 s{sT2}, s{sT2}, 3")
        if sp == 2:
            e(f"s_and_b32 s{sCNT}, s{sT2}, 1"); e(f"s_lshl_b32 s{sCNT}, s{sCNT}, 14"); e(f"s_lshr_b32 s{sT2}, s{sT2}, 1"); e(f"s_lshl_b32 s{sT2}, s{sT2}, 9"); e(f"s_add_u32 s{sT2}, s{sT2}, s{sCNT}")
        else: e(f"s_lshl_b32 s{sT2}, s{sT2}, {8 if sp == 1 else 13}")
        e(f"s_add_u32 s{sCNT}, s{sT2}, s{sXB}")
        e(f"buffer_load_dword v{250+r}, v{vT0}, {srd(SOTH)}, s{sCNT} offen{' nt' if O.tnt else ''}")
        e.label(f"L_t{r}d")
        e("s_barrier")
    if not O.rotA: e(f"s_mov_b32 s{sT3}, 0")
    e.label("L_notouch")
    e(f"s_mov_b64 {sr(SOUT)}, s[44:45]")
    def chunk(t):
        e(f"s_add_u32 s{sT2}, s{sT3}, {t}"); e(f"s_and_b32 s{sT2}, s{sT2}, 7")
        e(f"s_lshl_b32 s{sCX+t}, s{sT2}, 7"); e(f"s_add_u32 s{sCX+t}, s{sCX+t}, s{sT0}")
        e(f"s_mul_i32 s{sCW+t}, s{sT2}, {64*3072}"); e(f"s_add_u32 s{sCW+t}, s{sCW+t}, s{sT1}")
    chunk(0)
    for p in st_pieces(0): p()
    e(f"s_mov_b32 s{SDBG+2}, 256"); e(f"s_mov_b32 s{SDBG+3}, 0x20000")
    e(f"s_xor_b32 s{sT2}, s{sW}, 7"); e(f"s_or_b32 s{sT2}, s2, s{sT2}")
    def tag():
        e(f"s_memrealtime {sr(sNON)}"); e("s_waitcnt lgkmcnt(0)")
        e(f"s_or_b32 s{sNON+1}, s{sNON+1}, 0x80000000")
        e(f"v_mov_b32 v{vCV}, s{sNON}"); e(f"v_mov_b32 v{vCV+1}, s{sNON+1}")
        e("s_mov_b64 exec, 1")
        e(f"buffer_store_dwordx2 {vr(vCV,2)}, off, {srd(SDBG)}, 0 sc1")
        e("s_mov_b64 exec, -1")
    e.cond(f"s_cmp_eq_u32 s{sT2}, 0", tag)
    chunk(1)
    for p in st_pieces(1): p()
    for t in range(2, 8): chunk(t)
    e(f"s_mov_b32 s{SWO+2}, {512*1024}"); e(f"s_mov_b32 s{SWO+3}, 0x20000")
    e(f"s_mov_b32 s{SOUT+2}, {2048*2048}")
    e(f"s_mov_b32 s{SWS+2}, {WS_BYTES}"); e(f"s_mov_b32 s{SWS+3}, 0x20000")
    e(f"s_lshr_b32 s{sFT}, s{sW}, 2"); e(f"s_mul_i32 s{sTT}, s{sFT}, 3"); e(f"s_and_b32 s{sT0}, s{sW}, 3"); e(f"s_xor_b32 s{sTT}, s{sTT}, s{sT0}")
    e(f"s_lshl_b32 s{sT}, s{sRB}, 2"); e(f"s_add_u32 s{sT}, s{sT}, s{sTT}")
    e(f"v_and_b32 v{vT0}, 31, v{vL}"); e(f"v_lshrrev_b32 v{vT1}, 5, v{vL}")
    e(f"v_bfe_u32 v{vT2}, v{vL}, 1, 3"); e(f"v_xor_b32 v{vT2}, v{vT2}, v{vT1}"); e(f"v_lshlrev_b32 v{vT2}, 4, v{vT2}")
    e(f"v_lshl_add_u32 v{vXR}, v{vT0}, 7, v{vT2}")
    e(f"s_lshl_b32 s{sT0}, s{sTT}, 12"); e(f"v_add_u32 v{vXR}, s{sT0}, v{vXR}")
    for s_ in range(1, 4): e(f"v_xor_b32 v{vXR+s_}, {s_*32}, v{vXR}")
    e(f"v_bfe_u32 v{vT2}, v{vL}, 2, 2"); e(f"v_lshlrev_b32 v{vWR}, 6, v{vT2}")
    e(f"v_bfe_u32 v{vT2}, v{vL}, 4, 1"); e(f"v_lshl_add_u32 v{vWR}, v{vT2}, 5, v{vWR}")
    e(f"v_and_b32 v{vT2}, 3, v{vL}"); e(f"v_lshl_add_u32 v{vWR}, v{vT2}, 3, v{vWR}")
    e(f"v_lshl_add_u32 v{vWR}, v{vT1}, 10, v{vWR}")
    e(f"s_lshl_b32 s{sT0}, s{sFT}, 9"); e(f"v_add_u32 v{vWR}, s{sT0}, v{vWR}")
    e(f"v_add_u32 v{vWR1}, 0x10000, v{vWR}"); e(f"v_add_u32 v{vWR2}, 0x20000, v{vWR}")
    e(f"v_lshlrev_b32 v{vL16}, 4, v{vL}")
    e(f"s_lshl_b32 s{sT0}, s{sTT}, 13"); e(f"s_lshl_b32 s{sT1}, s{sFT}, 11"); e(f"s_add_u32 s{sT0}, s{sT0}, s{sT1}")
    e(f"s_add_u32 s{sT0}, s{sT0}, {L_KV + 8*8192}"); e(f"v_add_u32 v{vEXP}, s{sT0}, v{vL16}")
    e(f"s_lshl_b32 s{sT0}, s{sBR}, 3"); e(f"s_add_u32 s{sT0}, s{sT0}, s{sG}"); e(f"s_lshl_b32 s{sT0}, s{sT0}, 6"); e(f"s_add_u32 s{sT0}, s{sT0}, s{sT}")
    e(f"s_lshl_b32 s{sKV}, s{sT0}, 13"); e(f"s_add_u32 s{sKV}, s{sKV}, s{sT1}")
    e(f"s_lshl_b32 s{sF1}, s{sT0}, 8"); e(f"s_lshl_b32 s{sT1}, s{sFT}, 7"); e(f"s_add_u32 s{sF1}, s{sF1}, s{sT1}"); e(f"s_add_u32 s{sF1}, s{sF1}, {WS_F1}")
    e(f"s_sub_u32 s{sT0}, s{sT0}, s{sTT}"); e(f"s_add_u32 s{sT0}, s{sT0}, s{sW}"); e(f"s_sub_u32 s{sT0}, s{sT0}, 8")
    e(f"s_lshl_b32 s{sT1}, s{sRB}, 2"); e(f"s_add_u32 s{sT1}, s{sT1}, s{sW}"); e(f"s_cmp_lt_u32 s{sT1}, 8"); e(f"s_cselect_b32 s{sIMP}, 1, 0")
    e(f"s_cselect_b32 s{sT0}, 0, s{sT0}")
    e(f"s_lshl_b32 s{sIG}, s{sT0}, 13"); e(f"s_lshl_b32 s{sIF}, s{sT0}, 8"); e(f"s_add_u32 s{sIF}, s{sIF}, {WS_F1 + 120}")
    e(f"s_cmp_eq_u32 s{sBR}, 0"); e(f"s_cselect_b32 s{sIMP}, 2, s{sIMP}")
    e(f"s_lshl_b32 s{sT0}, s{sBR}, 6"); e(f"s_add_u32 s{sT0}, s{sT0}, s{sT}")
    e(f"s_lshl_b32 s{sT1}, s{sT0}, 4"); e(f"s_lshl_b32 s{sT2}, s{sG}, 1"); e(f"s_add_u32 s{sT1}, s{sT1}, s{sT2}"); e(f"s_add_u32 s{sT1}, s{sT1}, s{sFT}")
    e(f"s_lshl_b32 s{sOA}, s{sT1}, 11"); e(f"s_add_u32 s{sOA}, s{sOA}, {WS_O}")
    e(f"s_lshl_b32 s{sF2}, s{sT1}, 8"); e(f"s_add_u32 s{sF2}, s{sF2}, {WS_F2}")
    e(f"s_mov_b32 s{sEX}, 0xffff"); e(f"s_mov_b32 s{sEX+1}, 0xffff")
    e(f"s_lshl_b32 s{sT0}, s{sXCD}, 1"); e(f"s_bfe_u32 s{sT1}, s{sJ}, 0x10003"); e(f"s_add_u32 s{sT0}, s{sT0}, s{sT1}")
    e(f"s_lshl_b32 s{sT0}, s{sT0}, 2"); e(f"s_and_b32 s{sT1}, s{sW}, 3"); e(f"s_add_u32 s{sT3P}, s{sT0}, s{sT1}")
    e(f"s_cmp_eq_u32 s{sBR}, 0"); e("s_cbranch_scc1 L_maskA")
    masks("B"); e("s_branch L_maskdone")
    e.flush()
    e.label("L_maskA"); masks("A")
    e.label("L_maskdone")
    e(f"v_lshlrev_b32 v{vL8}, 3, v{vL}")

def flag_store(soff, s_=SWS, off=0):
    e("s_mov_b64 exec, 0xffff")
    e.vm(f"buffer_store_dwordx2 {vr(vNON,2)}, v{vL8}, {srd(s_)}, s{soff} offen{f' offset:{off}' if off else ''} sc1", "flag")
    e("s_mov_b64 exec, -1")
def flag_ld(tag):
    e.vm(f"buffer_load_dwordx4 {vr(vFL,4)}, off, {srd(SWS)}, s{sIF} sc1", tag)
def flag_cmp():
    e(f"v_cmp_ne_u64 vcc, {sr(sNON)}, {vr(vFL,2)}"); e(f"v_cmp_ne_u64 {sr(sVM)}, {sr(sNON)}, {vr(vFL+2,2)}")
    e(f"s_or_b64 {sr(sVM)}, {sr(sVM)}, vcc")
def flag_poll():
    L = e.newlab("L_fp"); D = L + "d"
    e(f"s_mov_b32 s{sCNT}, 0")
    e.label(L)
    e(f"buffer_load_dwordx4 {vr(vFL,4)}, off, {srd(SWS)}, s{sIF} sc1")
    e(f"s_add_u32 s{sCNT}, s{sCNT}, 1"); e(f"s_cmp_gt_u32 s{sCNT}, {O.pollmax}"); e(f"s_cbranch_scc1 {D}")
    e("s_waitcnt vmcnt(0)")
    flag_cmp(); e(f"s_cbranch_scc1 {L}")
    e.label(D)
def imp_dma(v, track=None):
    e(f"s_lshl_b32 s{sT1}, s{sW}, 13"); e(f"s_add_u32 m0, s{sT1}, {L_KV + v*4096}")
    e(f"s_add_u32 s{sT0}, s{sIG}, {v*4096}")
    for k in range(4):
        t = f"buffer_load_dwordx4 v{vL16}, {srd(SIMP)}, s{sT0} offen offset:{k*1024} sc1 lds"
        if track: e.vm(t, track)
        else: e(t)

def p1():
    e.stamp(12)
    def rd(ks):
        G, s_ = divmod(ks, 4)
        w = WF[ks % 8]
        if G < 8:
            e.ds(f"ds_read_b128 {vr(vXF+4*ks,4)}, v{vXR+s_} offset:{(G%4)*16384}", f"w{ks}")
            b, off = vWR2, (G % 4)*8192 + s_*2048
        elif G < 16: b, off = vWR1, (G-8)*8192 + s_*2048
        else: b, off = vWR, (G-16)*8192 + s_*2048
        e.ds(f"ds_read_b64_tr_b16 {vr(w,2)}, v{b} offset:{off}", f"w{ks}")
        e.ds(f"ds_read_b64_tr_b16 {vr(w+2,2)}, v{b} offset:{off+256}", f"w{ks}")
    syncs = {G: (f"st{G}", True) for G in range(8)}
    syncs.update({8: ("wv1", True), 10: ("wv3", False), 12: ("wv7", False), 16: ("wq3", False), 20: ("wq7", "exp")})
    def sync(G):
        if G not in syncs: return
        tag, lg = syncs[G]
        e.wait_vm(tag)
        if lg is True: e.ds_all()
        elif lg: e.wait_ds(lg)
        e("s_barrier")
    gap = {k: [] for k in range(-1, 96)}
    def I(t): return lambda: e(t)
    def wv(t): return lambda: dma(vW0, SW, sCW+t, L_WV + t*8192, f"wv{t}")
    def wq(t): return lambda: dma(vW0, SW, sCW+t, t*8192, f"wq{t}")
    gap[-1] += st_pieces(2)
    for t in range(3, 8):
        for i, p in enumerate(st_pieces(t)): gap[4*(t-3) + i].append(p)
    gap[19].append(I(f"v_add_u32 v{vW0}, 0x400, v{vW0}"))
    for t, k in enumerate([20, 22, 24, 26, 28, 30, 32, 33]): gap[k].append(wv(t))
    gap[29].append(lambda: e.vm(f"buffer_load_dwordx2 {vr(vNON,2)}, off, {srd(SDBG)}, 0 sc1", "non"))
    gap[21] += [I(f"s_mov_b64 {sr(SEXP)}, {sr(SWS)}"), I(f"s_lshl_b32 s{sT0}, s{sBR}, 2"), I(f"s_or_b32 s{sT0}, s{sT0}, s{sTT}")]
    gap[23] += [I(f"s_cmp_ge_u32 s{sT0}, 3"), I(f"s_cselect_b32 s{SEXP+2}, s{SWS+2}, 0")]
    def export(k0, acc, tmp, off, tag):
        for i in range(4): gap[k0].append(lambda i=i: cvt(tmp, acc, i))
        if off: gap[k0].append(I(f"s_add_u32 s{sKV}, s{sKV}, {off}"))
        gap[k0+1].append(lambda: e.vm(f"buffer_store_dwordx4 {vr(tmp,4)}, v{vL16}, {srd(SEXP)}, s{sKV} offen sc1", tag))
        for i in range(4, 8): gap[k0+1].append(lambda i=i: cvt(tmp, acc, i))
        gap[k0+2].append(lambda: e.vm(f"buffer_store_dwordx4 {vr(tmp+4,4)}, v{vL16}, {srd(SEXP)}, s{sKV} offen offset:1024 sc1", tag))
        gap[k0+3].append(lambda: e.ds(f"ds_write_b128 v{vEXP}, {vr(tmp,4)} offset:{off}", "exp"))
        gap[k0+4].append(lambda: e.ds(f"ds_write_b128 v{vEXP}, {vr(tmp+4,4)} offset:{off+1024}", "exp"))
    export(34, accA, vCV, 0, "kst")
    gap[39].append(I(f"v_subrev_u32 v{vW0}, 0x800, v{vW0}"))
    for t, k in enumerate([40, 43, 46, 49, 54, 57, 60, 63]): gap[k].append(wq(t))
    def kflag():
        e.wait_vm("kst")
        e(f"v_readfirstlane_b32 s{sNON}, v{vNON}"); e(f"v_readfirstlane_b32 s{sNON+1}, v{vNON+1}")
        def late():
            L = e.newlab("L_tag"); D = L + "d"
            e(f"s_mov_b32 s{sCNT}, 0")
            e.label(L)
            e(f"buffer_load_dwordx2 {vr(vNON,2)}, off, {srd(SDBG)}, 0 sc1"); e("s_waitcnt vmcnt(0)")
            e(f"v_readfirstlane_b32 s{sNON}, v{vNON}"); e(f"v_readfirstlane_b32 s{sNON+1}, v{vNON+1}")
            e(f"s_add_u32 s{sCNT}, s{sCNT}, 1"); e(f"s_cmp_gt_u32 s{sCNT}, {O.pollmax}"); e(f"s_cbranch_scc1 {D}")
            e(f"s_cmp_eq_u32 s{sNON+1}, 0"); e(f"s_cbranch_scc1 {L}")
            e.label(D)
        e("s_nop 0")
        e.cond(f"s_cmp_eq_u32 s{sNON+1}, 0", late)
        flag_store(sF1, SEXP)
    gap[O.kflag].append(kflag)
    def prew():
        e("s_mov_b32 exec_hi, 0")
        e.vm(f"buffer_store_dwordx2 {vr(vL16,2)}, v{vL8}, {srd(SWS)}, s{sF2} offen sc1", "prew")
        e("s_mov_b32 exec_hi, -1")
    if O.prew: gap[O.prew].append(prew)
    export(66, accB, vCV+8, 4096, "vst")
    gap[O.kchk].append(lambda: flag_ld("kchk"))
    gap[72] += [I(f"v_add_u32 v{vKA8}, {-8*8192 & 0xffffffff:#x}, v{vEXP}"), I(f"v_add_u32 v{vKA}, 0x2000, v{vKA8}"), I(f"v_and_b32 v{vVA8}, 0xfffffeff, v{vKA8}")]
    gap[73] += [I(f"v_add_u32 v{vVA8}, 0x1000, v{vVA8}"), I(f"v_add_u32 v{vVA}, 0x2000, v{vVA8}")]
    for i in range(1, 9):
        gap[73+i] += [I(f"s_cmp_le_u32 {i}, s{sT}"), I(f"s_cselect_b64 {sr(sVMK+2*(i-1))}, {sr(sEX)}, -1")]
    gap[82] += [I(f"v_bfe_u32 v{vWO}, v{vL}, 2, 3"), I(f"s_lshl_b32 s{sT0}, s{sW}, 3"), I(f"v_add_u32 v{vWO}, s{sT0}, v{vWO}"), I(f"v_lshlrev_b32 v{vWO}, 10, v{vWO}")]
    gap[83] += [I(f"v_lshrrev_b32 v{vWR1}, 5, v{vL}"), I(f"v_lshl_add_u32 v{vWO}, v{vWR1}, 6, v{vWO}"), I(f"v_and_b32 v{vWR1}, 3, v{vL}"), I(f"v_lshl_add_u32 v{vWO}, v{vWR1}, 4, v{vWO}")]
    gap[84] += [I(f"s_and_b32 s{sT0}, s{sJ}, 7"), I(f"s_lshl_b32 s{sT0}, s{sT0}, 7"), I(f"v_add_u32 v{vWO}, s{sT0}, v{vWO}")]
    gap[64] += [I(f"s_mov_b64 {sr(SIMP)}, {sr(SWS)}")]
    def imp_k1():
        e.wait_vm("kchk")
        flag_cmp()
        e(f"s_cselect_b32 s{sPEND}, 1, 0")
        e(f"s_cmp_lg_u32 s{sIMP}, 0"); e(f"s_cselect_b32 s{sPEND}, 0, s{sPEND}")
        flag_ld("kchk2")
        e(f"s_or_b32 s{sT0}, s{sPEND}, s{sIMP}"); e(f"s_cselect_b32 s{SIMP+2}, 0, s{SWS+2}")
        imp_dma(0, "kimp")
    gap[O.imp1].append(imp_k1)
    def imp_k2():
        e.wait_vm("vst")
        e(f"s_add_u32 s{sF1}, s{sF1}, {F1V}")
        flag_store(sF1, SEXP); e.stamp(5)
        e(f"s_cmp_lg_u32 s{sIMP}, 0"); e(f"s_cselect_b32 s{SIMP+2}, 0, s{SWS+2}")
        def again():
            L = e.newlab("L_k2")
            e("s_waitcnt vmcnt(1)")
            flag_cmp(); e(f"s_cbranch_scc1 {L}")
            imp_dma(0); e(f"s_mov_b32 s{sPEND}, 2")
            e.label(L)
        e.cond(f"s_cmp_eq_u32 s{sPEND}, 1", again)
    gap[O.imp].append(imp_k2)
    gap[86].append(I(f"s_mov_b32 s{sT2}, 0x3f803f80"))
    for i in range(16): gap[88 + i//4].append(I(f"v_mov_b32 v{vV+i}, s{sT2}"))
    gap[92].append(lambda: e.ds(f"ds_read_b128 {vr(vK,4)}, v{vKA} offset:{7*8192}", "k0"))
    gap[93] += [I(f"s_mov_b32 s{sT2}, 0x3eb8aa3b"), I(f"s_mov_b32 s{sT3}, 0x3eb8aa3b")]

    sync(0); e.stamp(1)
    for s_ in range(4): rd(s_)
    for f in gap[-1]: f()
    for ks in range(96):
        it, s_ = divmod(ks, 4)
        if s_ == 0:
            e.c(f"---- P1 group {it}")
            sync(it+1)
            if it in (8, 16): e.stamp({8: 2, 16: 3}[it])
            if it < 13: e.stamp(it+1, 2)
            if it >= 11: e.stamp(it-10, 3)
        e.wait_ds(f"w{ks}")
        acc = accB if 8 <= it < 16 else accA
        c = "0" if ks % 32 == 0 else acc
        if 8 <= it < 16: mfma(acc, vXF+4*(ks % 32), WF[ks % 8], c)
        else: mfma(acc, WF[ks % 8], vXF+4*(ks % 32), c)
        if it < 7:
            if s_ == 0:
                for q in range(4): rd(ks+4+q)
        elif ks + 4 < 96: rd(ks+4)
        for f in gap[ks]: f()

def wo_piece(i):
    e(f"s_add_u32 m0, s{sM0}, {i*8192}"); e(f"s_mov_b32 s{sT0}, {i*65536}")
    e(f"buffer_load_dwordx4 v{vWO}, {srd(SWO)}, s{sT0} offen lds")

def norm(o, dst):
    e(f"v_rcp_f32 v{o+10}, v{o+8}")
    e(f"v_pk_add_f32 {vr(o+12,2)}, {vr(o,2)}, {vr(o+2,2)}"); e(f"v_pk_add_f32 {vr(o+14,2)}, {vr(o+4,2)}, {vr(o+6,2)}")
    for i in range(4): e(f"v_pk_mul_f32 {vr(o+2*i,2)}, {vr(o+2*i,2)}, {vr(o+10,2)} op_sel_hi:[1,0]")
    e(f"v_pk_add_f32 {vr(o+12,2)}, {vr(o+12,2)}, {vr(o+14,2)}")
    cvt8(dst, o)
    e(f"v_add_f32 v{o+12}, v{o+12}, v{o+13}"); e(f"v_fma_f32 v{o+8}, v{o+12}, 0, v{o+8}")
def check(os_, slowlab):
    for n, o in enumerate(os_):
        e(f"v_subrev_u32 v{o+8}, 0x2b800000, v{o+8}")
        if n: e(f"v_max_u32 v{os_[0]+8}, v{os_[0]+8}, v{o+8}")
    e(f"v_cmp_lt_u32 vcc, 0x28000000, v{os_[0]+8}")
    if O.force_slow: e(f"s_branch {slowlab}")
    else: e(f"s_cbranch_vccnz {slowlab}")
def prefill(regs):
    e(f"s_mov_b32 s{sT0}, 0x3f803f80")
    for i in regs: e(f"v_mov_b32 v{i}, s{sT0}")
def rdK(i):
    if i < 8: e(f"ds_read_b128 {vr(vK+4*(i%2),4)}, v{vKA} offset:{(7-i)*8192}")
    else: e(f"ds_read_b128 {vr(vK+4*(i%2),4)}, v{vKA8}")
def rdV(i, dyn=True):
    e(f"s_mov_b64 exec, {sr(sVMK+2*(i-1)) if dyn and i > 0 else sr(sEX)}")
    b, off = (vVA, (7-i)*8192) if i < 8 else (vVA8, 0)
    e(f"ds_read_b128 {vr(vV+8*(i%2),4)}, v{b} offset:{off}")
    e(f"ds_read_b128 {vr(vV+8*(i%2)+4,4)}, v{b} offset:{off+1024}")
    e("s_mov_b64 exec, -1")

def attention():
    e.c("---- Q epilogue")
    e.stamp(4)
    def qscale(h):
        for i in range(4*h, 4*h+4): e(f"v_pk_mul_f32 {vr(accA+2*i,2)}, {vr(accA+2*i,2)}, {sr(sT2)}")
        for i in range(4*h, 4*h+4): cvt(vQ2, accA, i)
    e(f"s_cmp_eq_u32 s{sBR}, 0"); e("s_cbranch_scc1 L_attnA")
    e.c("---- attention B")
    e.cond(f"s_cmp_eq_u32 s{sPEND}, 1", lambda: (flag_poll(), imp_dma(0)))
    e(f"s_add_u32 s{sIF}, s{sIF}, {F1V}")
    e("s_nop 6")
    qscale(0); qscale(1)
    def kbar():
        flag_ld("x")
        e("s_waitcnt vmcnt(2)")
        e.cond(f"s_cmp_lg_u32 s{sPEND}, 0", lambda: e("s_waitcnt vmcnt(1)"))
        if O.stamps == 1: e(f"s_mul_i32 s{sT0}, s{sPEND}, 1000"); e(f"s_add_u32 s{ST0+24}, s{ST0}, s{sT0}")
        e("s_barrier"); e.stamp(6)
    def vimp():
        e("s_waitcnt vmcnt(0)")
        flag_cmp()
        e(f"s_cselect_b32 s{sT0}, s{SIMP+2}, 0")
        e.cond(f"s_cmp_lg_u32 s{sT0}, 0", flag_poll)
        imp_dma(1)
    def vbar():
        e("s_waitcnt vmcnt(0)"); e("s_barrier"); e.stamp(13)
        e(f"s_cmp_lt_u32 s{sW}, 4"); e(f"s_cselect_b64 {sr(SOWO)}, {sr(SWO)}, {sr(sOW)}"); e(f"s_mov_b32 s{SOWO+2}, {512*1024}")
        e(f"s_and_b32 s{sT0}, s{sJ}, 15"); e(f"s_lshl_b32 s{sT0}, s{sT0}, 2"); e(f"s_and_b32 s{sT1}, s{sW}, 3"); e(f"s_add_u32 s{sT0}, s{sT0}, s{sT1}")
        e(f"s_lshl_b32 s{sT0}, s{sT0}, 13"); e(f"v_lshlrev_b32 v{vU0}, 7, v{vL}")
        e(f"buffer_load_dword v{vU2+1}, v{vU0}, {srd(SOWO)}, s{sT0} offen")
    def wo16(ps):
        def f():
            for i in ps:
                e(f"s_add_u32 m0, s{sM0}, {i*4096}"); e(f"s_mov_b32 s{sT0}, {i*32768}")
                e(f"buffer_load_dwordx4 v{vWO}, {srd(SWO)}, s{sT0} offen lds")
        return f
    def sample02():
        f3_addr()
        e("s_mov_b64 exec, 0x55555555")
        e(f"buffer_load_dwordx2 {vr(vFL,2)}, v{vF}, {srd(SWS)}, s{sF3} offen sc1")
        e("s_mov_b64 exec, -1")
    def unit(u, L):
        q = vQ2 + 4*u
        def ex(i, r): e(f"v_exp_f32 v{vS+16*(i%2)+r}, v{vS+16*(i%2)+r}")
        def P(i): return PB + 8*(i % (L+1))
        if u: rdK(0)
        e("s_waitcnt lgkmcnt(0)")
        mfma(vS, vK, q, vML)
        e("s_nop 10")
        for i in range(9 + L):
            j = i - L
            s_ = vS + 16*(i % 2)
            e.c(f"unit {u} task {i}")
            if i < 11: e.stamp(i+1, 4+u)
            if O.fair:
                pr = {(0, 0): 2, (0, 2): 1, (0, 4): 0, (0, L): 3, (0, 9): 2, (1, 3): 1, (1, 6): 0}.get((u, i))
                if pr is not None: e(f"s_setprio {pr}")
            if u == 0:
                if i == 0: kbar()
                if i == O.vpos: vimp()
                if j == 0: vbar()
            if u == 1 and i == O.oflag:
                e("s_waitcnt vmcnt(0)"); flag_store(sF2)
            if u == 1 and O.oflag <= i < O.oflag + 4: wo_piece(2*(i-O.oflag)); wo_piece(2*(i-O.oflag)+1)
            if u == 1 and i == O.smp_at: sample02()
            n = 0
            if i < 8: rdK(i+1); n += 1
            if -1 <= j < 8: rdV(j+1); n += 2
            if i < 9:
                for r in range(4): ex(i, r)
            if j >= 0:
                e(f"s_waitcnt lgkmcnt({n})")
                if i == 9 and L == 1: e("s_nop 0")
                mfma(vO, vV+8*(j%2), P(j), vO if j > 0 else "0")
            if i < 9:
                for r in range(4, 8): ex(i, r)
            if i < 8:
                e(f"s_waitcnt lgkmcnt({n-1})")
                mfma(vS+16*((i+1)%2), vK+4*((i+1)%2), q, vMF if i+1 == 8 else "0")
            if i < 9:
                cvt8(P(i), s_)
                for r in range(8, 12): ex(i, r)
            if j >= 0: mfma(vO, vV+8*(j%2)+4, P(j)+4, vO)
            if i < 9:
                for r in range(12, 16): ex(i, r)
                cvt8(P(i)+4, s_+8)
        e("s_nop 11")
        norm(vO, vP); check([vO], f"L_B_slow{u}")
        e.label(f"L_B_ok{u}")
        e(f"buffer_store_dwordx4 {vr(vP,4)}, v{vL16}, {srd(SWS)}, s{sOA} offen offset:{1024*u} sc1")
    unit(0, O.lag)
    e(f"v_add_u32 v{vKA}, 0x400, v{vKA}"); e(f"v_add_u32 v{vKA8}, 0x400, v{vKA8}")
    e(f"v_add_u32 v{vVA}, 0x100, v{vVA}"); e(f"v_add_u32 v{vVA8}, 0x100, v{vVA8}")
    e.cond(f"s_cmp_lt_u32 s{sT}, 8", lambda: prefill(range(vV, vV+16)))
    e.stamp(12, 4)
    unit(1, 1)
    e.stamp(7); e.stamp(12, 7)
    e(f"s_cmp_lt_u32 s{sW}, 4"); e("s_cbranch_scc1 L_B_old")
    e("s_waitcnt vmcnt(1)"); e("s_barrier")
    e("s_waitcnt vmcnt(0)"); flag_store(sF2, off=128); e.stamp(8)
    e("s_branch L_stamps" if O.stamps else "s_endpgm")
    e.label("L_B_old")
    e(f"s_mov_b32 s{sHM}, 0")
    p3_setup()
    e("s_waitcnt vmcnt(1)")
    e("s_mov_b64 exec, 0x55555555")
    e(f"v_cmp_eq_u64 vcc, {sr(sNON)}, {vr(vFL,2)}")
    e("s_mov_b64 exec, -1")
    e(f"s_not_b32 s{sNR}, vcc_lo")
    e("s_barrier")
    def late0():
        e("s_waitcnt vmcnt(0)"); flag_store(sF2, off=128); poll3(0x55555555, 0x55555555)
    e.cond(f"s_and_b32 s{sT0}, s{sNR}, 0x55555555", late0)
    p3_first()
    e("s_waitcnt vmcnt(8)"); flag_store(sF2, off=128); e.stamp(8)
    e("s_branch L_p3go")
    e.flush()

    e.c("---- attention A")
    e.label("L_attnA")
    KP, VP = 160, 168
    e(f"s_and_b32 s{sIF}, s{sF1}, 0xffffff00"); e(f"s_sub_u32 s{sIF}, s{sIF}, 136")
    flag_ld("x")
    e("s_barrier")
    e.stamp(6)
    e(f"ds_read_b128 {vr(vK+4,4)}, v{vKA} offset:{7*8192 + 1024}")
    e(f"s_mov_b64 exec, {sr(sEX)}")
    for h in range(2):
        for kb in range(2): e(f"ds_read_b128 {vr(vV+8*h+4*kb,4)}, v{vVA} offset:{7*8192 + kb*1024 + h*256}")
    e("s_mov_b64 exec, -1")
    qscale(0); qscale(1)
    prefill(range(VP, VP+8))
    def halo():
        L = e.newlab("L_h")
        e(f"s_cmp_eq_u32 s{sT}, 0"); e(f"s_cbranch_scc1 L_A_nh")
        e("s_waitcnt vmcnt(0)")
        flag_cmp(); e(f"s_cbranch_scc0 {L}")
        flag_poll()
        e.label(L)
        e(f"s_sub_u32 s{sT0}, s{sKV}, {8192 + 4096}"); e(f"s_sub_u32 s{sT1}, s{sKV}, {8192 - 1024}")
        e(f"v_and_b32 v{vFL}, 0x2ff, v{vL16}")
        for h in range(2): e(f"buffer_load_dwordx4 {vr(KP+4*h,4)}, v{vL16}, {srd(SWS)}, s{sT0} offen offset:{h*1024} sc1")
        e(f"s_mov_b64 exec, {sr(sEX)}")
        for h in range(2): e(f"buffer_load_dwordx4 {vr(VP+4*h,4)}, v{vFL}, {srd(SWS)}, s{sT1} offen offset:{h*256} sc1")
        e("s_mov_b64 exec, -1")
        e("s_branch L_A_nh")
    e.cond(f"s_cmp_eq_u32 s{sTT}, 0", halo)
    for h in range(2): e(f"ds_read_b128 {vr(KP+4*h,4)}, v{vKA} offset:{6*8192 + h*1024}")
    e(f"s_mov_b64 exec, {sr(sEX)}")
    for h in range(2): e(f"ds_read_b128 {vr(VP+4*h,4)}, v{vVA} offset:{6*8192 + 1024 + h*256}")
    e("s_mov_b64 exec, -1")
    e.label("L_A_nh")
    e("s_waitcnt lgkmcnt(0)")
    def a_body(slow):
        def exs(s_, rs, h):
            for r in rs:
                if slow: e(f"v_sub_f32 v{s_+r}, v{s_+r}, v{vFL+h}")
                e(f"v_exp_f32 v{s_+r}, v{s_+r}")
        lab = "L_A_s2" if slow else "L_A_f2"
        for h in range(2): mfma(vS+16*h, vK+4*h, vQ2+4*h, vML)
        if slow: e("s_nop 10")
        for h in range(2):
            if not slow:
                for i in range(4*h, 4*h+4): wo_piece(i)
            exs(vS+16*h, range(16), h); cvt8(vP+8*h, vS+16*h, 8); e("s_nop 1")
            mfma(vO+16*h, vV+8*h, vP+8*h, "0"); mfma(vO+16*h, vV+8*h+4, vP+8*h+4, vO+16*h)
        e("s_waitcnt vmcnt(8)")
        e(f"s_cmp_eq_u32 s{sT}, 0"); e(f"s_cbranch_scc1 {lab}")
        e.stamp(13)
        for h in range(2): mfma(vS+16*h, KP+4*h, vQ2+4*h, vMF)
        e("s_nop 10")
        for h in range(2):
            exs(vS+16*h, range(8, 16), h); cvt8(vP+8*h+4, vS+16*h+8); e("s_nop 1")
            mfma(vO+16*h, VP+4*h, vP+8*h+4, vO+16*h)
        e.label(lab)
        e("s_nop 11")
        for h in range(2): norm(vO+16*h, vP+4*h)
    a_body(False)
    check([vO, vO+16], "L_A_slow")
    e.label("L_A_ok")
    e(f"buffer_store_dwordx4 {vr(vP,4)}, v{vL16}, {srd(SWS)}, s{sOA} offen sc1")
    e(f"buffer_store_dwordx4 {vr(vP+4,4)}, v{vL16}, {srd(SWS)}, s{sOA} offen offset:1024 sc1")
    e.stamp(7)
    def aflags():
        e("s_waitcnt vmcnt(0)")
        e("s_mov_b32 exec_hi, 0")
        e(f"buffer_store_dwordx2 {vr(vNON,2)}, v{vL8}, {srd(SWS)}, s{sF2} offen sc1")
        e("s_mov_b64 exec, -1")
        e.stamp(8)
        e("s_barrier")
    e.cond(f"s_cmp_ge_u32 s{sW}, 4", lambda: (aflags(), e("s_branch L_stamps" if O.stamps else "s_endpgm")))
    e(f"s_and_b32 s{sHM}, s{sJ}, 3")
    p3_setup()
    aflags()
    e(f"s_mov_b32 s{sNR}, -1")
    poll3(0xffffffff, 0xffffffff)
    p3_first()
    return a_body, KP

vA, vB, vO0, vO1, vF = 2, 3, 7, 5, 10
sO3, sF3, sOUT3, sHM = sIG, sIF, sOA, sPEND
A0, A1 = 40, 56
vTW, vTR = 18, 17
OF = 136; WB = 72
sCUR = (sVMK, sVMK+1); sNXT = sVMK+5; sHB = sVMK+4; sPASS = sVMK+6
SLD = SDUM
vW = ((0, 4), (6, 16))
def f3_addr():
    e(f"s_lshl_b32 s{sT0}, s{sBR}, 6"); e(f"s_add_u32 s{sT0}, s{sT0}, s{sT3P}")
    e(f"s_lshl_b32 s{sO3}, s{sT0}, 15"); e(f"s_add_u32 s{sO3}, s{sO3}, {WS_O}")
    e(f"s_lshl_b32 s{sF3}, s{sT0}, 12"); e(f"s_add_u32 s{sF3}, s{sF3}, {WS_F2}")
    e(f"v_lshlrev_b32 v{vF}, 7, v{vL}")
def group(dst):
    e(f"s_brev_b32 s{sHB}, s{sHM}"); e(f"s_lshr_b32 s{sHB}, s{sHB}, 20")
    e(f"s_add_u32 s{dst}, s{sHB}, s{sO3}")
    e(f"s_add_u32 s{sHM}, s{sHM}, 1"); e(f"s_and_b32 s{sHM}, s{sHM}, 3")
def wbase(buf, src):
    e(f"s_and_b32 s{sT0}, s{src}, 0xc00"); e(f"s_lshl_b32 s{sT0}, s{sT0}, 1")
    e(f"v_add_u32 v{vW[buf][0]}, s{sT0}, v{vA}"); e(f"v_add_u32 v{vW[buf][1]}, s{sT0}, v{vB}")
def o_ld(buf, k, base, s_):
    if k: e(f"s_add_u32 s{sT0}, s{base}, {k*4096}")
    e(f"buffer_load_dwordx4 {vr(OF+32*buf+4*k,4)}, v{vL16}, {srd(s_)}, s{sT0 if k else base} offen sc1")
def p3_first():
    for k in range(8): o_ld(0, k, sNXT, SWS)
sNR = sVMK + 7
def poll3(need, look):
    L = e.newlab("L_poll"); D = L + "d"
    e(f"s_mov_b32 s{sCNT}, 0"); e("s_mov_b32 exec_hi, 0")
    e.label(L)
    e(f"s_and_b32 s{sT0}, s{sNR}, {need:#x}"); e(f"s_cbranch_scc0 {D}")
    e(f"s_and_b32 exec_lo, s{sNR}, {look:#x}")
    e(f"buffer_load_dwordx2 {vr(vFL,2)}, v{vF}, {srd(SWS)}, s{sF3} offen sc1")
    e(f"s_add_u32 s{sCNT}, s{sCNT}, 1")
    e("s_waitcnt vmcnt(0)")
    e(f"v_cmp_eq_u64 vcc, {sr(sNON)}, {vr(vFL,2)}")
    e(f"s_andn2_b32 s{sNR}, s{sNR}, vcc_lo")
    if O.sleep: e(f"s_sleep {O.sleep}")
    e(f"s_cmp_gt_u32 s{sCNT}, {O.pollmax}"); e(f"s_cbranch_scc0 {L}")
    e.label(D)
    e("s_mov_b64 exec, -1")
def p3_setup():
    e(f"v_mov_b32 v{vFL+3}, {L_KV}")
    for i in range(32): e(f"v_mov_b32 v{A0+i}, 0")
    f3_addr()
    group(sNXT)
    e(f"s_mov_b64 {sr(SLD)}, {sr(SWS)}"); e(f"s_mov_b32 s{SLD+2}, s{SWS+2}"); e(f"s_mov_b32 s{sPASS}, s{sBR}")
    e(f"v_bfe_u32 v{vU0}, v{vL}, 2, 2"); e(f"v_lshlrev_b32 v{vA}, 6, v{vU0}")
    e(f"v_and_b32 v{vU0}, 1, v{vL}"); e(f"v_mul_u32_u24 v{vU0}, 544, v{vU0}"); e(f"v_add_u32 v{vA}, v{vA}, v{vU0}")
    e(f"v_bfe_u32 v{vU0}, v{vL}, 4, 1"); e(f"v_lshl_add_u32 v{vA}, v{vU0}, 4, v{vA}")
    e(f"v_bfe_u32 v{vU0}, v{vL}, 1, 1"); e(f"v_lshl_add_u32 v{vA}, v{vU0}, 3, v{vA}")
    e(f"v_lshrrev_b32 v{vU0}, 5, v{vL}"); e(f"v_lshl_add_u32 v{vA}, v{vU0}, 8, v{vA}")
    e(f"v_xor_b32 v{vB}, 32, v{vA}")
    if O.tpose:
        e(f"s_lshl_b32 s{sT0}, s{sW}, 12"); e(f"s_add_u32 s{sT0}, s{sT0}, {L_KV}")
        e(f"v_mul_u32_u24 v{vU0}, 6, v{vU0}"); e(f"v_and_b32 v{vU1}, 7, v{vL}"); e(f"v_xor_b32 v{vU0}, v{vU0}, v{vU1}")
        e(f"v_and_b32 v{vTW}, 31, v{vL}"); e(f"v_lshlrev_b32 v{vTW}, 7, v{vTW}"); e(f"v_lshl_add_u32 v{vTW}, v{vU0}, 4, v{vTW}"); e(f"v_add_u32 v{vTW}, s{sT0}, v{vTW}")
        for i in range(1, 4): e(f"v_xor_b32 v{vTW+i}, {16*i}, v{vTW}")
        e(f"v_lshrrev_b32 v{vU0}, 3, v{vL}"); e(f"v_xor_b32 v{vTR}, v{vU0}, v{vU1}"); e(f"v_lshlrev_b32 v{vTR}, 4, v{vTR}")
        e(f"v_lshl_add_u32 v{vTR}, v{vU0}, 7, v{vTR}"); e(f"v_add_u32 v{vTR}, s{sT0}, v{vTR}")
        e(f"v_lshlrev_b32 v{vO0}, 11, v{vU0}"); e(f"v_lshl_add_u32 v{vO0}, v{vU1}, 4, v{vO0}")
    else:
        e(f"v_and_b32 v{vO0}, 31, v{vL}"); e(f"v_lshlrev_b32 v{vO0}, 11, v{vO0}"); e(f"v_mul_u32_u24 v{vU0}, 96, v{vU0}"); e(f"v_add_u32 v{vO0}, v{vO0}, v{vU0}")
        e(f"v_xor_b32 v{vO1}, 32, v{vO0}")
    e(f"s_lshl_b32 s{sOUT3}, s{sT3P}, 16"); e(f"s_lshl_b32 s{sT1}, s{sBR}, 10"); e(f"s_add_u32 s{sOUT3}, s{sOUT3}, s{sT1}")
    e(f"s_and_b32 s{sT1}, s{sJ}, 7"); e(f"s_lshl_b32 s{sT1}, s{sT1}, 7"); e(f"s_add_u32 s{sOUT3}, s{sOUT3}, s{sT1}")
    wbase(0, sNXT)

def lds_wait(off, val):
    L = e.newlab("L_lw"); D = L + "d"
    e(f"s_mov_b32 s{sCNT}, 0")
    e.label(L)
    e(f"ds_read_b32 v{vFL}, v{vFL+3} offset:{off}")
    e(f"s_add_u32 s{sCNT}, s{sCNT}, 1"); e(f"s_cmp_gt_u32 s{sCNT}, {O.pollmax*8}")
    e("s_waitcnt lgkmcnt(0)")
    e(f"v_cmp_ne_u32 vcc, {val}, v{vFL}")
    e(f"s_cbranch_scc1 {D}")
    e(f"s_cbranch_vccz {D}"); e("s_sleep 1"); e(f"s_branch {L}")
    e.label(D)

def p3():
    e.c("---- P3 (waves 0..3)")
    def wrd(buf, k):
        for ct in range(2):
            d = WB + 8*k + 4*ct
            e(f"ds_read_b64_tr_b16 {vr(d,2)}, v{vW[buf][ct]} offset:{k*8192}")
            e(f"ds_read_b64_tr_b16 {vr(d+2,2)}, v{vW[buf][ct]} offset:{k*8192 + 1024}")
    def mm(buf, late=False):
        if not late: group(sNXT)
        if not (late and buf): wbase(buf ^ 1, sNXT)
        for kk in range(8):
            o = OF+32*buf+4*kk
            e(f"s_waitcnt vmcnt({15 - 8*buf - kk if late else 7}) lgkmcnt(12)")
            mfma(A0, WB + 8*kk, o, A0)
            if not late: o_ld(buf ^ 1, kk, sNXT, SLD)
            mfma(A1, WB + 8*kk + 4, o, A1)
            if kk < 4: wrd(buf, kk+4)
            else: wrd(buf ^ 1, kk-4)
    e.label("L_p3go")
    for k in range(4): wrd(0, k)
    e.stamp(9); e.stamp(13, 7)
    e.label("L_p3loop")
    def late():
        e.stamp(5, 7)
        poll3(0xaaaaaaaa, 0xaaaaaaaa); e.stamp(10); e.stamp(7, 7)
        for k in range(8): o_ld(0, k, sNXT, SWS)
        e(f"s_add_u32 s{sNXT}, s{sNXT}, 0x800")
        for k in range(8): o_ld(1, k, sNXT, SWS)
        e.stamp(8, 7)
        e("s_branch L_p3late")
    e.cond(f"s_cmp_eq_u32 s{sPASS}, 3", late)
    mm(0)
    e.stamp(2, 7)
    e.cond(f"s_cmp_lg_u32 s{sPASS}, 0", lambda: e(f"s_mov_b32 s{SLD+2}, 0"))
    mm(1)
    e(f"s_bitcmp1_b32 s{sPASS}, 1"); e(f"s_bitset1_b32 s{sPASS}, 1"); e("s_cbranch_scc0 L_p3loop")
    e("s_branch L_p3out")
    e.label("L_p3late")
    mm(0, True); mm(1, True)
    e.label("L_p3out")
    e.stamp(9, 7)
    e("s_waitcnt lgkmcnt(0)")
    e("s_nop 9")
    cvt8(72, A0, 8); cvt8(80, A1, 8)
    fl = " sc1" if O.outsc == 1 else (" nt" if O.outsc == 2 else "")
    if O.tpose:
        for i in range(4): e(f"ds_write_b128 v{vTW+i}, {vr(72+4*i,4)}")
        for i in range(4): e(f"ds_read_b128 {vr(88+4*i,4)}, v{vTR} offset:{i*1024}")
        for i in range(4):
            e(f"s_waitcnt lgkmcnt({3-i})")
            e(f"buffer_store_dwordx4 {vr(88+4*i,4)}, v{vO0}, {srd(SOUT)}, s{sOUT3} offen{fl}")
            if i < 3: e(f"s_add_u32 s{sOUT3}, s{sOUT3}, 0x4000")
    else:
        for i in range(4): e(f"buffer_store_dwordx4 {vr(72+4*i,4)}, v{(vO0, vO1)[i//2]}, {srd(SOUT)}, s{sOUT3} offen offset:{16*(i%2)}{fl}")
    if O.stamps:
        e.stamp(10, 7); e("s_waitcnt vmcnt(0)"); e.stamp(11); e.stamp(11, 7)
        e.label("L_stamps")
        e(f"s_memrealtime {sr(sVM)}"); e("s_waitcnt lgkmcnt(0)")
        e(f"s_lshl_b32 s{sT0}, s2, 3"); e(f"s_add_u32 s{sT0}, s{sT0}, s{sW}"); e(f"s_lshl_b32 s{sT0}, s{sT0}, 6"); e(f"s_add_u32 s{sT0}, s{sT0}, {WS_ST}")
        e("s_mov_b64 exec, 1")
        for i in range(1, 14):
            e(f"s_sub_u32 s{sT1}, s{ST0+2*i}, s{ST0}"); e(f"v_mov_b32 v{vU1}, s{sT1}")
            e(f"buffer_store_dword v{vU1}, off, {srd(SWS)}, s{sT0} offset:{4*i}")
        e(f"v_mov_b32 v{vU1}, s100"); e(f"buffer_store_dword v{vU1}, off, {srd(SWS)}, s{sT0} offset:56")
        e(f"v_mov_b32 v{vU1}, s{sVM}"); e(f"buffer_store_dword v{vU1}, off, {srd(SWS)}, s{sT0} offset:60")
    e.label("L_end")
    e("s_endpgm")
    e.flush()

def xmax(reg):
    e(f"v_mov_b32 v{vFL+2}, v{reg}"); e("s_nop 1")
    e(f"v_permlane32_swap_b32 v{vFL+2}, v{reg}"); e("s_nop 1")
    e(f"v_max_f32 v{reg}, v{reg}, v{vFL+2}")

def slow_paths(a_body, KP):
    e.c("---- rare path: the stand-in max was unsafe, redo the unit with the true row max")
    for u in range(2):
        e.label(f"L_B_slow{u}")
        e(f"s_mov_b32 s{sU}, {u}")
        for i in range(4): e(f"v_mov_b32 v{vQ+i}, v{vQ2+4*u+i}")
        if u == 0: e("s_branch L_B_slow")
    e.label("L_B_slow")
    e("s_waitcnt vmcnt(0)")
    prefill(range(vV, vV+16))
    e(f"v_mov_b32 v{vFL}, {NEG}")
    for ps in range(2):
        for i in range(9):
            if i > 0: e(f"s_cmp_gt_u32 {i}, s{sT}"); e(f"s_cbranch_scc1 L_B_s{ps}")
            rdK(i)
            if ps: rdV(i, dyn=False)
            e("s_waitcnt lgkmcnt(0)")
            mfma(vS, vK+4*(i%2), vQ, vML if i == 0 else (vMF if i == 8 else "0"))
            e("s_nop 11")
            if ps == 0:
                for r in range(0, 16, 2): e(f"v_max3_f32 v{vFL}, v{vFL}, v{vS+r}, v{vS+r+1}")
            else:
                for r in range(16): e(f"v_sub_f32 v{vS+r}, v{vS+r}, v{vFL}")
                for r in range(16): e(f"v_exp_f32 v{vS+r}, v{vS+r}")
                cvt8(vP, vS, 8); e("s_nop 1")
                mfma(vO, vV+8*(i%2), vP, vO if i > 0 else "0"); mfma(vO, vV+8*(i%2)+4, vP+4, vO)
        e.label(f"L_B_s{ps}")
        if ps == 0: xmax(vFL)
    e("s_nop 11")
    norm(vO, vP)
    e(f"s_cmp_eq_u32 s{sU}, 0"); e("s_cbranch_scc1 L_B_ok0")
    e("s_branch L_B_ok1")
    e.label("L_A_slow")
    for h in range(2):
        e(f"v_mov_b32 v{vFL+h}, {NEG}")
        mfma(vS, vK+4*h, vQ2+4*h, vML); e("s_nop 11")
        for r in range(0, 16, 2): e(f"v_max3_f32 v{vFL+h}, v{vFL+h}, v{vS+r}, v{vS+r+1}")
        e(f"s_cmp_eq_u32 s{sT}, 0"); e(f"s_cbranch_scc1 L_A_m{h}")
        mfma(vS, KP+4*h, vQ2+4*h, vMF); e("s_nop 11")
        for r in range(8, 16, 2): e(f"v_max3_f32 v{vFL+h}, v{vFL+h}, v{vS+r}, v{vS+r+1}")
        e.label(f"L_A_m{h}")
        xmax(vFL+h)
    a_body(True)
    e("s_branch L_A_ok")

prologue(); p1(); ab = attention(); p3(); slow_paths(*ab)
e("s_endpgm")

hdr = open("cdna_kernels/" + NAME + ".s.ref").read().split("; Override launch geometry")[0]
out = hdr + f"; @launch grid=(256,1,1) block=(512,1,1) lds={LDS_BYTES}\n"
out += f""".amdgcn_target "amdgcn-amd-amdhsa--gfx950"
.text
.globl {NAME}_kernel
.p2align 8
.type {NAME}_kernel,@function
{NAME}_kernel:
""" + "\n".join(e.L) + f"""
.section .rodata,"a"
.p2align 6
.amdhsa_kernel {NAME}_kernel
  .amdhsa_next_free_vgpr 256
  .amdhsa_next_free_sgpr {102 if O.stamps else 72}
  .amdhsa_accum_offset 256
  .amdhsa_group_segment_fixed_size 0
  .amdhsa_kernarg_size 72
  .amdhsa_user_sgpr_count 2
  .amdhsa_user_sgpr_kernarg_segment_ptr 1
  .amdhsa_system_sgpr_workgroup_id_x 1
.end_amdhsa_kernel
"""
open(sys.argv[1], "w").write(out)
```

```python
import sys
NAME = "concat_heads__sliding_local_dilated__sliding_block__prompt"

class Opt:
    stamps = 0
    force_slow = 0
    pollmax = 400000
    only = 0
    delayA = 7
    lag = 6
    kflag = 50
    kchk = 65
    imp = 87
    oflag = 2
    vpos = 2
    uni = 0
    xspan = 1
    torder = 0
    tseq = 0
    tn = 10
    tnt = 0
    rotA = 1
    yprio = 0
    prew = 52
    imp1 = 77
    fair = 1
    tpose = 1
    pdelay = 0
    spin = 0
    smp_at = 7
    wo_at = 5
    tch_at = 4
    quiet = 1
    prio = 0
    outsc = 0
    stag = 0
    sleep = 0
O = Opt()
for a in sys.argv[2:]:
    k, v = a.split("="); assert hasattr(O, k), k
    setattr(O, k, int(v))

WS_O = 8 << 20
WS_F1 = 12 << 20
F1V = 262144
WS_F2 = WS_F1 + 524288
WS_ST = 13 << 20
WS_BYTES = 14 << 20
LDS_BYTES = 163840
L_WV = 65536; L_WK = 131072; L_KV = 65536

class E:
    def __init__(s): s.L = []; s.vq = []; s.lq = []; s.lab = 0; s.ool = []
    def __call__(s, t): s.L.append("    " + t)
    def label(s, n): s.L.append(n + ":")
    def c(s, t): s.L.append("    ; " + t)
    def vm(s, t, tag): s(t); s.vq.append(tag)
    def ds(s, t, tag): s(t); s.lq.append(tag)
    def _n(s, q, tag): return len(q) - 1 - max(i for i, x in enumerate(q) if x == tag)
    def wait_vm(s, tag):
        if tag not in s.vq: return
        n = s._n(s.vq, tag); assert n <= 63
        s(f"s_waitcnt vmcnt({n})"); s.vq = s.vq[len(s.vq)-n:]
    def wait_ds(s, tag):
        if tag not in s.lq: return
        n = s._n(s.lq, tag); assert n <= 15
        s(f"s_waitcnt lgkmcnt({n})"); s.lq = s.lq[len(s.lq)-n:]
    def wait_all(s): s("s_waitcnt vmcnt(0)"); s.vq = []
    def ds_all(s): s("s_waitcnt lgkmcnt(0)"); s.lq = []
    def stamp(s, i, mode=1):
        if O.stamps == mode: s(f"s_memtime s[{ST0+2*i}:{ST0+1+2*i}]")
    def newlab(s, p): s.lab += 1; return f"{p}_{s.lab}"
    def cond(s, cmp_, body):
        L = s.newlab("L_c"); s(cmp_); s(f"s_cbranch_scc1 {L}"); s.label(L + "r")
        s.ool.append((L, body))
    def flush(s):
        while s.ool:
            L, body = s.ool.pop(0)
            s.label(L); body(); s(f"s_branch {L}r")
e = E()
def vr(a, n): return f"v[{a}:{a+n-1}]"
def sr(a): return f"s[{a}:{a+1}]"
def srd(a): return f"s[{a}:{a+3}]"

SX, SW, SWO, SOUT, SWS, SDBG = 8, 12, 16, 20, 24, 28
SEXP = 8
SOWO = 28
sF1, sKV = 0, 1
sBR, sRB, sG, sW, sM0 = 3, 4, 5, 6, 7
sCX = 32; sCW = 40; sVMK = 32
sNON = 48
sT0, sT1, sT2, sT3 = 50, 51, 52, 53
sJ, sXCD, sTT, sFT, sCNT, sT = 54, 55, 56, 57, 58, 59
sEX = 60; sVM = 62
sIG, sIF, sIMP, sPEND = 64, 65, 66, 67
sOA, sF2 = 68, 69
sOW = 70
sU = 53
sT3P = 55
ST0 = 72
SOTH = 20
SIMP = 12
SDUM = 12
vL, vX0, vX1, vW0, vWR, vWR1, vWR2, vXR, vL16 = 1, 2, 3, 4, 5, 6, 7, 8, 12
vT0, vT1, vT2 = 13, 14, 15
vNON = 14
vEXP = 0
vKA, vVA, vKA8, vVA8 = 2, 3, 0, 7
vWO = 4
vFL = 8
vQ2 = 16; vCV = 24; vP = 24; vQ = 32
vML, vMF = 40, 56
accA, accB = 72, 88
vS = 72
WF = [104, 108, 112, 116, 120, 124, 16, 20]
vXF = 128
vO = 104; vK = 136; vV = 144; PB = 160; PZ = 240
vU0, vU1, vU2 = 36, 37, 38
vL8 = 13
NEG = "0xff800000"

def mfma(d, a, b, c): e(f"v_mfma_f32_32x32x16_bf16 {vr(d,16)}, {vr(a,4)}, {vr(b,4)}, {c if isinstance(c,str) else vr(c,16)}")
def dma(v, s_, soff, ldsdst, tag):
    e(f"s_add_u32 m0, s{sM0}, {ldsdst}"); e("s_nop 0")
    e.vm(f"buffer_load_dwordx4 v{v}, {srd(s_)}, s{soff} offen lds", tag)
def st_pieces(t):
    sl = t % 4
    return [lambda: dma(vX0, SX, sCX+t, sl*16384, f"st{t}"),
            lambda: dma(vW0, SW, sCW+t, L_WK + sl*8192, f"st{t}"),
            lambda: dma(vX1, SX, sCX+t, sl*16384 + 8192, f"st{t}")]
def cvt(dst, src, i): e(f"v_cvt_pk_bf16_f32 v{dst+i}, v{src+2*i}, v{src+2*i+1}")
def cvt8(dst, src, n=4):
    for i in range(n): cvt(dst, src, i)

def masks(kind):
    e(f"v_and_b32 v{vT0}, 31, v{vL}"); e(f"v_lshrrev_b32 v{vT1}, 5, v{vL}")
    e(f"v_lshlrev_b32 v{vT1}, 2, v{vT1}"); e(f"v_sub_u32 v{vT0}, v{vT0}, v{vT1}")
    if kind == "B":
        e(f"s_mov_b32 s{sT0}, {NEG}")
        for r in range(16):
            c = 8*(r >> 2) + (r & 3)
            e(f"v_subrev_u32 v{vT1}, {c}, v{vT0}"); e(f"v_and_b32 v{vML+r}, s{sT0}, v{vT1}"); e(f"v_xor_b32 v{vMF+r}, s{sT0}, v{vML+r}")
    else:
        e(f"s_mov_b32 s{sT0}, 0xf149f2ca")
        for r in range(16):
            c = 8*(r >> 2) + (r & 3)
            e(f"v_subrev_u32 v{vT1}, {c}, v{vT0}"); e(f"v_and_b32 v{vT1}, -15, v{vT1}"); e(f"v_cvt_f32_u32 v{vT1}, v{vT1}"); e(f"v_mul_f32 v{vML+r}, s{sT0}, v{vT1}")
            if r >= 8:
                e(f"v_add_u32 v{vT1}, {32-c}, v{vT0}"); e(f"v_and_b32 v{vT1}, -15, v{vT1}"); e(f"v_cvt_f32_u32 v{vT1}, v{vT1}"); e(f"v_mul_f32 v{vMF+r}, s{sT0}, v{vT1}")
            else:
                e(f"v_mov_b32 v{vMF+r}, s{sT0}")

def prologue():
    e("s_cmp_ge_u32 s2, 256"); e("s_cbranch_scc1 L_end")
    if O.only == 1: e("s_cmp_ge_u32 s2, 128"); e("s_cbranch_scc1 L_end")
    if O.stamps: e(f"s_memtime {sr(ST0)}"); e("s_memrealtime s[100:101]")
    if O.spin: e("s_memrealtime s[72:73]")
    e("s_load_dwordx16 s[32:47], s[0:1], 0"); e("s_load_dwordx2 s[24:25], s[0:1], 64")
    e(f"v_lshrrev_b32 v{vT0}, 6, v0"); e(f"v_and_b32 v{vL}, 63, v0")
    e(f"v_readfirstlane_b32 s{sW}, v{vT0}")
    e(f"s_and_b32 s{sXCD}, s2, 7"); e(f"s_lshr_b32 s{sJ}, s2, 3")
    e(f"s_lshr_b32 s{sT0}, s{sXCD}, 1"); e(f"s_lshl_b32 s{sT0}, s{sT0}, 2"); e(f"s_bfe_u32 s{sT1}, s{sJ}, 0x20002")
    e(f"s_add_u32 s{sRB}, s{sT0}, s{sT1}")
    e(f"s_and_b32 s{sT0}, s{sXCD}, 1"); e(f"s_lshl_b32 s{sT0}, s{sT0}, 2"); e(f"s_and_b32 s{sT2}, s{sJ}, 3")
    e(f"s_add_u32 s{sG}, s{sT0}, s{sT2}")
    e(f"s_add_u32 s{sT3}, s{sT1}, s{sT2}"); e(f"s_lshl_b32 s{sT3}, s{sT3}, 1")
    e(f"s_lshl_b32 s{sM0}, s{sW}, 10")
    e(f"v_lshrrev_b32 v{vT0}, 4, v{vL}")
    e(f"s_and_b32 s{sT0}, s{sW}, 1"); e(f"s_lshl_b32 s{sT0}, s{sT0}, 2")
    e(f"v_add_u32 v{vT0}, s{sT0}, v{vT0}")
    e(f"v_and_b32 v{vT1}, 7, v{vL}"); e(f"v_xor_b32 v{vT0}, v{vT0}, v{vT1}"); e(f"v_lshlrev_b32 v{vT0}, 4, v{vT0}")
    e(f"v_lshrrev_b32 v{vT1}, 3, v{vL}"); e(f"v_lshl_add_u32 v{vX0}, v{vT1}, 10, v{vT0}")
    e(f"s_lshl_b32 s{sT0}, s{sW}, 13"); e(f"v_add_u32 v{vX0}, s{sT0}, v{vX0}"); e(f"v_add_u32 v{vX1}, 0x10000, v{vX0}")
    e(f"v_bfe_u32 v{vT0}, v{vL}, 2, 3")
    e(f"s_lshl_b32 s{sT0}, s{sW}, 3"); e(f"v_add_u32 v{vT0}, s{sT0}, v{vT0}")
    e(f"v_lshrrev_b32 v{vT1}, 5, v{vL}"); e(f"v_lshlrev_b32 v{vT1}, 6, v{vT1}")
    e(f"v_and_b32 v{vT2}, 3, v{vL}"); e(f"v_lshl_add_u32 v{vT1}, v{vT2}, 4, v{vT1}")
    e(f"v_mul_u32_u24 v{vW0}, 3072, v{vT0}"); e(f"v_add_u32 v{vW0}, v{vW0}, v{vT1}"); e(f"v_add_u32 v{vW0}, 0x400, v{vW0}")
    e(f"s_mov_b32 s{SX+2}, {2048*1024}"); e(f"s_mov_b32 s{SX+3}, 0x20000")
    e(f"s_mov_b32 s{SW+2}, {512*3072}"); e(f"s_mov_b32 s{SW+3}, 0x20000")
    e(f"s_mov_b32 s{SOTH+3}, 0x20000")
    e(f"s_lshl_b32 s{sT0}, s{sRB}, 17"); e(f"s_lshl_b32 s{sT1}, s{sG}, 7")
    e(f"s_cmp_lt_u32 s2, 128"); e(f"s_cselect_b32 s{sBR}, 1, 0")
    e(f"s_cselect_b32 s{sT3}, 0, s{sT3}")
    e("s_waitcnt lgkmcnt(0)")
    e(f"s_cselect_b64 {sr(SX)}, s[38:39], s[32:33]")
    e(f"s_cselect_b64 {sr(SW)}, s[40:41], s[34:35]")
    e(f"s_cselect_b64 {sr(SWO)}, s[42:43], s[36:37]")
    e(f"s_cselect_b64 {sr(sOW)}, s[36:37], s[42:43]")
    e(f"s_mov_b64 {sr(SDBG)}, s[46:47]")
    e("s_cbranch_scc1 L_notouch")
    sp = O.xspan
    e(f"v_lshrrev_b32 v{vT0}, {sp}, v{vL}"); e(f"v_lshlrev_b32 v{vT0}, 10, v{vT0}")
    e(f"v_and_b32 v{vT1}, {(1 << sp) - 1}, v{vL}"); e(f"v_lshl_add_u32 v{vT0}, v{vT1}, 7, v{vT0}")
    e(f"v_lshrrev_b32 v{vT1}, 4, v{vL}"); e(f"v_bfe_u32 v{vT2}, v{vL}, 2, 2"); e(f"v_lshl_add_u32 v{vT1}, v{vT1}, 6, v{vT2}")
    e(f"v_mul_u32_u24 v{vT1}, 3072, v{vT1}"); e(f"v_and_b32 v{vT2}, 3, v{vL}"); e(f"v_lshl_add_u32 v{vT1}, v{vT2}, 7, v{vT1}")
    sXB, sWB = sIG, sIF
    e(f"s_and_b32 s{sXB}, s{sG}, 3"); e(f"s_lshl_b32 s{sXB}, s{sXB}, 15"); e(f"s_add_u32 s{sXB}, s{sXB}, s{sT0}")
    e(f"s_and_b32 s{sWB}, s{sJ}, 15"); e(f"s_mul_i32 s{sWB}, s{sWB}, {4*3072}"); e(f"s_and_b32 s{sT2}, s{sT1}, 512"); e(f"s_add_u32 s{sWB}, s{sWB}, s{sT2}")
    code = {0: [8, 2, 9, 10, 3, 11, 4, 5, 0, 1], 1: [8, 9, 10, 11, 2, 3, 4, 5, 0, 1]}[O.torder]
    items = [(1, c) for c in code] + [(0, c) for c in code]
    if O.tseq == 1:
        items = [(1, c) for c in code[:8]] + [(0, c) for c in code[:6]] + [(1, c) for c in code[8:]] + [(0, c) for c in code[6:]]
    items = items[:O.tn]
    for r in range((len(items) + 7) // 8):
        rnd = items[8*r:8*r+8]
        pk = sum(c << (4*i) for i, (b_, c) in enumerate(rnd)); bm = sum(b_ << i for i, (b_, c) in enumerate(rnd))
        if len(rnd) < 8: e(f"s_cmp_ge_u32 s{sW}, {len(rnd)}"); e(f"s_cbranch_scc1 L_t{r}d")
        e(f"s_lshl_b32 s{sT2}, s{sW}, 2"); e(f"s_lshr_b32 s{sT2}, {pk:#x}, s{sT2}")
        e(f"s_bitcmp1_b32 s{sT2}, 3"); e(f"s_cbranch_scc1 L_t{r}x")
        e(f"s_bitcmp1_b32 {bm:#x}, s{sW}"); e(f"s_cselect_b64 {sr(SOTH)}, s[40:41], s[34:35]"); e(f"s_mov_b32 s{SOTH+2}, {512*3072}")
        e(f"s_and_b32 s{sCNT}, s{sT2}, 1"); e(f"s_mul_i32 s{sCNT}, s{sCNT}, {256*3072}"); e(f"s_add_u32 s{sCNT}, s{sCNT}, s{sWB}")
        e(f"s_and_b32 s{sT2}, s{sT2}, 6"); e(f"s_lshl_b32 s{sT2}, s{sT2}, 9"); e(f"s_add_u32 s{sCNT}, s{sCNT}, s{sT2}")
        e(f"buffer_load_dword v{250+r}, v{vT1}, {srd(SOTH)}, s{sCNT} offen{' nt' if O.tnt else ''}")
        e(f"s_branch L_t{r}d")
        e.label(f"L_t{r}x")
        e(f"s_bitcmp1_b32 {bm:#x}, s{sW}"); e(f"s_cselect_b64 {sr(SOTH)}, s[38:39], s[32:33]"); e(f"s_mov_b32 s{SOTH+2}, {2048*1024}")
        e(f"s_and_b32 s{sT2}, s{sT2}, 3")
        if sp == 2:
            e(f"s_and_b32 s{sCNT}, s{sT2}, 1"); e(f"s_lshl_b32 s{sCNT}, s{sCNT}, 14"); e(f"s_lshr_b32 s{sT2}, s{sT2}, 1"); e(f"s_lshl_b32 s{sT2}, s{sT2}, 9"); e(f"s_add_u32 s{sT2}, s{sT2}, s{sCNT}")
        else: e(f"s_lshl_b32 s{sT2}, s{sT2}, {8 if sp == 1 else 13}")
        e(f"s_add_u32 s{sCNT}, s{sT2}, s{sXB}")
        e(f"buffer_load_dword v{250+r}, v{vT0}, {srd(SOTH)}, s{sCNT} offen{' nt' if O.tnt else ''}")
        e.label(f"L_t{r}d")
        e("s_barrier")
    if not O.rotA: e(f"s_mov_b32 s{sT3}, 0")
    e.label("L_notouch")
    e(f"s_mov_b64 {sr(SOUT)}, s[44:45]")
    def chunk(t):
        e(f"s_add_u32 s{sT2}, s{sT3}, {t}"); e(f"s_and_b32 s{sT2}, s{sT2}, 7")
        e(f"s_lshl_b32 s{sCX+t}, s{sT2}, 7"); e(f"s_add_u32 s{sCX+t}, s{sCX+t}, s{sT0}")
        e(f"s_mul_i32 s{sCW+t}, s{sT2}, {64*3072}"); e(f"s_add_u32 s{sCW+t}, s{sCW+t}, s{sT1}")
    chunk(0)
    for p in st_pieces(0): p()
    e(f"s_mov_b32 s{SDBG+2}, 256"); e(f"s_mov_b32 s{SDBG+3}, 0x20000")
    e(f"s_xor_b32 s{sT2}, s{sW}, 7"); e(f"s_or_b32 s{sT2}, s2, s{sT2}")
    def tag():
        e(f"s_memrealtime {sr(sNON)}"); e("s_waitcnt lgkmcnt(0)")
        e(f"s_or_b32 s{sNON+1}, s{sNON+1}, 0x80000000")
        e(f"v_mov_b32 v{vCV}, s{sNON}"); e(f"v_mov_b32 v{vCV+1}, s{sNON+1}")
        e("s_mov_b64 exec, 1")
        e(f"buffer_store_dwordx2 {vr(vCV,2)}, off, {srd(SDBG)}, 0 sc1")
        e("s_mov_b64 exec, -1")
    e.cond(f"s_cmp_eq_u32 s{sT2}, 0", tag)
    chunk(1)
    for p in st_pieces(1): p()
    for t in range(2, 8): chunk(t)
    e(f"s_mov_b32 s{SWO+2}, {512*1024}"); e(f"s_mov_b32 s{SWO+3}, 0x20000")
    e(f"s_mov_b32 s{SOUT+2}, {2048*2048}")
    e(f"s_mov_b32 s{SWS+2}, {WS_BYTES}"); e(f"s_mov_b32 s{SWS+3}, 0x20000")
    e(f"s_lshr_b32 s{sFT}, s{sW}, 2"); e(f"s_mul_i32 s{sTT}, s{sFT}, 3"); e(f"s_and_b32 s{sT0}, s{sW}, 3"); e(f"s_xor_b32 s{sTT}, s{sTT}, s{sT0}")
    e(f"s_lshl_b32 s{sT}, s{sRB}, 2"); e(f"s_add_u32 s{sT}, s{sT}, s{sTT}")
    e(f"v_and_b32 v{vT0}, 31, v{vL}"); e(f"v_lshrrev_b32 v{vT1}, 5, v{vL}")
    e(f"v_bfe_u32 v{vT2}, v{vL}, 1, 3"); e(f"v_xor_b32 v{vT2}, v{vT2}, v{vT1}"); e(f"v_lshlrev_b32 v{vT2}, 4, v{vT2}")
    e(f"v_lshl_add_u32 v{vXR}, v{vT0}, 7, v{vT2}")
    e(f"s_lshl_b32 s{sT0}, s{sTT}, 12"); e(f"v_add_u32 v{vXR}, s{sT0}, v{vXR}")
    for s_ in range(1, 4): e(f"v_xor_b32 v{vXR+s_}, {s_*32}, v{vXR}")
    e(f"v_bfe_u32 v{vT2}, v{vL}, 2, 2"); e(f"v_lshlrev_b32 v{vWR}, 6, v{vT2}")
    e(f"v_bfe_u32 v{vT2}, v{vL}, 4, 1"); e(f"v_lshl_add_u32 v{vWR}, v{vT2}, 5, v{vWR}")
    e(f"v_and_b32 v{vT2}, 3, v{vL}"); e(f"v_lshl_add_u32 v{vWR}, v{vT2}, 3, v{vWR}")
    e(f"v_lshl_add_u32 v{vWR}, v{vT1}, 10, v{vWR}")
    e(f"s_lshl_b32 s{sT0}, s{sFT}, 9"); e(f"v_add_u32 v{vWR}, s{sT0}, v{vWR}")
    e(f"v_add_u32 v{vWR1}, 0x10000, v{vWR}"); e(f"v_add_u32 v{vWR2}, 0x20000, v{vWR}")
    e(f"v_lshlrev_b32 v{vL16}, 4, v{vL}")
    e(f"s_lshl_b32 s{sT0}, s{sTT}, 13"); e(f"s_lshl_b32 s{sT1}, s{sFT}, 11"); e(f"s_add_u32 s{sT0}, s{sT0}, s{sT1}")
    e(f"s_add_u32 s{sT0}, s{sT0}, {L_KV + 8*8192}"); e(f"v_add_u32 v{vEXP}, s{sT0}, v{vL16}")
    e(f"s_lshl_b32 s{sT0}, s{sBR}, 3"); e(f"s_add_u32 s{sT0}, s{sT0}, s{sG}"); e(f"s_lshl_b32 s{sT0}, s{sT0}, 6"); e(f"s_add_u32 s{sT0}, s{sT0}, s{sT}")
    e(f"s_lshl_b32 s{sKV}, s{sT0}, 13"); e(f"s_add_u32 s{sKV}, s{sKV}, s{sT1}")
    e(f"s_lshl_b32 s{sF1}, s{sT0}, 8"); e(f"s_lshl_b32 s{sT1}, s{sFT}, 7"); e(f"s_add_u32 s{sF1}, s{sF1}, s{sT1}"); e(f"s_add_u32 s{sF1}, s{sF1}, {WS_F1}")
    e(f"s_sub_u32 s{sT0}, s{sT0}, s{sTT}"); e(f"s_add_u32 s{sT0}, s{sT0}, s{sW}"); e(f"s_sub_u32 s{sT0}, s{sT0}, 8")
    e(f"s_lshl_b32 s{sT1}, s{sRB}, 2"); e(f"s_add_u32 s{sT1}, s{sT1}, s{sW}"); e(f"s_cmp_lt_u32 s{sT1}, 8"); e(f"s_cselect_b32 s{sIMP}, 1, 0")
    e(f"s_cselect_b32 s{sT0}, 0, s{sT0}")
    e(f"s_lshl_b32 s{sIG}, s{sT0}, 13"); e(f"s_lshl_b32 s{sIF}, s{sT0}, 8"); e(f"s_add_u32 s{sIF}, s{sIF}, {WS_F1 + 120}")
    e(f"s_cmp_eq_u32 s{sBR}, 0"); e(f"s_cselect_b32 s{sIMP}, 2, s{sIMP}")
    e(f"s_lshl_b32 s{sT0}, s{sBR}, 6"); e(f"s_add_u32 s{sT0}, s{sT0}, s{sT}")
    e(f"s_lshl_b32 s{sT1}, s{sT0}, 4"); e(f"s_lshl_b32 s{sT2}, s{sG}, 1"); e(f"s_add_u32 s{sT1}, s{sT1}, s{sT2}"); e(f"s_add_u32 s{sT1}, s{sT1}, s{sFT}")
    e(f"s_lshl_b32 s{sOA}, s{sT1}, 11"); e(f"s_add_u32 s{sOA}, s{sOA}, {WS_O}")
    e(f"s_lshl_b32 s{sF2}, s{sT1}, 8"); e(f"s_add_u32 s{sF2}, s{sF2}, {WS_F2}")
    e(f"s_mov_b32 s{sEX}, 0xffff"); e(f"s_mov_b32 s{sEX+1}, 0xffff")
    e(f"s_lshl_b32 s{sT0}, s{sXCD}, 1"); e(f"s_bfe_u32 s{sT1}, s{sJ}, 0x10003"); e(f"s_add_u32 s{sT0}, s{sT0}, s{sT1}")
    e(f"s_lshl_b32 s{sT0}, s{sT0}, 2"); e(f"s_and_b32 s{sT1}, s{sW}, 3"); e(f"s_add_u32 s{sT3P}, s{sT0}, s{sT1}")
    e(f"s_cmp_eq_u32 s{sBR}, 0"); e("s_cbranch_scc1 L_maskA")
    masks("B"); e("s_branch L_maskdone")
    e.flush()
    e.label("L_maskA"); masks("A")
    e.label("L_maskdone")
    e(f"v_lshlrev_b32 v{vL8}, 3, v{vL}")

def flag_store(soff, s_=SWS, off=0):
    e("s_mov_b64 exec, 0xffff")
    e.vm(f"buffer_store_dwordx2 {vr(vNON,2)}, v{vL8}, {srd(s_)}, s{soff} offen{f' offset:{off}' if off else ''} sc1", "flag")
    e("s_mov_b64 exec, -1")
def flag_ld(tag):
    e.vm(f"buffer_load_dwordx4 {vr(vFL,4)}, off, {srd(SWS)}, s{sIF} sc1", tag)
def flag_cmp():
    e(f"v_cmp_ne_u64 vcc, {sr(sNON)}, {vr(vFL,2)}"); e(f"v_cmp_ne_u64 {sr(sVM)}, {sr(sNON)}, {vr(vFL+2,2)}")
    e(f"s_or_b64 {sr(sVM)}, {sr(sVM)}, vcc")
def flag_poll():
    L = e.newlab("L_fp"); D = L + "d"
    e(f"s_mov_b32 s{sCNT}, 0")
    e.label(L)
    e(f"buffer_load_dwordx4 {vr(vFL,4)}, off, {srd(SWS)}, s{sIF} sc1")
    e(f"s_add_u32 s{sCNT}, s{sCNT}, 1"); e(f"s_cmp_gt_u32 s{sCNT}, {O.pollmax}"); e(f"s_cbranch_scc1 {D}")
    e("s_waitcnt vmcnt(0)")
    flag_cmp(); e(f"s_cbranch_scc1 {L}")
    e.label(D)
def imp_dma(v, track=None):
    e(f"s_lshl_b32 s{sT1}, s{sW}, 13"); e(f"s_add_u32 m0, s{sT1}, {L_KV + v*4096}")
    e(f"s_add_u32 s{sT0}, s{sIG}, {v*4096}")
    for k in range(4):
        t = f"buffer_load_dwordx4 v{vL16}, {srd(SIMP)}, s{sT0} offen offset:{k*1024} sc1 lds"
        if track: e.vm(t, track)
        else: e(t)

def p1():
    e.stamp(12)
    def rd(ks):
        G, s_ = divmod(ks, 4)
        w = WF[ks % 8]
        if G < 8:
            e.ds(f"ds_read_b128 {vr(vXF+4*ks,4)}, v{vXR+s_} offset:{(G%4)*16384}", f"w{ks}")
            b, off = vWR2, (G % 4)*8192 + s_*2048
        elif G < 16: b, off = vWR1, (G-8)*8192 + s_*2048
        else: b, off = vWR, (G-16)*8192 + s_*2048
        e.ds(f"ds_read_b64_tr_b16 {vr(w,2)}, v{b} offset:{off}", f"w{ks}")
        e.ds(f"ds_read_b64_tr_b16 {vr(w+2,2)}, v{b} offset:{off+256}", f"w{ks}")
    syncs = {G: (f"st{G}", True) for G in range(8)}
    syncs.update({8: ("wv1", True), 10: ("wv3", False), 12: ("wv7", False), 16: ("wq3", False), 20: ("wq7", "exp")})
    def sync(G):
        if G not in syncs: return
        tag, lg = syncs[G]
        e.wait_vm(tag)
        if lg is True: e.ds_all()
        elif lg: e.wait_ds(lg)
        e("s_barrier")
    gap = {k: [] for k in range(-1, 96)}
    def I(t): return lambda: e(t)
    def wv(t): return lambda: dma(vW0, SW, sCW+t, L_WV + t*8192, f"wv{t}")
    def wq(t): return lambda: dma(vW0, SW, sCW+t, t*8192, f"wq{t}")
    gap[-1] += st_pieces(2)
    for t in range(3, 8):
        for i, p in enumerate(st_pieces(t)): gap[4*(t-3) + i].append(p)
    gap[19].append(I(f"v_add_u32 v{vW0}, 0x400, v{vW0}"))
    for t, k in enumerate([20, 22, 24, 26, 28, 30, 32, 33]): gap[k].append(wv(t))
    gap[29].append(lambda: e.vm(f"buffer_load_dwordx2 {vr(vNON,2)}, off, {srd(SDBG)}, 0 sc1", "non"))
    gap[21] += [I(f"s_mov_b64 {sr(SEXP)}, {sr(SWS)}"), I(f"s_lshl_b32 s{sT0}, s{sBR}, 2"), I(f"s_or_b32 s{sT0}, s{sT0}, s{sTT}")]
    gap[23] += [I(f"s_cmp_ge_u32 s{sT0}, 3"), I(f"s_cselect_b32 s{SEXP+2}, s{SWS+2}, 0")]
    def export(k0, acc, tmp, off, tag):
        for i in range(4): gap[k0].append(lambda i=i: cvt(tmp, acc, i))
        if off: gap[k0].append(I(f"s_add_u32 s{sKV}, s{sKV}, {off}"))
        gap[k0+1].append(lambda: e.vm(f"buffer_store_dwordx4 {vr(tmp,4)}, v{vL16}, {srd(SEXP)}, s{sKV} offen sc1", tag))
        for i in range(4, 8): gap[k0+1].append(lambda i=i: cvt(tmp, acc, i))
        gap[k0+2].append(lambda: e.vm(f"buffer_store_dwordx4 {vr(tmp+4,4)}, v{vL16}, {srd(SEXP)}, s{sKV} offen offset:1024 sc1", tag))
        gap[k0+3].append(lambda: e.ds(f"ds_write_b128 v{vEXP}, {vr(tmp,4)} offset:{off}", "exp"))
        gap[k0+4].append(lambda: e.ds(f"ds_write_b128 v{vEXP}, {vr(tmp+4,4)} offset:{off+1024}", "exp"))
    export(34, accA, vCV, 0, "kst")
    gap[39].append(I(f"v_subrev_u32 v{vW0}, 0x800, v{vW0}"))
    for t, k in enumerate([40, 43, 46, 49, 54, 57, 60, 63]): gap[k].append(wq(t))
    def kflag():
        e.wait_vm("kst")
        e(f"v_readfirstlane_b32 s{sNON}, v{vNON}"); e(f"v_readfirstlane_b32 s{sNON+1}, v{vNON+1}")
        def late():
            L = e.newlab("L_tag"); D = L + "d"
            e(f"s_mov_b32 s{sCNT}, 0")
            e.label(L)
            e(f"buffer_load_dwordx2 {vr(vNON,2)}, off, {srd(SDBG)}, 0 sc1"); e("s_waitcnt vmcnt(0)")
            e(f"v_readfirstlane_b32 s{sNON}, v{vNON}"); e(f"v_readfirstlane_b32 s{sNON+1}, v{vNON+1}")
            e(f"s_add_u32 s{sCNT}, s{sCNT}, 1"); e(f"s_cmp_gt_u32 s{sCNT}, {O.pollmax}"); e(f"s_cbranch_scc1 {D}")
            e(f"s_cmp_eq_u32 s{sNON+1}, 0"); e(f"s_cbranch_scc1 {L}")
            e.label(D)
        e("s_nop 0")
        e.cond(f"s_cmp_eq_u32 s{sNON+1}, 0", late)
        flag_store(sF1, SEXP)
    gap[O.kflag].append(kflag)
    def prew():
        e("s_mov_b32 exec_hi, 0")
        e.vm(f"buffer_store_dwordx2 {vr(vL16,2)}, v{vL8}, {srd(SWS)}, s{sF2} offen sc1", "prew")
        e("s_mov_b32 exec_hi, -1")
    if O.prew: gap[O.prew].append(prew)
    export(66, accB, vCV+8, 4096, "vst")
    gap[O.kchk].append(lambda: flag_ld("kchk"))
    gap[72] += [I(f"v_add_u32 v{vKA8}, {-8*8192 & 0xffffffff:#x}, v{vEXP}"), I(f"v_add_u32 v{vKA}, 0x2000, v{vKA8}"), I(f"v_and_b32 v{vVA8}, 0xfffffeff, v{vKA8}")]
    gap[73] += [I(f"v_add_u32 v{vVA8}, 0x1000, v{vVA8}"), I(f"v_add_u32 v{vVA}, 0x2000, v{vVA8}")]
    for i in range(1, 9):
        gap[73+i] += [I(f"s_cmp_le_u32 {i}, s{sT}"), I(f"s_cselect_b64 {sr(sVMK+2*(i-1))}, {sr(sEX)}, -1")]
    gap[82] += [I(f"v_bfe_u32 v{vWO}, v{vL}, 2, 3"), I(f"s_lshl_b32 s{sT0}, s{sW}, 3"), I(f"v_add_u32 v{vWO}, s{sT0}, v{vWO}"), I(f"v_lshlrev_b32 v{vWO}, 10, v{vWO}")]
    gap[83] += [I(f"v_lshrrev_b32 v{vWR1}, 5, v{vL}"), I(f"v_lshl_add_u32 v{vWO}, v{vWR1}, 6, v{vWO}"), I(f"v_and_b32 v{vWR1}, 3, v{vL}"), I(f"v_lshl_add_u32 v{vWO}, v{vWR1}, 4, v{vWO}")]
    gap[84] += [I(f"s_and_b32 s{sT0}, s{sJ}, 7"), I(f"s_lshl_b32 s{sT0}, s{sT0}, 7"), I(f"v_add_u32 v{vWO}, s{sT0}, v{vWO}")]
    gap[64] += [I(f"s_mov_b64 {sr(SIMP)}, {sr(SWS)}")]
    def imp_k1():
        e.wait_vm("kchk")
        flag_cmp()
        e(f"s_cselect_b32 s{sPEND}, 1, 0")
        e(f"s_cmp_lg_u32 s{sIMP}, 0"); e(f"s_cselect_b32 s{sPEND}, 0, s{sPEND}")
        flag_ld("kchk2")
        e(f"s_or_b32 s{sT0}, s{sPEND}, s{sIMP}"); e(f"s_cselect_b32 s{SIMP+2}, 0, s{SWS+2}")
        imp_dma(0, "kimp")
    gap[O.imp1].append(imp_k1)
    def imp_k2():
        e.wait_vm("vst")
        e(f"s_add_u32 s{sF1}, s{sF1}, {F1V}")
        flag_store(sF1, SEXP); e.stamp(5)
        e(f"s_cmp_lg_u32 s{sIMP}, 0"); e(f"s_cselect_b32 s{SIMP+2}, 0, s{SWS+2}")
        def again():
            L = e.newlab("L_k2")
            e("s_waitcnt vmcnt(1)")
            flag_cmp(); e(f"s_cbranch_scc1 {L}")
            imp_dma(0); e(f"s_mov_b32 s{sPEND}, 2")
            e.label(L)
        e.cond(f"s_cmp_eq_u32 s{sPEND}, 1", again)
    gap[O.imp].append(imp_k2)
    gap[86].append(I(f"s_mov_b32 s{sT2}, 0x3f803f80"))
    for i in range(16): gap[88 + i//4].append(I(f"v_mov_b32 v{vV+i}, s{sT2}"))
    gap[92].append(lambda: e.ds(f"ds_read_b128 {vr(vK,4)}, v{vKA} offset:{7*8192}", "k0"))
    gap[93] += [I(f"s_mov_b32 s{sT2}, 0x3eb8aa3b"), I(f"s_mov_b32 s{sT3}, 0x3eb8aa3b")]

    sync(0); e.stamp(1)
    for s_ in range(4): rd(s_)
    for f in gap[-1]: f()
    for ks in range(96):
        it, s_ = divmod(ks, 4)
        if s_ == 0:
            e.c(f"---- P1 group {it}")
            sync(it+1)
            if it in (8, 16): e.stamp({8: 2, 16: 3}[it])
            if it < 13: e.stamp(it+1, 2)
            if it >= 11: e.stamp(it-10, 3)
        e.wait_ds(f"w{ks}")
        acc = accB if 8 <= it < 16 else accA
        c = "0" if ks % 32 == 0 else acc
        if 8 <= it < 16: mfma(acc, vXF+4*(ks % 32), WF[ks % 8], c)
        else: mfma(acc, WF[ks % 8], vXF+4*(ks % 32), c)
        if it < 7:
            if s_ == 0:
                for q in range(4): rd(ks+4+q)
        elif ks + 4 < 96: rd(ks+4)
        for f in gap[ks]: f()

def wo_piece(i):
    e(f"s_add_u32 m0, s{sM0}, {i*8192}"); e(f"s_mov_b32 s{sT0}, {i*65536}")
    e(f"buffer_load_dwordx4 v{vWO}, {srd(SWO)}, s{sT0} offen lds")

def norm(o, dst):
    e(f"v_rcp_f32 v{o+10}, v{o+8}")
    e(f"v_pk_add_f32 {vr(o+12,2)}, {vr(o,2)}, {vr(o+2,2)}"); e(f"v_pk_add_f32 {vr(o+14,2)}, {vr(o+4,2)}, {vr(o+6,2)}")
    for i in range(4): e(f"v_pk_mul_f32 {vr(o+2*i,2)}, {vr(o+2*i,2)}, {vr(o+10,2)} op_sel_hi:[1,0]")
    e(f"v_pk_add_f32 {vr(o+12,2)}, {vr(o+12,2)}, {vr(o+14,2)}")
    cvt8(dst, o)
    e(f"v_add_f32 v{o+12}, v{o+12}, v{o+13}"); e(f"v_fma_f32 v{o+8}, v{o+12}, 0, v{o+8}")
def check(os_, slowlab):
    for n, o in enumerate(os_):
        e(f"v_subrev_u32 v{o+8}, 0x2b800000, v{o+8}")
        if n: e(f"v_max_u32 v{os_[0]+8}, v{os_[0]+8}, v{o+8}")
    e(f"v_cmp_lt_u32 vcc, 0x28000000, v{os_[0]+8}")
    if O.force_slow: e(f"s_branch {slowlab}")
    else: e(f"s_cbranch_vccnz {slowlab}")
def prefill(regs):
    e(f"s_mov_b32 s{sT0}, 0x3f803f80")
    for i in regs: e(f"v_mov_b32 v{i}, s{sT0}")
def rdK(i):
    if i < 8: e(f"ds_read_b128 {vr(vK+4*(i%2),4)}, v{vKA} offset:{(7-i)*8192}")
    else: e(f"ds_read_b128 {vr(vK+4*(i%2),4)}, v{vKA8}")
def rdV(i, dyn=True):
    e(f"s_mov_b64 exec, {sr(sVMK+2*(i-1)) if dyn and i > 0 else sr(sEX)}")
    b, off = (vVA, (7-i)*8192) if i < 8 else (vVA8, 0)
    e(f"ds_read_b128 {vr(vV+8*(i%2),4)}, v{b} offset:{off}")
    e(f"ds_read_b128 {vr(vV+8*(i%2)+4,4)}, v{b} offset:{off+1024}")
    e("s_mov_b64 exec, -1")

def attention():
    e.c("---- Q epilogue")
    e.stamp(4)
    def qscale(h):
        for i in range(4*h, 4*h+4): e(f"v_pk_mul_f32 {vr(accA+2*i,2)}, {vr(accA+2*i,2)}, {sr(sT2)}")
        for i in range(4*h, 4*h+4): cvt(vQ2, accA, i)
    e(f"s_cmp_eq_u32 s{sBR}, 0"); e("s_cbranch_scc1 L_attnA")
    e.c("---- attention B")
    e.cond(f"s_cmp_eq_u32 s{sPEND}, 1", lambda: (flag_poll(), imp_dma(0)))
    e(f"s_add_u32 s{sIF}, s{sIF}, {F1V}")
    e("s_nop 6")
    qscale(0); qscale(1)
    def kbar():
        flag_ld("x")
        e("s_waitcnt vmcnt(2)")
        e.cond(f"s_cmp_lg_u32 s{sPEND}, 0", lambda: e("s_waitcnt vmcnt(1)"))
        if O.stamps == 1: e(f"s_mul_i32 s{sT0}, s{sPEND}, 1000"); e(f"s_add_u32 s{ST0+24}, s{ST0}, s{sT0}")
        e("s_barrier"); e.stamp(6)
    def vimp():
        e("s_waitcnt vmcnt(0)")
        flag_cmp()
        e(f"s_cselect_b32 s{sT0}, s{SIMP+2}, 0")
        e.cond(f"s_cmp_lg_u32 s{sT0}, 0", flag_poll)
        imp_dma(1)
    def vbar():
        e("s_waitcnt vmcnt(0)"); e("s_barrier"); e.stamp(13)
        e(f"s_cmp_lt_u32 s{sW}, 4"); e(f"s_cselect_b64 {sr(SOWO)}, {sr(SWO)}, {sr(sOW)}"); e(f"s_mov_b32 s{SOWO+2}, {512*1024}")
        e(f"s_and_b32 s{sT0}, s{sJ}, 15"); e(f"s_lshl_b32 s{sT0}, s{sT0}, 2"); e(f"s_and_b32 s{sT1}, s{sW}, 3"); e(f"s_add_u32 s{sT0}, s{sT0}, s{sT1}")
        e(f"s_lshl_b32 s{sT0}, s{sT0}, 13"); e(f"v_lshlrev_b32 v{vU0}, 7, v{vL}")
        e(f"buffer_load_dword v{vU2+1}, v{vU0}, {srd(SOWO)}, s{sT0} offen")
    def wo16(ps):
        def f():
            for i in ps:
                e(f"s_add_u32 m0, s{sM0}, {i*4096}"); e(f"s_mov_b32 s{sT0}, {i*32768}")
                e(f"buffer_load_dwordx4 v{vWO}, {srd(SWO)}, s{sT0} offen lds")
        return f
    def sample02():
        f3_addr()
        e("s_mov_b64 exec, 0x55555555")
        e(f"buffer_load_dwordx2 {vr(vFL,2)}, v{vF}, {srd(SWS)}, s{sF3} offen sc1")
        e("s_mov_b64 exec, -1")
    def unit(u, L):
        q = vQ2 + 4*u
        def ex(i, r): e(f"v_exp_f32 v{vS+16*(i%2)+r}, v{vS+16*(i%2)+r}")
        def P(i): return PB + 8*(i % (L+1))
        if u: rdK(0)
        e("s_waitcnt lgkmcnt(0)")
        mfma(vS, vK, q, vML)
        e("s_nop 10")
        for i in range(9 + L):
            j = i - L
            s_ = vS + 16*(i % 2)
            e.c(f"unit {u} task {i}")
            if i < 11: e.stamp(i+1, 4+u)
            if O.fair:
                pr = {(0, 0): 2, (0, 2): 1, (0, 4): 0, (0, L): 3, (0, 9): 2, (1, 3): 1, (1, 6): 0}.get((u, i))
                if pr is not None: e(f"s_setprio {pr}")
            if u == 0:
                if i == 0: kbar()
                if i == O.vpos: vimp()
                if j == 0: vbar()
            if u == 1 and i == O.oflag:
                e("s_waitcnt vmcnt(0)"); flag_store(sF2)
            if u == 1 and O.oflag <= i < O.oflag + 4: wo_piece(2*(i-O.oflag)); wo_piece(2*(i-O.oflag)+1)
            if u == 1 and i == O.smp_at: sample02()
            n = 0
            if i < 8: rdK(i+1); n += 1
            if -1 <= j < 8: rdV(j+1); n += 2
            if i < 9:
                for r in range(4): ex(i, r)
            if j >= 0:
                e(f"s_waitcnt lgkmcnt({n})")
                if i == 9 and L == 1: e("s_nop 0")
                mfma(vO, vV+8*(j%2), P(j), vO if j > 0 else "0")
            if i < 9:
                for r in range(4, 8): ex(i, r)
            if i < 8:
                e(f"s_waitcnt lgkmcnt({n-1})")
                mfma(vS+16*((i+1)%2), vK+4*((i+1)%2), q, vMF if i+1 == 8 else "0")
            if i < 9:
                cvt8(P(i), s_)
                for r in range(8, 12): ex(i, r)
            if j >= 0: mfma(vO, vV+8*(j%2)+4, P(j)+4, vO)
            if i < 9:
                for r in range(12, 16): ex(i, r)
                cvt8(P(i)+4, s_+8)
        e("s_nop 11")
        norm(vO, vP); check([vO], f"L_B_slow{u}")
        e.label(f"L_B_ok{u}")
        e(f"buffer_store_dwordx4 {vr(vP,4)}, v{vL16}, {srd(SWS)}, s{sOA} offen offset:{1024*u} sc1")
    unit(0, O.lag)
    e(f"v_add_u32 v{vKA}, 0x400, v{vKA}"); e(f"v_add_u32 v{vKA8}, 0x400, v{vKA8}")
    e(f"v_add_u32 v{vVA}, 0x100, v{vVA}"); e(f"v_add_u32 v{vVA8}, 0x100, v{vVA8}")
    e.cond(f"s_cmp_lt_u32 s{sT}, 8", lambda: prefill(range(vV, vV+16)))
    e.stamp(12, 4)
    unit(1, 1)
    e.stamp(7); e.stamp(12, 7)
    e(f"s_cmp_lt_u32 s{sW}, 4"); e("s_cbranch_scc1 L_B_old")
    e("s_waitcnt vmcnt(1)"); e("s_barrier")
    e("s_waitcnt vmcnt(0)"); flag_store(sF2, off=128); e.stamp(8)
    e("s_branch L_stamps" if O.stamps else "s_endpgm")
    e.label("L_B_old")
    e(f"s_mov_b32 s{sHM}, 0")
    p3_setup()
    e("s_waitcnt vmcnt(1)")
    e("s_mov_b64 exec, 0x55555555")
    e(f"v_cmp_eq_u64 vcc, {sr(sNON)}, {vr(vFL,2)}")
    e("s_mov_b64 exec, -1")
    e(f"s_not_b32 s{sNR}, vcc_lo")
    e("s_barrier")
    def late0():
        e("s_waitcnt vmcnt(0)"); flag_store(sF2, off=128); poll3(0x55555555, 0x55555555)
    e.cond(f"s_and_b32 s{sT0}, s{sNR}, 0x55555555", late0)
    p3_first()
    e("s_waitcnt vmcnt(8)"); flag_store(sF2, off=128); e.stamp(8)
    e("s_branch L_p3go")
    e.flush()

    e.c("---- attention A")
    e.label("L_attnA")
    KP, VP = 160, 168
    e(f"s_and_b32 s{sIF}, s{sF1}, 0xffffff00"); e(f"s_sub_u32 s{sIF}, s{sIF}, 136")
    flag_ld("x")
    e("s_barrier")
    e.stamp(6)
    e(f"ds_read_b128 {vr(vK+4,4)}, v{vKA} offset:{7*8192 + 1024}")
    e(f"s_mov_b64 exec, {sr(sEX)}")
    for h in range(2):
        for kb in range(2): e(f"ds_read_b128 {vr(vV+8*h+4*kb,4)}, v{vVA} offset:{7*8192 + kb*1024 + h*256}")
    e("s_mov_b64 exec, -1")
    qscale(0); qscale(1)
    prefill(range(VP, VP+8))
    def halo():
        L = e.newlab("L_h")
        e(f"s_cmp_eq_u32 s{sT}, 0"); e(f"s_cbranch_scc1 L_A_nh")
        e("s_waitcnt vmcnt(0)")
        flag_cmp(); e(f"s_cbranch_scc0 {L}")
        flag_poll()
        e.label(L)
        e(f"s_sub_u32 s{sT0}, s{sKV}, {8192 + 4096}"); e(f"s_sub_u32 s{sT1}, s{sKV}, {8192 - 1024}")
        e(f"v_and_b32 v{vFL}, 0x2ff, v{vL16}")
        for h in range(2): e(f"buffer_load_dwordx4 {vr(KP+4*h,4)}, v{vL16}, {srd(SWS)}, s{sT0} offen offset:{h*1024} sc1")
        e(f"s_mov_b64 exec, {sr(sEX)}")
        for h in range(2): e(f"buffer_load_dwordx4 {vr(VP+4*h,4)}, v{vFL}, {srd(SWS)}, s{sT1} offen offset:{h*256} sc1")
        e("s_mov_b64 exec, -1")
        e("s_branch L_A_nh")
    e.cond(f"s_cmp_eq_u32 s{sTT}, 0", halo)
    for h in range(2): e(f"ds_read_b128 {vr(KP+4*h,4)}, v{vKA} offset:{6*8192 + h*1024}")
    e(f"s_mov_b64 exec, {sr(sEX)}")
    for h in range(2): e(f"ds_read_b128 {vr(VP+4*h,4)}, v{vVA} offset:{6*8192 + 1024 + h*256}")
    e("s_mov_b64 exec, -1")
    e.label("L_A_nh")
    e("s_waitcnt lgkmcnt(0)")
    def a_body(slow):
        def exs(s_, rs, h):
            for r in rs:
                if slow: e(f"v_sub_f32 v{s_+r}, v{s_+r}, v{vFL+h}")
                e(f"v_exp_f32 v{s_+r}, v{s_+r}")
        lab = "L_A_s2" if slow else "L_A_f2"
        for h in range(2): mfma(vS+16*h, vK+4*h, vQ2+4*h, vML)
        if slow: e("s_nop 10")
        for h in range(2):
            if not slow:
                for i in range(4*h, 4*h+4): wo_piece(i)
            exs(vS+16*h, range(16), h); cvt8(vP+8*h, vS+16*h, 8); e("s_nop 1")
            mfma(vO+16*h, vV+8*h, vP+8*h, "0"); mfma(vO+16*h, vV+8*h+4, vP+8*h+4, vO+16*h)
        e("s_waitcnt vmcnt(8)")
        e(f"s_cmp_eq_u32 s{sT}, 0"); e(f"s_cbranch_scc1 {lab}")
        e.stamp(13)
        for h in range(2): mfma(vS+16*h, KP+4*h, vQ2+4*h, vMF)
        e("s_nop 10")
        for h in range(2):
            exs(vS+16*h, range(8, 16), h); cvt8(vP+8*h+4, vS+16*h+8); e("s_nop 1")
            mfma(vO+16*h, VP+4*h, vP+8*h+4, vO+16*h)
        e.label(lab)
        e("s_nop 11")
        for h in range(2): norm(vO+16*h, vP+4*h)
    a_body(False)
    check([vO, vO+16], "L_A_slow")
    e.label("L_A_ok")
    e(f"buffer_store_dwordx4 {vr(vP,4)}, v{vL16}, {srd(SWS)}, s{sOA} offen sc1")
    e(f"buffer_store_dwordx4 {vr(vP+4,4)}, v{vL16}, {srd(SWS)}, s{sOA} offen offset:1024 sc1")
    e.stamp(7)
    def aflags():
        e("s_waitcnt vmcnt(0)")
        e("s_mov_b32 exec_hi, 0")
        e(f"buffer_store_dwordx2 {vr(vNON,2)}, v{vL8}, {srd(SWS)}, s{sF2} offen sc1")
        e("s_mov_b64 exec, -1")
        e.stamp(8)
        e("s_barrier")
    e.cond(f"s_cmp_ge_u32 s{sW}, 4", lambda: (aflags(), e("s_branch L_stamps" if O.stamps else "s_endpgm")))
    e(f"s_and_b32 s{sHM}, s{sJ}, 3")
    p3_setup()
    aflags()
    e(f"s_mov_b32 s{sNR}, -1")
    poll3(0xffffffff, 0xffffffff)
    p3_first()
    return a_body, KP

vA, vB, vO0, vO1, vF = 2, 3, 7, 5, 10
sO3, sF3, sOUT3, sHM = sIG, sIF, sOA, sPEND
A0, A1 = 40, 56
vTW, vTR = 18, 17
OF = 136; WB = 72
sCUR = (sVMK, sVMK+1); sNXT = sVMK+5; sHB = sVMK+4; sPASS = sVMK+6
SLD = SDUM
vW = ((0, 4), (6, 16))
def f3_addr():
    e(f"s_lshl_b32 s{sT0}, s{sBR}, 6"); e(f"s_add_u32 s{sT0}, s{sT0}, s{sT3P}")
    e(f"s_lshl_b32 s{sO3}, s{sT0}, 15"); e(f"s_add_u32 s{sO3}, s{sO3}, {WS_O}")
    e(f"s_lshl_b32 s{sF3}, s{sT0}, 12"); e(f"s_add_u32 s{sF3}, s{sF3}, {WS_F2}")
    e(f"v_lshlrev_b32 v{vF}, 7, v{vL}")
def group(dst):
    e(f"s_brev_b32 s{sHB}, s{sHM}"); e(f"s_lshr_b32 s{sHB}, s{sHB}, 20")
    e(f"s_add_u32 s{dst}, s{sHB}, s{sO3}")
    e(f"s_add_u32 s{sHM}, s{sHM}, 1"); e(f"s_and_b32 s{sHM}, s{sHM}, 3")
def wbase(buf, src):
    e(f"s_and_b32 s{sT0}, s{src}, 0xc00"); e(f"s_lshl_b32 s{sT0}, s{sT0}, 1")
    e(f"v_add_u32 v{vW[buf][0]}, s{sT0}, v{vA}"); e(f"v_add_u32 v{vW[buf][1]}, s{sT0}, v{vB}")
def o_ld(buf, k, base, s_):
    if k: e(f"s_add_u32 s{sT0}, s{base}, {k*4096}")
    e(f"buffer_load_dwordx4 {vr(OF+32*buf+4*k,4)}, v{vL16}, {srd(s_)}, s{sT0 if k else base} offen sc1")
def p3_first():
    for k in range(8): o_ld(0, k, sNXT, SWS)
sNR = sVMK + 7
def poll3(need, look):
    L = e.newlab("L_poll"); D = L + "d"
    e(f"s_mov_b32 s{sCNT}, 0"); e("s_mov_b32 exec_hi, 0")
    e.label(L)
    e(f"s_and_b32 s{sT0}, s{sNR}, {need:#x}"); e(f"s_cbranch_scc0 {D}")
    e(f"s_and_b32 exec_lo, s{sNR}, {look:#x}")
    e(f"buffer_load_dwordx2 {vr(vFL,2)}, v{vF}, {srd(SWS)}, s{sF3} offen sc1")
    e(f"s_add_u32 s{sCNT}, s{sCNT}, 1")
    e("s_waitcnt vmcnt(0)")
    e(f"v_cmp_eq_u64 vcc, {sr(sNON)}, {vr(vFL,2)}")
    e(f"s_andn2_b32 s{sNR}, s{sNR}, vcc_lo")
    if O.sleep: e(f"s_sleep {O.sleep}")
    e(f"s_cmp_gt_u32 s{sCNT}, {O.pollmax}"); e(f"s_cbranch_scc0 {L}")
    e.label(D)
    e("s_mov_b64 exec, -1")
def p3_setup():
    e(f"v_mov_b32 v{vFL+3}, {L_KV}")
    for i in range(32): e(f"v_mov_b32 v{A0+i}, 0")
    f3_addr()
    group(sNXT)
    e(f"s_mov_b64 {sr(SLD)}, {sr(SWS)}"); e(f"s_mov_b32 s{SLD+2}, s{SWS+2}"); e(f"s_mov_b32 s{sPASS}, s{sBR}")
    e(f"v_bfe_u32 v{vU0}, v{vL}, 2, 2"); e(f"v_lshlrev_b32 v{vA}, 6, v{vU0}")
    e(f"v_and_b32 v{vU0}, 1, v{vL}"); e(f"v_mul_u32_u24 v{vU0}, 544, v{vU0}"); e(f"v_add_u32 v{vA}, v{vA}, v{vU0}")
    e(f"v_bfe_u32 v{vU0}, v{vL}, 4, 1"); e(f"v_lshl_add_u32 v{vA}, v{vU0}, 4, v{vA}")
    e(f"v_bfe_u32 v{vU0}, v{vL}, 1, 1"); e(f"v_lshl_add_u32 v{vA}, v{vU0}, 3, v{vA}")
    e(f"v_lshrrev_b32 v{vU0}, 5, v{vL}"); e(f"v_lshl_add_u32 v{vA}, v{vU0}, 8, v{vA}")
    e(f"v_xor_b32 v{vB}, 32, v{vA}")
    if O.tpose:
        e(f"s_lshl_b32 s{sT0}, s{sW}, 12"); e(f"s_add_u32 s{sT0}, s{sT0}, {L_KV}")
        e(f"v_mul_u32_u24 v{vU0}, 6, v{vU0}"); e(f"v_and_b32 v{vU1}, 7, v{vL}"); e(f"v_xor_b32 v{vU0}, v{vU0}, v{vU1}")
        e(f"v_and_b32 v{vTW}, 31, v{vL}"); e(f"v_lshlrev_b32 v{vTW}, 7, v{vTW}"); e(f"v_lshl_add_u32 v{vTW}, v{vU0}, 4, v{vTW}"); e(f"v_add_u32 v{vTW}, s{sT0}, v{vTW}")
        for i in range(1, 4): e(f"v_xor_b32 v{vTW+i}, {16*i}, v{vTW}")
        e(f"v_lshrrev_b32 v{vU0}, 3, v{vL}"); e(f"v_xor_b32 v{vTR}, v{vU0}, v{vU1}"); e(f"v_lshlrev_b32 v{vTR}, 4, v{vTR}")
        e(f"v_lshl_add_u32 v{vTR}, v{vU0}, 7, v{vTR}"); e(f"v_add_u32 v{vTR}, s{sT0}, v{vTR}")
        e(f"v_lshlrev_b32 v{vO0}, 11, v{vU0}"); e(f"v_lshl_add_u32 v{vO0}, v{vU1}, 4, v{vO0}")
    else:
        e(f"v_and_b32 v{vO0}, 31, v{vL}"); e(f"v_lshlrev_b32 v{vO0}, 11, v{vO0}"); e(f"v_mul_u32_u24 v{vU0}, 96, v{vU0}"); e(f"v_add_u32 v{vO0}, v{vO0}, v{vU0}")
        e(f"v_xor_b32 v{vO1}, 32, v{vO0}")
    e(f"s_lshl_b32 s{sOUT3}, s{sT3P}, 16"); e(f"s_lshl_b32 s{sT1}, s{sBR}, 10"); e(f"s_add_u32 s{sOUT3}, s{sOUT3}, s{sT1}")
    e(f"s_and_b32 s{sT1}, s{sJ}, 7"); e(f"s_lshl_b32 s{sT1}, s{sT1}, 7"); e(f"s_add_u32 s{sOUT3}, s{sOUT3}, s{sT1}")
    wbase(0, sNXT)

def lds_wait(off, val):
    L = e.newlab("L_lw"); D = L + "d"
    e(f"s_mov_b32 s{sCNT}, 0")
    e.label(L)
    e(f"ds_read_b32 v{vFL}, v{vFL+3} offset:{off}")
    e(f"s_add_u32 s{sCNT}, s{sCNT}, 1"); e(f"s_cmp_gt_u32 s{sCNT}, {O.pollmax*8}")
    e("s_waitcnt lgkmcnt(0)")
    e(f"v_cmp_ne_u32 vcc, {val}, v{vFL}")
    e(f"s_cbranch_scc1 {D}")
    e(f"s_cbranch_vccz {D}"); e("s_sleep 1"); e(f"s_branch {L}")
    e.label(D)

def p3():
    e.c("---- P3 (waves 0..3)")
    def wrd(buf, k):
        for ct in range(2):
            d = WB + 8*k + 4*ct
            e(f"ds_read_b64_tr_b16 {vr(d,2)}, v{vW[buf][ct]} offset:{k*8192}")
            e(f"ds_read_b64_tr_b16 {vr(d+2,2)}, v{vW[buf][ct]} offset:{k*8192 + 1024}")
    def mm(buf, late=False):
        if not late: group(sNXT)
        if not (late and buf): wbase(buf ^ 1, sNXT)
        for kk in range(8):
            o = OF+32*buf+4*kk
            e(f"s_waitcnt vmcnt({15 - 8*buf - kk if late else 7}) lgkmcnt(12)")
            mfma(A0, WB + 8*kk, o, A0)
            if not late: o_ld(buf ^ 1, kk, sNXT, SLD)
            mfma(A1, WB + 8*kk + 4, o, A1)
            if kk < 4: wrd(buf, kk+4)
            else: wrd(buf ^ 1, kk-4)
    e.label("L_p3go")
    for k in range(4): wrd(0, k)
    e.stamp(9); e.stamp(13, 7)
    e.label("L_p3loop")
    def late():
        e.stamp(5, 7)
        poll3(0xaaaaaaaa, 0xaaaaaaaa); e.stamp(10); e.stamp(7, 7)
        for k in range(8): o_ld(0, k, sNXT, SWS)
        e(f"s_add_u32 s{sNXT}, s{sNXT}, 0x800")
        for k in range(8): o_ld(1, k, sNXT, SWS)
        e.stamp(8, 7)
        e("s_branch L_p3late")
    e.cond(f"s_cmp_eq_u32 s{sPASS}, 3", late)
    mm(0)
    e.stamp(2, 7)
    e.cond(f"s_cmp_lg_u32 s{sPASS}, 0", lambda: e(f"s_mov_b32 s{SLD+2}, 0"))
    mm(1)
    e(f"s_bitcmp1_b32 s{sPASS}, 1"); e(f"s_bitset1_b32 s{sPASS}, 1"); e("s_cbranch_scc0 L_p3loop")
    e("s_branch L_p3out")
    e.label("L_p3late")
    mm(0, True); mm(1, True)
    e.label("L_p3out")
    e.stamp(9, 7)
    e("s_waitcnt lgkmcnt(0)")
    e("s_nop 9")
    cvt8(72, A0, 8); cvt8(80, A1, 8)
    fl = ["", " sc1", " nt", " sc1 nt", " sc0 sc1", " sc0 sc1 nt", " sc0 nt"][O.outsc]
    if O.tpose:
        for i in range(4): e(f"ds_write_b128 v{vTW+i}, {vr(72+4*i,4)}")
        for i in range(4): e(f"ds_read_b128 {vr(88+4*i,4)}, v{vTR} offset:{i*1024}")
        for i in range(4):
            e(f"s_waitcnt lgkmcnt({3-i})")
            e(f"buffer_store_dwordx4 {vr(88+4*i,4)}, v{vO0}, {srd(SOUT)}, s{sOUT3} offen{fl}")
            if i < 3: e(f"s_add_u32 s{sOUT3}, s{sOUT3}, 0x4000")
    else:
        for i in range(4): e(f"buffer_store_dwordx4 {vr(72+4*i,4)}, v{(vO0, vO1)[i//2]}, {srd(SOUT)}, s{sOUT3} offen offset:{16*(i%2)}{fl}")
    if O.stamps:
        e.stamp(10, 7); e("s_waitcnt vmcnt(0)"); e.stamp(11); e.stamp(11, 7)
        e.label("L_stamps")
        e(f"s_memrealtime {sr(sVM)}"); e("s_waitcnt lgkmcnt(0)")
        e(f"s_lshl_b32 s{sT0}, s2, 3"); e(f"s_add_u32 s{sT0}, s{sT0}, s{sW}"); e(f"s_lshl_b32 s{sT0}, s{sT0}, 6"); e(f"s_add_u32 s{sT0}, s{sT0}, {WS_ST}")
        e("s_mov_b64 exec, 1")
        for i in range(1, 14):
            e(f"s_sub_u32 s{sT1}, s{ST0+2*i}, s{ST0}"); e(f"v_mov_b32 v{vU1}, s{sT1}")
            e(f"buffer_store_dword v{vU1}, off, {srd(SWS)}, s{sT0} offset:{4*i}")
        e(f"v_mov_b32 v{vU1}, s100"); e(f"buffer_store_dword v{vU1}, off, {srd(SWS)}, s{sT0} offset:56")
        e(f"v_mov_b32 v{vU1}, s{sVM}"); e(f"buffer_store_dword v{vU1}, off, {srd(SWS)}, s{sT0} offset:60")
    if O.spin:
        e.label("L_spin"); e("s_memrealtime s[74:75]"); e("s_waitcnt lgkmcnt(0)"); e("s_sub_u32 s74, s74, s72")
        e(f"s_cmp_lt_u32 s74, {O.spin}"); e("s_cbranch_scc1 L_spin")
    e.label("L_end")
    e("s_endpgm")
    e.flush()

def xmax(reg):
    e(f"v_mov_b32 v{vFL+2}, v{reg}"); e("s_nop 1")
    e(f"v_permlane32_swap_b32 v{vFL+2}, v{reg}"); e("s_nop 1")
    e(f"v_max_f32 v{reg}, v{reg}, v{vFL+2}")

def slow_paths(a_body, KP):
    e.c("---- rare path: the stand-in max was unsafe, redo the unit with the true row max")
    for u in range(2):
        e.label(f"L_B_slow{u}")
        e(f"s_mov_b32 s{sU}, {u}")
        for i in range(4): e(f"v_mov_b32 v{vQ+i}, v{vQ2+4*u+i}")
        if u == 0: e("s_branch L_B_slow")
    e.label("L_B_slow")
    e("s_waitcnt vmcnt(0)")
    prefill(range(vV, vV+16))
    e(f"v_mov_b32 v{vFL}, {NEG}")
    for ps in range(2):
        for i in range(9):
            if i > 0: e(f"s_cmp_gt_u32 {i}, s{sT}"); e(f"s_cbranch_scc1 L_B_s{ps}")
            rdK(i)
            if ps: rdV(i, dyn=False)
            e("s_waitcnt lgkmcnt(0)")
            mfma(vS, vK+4*(i%2), vQ, vML if i == 0 else (vMF if i == 8 else "0"))
            e("s_nop 11")
            if ps == 0:
                for r in range(0, 16, 2): e(f"v_max3_f32 v{vFL}, v{vFL}, v{vS+r}, v{vS+r+1}")
            else:
                for r in range(16): e(f"v_sub_f32 v{vS+r}, v{vS+r}, v{vFL}")
                for r in range(16): e(f"v_exp_f32 v{vS+r}, v{vS+r}")
                cvt8(vP, vS, 8); e("s_nop 1")
                mfma(vO, vV+8*(i%2), vP, vO if i > 0 else "0"); mfma(vO, vV+8*(i%2)+4, vP+4, vO)
        e.label(f"L_B_s{ps}")
        if ps == 0: xmax(vFL)
    e("s_nop 11")
    norm(vO, vP)
    e(f"s_cmp_eq_u32 s{sU}, 0"); e("s_cbranch_scc1 L_B_ok0")
    e("s_branch L_B_ok1")
    e.label("L_A_slow")
    for h in range(2):
        e(f"v_mov_b32 v{vFL+h}, {NEG}")
        mfma(vS, vK+4*h, vQ2+4*h, vML); e("s_nop 11")
        for r in range(0, 16, 2): e(f"v_max3_f32 v{vFL+h}, v{vFL+h}, v{vS+r}, v{vS+r+1}")
        e(f"s_cmp_eq_u32 s{sT}, 0"); e(f"s_cbranch_scc1 L_A_m{h}")
        mfma(vS, KP+4*h, vQ2+4*h, vMF); e("s_nop 11")
        for r in range(8, 16, 2): e(f"v_max3_f32 v{vFL+h}, v{vFL+h}, v{vS+r}, v{vS+r+1}")
        e.label(f"L_A_m{h}")
        xmax(vFL+h)
    a_body(True)
    e("s_branch L_A_ok")

prologue(); p1(); ab = attention(); p3(); slow_paths(*ab)
e("s_endpgm")

hdr = open("cdna_kernels/" + NAME + ".s.ref").read().split("; Override launch geometry")[0]
out = hdr + f"; @launch grid=(256,1,1) block=(512,1,1) lds={LDS_BYTES}\n"
out += f""".amdgcn_target "amdgcn-amd-amdhsa--gfx950"
.text
.globl {NAME}_kernel
.p2align 8
.type {NAME}_kernel,@function
{NAME}_kernel:
""" + "\n".join(e.L) + f"""
.section .rodata,"a"
.p2align 6
.amdhsa_kernel {NAME}_kernel
  .amdhsa_next_free_vgpr 256
  .amdhsa_next_free_sgpr {102 if O.stamps else (80 if O.spin else 72)}
  .amdhsa_accum_offset 256
  .amdhsa_group_segment_fixed_size 0
  .amdhsa_kernarg_size 72
  .amdhsa_user_sgpr_count 2
  .amdhsa_user_sgpr_kernarg_segment_ptr 1
  .amdhsa_system_sgpr_workgroup_id_x 1
.end_amdhsa_kernel
"""
open(sys.argv[1], "w").write(out)
```

```python
import sys
NAME = "concat_heads__sliding_local_dilated__sliding_block__prompt"

class Opt:
    stamps = 0
    force_slow = 0
    pollmax = 400000
    only = 0
    delayA = 7
    lag = 6
    kflag = 50
    kchk = 65
    imp = 87
    oflag = 13
    vpos = 2
    uni = 0
    xspan = 1
    torder = 0
    tseq = 2
    tn = 12
    tnt = 0
    rotA = 1
    yprio = 0
    prew = 52
    imp1 = 77
    fair = 1
    tpose = 1
    pdelay = 0
    spin = 0
    x = 0
    wqs = 2
    p1prio = 1
    epi = 11
    tchB = 0
    wo_n = 4
    tchA = 6
    ctouch = 1
    warm = 0
    al12 = 1
    tE = 16
    ltouch = 0
    awo = 1
    pre = 8
    ad = 8
    spoll = 1
    stlb = 0
    sp32 = 1
    fprio = 1
    swp = 1
    smp_at = 17
    wo_at = 12
    tch_at = 4
    quiet = 1
    prio = 0
    outsc = 1
    stag = 0
    sleep = 0
O = Opt()
for a in sys.argv[2:]:
    k, v = a.split("="); assert hasattr(O, k), k
    setattr(O, k, int(v))

WS_O = 8 << 20
WS_F1 = 12 << 20
F1V = 262144
WS_F2 = WS_F1 + 524288
WS_ST = 13 << 20
WS_BYTES = 14 << 20
LDS_BYTES = 163840
L_WV = 65536; L_WK = 131072; L_KV = 65536

class E:
    def __init__(s): s.L = []; s.vq = []; s.lq = []; s.lab = 0; s.ool = []
    def __call__(s, t): s.L.append("    " + t)
    def label(s, n): s.L.append(n + ":")
    def c(s, t): s.L.append("    ; " + t)
    def vm(s, t, tag): s(t); s.vq.append(tag)
    def ds(s, t, tag): s(t); s.lq.append(tag)
    def _n(s, q, tag): return len(q) - 1 - max(i for i, x in enumerate(q) if x == tag)
    def wait_vm(s, tag):
        if tag not in s.vq: return
        n = s._n(s.vq, tag); assert n <= 63
        s(f"s_waitcnt vmcnt({n})"); s.vq = s.vq[len(s.vq)-n:]
    def wait_ds(s, tag):
        if tag not in s.lq: return
        n = s._n(s.lq, tag); assert n <= 15
        s(f"s_waitcnt lgkmcnt({n})"); s.lq = s.lq[len(s.lq)-n:]
    def wait_all(s): s("s_waitcnt vmcnt(0)"); s.vq = []
    def ds_all(s): s("s_waitcnt lgkmcnt(0)"); s.lq = []
    def stamp(s, i, mode=1):
        if O.stamps == mode: s(f"s_memtime s[{ST0+2*i}:{ST0+1+2*i}]")
    def stub(s):
        if O.warm:
            s.nstub = getattr(s, "nstub", 0); s.label(f"L_stub{s.nstub}"); s("s_cbranch_execz L_warmed"); s.nstub += 1
    def newlab(s, p): s.lab += 1; return f"{p}_{s.lab}"
    def cond(s, cmp_, body):
        L = s.newlab("L_c"); s(cmp_); s(f"s_cbranch_scc1 {L}"); s.label(L + "r")
        s.ool.append((L, body))
    def flush(s):
        while s.ool:
            L, body = s.ool.pop(0)
            s.label(L); body(); s(f"s_branch {L}r")
e = E()
def vr(a, n): return f"v[{a}:{a+n-1}]"
def sr(a): return f"s[{a}:{a+1}]"
def srd(a): return f"s[{a}:{a+3}]"

SX, SW, SWO, SOUT, SWS, SDBG = 8, 12, 16, 20, 24, 28
SEXP = 8
SOWO = 28
sF1, sKV = 0, 1
sBR, sRB, sG, sW, sM0 = 3, 4, 5, 6, 7
sCX = 32; sCW = 40; sVMK = 32
sNON = 48
sT0, sT1, sT2, sT3 = 50, 51, 52, 53
sJ, sXCD, sTT, sFT, sCNT, sT = 54, 55, 56, 57, 58, 59
sEX = 60; sVM = 62
sIG, sIF, sIMP, sPEND = 64, 65, 66, 67
sOA, sF2 = 68, 69
sOW = 70
sU = 53
sT3P = 55
ST0 = 72
SOTH = 20
SIMP = 12
SDUM = 12
vL, vX0, vX1, vW0, vWR, vWR1, vWR2, vXR, vL16 = 1, 2, 3, 4, 5, 6, 7, 8, 12
vT0, vT1, vT2 = 13, 14, 15
vNON = 14
vEXP = 0
vKA, vVA, vKA8, vVA8 = 2, 3, 0, 7
vWO = 4
vFL = 8
vQ2 = 16; vCV = 24; vP = 24; vQ = 32
vML, vMF = 40, 56
accA, accB = 72, 88
vS = 72
WF = [104, 108, 112, 116, 120, 124, 16, 20]
vXF = 128
vO = 104; vK = 136; vV = 144; PB = 176
sBAD = 67
vU0, vU1, vU2 = 36, 37, 38
vL8 = 13
NEG = "0xff800000"

def mfma(d, a, b, c): e(f"v_mfma_f32_32x32x16_bf16 {vr(d,16)}, {vr(a,4)}, {vr(b,4)}, {c if isinstance(c,str) else vr(c,16)}")
def dma(v, s_, soff, ldsdst, tag):
    e(f"s_add_u32 m0, s{sM0}, {ldsdst}"); e("s_nop 0")
    e.vm(f"buffer_load_dwordx4 v{v}, {srd(s_)}, s{soff} offen lds", tag)
def st_pieces(t):
    sl = t % 4
    return [lambda: dma(vX0, SX, sCX+t, sl*16384, f"st{t}"),
            lambda: dma(vW0, SW, sCW+t, L_WK + sl*8192, f"st{t}"),
            lambda: dma(vX1, SX, sCX+t, sl*16384 + 8192, f"st{t}")]
def cvt(dst, src, i): e(f"v_cvt_pk_bf16_f32 v{dst+i}, v{src+2*i}, v{src+2*i+1}")
def cvt8(dst, src, n=4):
    for i in range(n): cvt(dst, src, i)

def masks(kind):
    e(f"v_and_b32 v{vT0}, 31, v{vL}"); e(f"v_lshrrev_b32 v{vT1}, 5, v{vL}")
    e(f"v_lshlrev_b32 v{vT1}, 2, v{vT1}"); e(f"v_sub_u32 v{vT0}, v{vT0}, v{vT1}")
    if kind == "B":
        e(f"s_mov_b32 s{sT0}, {NEG}")
        for r in range(16):
            c = 8*(r >> 2) + (r & 3)
            e(f"v_subrev_u32 v{vT1}, {c}, v{vT0}"); e(f"v_and_b32 v{vML+r}, s{sT0}, v{vT1}"); e(f"v_xor_b32 v{vMF+r}, s{sT0}, v{vML+r}")
    else:
        e(f"s_mov_b32 s{sT0}, 0xf149f2ca")
        for r in range(16):
            c = 8*(r >> 2) + (r & 3)
            e(f"v_subrev_u32 v{vT1}, {c}, v{vT0}"); e(f"v_and_b32 v{vT1}, -15, v{vT1}"); e(f"v_cvt_f32_u32 v{vT1}, v{vT1}"); e(f"v_mul_f32 v{vML+r}, s{sT0}, v{vT1}")
            if r >= 8:
                e(f"v_add_u32 v{vT1}, {32-c}, v{vT0}"); e(f"v_and_b32 v{vT1}, -15, v{vT1}"); e(f"v_cvt_f32_u32 v{vT1}, v{vT1}"); e(f"v_mul_f32 v{vMF+r}, s{sT0}, v{vT1}")
            else:
                e(f"v_mov_b32 v{vMF+r}, s{sT0}")

def prologue():
    e("s_cmp_ge_u32 s2, 256"); e("s_cbranch_scc1 L_end")
    if O.only == 1: e("s_cmp_ge_u32 s2, 128"); e("s_cbranch_scc1 L_end")
    if O.stamps: e(f"s_memtime {sr(ST0)}"); e("s_memrealtime s[100:101]")
    if O.spin: e("s_memrealtime s[72:73]")
    e("s_load_dwordx16 s[32:47], s[0:1], 0"); e("s_load_dwordx2 s[24:25], s[0:1], 64")
    if O.ctouch:
        e(f"s_getpc_b64 {sr(sVM)}")
        e(f"s_lshr_b32 s{sT0}, s2, 3"); e(f"s_mul_i32 s{sT0}, s{sT0}, 5"); e(f"v_add_u32 v{vT0}, s{sT0}, v0"); e(f"v_lshlrev_b32 v{vT0}, 7, v{vT0}")
        e(f"v_cmp_gt_u32 vcc, 5, v0"); e(f"s_and_saveexec_b64 {sr(sEX)}, vcc"); e("s_cbranch_execz L_noct")
        e(f"global_load_dword v254, v{vT0}, {sr(sVM)}")
        e.label("L_noct"); e("s_mov_b64 exec, -1")
    e(f"v_lshrrev_b32 v{vT0}, 6, v0"); e(f"v_and_b32 v{vL}, 63, v0")
    e(f"v_readfirstlane_b32 s{sW}, v{vT0}")
    e(f"s_and_b32 s{sXCD}, s2, 7"); e(f"s_lshr_b32 s{sJ}, s2, 3")
    e(f"s_lshr_b32 s{sT0}, s{sXCD}, 1"); e(f"s_lshl_b32 s{sT0}, s{sT0}, 2"); e(f"s_bfe_u32 s{sT1}, s{sJ}, 0x20002")
    e(f"s_add_u32 s{sRB}, s{sT0}, s{sT1}")
    e(f"s_and_b32 s{sT0}, s{sXCD}, 1"); e(f"s_lshl_b32 s{sT0}, s{sT0}, 2"); e(f"s_and_b32 s{sT2}, s{sJ}, 3")
    e(f"s_add_u32 s{sG}, s{sT0}, s{sT2}")
    e(f"s_add_u32 s{sT3}, s{sT1}, s{sT2}"); e(f"s_lshl_b32 s{sT3}, s{sT3}, 1")
    e(f"s_lshl_b32 s{sM0}, s{sW}, 10")
    e(f"v_lshrrev_b32 v{vT0}, 4, v{vL}")
    e(f"s_and_b32 s{sT0}, s{sW}, 1"); e(f"s_lshl_b32 s{sT0}, s{sT0}, 2")
    e(f"v_add_u32 v{vT0}, s{sT0}, v{vT0}")
    e(f"v_and_b32 v{vT1}, 7, v{vL}"); e(f"v_xor_b32 v{vT0}, v{vT0}, v{vT1}"); e(f"v_lshlrev_b32 v{vT0}, 4, v{vT0}")
    e(f"v_lshrrev_b32 v{vT1}, 3, v{vL}"); e(f"v_lshl_add_u32 v{vX0}, v{vT1}, 10, v{vT0}")
    e(f"s_lshl_b32 s{sT0}, s{sW}, 13"); e(f"v_add_u32 v{vX0}, s{sT0}, v{vX0}"); e(f"v_add_u32 v{vX1}, 0x10000, v{vX0}")
    e(f"v_bfe_u32 v{vT0}, v{vL}, 2, 3")
    e(f"s_lshl_b32 s{sT0}, s{sW}, 3"); e(f"v_add_u32 v{vT0}, s{sT0}, v{vT0}")
    e(f"v_lshrrev_b32 v{vT1}, 5, v{vL}"); e(f"v_lshlrev_b32 v{vT1}, 6, v{vT1}")
    e(f"v_and_b32 v{vT2}, 3, v{vL}"); e(f"v_lshl_add_u32 v{vT1}, v{vT2}, 4, v{vT1}")
    e(f"v_mul_u32_u24 v{vW0}, 3072, v{vT0}"); e(f"v_add_u32 v{vW0}, v{vW0}, v{vT1}"); e(f"v_add_u32 v{vW0}, 0x400, v{vW0}")
    e(f"s_mov_b32 s{SX+2}, {2048*1024}"); e(f"s_mov_b32 s{SX+3}, 0x20000")
    e(f"s_mov_b32 s{SW+2}, {512*3072}"); e(f"s_mov_b32 s{SW+3}, 0x20000")
    e(f"s_mov_b32 s{SOTH+3}, 0x20000")
    e(f"s_lshl_b32 s{sT0}, s{sRB}, 17"); e(f"s_lshl_b32 s{sT1}, s{sG}, 7")
    e(f"s_cmp_lt_u32 s2, 128"); e(f"s_cselect_b32 s{sBR}, 1, 0")
    e(f"s_cselect_b32 s{sT3}, 0, s{sT3}")
    e("s_waitcnt lgkmcnt(0)")
    e(f"s_cselect_b64 {sr(SX)}, s[38:39], s[32:33]")
    e(f"s_cselect_b64 {sr(SW)}, s[40:41], s[34:35]")
    e(f"s_cselect_b64 {sr(SWO)}, s[42:43], s[36:37]")
    e(f"s_cselect_b64 {sr(sOW)}, s[36:37], s[42:43]")
    e(f"s_mov_b64 {sr(SDBG)}, s[46:47]")
    e("s_cbranch_scc1 L_notouch")
    sp = O.xspan
    e(f"v_lshrrev_b32 v{vT0}, {sp}, v{vL}"); e(f"v_lshlrev_b32 v{vT0}, 10, v{vT0}")
    e(f"v_and_b32 v{vT1}, {(1 << sp) - 1}, v{vL}"); e(f"v_lshl_add_u32 v{vT0}, v{vT1}, 7, v{vT0}")
    e(f"v_lshrrev_b32 v{vT1}, 4, v{vL}"); e(f"v_bfe_u32 v{vT2}, v{vL}, 2, 2"); e(f"v_lshl_add_u32 v{vT1}, v{vT1}, 6, v{vT2}")
    e(f"v_mul_u32_u24 v{vT1}, 3072, v{vT1}"); e(f"v_and_b32 v{vT2}, 3, v{vL}"); e(f"v_lshl_add_u32 v{vT1}, v{vT2}, 7, v{vT1}")
    sXB, sWB = sIG, sIF
    e(f"s_and_b32 s{sXB}, s{sG}, 3"); e(f"s_lshl_b32 s{sXB}, s{sXB}, 15"); e(f"s_add_u32 s{sXB}, s{sXB}, s{sT0}")
    e(f"s_and_b32 s{sWB}, s{sJ}, 15"); e(f"s_mul_i32 s{sWB}, s{sWB}, {4*3072}"); e(f"s_and_b32 s{sT2}, s{sT1}, 512"); e(f"s_add_u32 s{sWB}, s{sWB}, s{sT2}")
    code = {0: [8, 2, 9, 10, 3, 11, 4, 5, 0, 1], 1: [8, 9, 10, 11, 2, 3, 4, 5, 0, 1]}[O.torder]
    items = [(1, c) for c in code] + [(0, c) for c in code]
    if O.tseq == 1:
        items = [(1, c) for c in code[:8]] + [(0, c) for c in code[:6]] + [(1, c) for c in code[8:]] + [(0, c) for c in code[6:]]
    if O.tseq == 2: items = [(1, c) for c in code] + [(0, c) for c in code[6:]]
    if O.tseq == 3: items = [(1, c) for c in code] + [(0, c) for c in (2, 3, 4, 5, 0, 1)]
    if O.tseq == 4: items = [(1, c) for c in code[:8]] + [(0, c) for c in (2, 3, 4, 5)] + [(1, c) for c in code[8:]] + [(0, c) for c in (0, 1)]
    items = items[:O.tn]
    for r in range((len(items) + 7) // 8):
        rnd = items[8*r:8*r+8]
        pk = sum(c << (4*i) for i, (b_, c) in enumerate(rnd)); bm = sum(b_ << i for i, (b_, c) in enumerate(rnd))
        if len(rnd) < 8: e(f"s_cmp_ge_u32 s{sW}, {len(rnd)}"); e(f"s_cbranch_scc1 L_t{r}d")
        e(f"s_lshl_b32 s{sT2}, s{sW}, 2"); e(f"s_lshr_b32 s{sT2}, {pk:#x}, s{sT2}")
        e(f"s_bitcmp1_b32 s{sT2}, 3"); e(f"s_cbranch_scc1 L_t{r}x")
        e(f"s_bitcmp1_b32 {bm:#x}, s{sW}"); e(f"s_cselect_b64 {sr(SOTH)}, s[40:41], s[34:35]"); e(f"s_mov_b32 s{SOTH+2}, {512*3072}")
        e(f"s_and_b32 s{sCNT}, s{sT2}, 1"); e(f"s_mul_i32 s{sCNT}, s{sCNT}, {256*3072}"); e(f"s_add_u32 s{sCNT}, s{sCNT}, s{sWB}")
        e(f"s_and_b32 s{sT2}, s{sT2}, 6"); e(f"s_lshl_b32 s{sT2}, s{sT2}, 9"); e(f"s_add_u32 s{sCNT}, s{sCNT}, s{sT2}")
        e(f"buffer_load_dword v{250+r}, v{vT1}, {srd(SOTH)}, s{sCNT} offen{' nt' if O.tnt else ''}")
        e(f"s_branch L_t{r}d")
        e.label(f"L_t{r}x")
        e(f"s_bitcmp1_b32 {bm:#x}, s{sW}"); e(f"s_cselect_b64 {sr(SOTH)}, s[38:39], s[32:33]"); e(f"s_mov_b32 s{SOTH+2}, {2048*1024}")
        e(f"s_and_b32 s{sT2}, s{sT2}, 3")
        if sp == 2:
            e(f"s_and_b32 s{sCNT}, s{sT2}, 1"); e(f"s_lshl_b32 s{sCNT}, s{sCNT}, 14"); e(f"s_lshr_b32 s{sT2}, s{sT2}, 1"); e(f"s_lshl_b32 s{sT2}, s{sT2}, 9"); e(f"s_add_u32 s{sT2}, s{sT2}, s{sCNT}")
        else: e(f"s_lshl_b32 s{sT2}, s{sT2}, {8 if sp == 1 else 13}")
        e(f"s_add_u32 s{sCNT}, s{sT2}, s{sXB}")
        e(f"buffer_load_dword v{250+r}, v{vT0}, {srd(SOTH)}, s{sCNT} offen{' nt' if O.tnt else ''}")
        e.label(f"L_t{r}d")
        e("s_barrier")
    if not O.rotA: e(f"s_mov_b32 s{sT3}, 0")
    e.label("L_notouch")
    e(f"s_mov_b64 {sr(SOUT)}, s[44:45]")
    def chunk(t):
        e(f"s_add_u32 s{sT2}, s{sT3}, {t}"); e(f"s_and_b32 s{sT2}, s{sT2}, 7")
        e(f"s_lshl_b32 s{sCX+t}, s{sT2}, 7"); e(f"s_add_u32 s{sCX+t}, s{sCX+t}, s{sT0}")
        e(f"s_mul_i32 s{sCW+t}, s{sT2}, {64*3072}"); e(f"s_add_u32 s{sCW+t}, s{sCW+t}, s{sT1}")
    chunk(0)
    for p in st_pieces(0): p()
    e(f"s_mov_b32 s{SDBG+2}, 256"); e(f"s_mov_b32 s{SDBG+3}, 0x20000")
    e(f"s_xor_b32 s{sT2}, s{sW}, 7"); e(f"s_or_b32 s{sT2}, s2, s{sT2}")
    def tag():
        e(f"s_memrealtime {sr(sNON)}"); e("s_waitcnt lgkmcnt(0)")
        e(f"s_or_b32 s{sNON+1}, s{sNON+1}, 0x80000000")
        e(f"v_mov_b32 v{vCV}, s{sNON}"); e(f"v_mov_b32 v{vCV+1}, s{sNON+1}")
        e("s_mov_b64 exec, 1")
        e(f"buffer_store_dwordx2 {vr(vCV,2)}, off, {srd(SDBG)}, 0 sc1")
        e("s_mov_b64 exec, -1")
    e.cond(f"s_cmp_eq_u32 s{sT2}, 0", tag)
    chunk(1)
    for p in st_pieces(1): p()
    for t in range(2, 8): chunk(t)
    e(f"s_mov_b32 s{SWO+2}, {512*1024}"); e(f"s_mov_b32 s{SWO+3}, 0x20000")
    e(f"s_mov_b32 s{SOUT+2}, {2048*2048}")
    e(f"s_mov_b32 s{SWS+2}, {WS_BYTES}"); e(f"s_mov_b32 s{SWS+3}, 0x20000")
    e(f"s_lshr_b32 s{sFT}, s{sW}, 2"); e(f"s_mul_i32 s{sTT}, s{sFT}, 3"); e(f"s_and_b32 s{sT0}, s{sW}, 3"); e(f"s_xor_b32 s{sTT}, s{sTT}, s{sT0}")
    e(f"s_lshl_b32 s{sT}, s{sRB}, 2"); e(f"s_add_u32 s{sT}, s{sT}, s{sTT}")
    e(f"v_and_b32 v{vT0}, 31, v{vL}"); e(f"v_lshrrev_b32 v{vT1}, 5, v{vL}")
    e(f"v_bfe_u32 v{vT2}, v{vL}, 1, 3"); e(f"v_xor_b32 v{vT2}, v{vT2}, v{vT1}"); e(f"v_lshlrev_b32 v{vT2}, 4, v{vT2}")
    e(f"v_lshl_add_u32 v{vXR}, v{vT0}, 7, v{vT2}")
    e(f"s_lshl_b32 s{sT0}, s{sTT}, 12"); e(f"v_add_u32 v{vXR}, s{sT0}, v{vXR}")
    for s_ in range(1, 4): e(f"v_xor_b32 v{vXR+s_}, {s_*32}, v{vXR}")
    e(f"v_bfe_u32 v{vT2}, v{vL}, 2, 2"); e(f"v_lshlrev_b32 v{vWR}, 6, v{vT2}")
    e(f"v_bfe_u32 v{vT2}, v{vL}, 4, 1"); e(f"v_lshl_add_u32 v{vWR}, v{vT2}, 5, v{vWR}")
    e(f"v_and_b32 v{vT2}, 3, v{vL}"); e(f"v_lshl_add_u32 v{vWR}, v{vT2}, 3, v{vWR}")
    e(f"v_lshl_add_u32 v{vWR}, v{vT1}, 10, v{vWR}")
    e(f"s_lshl_b32 s{sT0}, s{sFT}, 9"); e(f"v_add_u32 v{vWR}, s{sT0}, v{vWR}")
    e(f"v_add_u32 v{vWR1}, 0x10000, v{vWR}"); e(f"v_add_u32 v{vWR2}, 0x20000, v{vWR}")
    e(f"v_lshlrev_b32 v{vL16}, 4, v{vL}")
    e(f"s_lshl_b32 s{sT0}, s{sTT}, 13"); e(f"s_lshl_b32 s{sT1}, s{sFT}, 11"); e(f"s_add_u32 s{sT0}, s{sT0}, s{sT1}")
    e(f"s_add_u32 s{sT0}, s{sT0}, {L_KV + 8*8192}"); e(f"v_add_u32 v{vEXP}, s{sT0}, v{vL16}")
    e(f"s_lshl_b32 s{sT0}, s{sBR}, 3"); e(f"s_add_u32 s{sT0}, s{sT0}, s{sG}"); e(f"s_lshl_b32 s{sT0}, s{sT0}, 6"); e(f"s_add_u32 s{sT0}, s{sT0}, s{sT}")
    e(f"s_lshl_b32 s{sKV}, s{sT0}, 13"); e(f"s_add_u32 s{sKV}, s{sKV}, s{sT1}")
    e(f"s_lshl_b32 s{sF1}, s{sT0}, 8"); e(f"s_lshl_b32 s{sT1}, s{sFT}, 7"); e(f"s_add_u32 s{sF1}, s{sF1}, s{sT1}"); e(f"s_add_u32 s{sF1}, s{sF1}, {WS_F1}")
    e(f"s_sub_u32 s{sT0}, s{sT0}, s{sTT}"); e(f"s_add_u32 s{sT0}, s{sT0}, s{sW}"); e(f"s_sub_u32 s{sT0}, s{sT0}, 8")
    e(f"s_lshl_b32 s{sT1}, s{sRB}, 2"); e(f"s_add_u32 s{sT1}, s{sT1}, s{sW}"); e(f"s_cmp_lt_u32 s{sT1}, 8"); e(f"s_cselect_b32 s{sIMP}, 1, 0")
    e(f"s_cselect_b32 s{sT0}, 0, s{sT0}")
    e(f"s_lshl_b32 s{sIG}, s{sT0}, 13"); e(f"s_lshl_b32 s{sIF}, s{sT0}, 8"); e(f"s_add_u32 s{sIF}, s{sIF}, {WS_F1 + 120}")
    e(f"s_cmp_eq_u32 s{sBR}, 0"); e(f"s_cselect_b32 s{sIMP}, 2, s{sIMP}")
    e(f"s_lshl_b32 s{sT0}, s{sBR}, 6"); e(f"s_add_u32 s{sT0}, s{sT0}, s{sT}")
    e(f"s_lshl_b32 s{sT1}, s{sT0}, 4"); e(f"s_lshl_b32 s{sT2}, s{sG}, 1"); e(f"s_add_u32 s{sT1}, s{sT1}, s{sT2}"); e(f"s_add_u32 s{sT1}, s{sT1}, s{sFT}")
    e(f"s_lshl_b32 s{sOA}, s{sT1}, 11"); e(f"s_add_u32 s{sOA}, s{sOA}, {WS_O}")
    e(f"s_lshl_b32 s{sF2}, s{sT1}, 8"); e(f"s_add_u32 s{sF2}, s{sF2}, {WS_F2}")
    e(f"s_mov_b32 s{sEX}, 0xffff"); e(f"s_mov_b32 s{sEX+1}, 0xffff")
    e(f"s_lshl_b32 s{sT0}, s{sXCD}, 1"); e(f"s_bfe_u32 s{sT1}, s{sJ}, 0x10003"); e(f"s_add_u32 s{sT0}, s{sT0}, s{sT1}")
    e(f"s_lshl_b32 s{sT0}, s{sT0}, 2"); e(f"s_and_b32 s{sT1}, s{sW}, 3"); e(f"s_add_u32 s{sT3P}, s{sT0}, s{sT1}")
    if O.stlb:
        e(f"s_add_u32 s{sVM}, s{SWS}, s{sF2}"); e(f"s_addc_u32 s{sVM+1}, s{SWS+1}, 0")
        e(f"s_load_dword s{sCNT}, {sr(sVM)}, 0 glc")
    e(f"s_cmp_eq_u32 s{sBR}, 0"); e("s_cbranch_scc1 L_maskA")
    masks("B"); e("s_branch L_maskdone")
    e.flush()
    e.label("L_maskA"); masks("A")
    e.label("L_maskdone")
    if O.warm:
        e("s_mov_b64 exec, 0")
        for i in range(7): e(f"s_cmp_eq_u32 s{sW}, {i}"); e(f"s_cbranch_scc1 L_stub{i}")
        e("s_branch L_stub7")
        e.label("L_warmed"); e("s_mov_b64 exec, -1")
    e(f"v_lshlrev_b32 v{vL8}, 3, v{vL}")

def flag_store(soff, s_=SWS, off=0):
    e("s_mov_b64 exec, 0xffff")
    e.vm(f"buffer_store_dwordx2 {vr(vNON,2)}, v{vL8}, {srd(s_)}, s{soff} offen{f' offset:{off}' if off else ''} sc1", "flag")
    e("s_mov_b64 exec, -1")
def flag_ld(tag):
    e.vm(f"buffer_load_dwordx4 {vr(vFL,4)}, off, {srd(SWS)}, s{sIF} sc1", tag)
def flag_cmp():
    e(f"v_cmp_ne_u64 vcc, {sr(sNON)}, {vr(vFL,2)}"); e(f"v_cmp_ne_u64 {sr(sVM)}, {sr(sNON)}, {vr(vFL+2,2)}")
    e(f"s_or_b64 {sr(sVM)}, {sr(sVM)}, vcc")
def flag_poll():
    L = e.newlab("L_fp"); D = L + "d"
    e(f"s_mov_b32 s{sCNT}, 0")
    e.label(L)
    e(f"buffer_load_dwordx4 {vr(vFL,4)}, off, {srd(SWS)}, s{sIF} sc1")
    e(f"s_add_u32 s{sCNT}, s{sCNT}, 1"); e(f"s_cmp_gt_u32 s{sCNT}, {O.pollmax}"); e(f"s_cbranch_scc1 {D}")
    e("s_waitcnt vmcnt(0)")
    flag_cmp(); e(f"s_cbranch_scc1 {L}")
    e.label(D)
def spoll(soff, offs):
    L = e.newlab("L_sp"); D = L + "d"
    e(f"s_add_u32 s{sVM}, s{SWS}, s{soff}"); e(f"s_addc_u32 s{sVM+1}, s{SWS+1}, 0"); e(f"s_mov_b32 s{sCNT}, 0")
    e.label(L)
    w32 = O.sp32 and len(offs) > 4
    for i, o in enumerate(offs): e(f"s_load_dword s{sVMK+i}, {sr(sVM)}, {o} glc" if w32 else f"s_load_dwordx2 {sr(sVMK+2*i)}, {sr(sVM)}, {o} glc")
    e(f"s_add_u32 s{sCNT}, s{sCNT}, 1"); e(f"s_cmp_gt_u32 s{sCNT}, {O.pollmax}")
    e("s_waitcnt lgkmcnt(0)")
    e(f"s_cbranch_scc1 {D}")
    n2 = len(offs)//2 if w32 else len(offs)
    for i in range(n2): e(f"s_xor_b64 {sr(sVMK+2*i)}, {sr(sVMK+2*i)}, {sr(sT2) if w32 else sr(sNON)}")
    for i in range(1, n2): e(f"s_or_b64 {sr(sVMK)}, {sr(sVMK)}, {sr(sVMK+2*i)}")
    e(f"s_cbranch_scc1 {L}")
    e.label(D)
def imp_dma(v, track=None):
    e(f"s_lshl_b32 s{sT1}, s{sW}, 13"); e(f"s_add_u32 m0, s{sT1}, {L_KV + v*4096}")
    e(f"s_add_u32 s{sT0}, s{sIG}, {v*4096}")
    for k in range(4):
        t = f"buffer_load_dwordx4 v{vL16}, {srd(SIMP)}, s{sT0} offen offset:{k*1024} sc1 lds"
        if track: e.vm(t, track)
        else: e(t)

def touch_wo(s_, tmp):
    e(f"s_and_b32 s{sT0}, s{sJ}, 15"); e(f"s_lshl_b32 s{sT0}, s{sT0}, 3"); e(f"s_add_u32 s{sT0}, s{sT0}, s{sW}")
    e(f"s_lshl_b32 s{sT0}, s{sT0}, 12"); e(f"v_lshlrev_b32 v{tmp}, 7, v{vL}")
    e("s_mov_b32 exec_hi, 0")
    e(f"buffer_load_dword v{tmp+1}, v{tmp}, {srd(s_)}, s{sT0} offen")
    e("s_mov_b32 exec_hi, -1")

def p1():
    e.stamp(12)
    def rd(ks):
        G, s_ = divmod(ks, 4)
        w = WF[ks % 8]
        if G < 8:
            e.ds(f"ds_read_b128 {vr(vXF+4*ks,4)}, v{vXR+s_} offset:{(G%4)*16384}", f"w{ks}")
            b, off = vWR2, (G % 4)*8192 + s_*2048
        elif G < 16: b, off = vWR1, (G-8)*8192 + s_*2048
        else: b, off = vWR, (G-16)*8192 + s_*2048
        e.ds(f"ds_read_b64_tr_b16 {vr(w,2)}, v{b} offset:{off}", f"w{ks}")
        e.ds(f"ds_read_b64_tr_b16 {vr(w+2,2)}, v{b} offset:{off+256}", f"w{ks}")
    syncs = {G: (f"st{G}", True) for G in range(8)}
    syncs.update({8: ("wv1", True), 10: ("wv3", False), 12: ("wv7", False), 16: ("wq3", False), 20: ("wq7", "exp")})
    def sync(G):
        if G not in syncs: return
        tag, lg = syncs[G]
        e.wait_vm(tag)
        if lg is True: e.ds_all()
        elif lg: e.wait_ds(lg)
        if not (O.x & 8 and G > 8): e("s_barrier")
    gap = {k: [] for k in range(-1, 96)}
    def I(t): return lambda: e(t)
    def wv(t): return lambda: dma(vW0, SW, sCW+t, L_WV + t*8192, f"wv{t}")
    def wq(t): return lambda: dma(vW0, SW, sCW+t, t*8192, f"wq{t}")
    gap[-1] += st_pieces(2)
    for t in range(3, 8):
        for i, p in enumerate(st_pieces(t)): gap[4*(t-3) + i].append(p)
    gap[19].append(I(f"v_add_u32 v{vW0}, 0x400, v{vW0}"))
    for t, k in enumerate([20, 22, 24, 26, 28, 30, 32, 33]): gap[k].append(wv(t))
    gap[29].append(lambda: e.vm(f"buffer_load_dwordx2 {vr(vNON,2)}, off, {srd(SDBG)}, 0 sc1", "non"))
    gap[21] += [I(f"s_mov_b64 {sr(SEXP)}, {sr(SWS)}"), I(f"s_lshl_b32 s{sT0}, s{sBR}, 2"), I(f"s_or_b32 s{sT0}, s{sT0}, s{sTT}")]
    gap[23] += [I(f"s_cmp_ge_u32 s{sT0}, 3"), I(f"s_cselect_b32 s{SEXP+2}, s{SWS+2}, 0")]
    def export(k0, acc, tmp, off, tag):
        for i in range(4): gap[k0].append(lambda i=i: cvt(tmp, acc, i))
        if off: gap[k0].append(I(f"s_add_u32 s{sKV}, s{sKV}, {off}"))
        if not O.x & 1: gap[k0+1].append(lambda: e.vm(f"buffer_store_dwordx4 {vr(tmp,4)}, v{vL16}, {srd(SEXP)}, s{sKV} offen sc1", tag))
        for i in range(4, 8): gap[k0+1].append(lambda i=i: cvt(tmp, acc, i))
        if not O.x & 1: gap[k0+2].append(lambda: e.vm(f"buffer_store_dwordx4 {vr(tmp+4,4)}, v{vL16}, {srd(SEXP)}, s{sKV} offen offset:1024 sc1", tag))
        if not O.x & 2: gap[k0+3].append(lambda: e.ds(f"ds_write_b128 v{vEXP}, {vr(tmp,4)} offset:{off}", "exp"))
        if not O.x & 2: gap[k0+4].append(lambda: e.ds(f"ds_write_b128 v{vEXP}, {vr(tmp+4,4)} offset:{off+1024}", "exp"))
    export(34, accA, vCV, 0, "kst")
    gap[39].append(I(f"v_subrev_u32 v{vW0}, 0x800, v{vW0}"))
    wqg = [[40, 43, 46, 49, 54, 57, 60, 63], [39, 40, 41, 42, 53, 55, 57, 59], [39, 41, 43, 45, 53, 55, 57, 59]][O.wqs]
    for t, k in enumerate(wqg):
        if not O.x & 4: gap[k].append(wq(t))
    def kflag():
        e.wait_vm("kst"); e.wait_vm("non")
        e(f"v_readfirstlane_b32 s{sNON}, v{vNON}"); e(f"v_readfirstlane_b32 s{sNON+1}, v{vNON+1}")
        def late():
            L = e.newlab("L_tag"); D = L + "d"
            e(f"s_mov_b32 s{sCNT}, 0")
            e.label(L)
            e(f"buffer_load_dwordx2 {vr(vNON,2)}, off, {srd(SDBG)}, 0 sc1"); e("s_waitcnt vmcnt(0)")
            e(f"v_readfirstlane_b32 s{sNON}, v{vNON}"); e(f"v_readfirstlane_b32 s{sNON+1}, v{vNON+1}")
            e(f"s_add_u32 s{sCNT}, s{sCNT}, 1"); e(f"s_cmp_gt_u32 s{sCNT}, {O.pollmax}"); e(f"s_cbranch_scc1 {D}")
            e(f"s_cmp_eq_u32 s{sNON+1}, 0"); e(f"s_cbranch_scc1 {L}")
            e.label(D)
        e("s_nop 0")
        e.cond(f"s_cmp_eq_u32 s{sNON+1}, 0", late)
        flag_store(sF1, SEXP)
    gap[O.kflag].append(kflag)
    def prew():
        e("s_mov_b32 exec_hi, 0")
        e.vm(f"buffer_store_dwordx2 {vr(vL16,2)}, v{vL8}, {srd(SWS)}, s{sF2} offen sc1", "prew")
        e("s_mov_b32 exec_hi, -1")
    if O.prew: gap[O.prew].append(prew)
    export(66, accB, vCV+8, 4096, "vst")
    gap[O.kchk].append(lambda: flag_ld("kchk"))
    gap[72] += [I(f"v_add_u32 v{vKA8}, {-8*8192 & 0xffffffff:#x}, v{vEXP}"), I(f"v_add_u32 v{vKA}, 0x2000, v{vKA8}"), I(f"v_and_b32 v{vVA8}, 0xfffffeff, v{vKA8}")]
    gap[73] += [I(f"v_add_u32 v{vVA8}, 0x1000, v{vVA8}"), I(f"v_add_u32 v{vVA}, 0x2000, v{vVA8}")]
    for i in range(1, 9):
        gap[73+i] += [I(f"s_cmp_le_u32 {i}, s{sT}"), I(f"s_cselect_b64 {sr(sVMK+2*(i-1))}, {sr(sEX)}, -1")]
    gap[61] += [I(f"v_bfe_u32 v{vWO}, v{vL}, 2, 3"), I(f"s_lshl_b32 s{sT0}, s{sW}, 3"), I(f"v_add_u32 v{vWO}, s{sT0}, v{vWO}"), I(f"v_lshlrev_b32 v{vWO}, 10, v{vWO}")]
    gap[62] += [I(f"v_lshrrev_b32 v{vWR1}, 5, v{vL}"), I(f"v_lshl_add_u32 v{vWO}, v{vWR1}, 6, v{vWO}"), I(f"v_and_b32 v{vWR1}, 3, v{vL}"), I(f"v_lshl_add_u32 v{vWO}, v{vWR1}, 4, v{vWO}")]
    gap[63] += [I(f"s_and_b32 s{sT0}, s{sJ}, 7"), I(f"s_lshl_b32 s{sT0}, s{sT0}, 7"), I(f"v_add_u32 v{vWO}, s{sT0}, v{vWO}")]
    gap[64] += [I(f"s_mov_b64 {sr(SIMP)}, {sr(SWS)}")]
    def imp_k1():
        e.wait_vm("kchk")
        flag_cmp()
        e(f"s_cselect_b32 s{sPEND}, 1, 0")
        e(f"s_cmp_lg_u32 s{sIMP}, 0"); e(f"s_cselect_b32 s{sPEND}, 0, s{sPEND}")
        flag_ld("kchk2")
        e(f"s_or_b32 s{sT0}, s{sPEND}, s{sIMP}"); e(f"s_cselect_b32 s{SIMP+2}, 0, s{SWS+2}")
        e.cond(f"s_cmp_eq_u32 s{sBR}, 0", lambda: ([e(f"buffer_load_dword v{vCV}, off, {srd(SIMP)}, 0") for i in range(4)], e("s_branch L_k1d")))
        imp_dma(0, "kimp")
        e.label("L_k1d")
    gap[O.imp1].append(imp_k1)
    def imp_k2():
        e.wait_vm("vst")
        e(f"s_add_u32 s{sF1}, s{sF1}, {F1V}")
        flag_store(sF1, SEXP); e.stamp(5)
        e(f"s_cmp_lg_u32 s{sIMP}, 0"); e(f"s_cselect_b32 s{SIMP+2}, 0, s{SWS+2}")
        def again():
            L = e.newlab("L_k2")
            e("s_waitcnt vmcnt(1)")
            flag_cmp(); e(f"s_cbranch_scc1 {L}")
            imp_dma(0); e(f"s_mov_b32 s{sPEND}, 2")
            e.label(L)
        e.cond(f"s_cmp_eq_u32 s{sPEND}, 1", again)
    gap[O.imp].append(imp_k2)
    def late_vm():
        if not O.awo: e.cond(f"s_cmp_eq_u32 s{sBR}, 0", lambda: ([wo_piece(i, L_KV) for i in range(4, 8)], e("s_branch L_tBd")))
        if O.tchB: touch_wo(SWO, vCV)
        e.label("L_tBd")
    gap[O.tchB or 90].append(late_vm)
    gap[86].append(I(f"s_mov_b32 s{sT2}, 0x3f803f80"))
    for i in range(32): gap[88 + i//4].append(I(f"v_mov_b32 v{vV+i}, s{sT2}"))
    gap[92].append(lambda: e.ds(f"ds_read_b128 {vr(vK,4)}, v{vKA} offset:{7*8192}", "k0"))
    gap[95] += [I(f"s_mov_b32 s{sT2}, 0x3eb8aa3b"), I(f"s_mov_b32 s{sT3}, 0x3eb8aa3b")]

    sync(0); e.stamp(1)
    for s_ in range(4): rd(s_)
    for f in gap[-1]: f()
    for ks in range(96):
        it, s_ = divmod(ks, 4)
        if s_ == 0:
            e.c(f"---- P1 group {it}")
            if it in (10, 20): e.stub()
            sync(it+1)
            if it in (8, 16): e.stamp({8: 2, 16: 3}[it])
            if it < 13: e.stamp(it+1, 2)
            if it >= 11: e.stamp(it-10, 3)
        if O.p1prio and ks >= 28:
            spans = [28, 36, 44, 60, 76, 96]
            a = max(x for x in spans if x <= ks); b_ = min(x for x in spans if x > ks)
            step = (b_ - a) // 4
            if (ks - a) % step == 0 and (ks - a) // step < 4: e(f"s_setprio {3 - (ks - a)//step}")
        e.wait_ds(f"w{ks}")
        acc = accB if 8 <= it < 16 else accA
        c = "0" if ks % 32 == 0 else acc
        if 8 <= it < 16: mfma(acc, vXF+4*(ks % 32), WF[ks % 8], c)
        else: mfma(acc, WF[ks % 8], vXF+4*(ks % 32), c)
        if it < 7:
            if s_ == 0:
                for q in range(4): rd(ks+4+q)
        elif ks + 4 < 96: rd(ks+4)
        for f in gap[ks]: f()

def wo_piece(i, base=0):
    e(f"s_add_u32 m0, s{sM0}, {base + i*8192}"); e(f"s_mov_b32 s{sT0}, {i*65536}")
    e(f"buffer_load_dwordx4 v{vWO}, {srd(SWO)}, s{sT0} offen lds")

def norm(o, dst):
    e(f"v_rcp_f32 v{o+10}, v{o+8}")
    e(f"v_pk_add_f32 {vr(o+12,2)}, {vr(o,2)}, {vr(o+2,2)}"); e(f"v_pk_add_f32 {vr(o+14,2)}, {vr(o+4,2)}, {vr(o+6,2)}")
    for i in range(4): e(f"v_pk_mul_f32 {vr(o+2*i,2)}, {vr(o+2*i,2)}, {vr(o+10,2)} op_sel_hi:[1,0]")
    e(f"v_pk_add_f32 {vr(o+12,2)}, {vr(o+12,2)}, {vr(o+14,2)}")
    cvt8(dst, o)
    e(f"v_add_f32 v{o+12}, v{o+12}, v{o+13}"); e(f"v_fma_f32 v{o+8}, v{o+12}, 0, v{o+8}")
def check(os_, slowlab):
    for n, o in enumerate(os_):
        e(f"v_subrev_u32 v{o+8}, 0x2b800000, v{o+8}")
        if n: e(f"v_max_u32 v{os_[0]+8}, v{os_[0]+8}, v{o+8}")
    e(f"v_cmp_lt_u32 vcc, 0x28000000, v{os_[0]+8}")
    if slowlab is None:
        e(f"s_or_b32 s{sBAD}, vcc_lo, vcc_hi")
        if O.force_slow: e(f"s_mov_b32 s{sBAD}, 1")
    elif O.force_slow: e(f"s_branch {slowlab}")
    else: e(f"s_cbranch_vccnz {slowlab}")
def prefill(regs):
    e(f"s_mov_b32 s{sT0}, 0x3f803f80")
    for i in regs: e(f"v_mov_b32 v{i}, s{sT0}")
def rdK(i, u, dst):
    if i < 8: e(f"ds_read_b128 {vr(dst,4)}, v{vKA} offset:{(7-i)*8192 + u*1024}")
    else: e(f"ds_read_b128 {vr(dst,4)}, v{vKA8} offset:{u*1024}")
def rdV(i, u, dst, dyn=True, restore=True):
    e(f"s_mov_b64 exec, {sr(sVMK+2*(i-1)) if dyn and i > 0 else sr(sEX)}")
    b, off = (vVA, (7-i)*8192) if i < 8 else (vVA8, 0)
    e(f"ds_read_b128 {vr(dst,4)}, v{b} offset:{off + u*256}")
    e(f"ds_read_b128 {vr(dst+4,4)}, v{b} offset:{off + u*256 + 1024}")
    if restore: e("s_mov_b64 exec, -1")

def attention():
    e.c("---- Q epilogue")
    e.stamp(4)
    def qscale(h):
        for i in range(4*h, 4*h+4): e(f"v_pk_mul_f32 {vr(accA+2*i,2)}, {vr(accA+2*i,2)}, {sr(sT2)}")
        for i in range(4*h, 4*h+4): cvt(vQ2, accA, i)
    e(f"s_cmp_eq_u32 s{sBR}, 0"); e("s_cbranch_scc1 L_attnA")
    e.c("---- attention B")
    e.cond(f"s_cmp_eq_u32 s{sPEND}, 1", lambda: (flag_poll(), imp_dma(0)))
    e(f"s_add_u32 s{sIF}, s{sIF}, {F1V}")
    e("s_nop 6")
    qscale(0); qscale(1)
    def kbar():
        flag_ld("x")
        e(f"s_waitcnt vmcnt({3 if O.tchB else 2})")
        e.cond(f"s_cmp_lg_u32 s{sPEND}, 0", lambda: e("s_waitcnt vmcnt(1)"))
        if O.stamps == 1: e(f"s_mul_i32 s{sT0}, s{sPEND}, 1000"); e(f"s_add_u32 s{ST0+24}, s{ST0}, s{sT0}")
        e("s_barrier"); e.stamp(6)
    def vimp():
        e("s_waitcnt vmcnt(0)")
        flag_cmp()
        e(f"s_cselect_b32 s{sT0}, s{SIMP+2}, 0")
        e.cond(f"s_cmp_lg_u32 s{sT0}, 0", flag_poll)
        imp_dma(1)
    def vbar():
        e(f"s_waitcnt vmcnt({1 if O.tchA < O.lag else 0})"); e("s_barrier"); e.stamp(13)
    def tchA():
        if not O.tchB: touch_wo(SWO, vU0+2)
        e(f"s_mov_b64 {sr(SOWO)}, {sr(sOW)}"); e(f"s_mov_b32 s{SOWO+2}, {512*1024}")
        touch_wo(SOWO, vU0)
    def sample02():
        f3_addr()
        e("s_mov_b64 exec, 0x55555555")
        e(f"buffer_load_dwordx2 {vr(vFL,2)}, v{vF}, {srd(SWS)}, s{sF3} offen sc1")
        e("s_mov_b64 exec, -1")
    L = O.lag
    pv = {n: [] for n in range(19)}
    pv[L].append(0); m = 1
    for n in range(L+1, 19):
        for _ in range(2):
            if m < n and m < 18: pv[n].append(m); m += 1
    assert m == 18
    def P(m): return PB + 8*(m % 8)
    def V(m): return vV + 8*(m % 4)
    def ex(n, r): e(f"v_exp_f32 v{vS+16*(n%2)+r}, v{vS+16*(n%2)+r}")
    def pvm(m, kb):
        o = vO + 16*(m // 9)
        mfma(o, V(m)+4*kb, P(m)+4*kb, "0" if (m % 9 == 0 and kb == 0) else o)
    assert max(n for n in pv if 8 in pv[n]) < O.epi
    prio = {0: 2, 2: 1, 4: 0, L: 3, L+3: 2, L+6: 1, L+9: 0}
    e("s_waitcnt lgkmcnt(0)")
    mfma(vS, vK, vQ2, vML)
    e(f"s_mov_b32 s{sT2}, 0x3f803f80")
    for n in range(19):
        u, i = divmod(n, 9)
        s_ = vS + 16*(n % 2)
        e.c(f"task {n}")
        if n in (5, 13): e.stub()
        if n < 11: e.stamp(n+1, 4)
        if n >= 8: e.stamp(n-7, 5)
        if O.fair and n in prio: e(f"s_setprio {prio[n]}")
        if n == 0: kbar(); e("s_nop 4")
        if n == O.vpos: vimp()
        if n == L: vbar()
        if n == O.oflag:
            younger = sum(8*(t-O.wo_at+1)//O.wo_n - 8*(t-O.wo_at)//O.wo_n for t in range(O.epi+1, n) if O.wo_at <= t < O.wo_at + O.wo_n)
            e(f"s_waitcnt vmcnt({younger})")
            e(f"s_cmp_lg_u32 s{sBAD}, 0"); e("s_cbranch_scc1 L_noflag0"); flag_store(sF2); e.label("L_noflag0")
        if O.wo_at <= n < O.wo_at + O.wo_n:
            for p_ in range(8*(n-O.wo_at)//O.wo_n, 8*(n-O.wo_at+1)//O.wo_n): wo_piece(p_)
        if n == O.tchA: tchA()
        if n == O.tE: e.cond(f"s_cmp_lt_u32 s{sW}, 4", lambda: (f3_addr(), o_touch(0x00ff00ff, 0)))
        if n == O.smp_at: sample02()
        nxt = pv[n+1] if n < 18 else []
        fresh = [m for m in nxt if 9 <= m < 13]
        if fresh: e.cond(f"s_cmp_lt_u32 s{sT}, 8", lambda fresh=fresh: [e(f"v_mov_b32 v{V(m)+k}, s{sT2}") for m in fresh for k in range(8)])
        cnt = 0
        if n < 17: rdK((n+1) % 9, (n+1) // 9, vK+4*((n+1) % 2)); cnt += 1
        for k, m in enumerate(nxt): rdV(m % 9, m // 9, V(m), restore=(k == len(nxt)-1)); cnt += 2
        mf = [(m, kb) for m in pv[n] for kb in range(2)]
        if n == 18:
            e("s_waitcnt lgkmcnt(0)"); e("s_nop 0")
            for x in mf: pvm(*x)
            break
        first = [True]
        def slot():
            if mf:
                if first[0]: e(f"s_waitcnt lgkmcnt({cnt})"); first[0] = False
                pvm(*mf.pop(0))
        two = len(mf) > 2
        for r in range(4): ex(n, r)
        slot()
        for r in range(4, 8): ex(n, r)
        if n < 17:
            e(f"s_waitcnt lgkmcnt({cnt-1})")
            i1 = (n+1) % 9
            mfma(vS+16*((n+1) % 2), vK+4*((n+1) % 2), vQ2 + 4*((n+1) // 9), vML if i1 == 0 else (vMF if i1 == 8 else "0"))
        cvt8(P(n), s_)
        for r in range(8, 10): ex(n, r)
        if two: slot()
        for r in range(10, 12): ex(n, r)
        if not two: slot()
        for r in range(12, 14): ex(n, r)
        slot()
        for r in range(14, 16): ex(n, r)
        cvt8(P(n)+4, s_+8)
        slot()
        if n == O.epi:
            norm(vO, vP); check([vO], None)
            e(f"buffer_store_dwordx4 {vr(vP,4)}, v{vL16}, {srd(SWS)}, s{sOA} offen sc1")
    e("s_nop 11")
    norm(vO+16, vP+4); check([vO+16], "L_B_slow1")
    e.label("L_B_ok1")
    e(f"buffer_store_dwordx4 {vr(vP+4,4)}, v{vL16}, {srd(SWS)}, s{sOA} offen offset:1024 sc1")
    e(f"s_cmp_lg_u32 s{sBAD}, 0"); e("s_cbranch_scc1 L_B_slow0")
    e.label("L_B_ok0")
    e.stamp(7); e.stamp(12, 7)
    e(f"s_cmp_lt_u32 s{sW}, 4"); e("s_cbranch_scc0 L_young")
    e(f"s_mov_b32 s{sHM}, 0")
    f3_groups()
    if O.swp:
        e(f"s_and_b32 s{sT0}, s{sJ}, 1"); e(f"s_lshl_b32 s{sT0}, s{sT0}, 11")
        for q in range(4): e(f"s_xor_b32 s{sG0+q}, s{sG0+q}, s{sT0}")
    e("s_waitcnt vmcnt(1)")
    e("s_mov_b64 exec, 0x55555555")
    e(f"v_cmp_ne_u64 vcc, {sr(sNON)}, {vr(vFL,2)}")
    e("s_mov_b64 exec, -1")
    e(f"s_mov_b32 s{sT3}, 0"); e(f"s_mov_b32 s{sNR}, vcc_lo")
    e("s_cbranch_vccnz L_p3again")
    e.label("L_p3even")
    for k in range(O.ad): o_ld(k, sG0 + k//8)
    p3_setup()
    e(f"s_mov_b32 s{SLD+2}, 0")
    e(f"s_waitcnt vmcnt({O.ad})"); e.stamp(8); e("s_barrier")
    e("s_branch L_p3go")
    e.label("L_p3again")
    e(f"s_mov_b32 exec_lo, s{sNR}"); e("s_mov_b32 exec_hi, 0")
    e(f"buffer_load_dwordx2 {vr(vFL,2)}, v{vF}, {srd(SWS)}, s{sF3} offen sc1")
    e("s_waitcnt vmcnt(0)")
    e(f"v_cmp_ne_u64 vcc, {sr(sNON)}, {vr(vFL,2)}")
    e("s_mov_b64 exec, -1")
    e(f"s_mov_b32 s{sNR}, vcc_lo")
    e("s_cbranch_vccz L_p3even")
    p3_setup()
    e(f"s_mov_b32 s{SLD+2}, 0")
    e("s_barrier")
    poll3(0x55555555, 0x55555555)
    for k in range(O.ad): o_ld(k, sG0 + k//8)
    e("s_branch L_p3go")
    e.label("L_young"); e.stub()
    e("s_waitcnt vmcnt(0)")
    e.label("L_youngA")
    e("s_mov_b64 exec, 0xffff")
    e(f"s_cmp_eq_u32 s{sW}, 4"); e(f"s_cselect_b32 s{SEXP+2}, s{SWS+2}, 0")
    if O.fprio: e("s_setprio 3")
    e("s_waitcnt vmcnt(8)"); e.stamp(8); e("s_barrier")
    e.stamp(1, 8)
    e(f"buffer_store_dwordx2 {vr(vNON,2)}, v{vL8}, {srd(SEXP)}, s{sF2} offen offset:128 sc1")
    e("s_mov_b64 exec, -1")
    e.stamp(2, 8)
    if O.stamps == 8: e("s_waitcnt vmcnt(0)"); e.stamp(3, 8); e(f"s_memrealtime {sr(ST0+12)}")
    e(f"s_cmp_lg_u32 s{sW}, 4"); e("s_cbranch_scc1 L_rest")
    f3_addr()
    e(f"s_add_u32 s{sF3}, s{sF3}, {3*4096}")
    e(f"s_mov_b32 s{sT2}, s{sNON}"); e(f"s_mov_b32 s{sT3}, s{sNON}")
    if O.pdelay: e(f"s_sleep {O.pdelay}")
    spoll(sF3, [384 + 512*g_ for g_ in range(8)])
    e.stamp(10); e.stamp(4, 8)
    if O.stamps == 8:
        e(f"s_memrealtime {sr(ST0+14)}"); e("s_waitcnt lgkmcnt(0)"); e(f"s_add_u32 s{ST0+10}, s{ST0}, s{sCNT}")
        for q_ in (12, 14): e(f"s_and_b32 s{ST0+q_}, s{ST0+q_}, 0xffff"); e(f"s_add_u32 s{ST0+q_}, s{ST0+q_}, s{ST0}")
    e("s_waitcnt vmcnt(1)")
    e("s_barrier")
    e.label("L_rest")
    e("s_waitcnt vmcnt(0)")
    e("s_branch L_stamps" if O.stamps else "s_endpgm")
    e.flush()

    e.c("---- attention A")
    e.label("L_attnA")
    KP, VP = 176, 160
    if not O.spoll:
        e(f"s_and_b32 s{sIF}, s{sF1}, 0xffffff00"); e(f"s_sub_u32 s{sIF}, s{sIF}, 136")
        flag_ld("x")
    else: e("s_waitcnt vmcnt(1)"); e("s_nop 1")
    e.stamp(6)
    e(f"ds_read_b128 {vr(vK+4,4)}, v{vKA} offset:{7*8192 + 1024}")
    e(f"s_mov_b64 exec, {sr(sEX)}")
    for h in range(2):
        for kb in range(2): e(f"ds_read_b128 {vr(vV+8*h+4*kb,4)}, v{vVA} offset:{7*8192 + kb*1024 + h*256}")
    e("s_mov_b64 exec, -1"); e("s_nop 0")
    qscale(0); qscale(1)
    def halo():
        L = e.newlab("L_h")
        e(f"s_cmp_eq_u32 s{sT}, 0"); e(f"s_cbranch_scc1 L_A_nh")
        if O.spoll:
            e(f"s_sub_u32 s{sIF}, s{sF1}, 256"); spoll(sIF, [0])
        else:
            e("s_waitcnt vmcnt(0)")
            flag_cmp(); e(f"s_cbranch_scc0 {L}")
            flag_poll()
        e.label(L)
        e(f"s_sub_u32 s{sT0}, s{sKV}, {8192 + 4096}"); e(f"s_sub_u32 s{sT1}, s{sKV}, {8192 - 1024}")
        e(f"v_and_b32 v{vFL}, 0x2ff, v{vL16}")
        for h in range(2): e(f"buffer_load_dwordx4 {vr(KP+4*h,4)}, v{vL16}, {srd(SWS)}, s{sT0} offen offset:{h*1024} sc1")
        e(f"s_mov_b64 exec, {sr(sEX)}")
        for h in range(2): e(f"buffer_load_dwordx4 {vr(VP+4*h,4)}, v{vFL}, {srd(SWS)}, s{sT1} offen offset:{h*256} sc1")
        e("s_mov_b64 exec, -1")
        e("s_branch L_A_nh")
    e.cond(f"s_cmp_eq_u32 s{sTT}, 0", halo)
    for h in range(2): e(f"ds_read_b128 {vr(KP+4*h,4)}, v{vKA} offset:{6*8192 + h*1024}")
    e(f"s_mov_b64 exec, {sr(sEX)}")
    for h in range(2): e(f"ds_read_b128 {vr(VP+4*h,4)}, v{vVA} offset:{6*8192 + 1024 + h*256}")
    e("s_mov_b64 exec, -1")
    e.label("L_A_nh")
    e("s_waitcnt lgkmcnt(0)")
    def a_body(slow):
        def exs(s_, rs, h):
            for r in rs:
                if slow: e(f"v_sub_f32 v{s_+r}, v{s_+r}, v{vFL+h}")
                e(f"v_exp_f32 v{s_+r}, v{s_+r}")
        lab = "L_A_s2" if slow else "L_A_f2"
        for h in range(2): mfma(vS+16*h, vK+4*h, vQ2+4*h, vML)
        e("s_nop 10")
        for h in range(2):
            exs(vS+16*h, range(16), h); cvt8(vP+8*h, vS+16*h, 8); e("s_nop 1")
            mfma(vO+16*h, vV+8*h, vP+8*h, "0"); mfma(vO+16*h, vV+8*h+4, vP+8*h+4, vO+16*h)
        e("s_waitcnt vmcnt(0)")
        e(f"s_cmp_eq_u32 s{sT}, 0"); e(f"s_cbranch_scc1 {lab}")
        e.stamp(13)
        for h in range(2): mfma(vS+16*h, KP+4*h, vQ2+4*h, vMF)
        e("s_nop 10")
        for h in range(2):
            exs(vS+16*h, range(8, 16), h); cvt8(vP+8*h+4, vS+16*h+8); e("s_nop 1")
            mfma(vO+16*h, VP+4*h, vP+8*h+4, vO+16*h)
        e.label(lab)
        e("s_nop 11")
        for h in range(2): norm(vO+16*h, vP+4*h)
    a_body(False)
    check([vO, vO+16], "L_A_slow")
    e.label("L_A_ok"); e.stub()
    e("s_setprio 2")
    e(f"buffer_store_dwordx4 {vr(vP,4)}, v{vL16}, {srd(SWS)}, s{sOA} offen sc1")
    e(f"buffer_store_dwordx4 {vr(vP+4,4)}, v{vL16}, {srd(SWS)}, s{sOA} offen offset:1024 sc1")
    e.stamp(7)
    e("s_setprio 0")
    for i in range(8): wo_piece(i, L_KV)
    e(f"s_cmp_lt_u32 s{sW}, 4"); e("s_cbranch_scc0 L_youngA")
    e(f"s_and_b32 s{sHM}, s{sJ}, 3")
    f3_groups()
    e(f"s_mov_b32 s{sT3}, {L_KV}")
    e.label("L_p3all")
    e("s_waitcnt vmcnt(8)"); e.stamp(8); e("s_barrier")
    p3_setup()
    e(f"s_mov_b32 s{SLD+2}, s{SWS+2}")
    e("s_waitcnt vmcnt(0)")
    e("s_barrier"); e.stamp(10)
    if O.ltouch: o_touch(0xffffffff, 0)
    for k in range(O.ad): o_ld(k, sG0 + k//8)
    return a_body, KP

vA, vB, vO0, vO1, vF = 2, 3, 7, 5, 10
sO3, sF3, sOUT3, sHM = sIG, sIF, sOA, sPEND
A0, A1 = 40, 56
vTW, vTR = 18, 17
WB = 72
def OFR(k): return 136 + 4*k if k < 30 else 24 + 4*(k-30)
sG0 = sVMK; sHB = sVMK+4
vW = ((0, 4), (6, 16))
def f3_addr():
    e(f"s_lshl_b32 s{sT0}, s{sBR}, 6"); e(f"s_add_u32 s{sT0}, s{sT0}, s{sT3P}")
    e(f"s_lshl_b32 s{sO3}, s{sT0}, 15"); e(f"s_add_u32 s{sO3}, s{sO3}, {WS_O}")
    e(f"s_lshl_b32 s{sF3}, s{sT0}, 12"); e(f"s_add_u32 s{sF3}, s{sF3}, {WS_F2}")
    e(f"v_lshlrev_b32 v{vF}, 7, v{vL}")
def group(dst):
    e(f"s_brev_b32 s{sHB}, s{sHM}"); e(f"s_lshr_b32 s{sHB}, s{sHB}, 20")
    e(f"s_add_u32 s{dst}, s{sHB}, s{sO3}")
    e(f"s_add_u32 s{sHM}, s{sHM}, 1"); e(f"s_and_b32 s{sHM}, s{sHM}, 3")
def wbase(buf, src):
    e(f"s_and_b32 s{sT0}, s{src}, 0xc00"); e(f"s_lshl_b32 s{sT0}, s{sT0}, 1")
    e(f"v_add_u32 v{vW[buf][0]}, s{sT0}, v{vA}"); e(f"v_add_u32 v{vW[buf][1]}, s{sT0}, v{vB}")
def o_ld(k, base, s_=None):
    if k % 8: e(f"s_add_u32 s{sT0}, s{base}, {(k % 8)*4096}")
    e(f"buffer_load_dwordx4 {vr(OFR(k),4)}, v{vL16}, {srd(s_ or SWS)}, s{sT0 if k % 8 else base} offen sc1")
sNR = sVMK + 7
def poll3(need, look):
    L = e.newlab("L_poll"); D = L + "d"
    e(f"s_mov_b32 s{sCNT}, 0"); e("s_mov_b32 exec_hi, 0")
    e.label(L)
    e(f"s_and_b32 s{sT0}, s{sNR}, {need:#x}"); e(f"s_cbranch_scc0 {D}")
    e(f"s_and_b32 exec_lo, s{sNR}, {look:#x}")
    e(f"buffer_load_dwordx2 {vr(vFL,2)}, v{vF}, {srd(SWS)}, s{sF3} offen sc1")
    e(f"s_add_u32 s{sCNT}, s{sCNT}, 1")
    e("s_waitcnt vmcnt(0)")
    e(f"v_cmp_eq_u64 vcc, {sr(sNON)}, {vr(vFL,2)}")
    e(f"s_andn2_b32 s{sNR}, s{sNR}, vcc_lo")
    if O.sleep: e(f"s_sleep {O.sleep}")
    e(f"s_cmp_gt_u32 s{sCNT}, {O.pollmax}"); e(f"s_cbranch_scc0 {L}")
    e.label(D)
    e("s_mov_b64 exec, -1")
SLD = SDUM
def f3_groups():
    f3_addr()
    for q in range(4): group(sG0+q)
def o_touch(mask, dst):
    e(f"s_and_b32 s{sT0}, s{sJ}, 7"); e(f"s_lshl_b32 s{sT0}, s{sT0}, 12"); e(f"s_add_u32 s{sT0}, s{sT0}, s{sO3}")
    e(f"s_mov_b32 exec_lo, {mask:#x}"); e("s_mov_b32 exec_hi, 0")
    e(f"buffer_load_dword v{vFL+3}, v{vF}, {srd(SWS)}, s{sT0} offen sc1")
    e("s_mov_b64 exec, -1")
def p3_setup():
    e(f"s_mov_b64 {sr(SLD)}, {sr(SWS)}")
    e(f"v_bfe_u32 v{vU0}, v{vL}, 2, 2"); e(f"v_lshlrev_b32 v{vA}, 6, v{vU0}")
    e(f"v_and_b32 v{vU0}, 1, v{vL}"); e(f"v_mul_u32_u24 v{vU0}, 544, v{vU0}"); e(f"v_add_u32 v{vA}, v{vA}, v{vU0}")
    e(f"v_bfe_u32 v{vU0}, v{vL}, 4, 1"); e(f"v_lshl_add_u32 v{vA}, v{vU0}, 4, v{vA}")
    e(f"v_bfe_u32 v{vU0}, v{vL}, 1, 1"); e(f"v_lshl_add_u32 v{vA}, v{vU0}, 3, v{vA}")
    e(f"v_lshrrev_b32 v{vU0}, 5, v{vL}"); e(f"v_lshl_add_u32 v{vA}, v{vU0}, 8, v{vA}")
    e(f"v_add_u32 v{vA}, s{sT3}, v{vA}")
    e(f"v_xor_b32 v{vB}, 32, v{vA}")
    if O.tpose:
        e(f"s_lshl_b32 s{sT0}, s{sW}, 12"); e(f"s_add_u32 s{sT0}, s{sT0}, {L_WK}")
        e(f"v_mul_u32_u24 v{vU0}, 6, v{vU0}"); e(f"v_and_b32 v{vU1}, 7, v{vL}"); e(f"v_xor_b32 v{vU0}, v{vU0}, v{vU1}")
        e(f"v_and_b32 v{vTW}, 31, v{vL}"); e(f"v_lshlrev_b32 v{vTW}, 7, v{vTW}"); e(f"v_lshl_add_u32 v{vTW}, v{vU0}, 4, v{vTW}"); e(f"v_add_u32 v{vTW}, s{sT0}, v{vTW}")
        for i in range(1, 4): e(f"v_xor_b32 v{vTW+i}, {16*i}, v{vTW}")
        e(f"v_lshrrev_b32 v{vU0}, 3, v{vL}"); e(f"v_xor_b32 v{vTR}, v{vU0}, v{vU1}"); e(f"v_lshlrev_b32 v{vTR}, 4, v{vTR}")
        e(f"v_lshl_add_u32 v{vTR}, v{vU0}, 7, v{vTR}"); e(f"v_add_u32 v{vTR}, s{sT0}, v{vTR}")
        e(f"v_lshlrev_b32 v{vO0}, 11, v{vU0}"); e(f"v_lshl_add_u32 v{vO0}, v{vU1}, 4, v{vO0}")
    else:
        e(f"v_and_b32 v{vO0}, 31, v{vL}"); e(f"v_lshlrev_b32 v{vO0}, 11, v{vO0}"); e(f"v_mul_u32_u24 v{vU0}, 96, v{vU0}"); e(f"v_add_u32 v{vO0}, v{vO0}, v{vU0}")
        e(f"v_xor_b32 v{vO1}, 32, v{vO0}")
    e(f"s_lshl_b32 s{sOUT3}, s{sT3P}, 16"); e(f"s_lshl_b32 s{sT1}, s{sBR}, 10"); e(f"s_add_u32 s{sOUT3}, s{sOUT3}, s{sT1}")
    e(f"s_and_b32 s{sT1}, s{sJ}, 7"); e(f"s_lshl_b32 s{sT1}, s{sT1}, 7"); e(f"s_add_u32 s{sOUT3}, s{sOUT3}, s{sT1}")
    wbase(0, sG0); wbase(1, sG0+1)

def lds_wait(off, val):
    L = e.newlab("L_lw"); D = L + "d"
    e(f"s_mov_b32 s{sCNT}, 0")
    e.label(L)
    e(f"ds_read_b32 v{vFL}, v{vFL+3} offset:{off}")
    e(f"s_add_u32 s{sCNT}, s{sCNT}, 1"); e(f"s_cmp_gt_u32 s{sCNT}, {O.pollmax*8}")
    e("s_waitcnt lgkmcnt(0)")
    e(f"v_cmp_ne_u32 vcc, {val}, v{vFL}")
    e(f"s_cbranch_scc1 {D}")
    e(f"s_cbranch_vccz {D}"); e("s_sleep 1"); e(f"s_branch {L}")
    e.label(D)

def p3():
    e.c("---- P3 (waves 0..3)")
    def wrd(buf, k):
        for ct in range(2):
            d = WB + 8*k + 4*ct
            e(f"ds_read_b64_tr_b16 {vr(d,2)}, v{vW[buf][ct]} offset:{k*8192}")
            e(f"ds_read_b64_tr_b16 {vr(d+2,2)}, v{vW[buf][ct]} offset:{k*8192 + 1024}")
    e.label("L_p3go")
    for k in range(4): wrd(0, k)
    e.stamp(9); e.stamp(13, 7)
    for k in range(32):
        q, kk = divmod(k, 8)
        if k == 16:
            e(f"s_cmp_lg_u32 s{SLD+2}, 0"); e("s_cbranch_scc1 L_p3b")
            e.stamp(5, 7)
            e("s_barrier"); e.stamp(10); e.stamp(7, 7)
            if O.ltouch: o_touch(0xff00ff00, 0)
            for k2 in range(16, 16+O.ad): o_ld(k2, sG0 + k2//8)
            e.label("L_p3b")
            e.stamp(8, 7)
        e(f"s_waitcnt vmcnt({min(O.ad-1, 31-k)}) lgkmcnt({min(12, 4*(31-k))})")
        mfma(A0, WB + 8*kk, OFR(k), A0 if k else "0")
        if k + O.ad < 32: o_ld(k+O.ad, sG0+(k+O.ad)//8, SLD if (k < 16 <= k+O.ad) else SWS)
        mfma(A1, WB + 8*kk + 4, OFR(k), A1 if k else "0")
        if k + 4 < 32: wrd(((k+4)//8) % 2, (k+4) % 8)
        if kk == 3 and q < 2: wbase(q, sG0+q+2)
    e.stamp(9, 7)
    e("s_nop 10")
    cvt8(72, A0, 8); cvt8(80, A1, 8)
    fl = ["", " sc1", " nt", " sc1 nt", " sc0 sc1", " sc0 sc1 nt", " sc0 nt"][O.outsc]
    if O.tpose:
        for i in range(4): e(f"ds_write_b128 v{vTW+i}, {vr(72+4*i,4)}")
        for i in range(4): e(f"ds_read_b128 {vr(88+4*i,4)}, v{vTR} offset:{i*1024}")
        for i in range(4):
            e(f"s_waitcnt lgkmcnt({3-i})")
            e(f"buffer_store_dwordx4 {vr(88+4*i,4)}, v{vO0}, {srd(SOUT)}, s{sOUT3} offen{fl}")
            if i < 3: e(f"s_add_u32 s{sOUT3}, s{sOUT3}, 0x4000")
    else:
        for i in range(4): e(f"buffer_store_dwordx4 {vr(72+4*i,4)}, v{(vO0, vO1)[i//2]}, {srd(SOUT)}, s{sOUT3} offen offset:{16*(i%2)}{fl}")
    if O.stamps:
        e.stamp(10, 7); e("s_waitcnt vmcnt(0)"); e.stamp(11); e.stamp(11, 7)
        e.label("L_stamps")
        e(f"s_memrealtime {sr(sVM)}"); e("s_waitcnt lgkmcnt(0)")
        e(f"s_lshl_b32 s{sT0}, s2, 3"); e(f"s_add_u32 s{sT0}, s{sT0}, s{sW}"); e(f"s_lshl_b32 s{sT0}, s{sT0}, 6"); e(f"s_add_u32 s{sT0}, s{sT0}, {WS_ST}")
        e("s_mov_b64 exec, 1")
        for i in range(1, 14):
            e(f"s_sub_u32 s{sT1}, s{ST0+2*i}, s{ST0}"); e(f"v_mov_b32 v{vU1}, s{sT1}")
            e(f"buffer_store_dword v{vU1}, off, {srd(SWS)}, s{sT0} offset:{4*i}")
        e(f"v_mov_b32 v{vU1}, s100"); e(f"buffer_store_dword v{vU1}, off, {srd(SWS)}, s{sT0} offset:56")
        e(f"v_mov_b32 v{vU1}, s{sVM}"); e(f"buffer_store_dword v{vU1}, off, {srd(SWS)}, s{sT0} offset:60")
    if O.spin:
        e.label("L_spin"); e("s_memrealtime s[74:75]"); e("s_waitcnt lgkmcnt(0)"); e("s_sub_u32 s74, s74, s72")
        e(f"s_cmp_lt_u32 s74, {O.spin}"); e("s_cbranch_scc1 L_spin")
    e.label("L_end")
    e("s_endpgm")
    e.flush()

def xmax(reg):
    e(f"v_mov_b32 v{vFL+2}, v{reg}"); e("s_nop 1")
    e(f"v_permlane32_swap_b32 v{vFL+2}, v{reg}"); e("s_nop 1")
    e(f"v_max_f32 v{reg}, v{reg}, v{vFL+2}")

def slow_paths(a_body, KP):
    e.c("---- rare path: the stand-in max was unsafe, redo the unit with the true row max")
    def shift(op):
        for r_, d_ in ((vKA, 0x400), (vKA8, 0x400), (vVA, 0x100), (vVA8, 0x100)): e(f"{op} v{r_}, {d_:#x}, v{r_}")
    for u in range(2):
        e.label(f"L_B_slow{u}")
        e(f"s_mov_b32 s{sU}, {u}")
        for i in range(4): e(f"v_mov_b32 v{vQ+i}, v{vQ2+4*u+i}")
        if u == 0: e("s_branch L_B_slow")
        else: shift("v_add_u32")
    e.label("L_B_slow")
    e("s_waitcnt vmcnt(0)")
    prefill(range(vV, vV+8))
    e(f"v_mov_b32 v{vFL}, {NEG}")
    for ps in range(2):
        for i in range(9):
            if i > 0: e(f"s_cmp_gt_u32 {i}, s{sT}"); e(f"s_cbranch_scc1 L_B_s{ps}")
            rdK(i, 0, vK)
            if ps: rdV(i, 0, vV, dyn=False)
            e("s_waitcnt lgkmcnt(0)")
            mfma(vS, vK, vQ, vML if i == 0 else (vMF if i == 8 else "0"))
            e("s_nop 11")
            if ps == 0:
                for r in range(0, 16, 2): e(f"v_max3_f32 v{vFL}, v{vFL}, v{vS+r}, v{vS+r+1}")
            else:
                for r in range(16): e(f"v_sub_f32 v{vS+r}, v{vS+r}, v{vFL}")
                for r in range(16): e(f"v_exp_f32 v{vS+r}, v{vS+r}")
                cvt8(PB, vS, 8); e("s_nop 1")
                mfma(vO, vV, PB, vO if i > 0 else "0"); mfma(vO, vV+4, PB+4, vO)
                e("s_nop 7")
        e.label(f"L_B_s{ps}")
        if ps == 0: xmax(vFL)
    e("s_nop 11")
    norm(vO, vP+4)
    e(f"s_cmp_eq_u32 s{sU}, 0"); e("s_cbranch_scc1 L_B_fin0")
    shift("v_subrev_u32")
    e("s_branch L_B_ok1")
    e.label("L_B_fin0")
    e(f"buffer_store_dwordx4 {vr(vP+4,4)}, v{vL16}, {srd(SWS)}, s{sOA} offen sc1")
    e("s_waitcnt vmcnt(0)"); flag_store(sF2)
    e("s_branch L_B_ok0")
    e.label("L_A_slow")
    for h in range(2):
        e(f"v_mov_b32 v{vFL+h}, {NEG}")
        mfma(vS, vK+4*h, vQ2+4*h, vML); e("s_nop 11")
        for r in range(0, 16, 2): e(f"v_max3_f32 v{vFL+h}, v{vFL+h}, v{vS+r}, v{vS+r+1}")
        e(f"s_cmp_eq_u32 s{sT}, 0"); e(f"s_cbranch_scc1 L_A_m{h}")
        mfma(vS, KP+4*h, vQ2+4*h, vMF); e("s_nop 11")
        for r in range(8, 16, 2): e(f"v_max3_f32 v{vFL+h}, v{vFL+h}, v{vS+r}, v{vS+r+1}")
        e.label(f"L_A_m{h}")
        xmax(vFL+h)
    a_body(True)
    e("s_branch L_A_ok")

prologue(); p1(); ab = attention(); p3(); slow_paths(*ab)
e("s_endpgm")

hdr = open("cdna_kernels/" + NAME + ".s.ref").read().split("; Override launch geometry")[0]
out = hdr + f"; @launch grid=(256,1,1) block=(512,1,1) lds={LDS_BYTES}\n"
out += f""".amdgcn_target "amdgcn-amd-amdhsa--gfx950"
.text
.globl {NAME}_kernel
{'.p2align 12' if O.al12 else ''}
.p2align 8
.type {NAME}_kernel,@function
{NAME}_kernel:
""" + "\n".join(e.L) + f"""
.section .rodata,"a"
.p2align 6
.amdhsa_kernel {NAME}_kernel
  .amdhsa_next_free_vgpr 256
  .amdhsa_next_free_sgpr {102 if O.stamps else (80 if O.spin else 72)}
  .amdhsa_accum_offset 256
  .amdhsa_group_segment_fixed_size 0
  .amdhsa_kernarg_size 72
  .amdhsa_user_sgpr_count 2
  .amdhsa_user_sgpr_kernarg_segment_ptr 1
  .amdhsa_system_sgpr_workgroup_id_x 1
.end_amdhsa_kernel
"""
open(sys.argv[1], "w").write(out)
```

```python
import sys
NAME = "concat_heads__sliding_local_dilated__sliding_block__prompt"

class Opt:
    stamps = 0
    force_slow = 0
    pollmax = 400000
    only = 0
    delayA = 7
    lag = 6
    kflag = 50
    kchk = 65
    imp = 87
    oflag = 13
    vpos = 2
    uni = 0
    xspan = 1
    torder = 0
    tseq = 2
    tn = 12
    tnt = 0
    rotA = 1
    yprio = 0
    prew = 52
    imp1 = 77
    fair = 1
    tpose = 1
    pdelay = 0
    spin = 0
    x = 0
    wqs = 2
    p1prio = 1
    epi = 11
    tchB = 0
    wo_n = 4
    tchA = 6
    ctouch = 1
    warm = 0
    al12 = 1
    tE = 16
    ltouch = 0
    awo = 1
    pre = 8
    ad = 8
    spoll = 1
    stlb = 0
    sp32 = 1
    fprio = 1
    swp = 1
    probe = 0
    pbr = 0
    smp_at = 17
    wo_at = 12
    tch_at = 4
    quiet = 1
    prio = 0
    outsc = 1
    stag = 0
    sleep = 0
O = Opt()
for a in sys.argv[2:]:
    k, v = a.split("="); assert hasattr(O, k), k
    setattr(O, k, int(v))

WS_O = 8 << 20
WS_F1 = 12 << 20
F1V = 262144
WS_F2 = WS_F1 + 524288
WS_ST = 13 << 20
WS_BYTES = 14 << 20
LDS_BYTES = 163840
L_WV = 65536; L_WK = 131072; L_KV = 65536

class E:
    def __init__(s): s.L = []; s.vq = []; s.lq = []; s.lab = 0; s.ool = []
    def __call__(s, t): s.L.append("    " + t)
    def label(s, n): s.L.append(n + ":")
    def c(s, t): s.L.append("    ; " + t)
    def vm(s, t, tag): s(t); s.vq.append(tag)
    def ds(s, t, tag): s(t); s.lq.append(tag)
    def _n(s, q, tag): return len(q) - 1 - max(i for i, x in enumerate(q) if x == tag)
    def wait_vm(s, tag):
        if tag not in s.vq: return
        n = s._n(s.vq, tag); assert n <= 63
        s(f"s_waitcnt vmcnt({n})"); s.vq = s.vq[len(s.vq)-n:]
    def wait_ds(s, tag):
        if tag not in s.lq: return
        n = s._n(s.lq, tag); assert n <= 15
        s(f"s_waitcnt lgkmcnt({n})"); s.lq = s.lq[len(s.lq)-n:]
    def wait_all(s): s("s_waitcnt vmcnt(0)"); s.vq = []
    def ds_all(s): s("s_waitcnt lgkmcnt(0)"); s.lq = []
    def stamp(s, i, mode=1):
        if O.probe == i and mode == 1: s("s_memrealtime s[76:77]")
        if O.stamps == mode: s(f"s_memtime s[{ST0+2*i}:{ST0+1+2*i}]")
    def stub(s):
        if O.warm:
            s.nstub = getattr(s, "nstub", 0); s.label(f"L_stub{s.nstub}"); s("s_cbranch_execz L_warmed"); s.nstub += 1
    def newlab(s, p): s.lab += 1; return f"{p}_{s.lab}"
    def cond(s, cmp_, body):
        L = s.newlab("L_c"); s(cmp_); s(f"s_cbranch_scc1 {L}"); s.label(L + "r")
        s.ool.append((L, body))
    def flush(s):
        while s.ool:
            L, body = s.ool.pop(0)
            s.label(L); body(); s(f"s_branch {L}r")
e = E()
def vr(a, n): return f"v[{a}:{a+n-1}]"
def sr(a): return f"s[{a}:{a+1}]"
def srd(a): return f"s[{a}:{a+3}]"

SX, SW, SWO, SOUT, SWS, SDBG = 8, 12, 16, 20, 24, 28
SEXP = 8
SOWO = 28
sF1, sKV = 0, 1
sBR, sRB, sG, sW, sM0 = 3, 4, 5, 6, 7
sCX = 32; sCW = 40; sVMK = 32
sNON = 48
sT0, sT1, sT2, sT3 = 50, 51, 52, 53
sJ, sXCD, sTT, sFT, sCNT, sT = 54, 55, 56, 57, 58, 59
sEX = 60; sVM = 62
sIG, sIF, sIMP, sPEND = 64, 65, 66, 67
sOA, sF2 = 68, 69
sOW = 70
sU = 53
sT3P = 55
ST0 = 72
SOTH = 20
SIMP = 12
SDUM = 12
vL, vX0, vX1, vW0, vWR, vWR1, vWR2, vXR, vL16 = 1, 2, 3, 4, 5, 6, 7, 8, 12
vT0, vT1, vT2 = 13, 14, 15
vNON = 14
vEXP = 0
vKA, vVA, vKA8, vVA8 = 2, 3, 0, 7
vWO = 4
vFL = 8
vQ2 = 16; vCV = 24; vP = 24; vQ = 32
vML, vMF = 40, 56
accA, accB = 72, 88
vS = 72
WF = [104, 108, 112, 116, 120, 124, 16, 20]
vXF = 128
vO = 104; vK = 136; vV = 144; PB = 176
sBAD = 67
vU0, vU1, vU2 = 36, 37, 38
vL8 = 13
NEG = "0xff800000"

def mfma(d, a, b, c): e(f"v_mfma_f32_32x32x16_bf16 {vr(d,16)}, {vr(a,4)}, {vr(b,4)}, {c if isinstance(c,str) else vr(c,16)}")
def dma(v, s_, soff, ldsdst, tag):
    e(f"s_add_u32 m0, s{sM0}, {ldsdst}"); e("s_nop 0")
    e.vm(f"buffer_load_dwordx4 v{v}, {srd(s_)}, s{soff} offen lds", tag)
def st_pieces(t):
    sl = t % 4
    return [lambda: dma(vX0, SX, sCX+t, sl*16384, f"st{t}"),
            lambda: dma(vW0, SW, sCW+t, L_WK + sl*8192, f"st{t}"),
            lambda: dma(vX1, SX, sCX+t, sl*16384 + 8192, f"st{t}")]
def cvt(dst, src, i): e(f"v_cvt_pk_bf16_f32 v{dst+i}, v{src+2*i}, v{src+2*i+1}")
def cvt8(dst, src, n=4):
    for i in range(n): cvt(dst, src, i)

def masks(kind):
    e(f"v_and_b32 v{vT0}, 31, v{vL}"); e(f"v_lshrrev_b32 v{vT1}, 5, v{vL}")
    e(f"v_lshlrev_b32 v{vT1}, 2, v{vT1}"); e(f"v_sub_u32 v{vT0}, v{vT0}, v{vT1}")
    if kind == "B":
        e(f"s_mov_b32 s{sT0}, {NEG}")
        for r in range(16):
            c = 8*(r >> 2) + (r & 3)
            e(f"v_subrev_u32 v{vT1}, {c}, v{vT0}"); e(f"v_and_b32 v{vML+r}, s{sT0}, v{vT1}"); e(f"v_xor_b32 v{vMF+r}, s{sT0}, v{vML+r}")
    else:
        e(f"s_mov_b32 s{sT0}, 0xf149f2ca")
        for r in range(16):
            c = 8*(r >> 2) + (r & 3)
            e(f"v_subrev_u32 v{vT1}, {c}, v{vT0}"); e(f"v_and_b32 v{vT1}, -15, v{vT1}"); e(f"v_cvt_f32_u32 v{vT1}, v{vT1}"); e(f"v_mul_f32 v{vML+r}, s{sT0}, v{vT1}")
            if r >= 8:
                e(f"v_add_u32 v{vT1}, {32-c}, v{vT0}"); e(f"v_and_b32 v{vT1}, -15, v{vT1}"); e(f"v_cvt_f32_u32 v{vT1}, v{vT1}"); e(f"v_mul_f32 v{vMF+r}, s{sT0}, v{vT1}")
            else:
                e(f"v_mov_b32 v{vMF+r}, s{sT0}")

def prologue():
    e("s_cmp_ge_u32 s2, 256"); e("s_cbranch_scc1 L_end")
    if O.only == 1: e("s_cmp_ge_u32 s2, 128"); e("s_cbranch_scc1 L_end")
    if O.stamps: e(f"s_memtime {sr(ST0)}"); e("s_memrealtime s[100:101]")
    if O.spin or O.probe: e("s_memrealtime s[72:73]")
    e("s_load_dwordx16 s[32:47], s[0:1], 0"); e("s_load_dwordx2 s[24:25], s[0:1], 64")
    if O.ctouch:
        e(f"s_getpc_b64 {sr(sVM)}")
        e(f"s_lshr_b32 s{sT0}, s2, 3"); e(f"s_mul_i32 s{sT0}, s{sT0}, 5"); e(f"v_add_u32 v{vT0}, s{sT0}, v0"); e(f"v_lshlrev_b32 v{vT0}, 7, v{vT0}")
        e(f"v_cmp_gt_u32 vcc, 5, v0"); e(f"s_and_saveexec_b64 {sr(sEX)}, vcc"); e("s_cbranch_execz L_noct")
        e(f"global_load_dword v254, v{vT0}, {sr(sVM)}")
        e.label("L_noct"); e("s_mov_b64 exec, -1")
    e(f"v_lshrrev_b32 v{vT0}, 6, v0"); e(f"v_and_b32 v{vL}, 63, v0")
    e(f"v_readfirstlane_b32 s{sW}, v{vT0}")
    e(f"s_and_b32 s{sXCD}, s2, 7"); e(f"s_lshr_b32 s{sJ}, s2, 3")
    e(f"s_lshr_b32 s{sT0}, s{sXCD}, 1"); e(f"s_lshl_b32 s{sT0}, s{sT0}, 2"); e(f"s_bfe_u32 s{sT1}, s{sJ}, 0x20002")
    e(f"s_add_u32 s{sRB}, s{sT0}, s{sT1}")
    e(f"s_and_b32 s{sT0}, s{sXCD}, 1"); e(f"s_lshl_b32 s{sT0}, s{sT0}, 2"); e(f"s_and_b32 s{sT2}, s{sJ}, 3")
    e(f"s_add_u32 s{sG}, s{sT0}, s{sT2}")
    e(f"s_add_u32 s{sT3}, s{sT1}, s{sT2}"); e(f"s_lshl_b32 s{sT3}, s{sT3}, 1")
    e(f"s_lshl_b32 s{sM0}, s{sW}, 10")
    e(f"v_lshrrev_b32 v{vT0}, 4, v{vL}")
    e(f"s_and_b32 s{sT0}, s{sW}, 1"); e(f"s_lshl_b32 s{sT0}, s{sT0}, 2")
    e(f"v_add_u32 v{vT0}, s{sT0}, v{vT0}")
    e(f"v_and_b32 v{vT1}, 7, v{vL}"); e(f"v_xor_b32 v{vT0}, v{vT0}, v{vT1}"); e(f"v_lshlrev_b32 v{vT0}, 4, v{vT0}")
    e(f"v_lshrrev_b32 v{vT1}, 3, v{vL}"); e(f"v_lshl_add_u32 v{vX0}, v{vT1}, 10, v{vT0}")
    e(f"s_lshl_b32 s{sT0}, s{sW}, 13"); e(f"v_add_u32 v{vX0}, s{sT0}, v{vX0}"); e(f"v_add_u32 v{vX1}, 0x10000, v{vX0}")
    e(f"v_bfe_u32 v{vT0}, v{vL}, 2, 3")
    e(f"s_lshl_b32 s{sT0}, s{sW}, 3"); e(f"v_add_u32 v{vT0}, s{sT0}, v{vT0}")
    e(f"v_lshrrev_b32 v{vT1}, 5, v{vL}"); e(f"v_lshlrev_b32 v{vT1}, 6, v{vT1}")
    e(f"v_and_b32 v{vT2}, 3, v{vL}"); e(f"v_lshl_add_u32 v{vT1}, v{vT2}, 4, v{vT1}")
    e(f"v_mul_u32_u24 v{vW0}, 3072, v{vT0}"); e(f"v_add_u32 v{vW0}, v{vW0}, v{vT1}"); e(f"v_add_u32 v{vW0}, 0x400, v{vW0}")
    e(f"s_mov_b32 s{SX+2}, {2048*1024}"); e(f"s_mov_b32 s{SX+3}, 0x20000")
    e(f"s_mov_b32 s{SW+2}, {512*3072}"); e(f"s_mov_b32 s{SW+3}, 0x20000")
    e(f"s_mov_b32 s{SOTH+3}, 0x20000")
    e(f"s_lshl_b32 s{sT0}, s{sRB}, 17"); e(f"s_lshl_b32 s{sT1}, s{sG}, 7")
    e(f"s_cmp_lt_u32 s2, 128"); e(f"s_cselect_b32 s{sBR}, 1, 0")
    e(f"s_cselect_b32 s{sT3}, 0, s{sT3}")
    e("s_waitcnt lgkmcnt(0)")
    e(f"s_cselect_b64 {sr(SX)}, s[38:39], s[32:33]")
    e(f"s_cselect_b64 {sr(SW)}, s[40:41], s[34:35]")
    e(f"s_cselect_b64 {sr(SWO)}, s[42:43], s[36:37]")
    e(f"s_cselect_b64 {sr(sOW)}, s[36:37], s[42:43]")
    e(f"s_mov_b64 {sr(SDBG)}, s[46:47]")
    e("s_cbranch_scc1 L_notouch")
    sp = O.xspan
    e(f"v_lshrrev_b32 v{vT0}, {sp}, v{vL}"); e(f"v_lshlrev_b32 v{vT0}, 10, v{vT0}")
    e(f"v_and_b32 v{vT1}, {(1 << sp) - 1}, v{vL}"); e(f"v_lshl_add_u32 v{vT0}, v{vT1}, 7, v{vT0}")
    e(f"v_lshrrev_b32 v{vT1}, 4, v{vL}"); e(f"v_bfe_u32 v{vT2}, v{vL}, 2, 2"); e(f"v_lshl_add_u32 v{vT1}, v{vT1}, 6, v{vT2}")
    e(f"v_mul_u32_u24 v{vT1}, 3072, v{vT1}"); e(f"v_and_b32 v{vT2}, 3, v{vL}"); e(f"v_lshl_add_u32 v{vT1}, v{vT2}, 7, v{vT1}")
    sXB, sWB = sIG, sIF
    e(f"s_and_b32 s{sXB}, s{sG}, 3"); e(f"s_lshl_b32 s{sXB}, s{sXB}, 15"); e(f"s_add_u32 s{sXB}, s{sXB}, s{sT0}")
    e(f"s_and_b32 s{sWB}, s{sJ}, 15"); e(f"s_mul_i32 s{sWB}, s{sWB}, {4*3072}"); e(f"s_and_b32 s{sT2}, s{sT1}, 512"); e(f"s_add_u32 s{sWB}, s{sWB}, s{sT2}")
    code = {0: [8, 2, 9, 10, 3, 11, 4, 5, 0, 1], 1: [8, 9, 10, 11, 2, 3, 4, 5, 0, 1]}[O.torder]
    items = [(1, c) for c in code] + [(0, c) for c in code]
    if O.tseq == 1:
        items = [(1, c) for c in code[:8]] + [(0, c) for c in code[:6]] + [(1, c) for c in code[8:]] + [(0, c) for c in code[6:]]
    if O.tseq == 2: items = [(1, c) for c in code] + [(0, c) for c in code[6:]]
    if O.tseq == 3: items = [(1, c) for c in code] + [(0, c) for c in (2, 3, 4, 5, 0, 1)]
    if O.tseq == 4: items = [(1, c) for c in code[:8]] + [(0, c) for c in (2, 3, 4, 5)] + [(1, c) for c in code[8:]] + [(0, c) for c in (0, 1)]
    items = items[:O.tn]
    for r in range((len(items) + 7) // 8):
        rnd = items[8*r:8*r+8]
        pk = sum(c << (4*i) for i, (b_, c) in enumerate(rnd)); bm = sum(b_ << i for i, (b_, c) in enumerate(rnd))
        if len(rnd) < 8: e(f"s_cmp_ge_u32 s{sW}, {len(rnd)}"); e(f"s_cbranch_scc1 L_t{r}d")
        e(f"s_lshl_b32 s{sT2}, s{sW}, 2"); e(f"s_lshr_b32 s{sT2}, {pk:#x}, s{sT2}")
        e(f"s_bitcmp1_b32 s{sT2}, 3"); e(f"s_cbranch_scc1 L_t{r}x")
        e(f"s_bitcmp1_b32 {bm:#x}, s{sW}"); e(f"s_cselect_b64 {sr(SOTH)}, s[40:41], s[34:35]"); e(f"s_mov_b32 s{SOTH+2}, {512*3072}")
        e(f"s_and_b32 s{sCNT}, s{sT2}, 1"); e(f"s_mul_i32 s{sCNT}, s{sCNT}, {256*3072}"); e(f"s_add_u32 s{sCNT}, s{sCNT}, s{sWB}")
        e(f"s_and_b32 s{sT2}, s{sT2}, 6"); e(f"s_lshl_b32 s{sT2}, s{sT2}, 9"); e(f"s_add_u32 s{sCNT}, s{sCNT}, s{sT2}")
        e(f"buffer_load_dword v{250+r}, v{vT1}, {srd(SOTH)}, s{sCNT} offen{' nt' if O.tnt else ''}")
        e(f"s_branch L_t{r}d")
        e.label(f"L_t{r}x")
        e(f"s_bitcmp1_b32 {bm:#x}, s{sW}"); e(f"s_cselect_b64 {sr(SOTH)}, s[38:39], s[32:33]"); e(f"s_mov_b32 s{SOTH+2}, {2048*1024}")
        e(f"s_and_b32 s{sT2}, s{sT2}, 3")
        if sp == 2:
            e(f"s_and_b32 s{sCNT}, s{sT2}, 1"); e(f"s_lshl_b32 s{sCNT}, s{sCNT}, 14"); e(f"s_lshr_b32 s{sT2}, s{sT2}, 1"); e(f"s_lshl_b32 s{sT2}, s{sT2}, 9"); e(f"s_add_u32 s{sT2}, s{sT2}, s{sCNT}")
        else: e(f"s_lshl_b32 s{sT2}, s{sT2}, {8 if sp == 1 else 13}")
        e(f"s_add_u32 s{sCNT}, s{sT2}, s{sXB}")
        e(f"buffer_load_dword v{250+r}, v{vT0}, {srd(SOTH)}, s{sCNT} offen{' nt' if O.tnt else ''}")
        e.label(f"L_t{r}d")
        e("s_barrier")
    if not O.rotA: e(f"s_mov_b32 s{sT3}, 0")
    e.label("L_notouch")
    e(f"s_mov_b64 {sr(SOUT)}, s[44:45]")
    def chunk(t):
        e(f"s_add_u32 s{sT2}, s{sT3}, {t}"); e(f"s_and_b32 s{sT2}, s{sT2}, 7")
        e(f"s_lshl_b32 s{sCX+t}, s{sT2}, 7"); e(f"s_add_u32 s{sCX+t}, s{sCX+t}, s{sT0}")
        e(f"s_mul_i32 s{sCW+t}, s{sT2}, {64*3072}"); e(f"s_add_u32 s{sCW+t}, s{sCW+t}, s{sT1}")
    chunk(0)
    for p in st_pieces(0): p()
    e(f"s_mov_b32 s{SDBG+2}, 256"); e(f"s_mov_b32 s{SDBG+3}, 0x20000")
    e(f"s_xor_b32 s{sT2}, s{sW}, 7"); e(f"s_or_b32 s{sT2}, s2, s{sT2}")
    def tag():
        e(f"s_memrealtime {sr(sNON)}"); e("s_waitcnt lgkmcnt(0)")
        e(f"s_or_b32 s{sNON+1}, s{sNON+1}, 0x80000000")
        e(f"v_mov_b32 v{vCV}, s{sNON}"); e(f"v_mov_b32 v{vCV+1}, s{sNON+1}")
        e("s_mov_b64 exec, 1")
        e(f"buffer_store_dwordx2 {vr(vCV,2)}, off, {srd(SDBG)}, 0 sc1")
        e("s_mov_b64 exec, -1")
    e.cond(f"s_cmp_eq_u32 s{sT2}, 0", tag)
    chunk(1)
    for p in st_pieces(1): p()
    for t in range(2, 8): chunk(t)
    e(f"s_mov_b32 s{SWO+2}, {512*1024}"); e(f"s_mov_b32 s{SWO+3}, 0x20000")
    e(f"s_mov_b32 s{SOUT+2}, {2048*2048}")
    e(f"s_mov_b32 s{SWS+2}, {WS_BYTES}"); e(f"s_mov_b32 s{SWS+3}, 0x20000")
    e(f"s_lshr_b32 s{sFT}, s{sW}, 2"); e(f"s_mul_i32 s{sTT}, s{sFT}, 3"); e(f"s_and_b32 s{sT0}, s{sW}, 3"); e(f"s_xor_b32 s{sTT}, s{sTT}, s{sT0}")
    e(f"s_lshl_b32 s{sT}, s{sRB}, 2"); e(f"s_add_u32 s{sT}, s{sT}, s{sTT}")
    e(f"v_and_b32 v{vT0}, 31, v{vL}"); e(f"v_lshrrev_b32 v{vT1}, 5, v{vL}")
    e(f"v_bfe_u32 v{vT2}, v{vL}, 1, 3"); e(f"v_xor_b32 v{vT2}, v{vT2}, v{vT1}"); e(f"v_lshlrev_b32 v{vT2}, 4, v{vT2}")
    e(f"v_lshl_add_u32 v{vXR}, v{vT0}, 7, v{vT2}")
    e(f"s_lshl_b32 s{sT0}, s{sTT}, 12"); e(f"v_add_u32 v{vXR}, s{sT0}, v{vXR}")
    for s_ in range(1, 4): e(f"v_xor_b32 v{vXR+s_}, {s_*32}, v{vXR}")
    e(f"v_bfe_u32 v{vT2}, v{vL}, 2, 2"); e(f"v_lshlrev_b32 v{vWR}, 6, v{vT2}")
    e(f"v_bfe_u32 v{vT2}, v{vL}, 4, 1"); e(f"v_lshl_add_u32 v{vWR}, v{vT2}, 5, v{vWR}")
    e(f"v_and_b32 v{vT2}, 3, v{vL}"); e(f"v_lshl_add_u32 v{vWR}, v{vT2}, 3, v{vWR}")
    e(f"v_lshl_add_u32 v{vWR}, v{vT1}, 10, v{vWR}")
    e(f"s_lshl_b32 s{sT0}, s{sFT}, 9"); e(f"v_add_u32 v{vWR}, s{sT0}, v{vWR}")
    e(f"v_add_u32 v{vWR1}, 0x10000, v{vWR}"); e(f"v_add_u32 v{vWR2}, 0x20000, v{vWR}")
    e(f"v_lshlrev_b32 v{vL16}, 4, v{vL}")
    e(f"s_lshl_b32 s{sT0}, s{sTT}, 13"); e(f"s_lshl_b32 s{sT1}, s{sFT}, 11"); e(f"s_add_u32 s{sT0}, s{sT0}, s{sT1}")
    e(f"s_add_u32 s{sT0}, s{sT0}, {L_KV + 8*8192}"); e(f"v_add_u32 v{vEXP}, s{sT0}, v{vL16}")
    e(f"s_lshl_b32 s{sT0}, s{sBR}, 3"); e(f"s_add_u32 s{sT0}, s{sT0}, s{sG}"); e(f"s_lshl_b32 s{sT0}, s{sT0}, 6"); e(f"s_add_u32 s{sT0}, s{sT0}, s{sT}")
    e(f"s_lshl_b32 s{sKV}, s{sT0}, 13"); e(f"s_add_u32 s{sKV}, s{sKV}, s{sT1}")
    e(f"s_lshl_b32 s{sF1}, s{sT0}, 8"); e(f"s_lshl_b32 s{sT1}, s{sFT}, 7"); e(f"s_add_u32 s{sF1}, s{sF1}, s{sT1}"); e(f"s_add_u32 s{sF1}, s{sF1}, {WS_F1}")
    e(f"s_sub_u32 s{sT0}, s{sT0}, s{sTT}"); e(f"s_add_u32 s{sT0}, s{sT0}, s{sW}"); e(f"s_sub_u32 s{sT0}, s{sT0}, 8")
    e(f"s_lshl_b32 s{sT1}, s{sRB}, 2"); e(f"s_add_u32 s{sT1}, s{sT1}, s{sW}"); e(f"s_cmp_lt_u32 s{sT1}, 8"); e(f"s_cselect_b32 s{sIMP}, 1, 0")
    e(f"s_cselect_b32 s{sT0}, 0, s{sT0}")
    e(f"s_lshl_b32 s{sIG}, s{sT0}, 13"); e(f"s_lshl_b32 s{sIF}, s{sT0}, 8"); e(f"s_add_u32 s{sIF}, s{sIF}, {WS_F1 + 120}")
    e(f"s_cmp_eq_u32 s{sBR}, 0"); e(f"s_cselect_b32 s{sIMP}, 2, s{sIMP}")
    e(f"s_lshl_b32 s{sT0}, s{sBR}, 6"); e(f"s_add_u32 s{sT0}, s{sT0}, s{sT}")
    e(f"s_lshl_b32 s{sT1}, s{sT0}, 4"); e(f"s_lshl_b32 s{sT2}, s{sG}, 1"); e(f"s_add_u32 s{sT1}, s{sT1}, s{sT2}"); e(f"s_add_u32 s{sT1}, s{sT1}, s{sFT}")
    e(f"s_lshl_b32 s{sOA}, s{sT1}, 11"); e(f"s_add_u32 s{sOA}, s{sOA}, {WS_O}")
    e(f"s_lshl_b32 s{sF2}, s{sT1}, 8"); e(f"s_add_u32 s{sF2}, s{sF2}, {WS_F2}")
    e(f"s_mov_b32 s{sEX}, 0xffff"); e(f"s_mov_b32 s{sEX+1}, 0xffff")
    e(f"s_lshl_b32 s{sT0}, s{sXCD}, 1"); e(f"s_bfe_u32 s{sT1}, s{sJ}, 0x10003"); e(f"s_add_u32 s{sT0}, s{sT0}, s{sT1}")
    e(f"s_lshl_b32 s{sT0}, s{sT0}, 2"); e(f"s_and_b32 s{sT1}, s{sW}, 3"); e(f"s_add_u32 s{sT3P}, s{sT0}, s{sT1}")
    if O.stlb:
        e(f"s_add_u32 s{sVM}, s{SWS}, s{sF2}"); e(f"s_addc_u32 s{sVM+1}, s{SWS+1}, 0")
        e(f"s_load_dword s{sCNT}, {sr(sVM)}, 0 glc")
    e(f"s_cmp_eq_u32 s{sBR}, 0"); e("s_cbranch_scc1 L_maskA")
    masks("B"); e("s_branch L_maskdone")
    e.flush()
    e.label("L_maskA"); masks("A")
    e.label("L_maskdone")
    if O.warm:
        e("s_mov_b64 exec, 0")
        for i in range(7): e(f"s_cmp_eq_u32 s{sW}, {i}"); e(f"s_cbranch_scc1 L_stub{i}")
        e("s_branch L_stub7")
        e.label("L_warmed"); e("s_mov_b64 exec, -1")
    e(f"v_lshlrev_b32 v{vL8}, 3, v{vL}")

def flag_store(soff, s_=SWS, off=0):
    e("s_mov_b64 exec, 0xffff")
    e.vm(f"buffer_store_dwordx2 {vr(vNON,2)}, v{vL8}, {srd(s_)}, s{soff} offen{f' offset:{off}' if off else ''} sc1", "flag")
    e("s_mov_b64 exec, -1")
def flag_ld(tag):
    e.vm(f"buffer_load_dwordx4 {vr(vFL,4)}, off, {srd(SWS)}, s{sIF} sc1", tag)
def flag_cmp():
    e(f"v_cmp_ne_u64 vcc, {sr(sNON)}, {vr(vFL,2)}"); e(f"v_cmp_ne_u64 {sr(sVM)}, {sr(sNON)}, {vr(vFL+2,2)}")
    e(f"s_or_b64 {sr(sVM)}, {sr(sVM)}, vcc")
def flag_poll():
    L = e.newlab("L_fp"); D = L + "d"
    e(f"s_mov_b32 s{sCNT}, 0")
    e.label(L)
    e(f"buffer_load_dwordx4 {vr(vFL,4)}, off, {srd(SWS)}, s{sIF} sc1")
    e(f"s_add_u32 s{sCNT}, s{sCNT}, 1"); e(f"s_cmp_gt_u32 s{sCNT}, {O.pollmax}"); e(f"s_cbranch_scc1 {D}")
    e("s_waitcnt vmcnt(0)")
    flag_cmp(); e(f"s_cbranch_scc1 {L}")
    e.label(D)
def spoll(soff, offs):
    L = e.newlab("L_sp"); D = L + "d"
    e(f"s_add_u32 s{sVM}, s{SWS}, s{soff}"); e(f"s_addc_u32 s{sVM+1}, s{SWS+1}, 0"); e(f"s_mov_b32 s{sCNT}, 0")
    e.label(L)
    w32 = O.sp32 and len(offs) > 4
    for i, o in enumerate(offs): e(f"s_load_dword s{sVMK+i}, {sr(sVM)}, {o} glc" if w32 else f"s_load_dwordx2 {sr(sVMK+2*i)}, {sr(sVM)}, {o} glc")
    e(f"s_add_u32 s{sCNT}, s{sCNT}, 1"); e(f"s_cmp_gt_u32 s{sCNT}, {O.pollmax}")
    e("s_waitcnt lgkmcnt(0)")
    e(f"s_cbranch_scc1 {D}")
    n2 = len(offs)//2 if w32 else len(offs)
    for i in range(n2): e(f"s_xor_b64 {sr(sVMK+2*i)}, {sr(sVMK+2*i)}, {sr(sT2) if w32 else sr(sNON)}")
    for i in range(1, n2): e(f"s_or_b64 {sr(sVMK)}, {sr(sVMK)}, {sr(sVMK+2*i)}")
    e(f"s_cbranch_scc1 {L}")
    e.label(D)
def imp_dma(v, track=None):
    e(f"s_lshl_b32 s{sT1}, s{sW}, 13"); e(f"s_add_u32 m0, s{sT1}, {L_KV + v*4096}")
    e(f"s_add_u32 s{sT0}, s{sIG}, {v*4096}")
    for k in range(4):
        t = f"buffer_load_dwordx4 v{vL16}, {srd(SIMP)}, s{sT0} offen offset:{k*1024} sc1 lds"
        if track: e.vm(t, track)
        else: e(t)

def touch_wo(s_, tmp):
    e(f"s_and_b32 s{sT0}, s{sJ}, 15"); e(f"s_lshl_b32 s{sT0}, s{sT0}, 3"); e(f"s_add_u32 s{sT0}, s{sT0}, s{sW}")
    e(f"s_lshl_b32 s{sT0}, s{sT0}, 12"); e(f"v_lshlrev_b32 v{tmp}, 7, v{vL}")
    e("s_mov_b32 exec_hi, 0")
    e(f"buffer_load_dword v{tmp+1}, v{tmp}, {srd(s_)}, s{sT0} offen")
    e("s_mov_b32 exec_hi, -1")

def p1():
    e.stamp(12)
    def rd(ks):
        G, s_ = divmod(ks, 4)
        w = WF[ks % 8]
        if G < 8:
            e.ds(f"ds_read_b128 {vr(vXF+4*ks,4)}, v{vXR+s_} offset:{(G%4)*16384}", f"w{ks}")
            b, off = vWR2, (G % 4)*8192 + s_*2048
        elif G < 16: b, off = vWR1, (G-8)*8192 + s_*2048
        else: b, off = vWR, (G-16)*8192 + s_*2048
        e.ds(f"ds_read_b64_tr_b16 {vr(w,2)}, v{b} offset:{off}", f"w{ks}")
        e.ds(f"ds_read_b64_tr_b16 {vr(w+2,2)}, v{b} offset:{off+256}", f"w{ks}")
    syncs = {G: (f"st{G}", True) for G in range(8)}
    syncs.update({8: ("wv1", True), 10: ("wv3", False), 12: ("wv7", False), 16: ("wq3", False), 20: ("wq7", "exp")})
    def sync(G):
        if G not in syncs: return
        tag, lg = syncs[G]
        e.wait_vm(tag)
        if lg is True: e.ds_all()
        elif lg: e.wait_ds(lg)
        if not (O.x & 8 and G > 8): e("s_barrier")
    gap = {k: [] for k in range(-1, 96)}
    def I(t): return lambda: e(t)
    def wv(t): return lambda: dma(vW0, SW, sCW+t, L_WV + t*8192, f"wv{t}")
    def wq(t): return lambda: dma(vW0, SW, sCW+t, t*8192, f"wq{t}")
    gap[-1] += st_pieces(2)
    for t in range(3, 8):
        for i, p in enumerate(st_pieces(t)): gap[4*(t-3) + i].append(p)
    gap[19].append(I(f"v_add_u32 v{vW0}, 0x400, v{vW0}"))
    for t, k in enumerate([20, 22, 24, 26, 28, 30, 32, 33]): gap[k].append(wv(t))
    gap[29].append(lambda: e.vm(f"buffer_load_dwordx2 {vr(vNON,2)}, off, {srd(SDBG)}, 0 sc1", "non"))
    gap[21] += [I(f"s_mov_b64 {sr(SEXP)}, {sr(SWS)}"), I(f"s_lshl_b32 s{sT0}, s{sBR}, 2"), I(f"s_or_b32 s{sT0}, s{sT0}, s{sTT}")]
    gap[23] += [I(f"s_cmp_ge_u32 s{sT0}, 3"), I(f"s_cselect_b32 s{SEXP+2}, s{SWS+2}, 0")]
    def export(k0, acc, tmp, off, tag):
        for i in range(4): gap[k0].append(lambda i=i: cvt(tmp, acc, i))
        if off: gap[k0].append(I(f"s_add_u32 s{sKV}, s{sKV}, {off}"))
        if not O.x & 1: gap[k0+1].append(lambda: e.vm(f"buffer_store_dwordx4 {vr(tmp,4)}, v{vL16}, {srd(SEXP)}, s{sKV} offen sc1", tag))
        for i in range(4, 8): gap[k0+1].append(lambda i=i: cvt(tmp, acc, i))
        if not O.x & 1: gap[k0+2].append(lambda: e.vm(f"buffer_store_dwordx4 {vr(tmp+4,4)}, v{vL16}, {srd(SEXP)}, s{sKV} offen offset:1024 sc1", tag))
        if not O.x & 2: gap[k0+3].append(lambda: e.ds(f"ds_write_b128 v{vEXP}, {vr(tmp,4)} offset:{off}", "exp"))
        if not O.x & 2: gap[k0+4].append(lambda: e.ds(f"ds_write_b128 v{vEXP}, {vr(tmp+4,4)} offset:{off+1024}", "exp"))
    export(34, accA, vCV, 0, "kst")
    gap[39].append(I(f"v_subrev_u32 v{vW0}, 0x800, v{vW0}"))
    wqg = [[40, 43, 46, 49, 54, 57, 60, 63], [39, 40, 41, 42, 53, 55, 57, 59], [39, 41, 43, 45, 53, 55, 57, 59]][O.wqs]
    for t, k in enumerate(wqg):
        if not O.x & 4: gap[k].append(wq(t))
    def kflag():
        e.wait_vm("kst"); e.wait_vm("non")
        e(f"v_readfirstlane_b32 s{sNON}, v{vNON}"); e(f"v_readfirstlane_b32 s{sNON+1}, v{vNON+1}")
        def late():
            L = e.newlab("L_tag"); D = L + "d"
            e(f"s_mov_b32 s{sCNT}, 0")
            e.label(L)
            e(f"buffer_load_dwordx2 {vr(vNON,2)}, off, {srd(SDBG)}, 0 sc1"); e("s_waitcnt vmcnt(0)")
            e(f"v_readfirstlane_b32 s{sNON}, v{vNON}"); e(f"v_readfirstlane_b32 s{sNON+1}, v{vNON+1}")
            e(f"s_add_u32 s{sCNT}, s{sCNT}, 1"); e(f"s_cmp_gt_u32 s{sCNT}, {O.pollmax}"); e(f"s_cbranch_scc1 {D}")
            e(f"s_cmp_eq_u32 s{sNON+1}, 0"); e(f"s_cbranch_scc1 {L}")
            e.label(D)
        e("s_nop 0")
        e.cond(f"s_cmp_eq_u32 s{sNON+1}, 0", late)
        flag_store(sF1, SEXP)
    gap[O.kflag].append(kflag)
    def prew():
        e("s_mov_b32 exec_hi, 0")
        e.vm(f"buffer_store_dwordx2 {vr(vL16,2)}, v{vL8}, {srd(SWS)}, s{sF2} offen sc1", "prew")
        e("s_mov_b32 exec_hi, -1")
    if O.prew: gap[O.prew].append(prew)
    export(66, accB, vCV+8, 4096, "vst")
    gap[O.kchk].append(lambda: flag_ld("kchk"))
    gap[72] += [I(f"v_add_u32 v{vKA8}, {-8*8192 & 0xffffffff:#x}, v{vEXP}"), I(f"v_add_u32 v{vKA}, 0x2000, v{vKA8}"), I(f"v_and_b32 v{vVA8}, 0xfffffeff, v{vKA8}")]
    gap[73] += [I(f"v_add_u32 v{vVA8}, 0x1000, v{vVA8}"), I(f"v_add_u32 v{vVA}, 0x2000, v{vVA8}")]
    for i in range(1, 9):
        gap[73+i] += [I(f"s_cmp_le_u32 {i}, s{sT}"), I(f"s_cselect_b64 {sr(sVMK+2*(i-1))}, {sr(sEX)}, -1")]
    gap[61] += [I(f"v_bfe_u32 v{vWO}, v{vL}, 2, 3"), I(f"s_lshl_b32 s{sT0}, s{sW}, 3"), I(f"v_add_u32 v{vWO}, s{sT0}, v{vWO}"), I(f"v_lshlrev_b32 v{vWO}, 10, v{vWO}")]
    gap[62] += [I(f"v_lshrrev_b32 v{vWR1}, 5, v{vL}"), I(f"v_lshl_add_u32 v{vWO}, v{vWR1}, 6, v{vWO}"), I(f"v_and_b32 v{vWR1}, 3, v{vL}"), I(f"v_lshl_add_u32 v{vWO}, v{vWR1}, 4, v{vWO}")]
    gap[63] += [I(f"s_and_b32 s{sT0}, s{sJ}, 7"), I(f"s_lshl_b32 s{sT0}, s{sT0}, 7"), I(f"v_add_u32 v{vWO}, s{sT0}, v{vWO}")]
    gap[64] += [I(f"s_mov_b64 {sr(SIMP)}, {sr(SWS)}")]
    def imp_k1():
        e.wait_vm("kchk")
        flag_cmp()
        e(f"s_cselect_b32 s{sPEND}, 1, 0")
        e(f"s_cmp_lg_u32 s{sIMP}, 0"); e(f"s_cselect_b32 s{sPEND}, 0, s{sPEND}")
        flag_ld("kchk2")
        e(f"s_or_b32 s{sT0}, s{sPEND}, s{sIMP}"); e(f"s_cselect_b32 s{SIMP+2}, 0, s{SWS+2}")
        e.cond(f"s_cmp_eq_u32 s{sBR}, 0", lambda: ([e(f"buffer_load_dword v{vCV}, off, {srd(SIMP)}, 0") for i in range(4)], e("s_branch L_k1d")))
        imp_dma(0, "kimp")
        e.label("L_k1d")
    gap[O.imp1].append(imp_k1)
    def imp_k2():
        e.wait_vm("vst")
        e(f"s_add_u32 s{sF1}, s{sF1}, {F1V}")
        flag_store(sF1, SEXP); e.stamp(5)
        e(f"s_cmp_lg_u32 s{sIMP}, 0"); e(f"s_cselect_b32 s{SIMP+2}, 0, s{SWS+2}")
        def again():
            L = e.newlab("L_k2")
            e("s_waitcnt vmcnt(1)")
            flag_cmp(); e(f"s_cbranch_scc1 {L}")
            imp_dma(0); e(f"s_mov_b32 s{sPEND}, 2")
            e.label(L)
        e.cond(f"s_cmp_eq_u32 s{sPEND}, 1", again)
    gap[O.imp].append(imp_k2)
    def late_vm():
        if not O.awo: e.cond(f"s_cmp_eq_u32 s{sBR}, 0", lambda: ([wo_piece(i, L_KV) for i in range(4, 8)], e("s_branch L_tBd")))
        if O.tchB: touch_wo(SWO, vCV)
        e.label("L_tBd")
    gap[O.tchB or 90].append(late_vm)
    gap[86].append(I(f"s_mov_b32 s{sT2}, 0x3f803f80"))
    for i in range(32): gap[88 + i//4].append(I(f"v_mov_b32 v{vV+i}, s{sT2}"))
    gap[92].append(lambda: e.ds(f"ds_read_b128 {vr(vK,4)}, v{vKA} offset:{7*8192}", "k0"))
    gap[95] += [I(f"s_mov_b32 s{sT2}, 0x3eb8aa3b"), I(f"s_mov_b32 s{sT3}, 0x3eb8aa3b")]

    sync(0); e.stamp(1)
    for s_ in range(4): rd(s_)
    for f in gap[-1]: f()
    for ks in range(96):
        it, s_ = divmod(ks, 4)
        if s_ == 0:
            e.c(f"---- P1 group {it}")
            if it in (10, 20): e.stub()
            sync(it+1)
            if it in (8, 16): e.stamp({8: 2, 16: 3}[it])
            if it < 13: e.stamp(it+1, 2)
            if it >= 11: e.stamp(it-10, 3)
        if O.p1prio and ks >= 28:
            spans = [28, 36, 44, 60, 76, 96]
            a = max(x for x in spans if x <= ks); b_ = min(x for x in spans if x > ks)
            step = (b_ - a) // 4
            if (ks - a) % step == 0 and (ks - a) // step < 4: e(f"s_setprio {3 - (ks - a)//step}")
        e.wait_ds(f"w{ks}")
        acc = accB if 8 <= it < 16 else accA
        c = "0" if ks % 32 == 0 else acc
        if 8 <= it < 16: mfma(acc, vXF+4*(ks % 32), WF[ks % 8], c)
        else: mfma(acc, WF[ks % 8], vXF+4*(ks % 32), c)
        if it < 7:
            if s_ == 0:
                for q in range(4): rd(ks+4+q)
        elif ks + 4 < 96: rd(ks+4)
        for f in gap[ks]: f()

def wo_piece(i, base=0):
    e(f"s_add_u32 m0, s{sM0}, {base + i*8192}"); e(f"s_mov_b32 s{sT0}, {i*65536}")
    e(f"buffer_load_dwordx4 v{vWO}, {srd(SWO)}, s{sT0} offen lds")

def norm(o, dst):
    e(f"v_rcp_f32 v{o+10}, v{o+8}")
    e(f"v_pk_add_f32 {vr(o+12,2)}, {vr(o,2)}, {vr(o+2,2)}"); e(f"v_pk_add_f32 {vr(o+14,2)}, {vr(o+4,2)}, {vr(o+6,2)}")
    for i in range(4): e(f"v_pk_mul_f32 {vr(o+2*i,2)}, {vr(o+2*i,2)}, {vr(o+10,2)} op_sel_hi:[1,0]")
    e(f"v_pk_add_f32 {vr(o+12,2)}, {vr(o+12,2)}, {vr(o+14,2)}")
    cvt8(dst, o)
    e(f"v_add_f32 v{o+12}, v{o+12}, v{o+13}"); e(f"v_fma_f32 v{o+8}, v{o+12}, 0, v{o+8}")
def check(os_, slowlab):
    for n, o in enumerate(os_):
        e(f"v_subrev_u32 v{o+8}, 0x2b800000, v{o+8}")
        if n: e(f"v_max_u32 v{os_[0]+8}, v{os_[0]+8}, v{o+8}")
    e(f"v_cmp_lt_u32 vcc, 0x28000000, v{os_[0]+8}")
    if slowlab is None:
        e(f"s_or_b32 s{sBAD}, vcc_lo, vcc_hi")
        if O.force_slow: e(f"s_mov_b32 s{sBAD}, 1")
    elif O.force_slow: e(f"s_branch {slowlab}")
    else: e(f"s_cbranch_vccnz {slowlab}")
def prefill(regs):
    e(f"s_mov_b32 s{sT0}, 0x3f803f80")
    for i in regs: e(f"v_mov_b32 v{i}, s{sT0}")
def rdK(i, u, dst):
    if i < 8: e(f"ds_read_b128 {vr(dst,4)}, v{vKA} offset:{(7-i)*8192 + u*1024}")
    else: e(f"ds_read_b128 {vr(dst,4)}, v{vKA8} offset:{u*1024}")
def rdV(i, u, dst, dyn=True, restore=True):
    e(f"s_mov_b64 exec, {sr(sVMK+2*(i-1)) if dyn and i > 0 else sr(sEX)}")
    b, off = (vVA, (7-i)*8192) if i < 8 else (vVA8, 0)
    e(f"ds_read_b128 {vr(dst,4)}, v{b} offset:{off + u*256}")
    e(f"ds_read_b128 {vr(dst+4,4)}, v{b} offset:{off + u*256 + 1024}")
    if restore: e("s_mov_b64 exec, -1")

def attention():
    e.c("---- Q epilogue")
    e.stamp(4)
    def qscale(h):
        for i in range(4*h, 4*h+4): e(f"v_pk_mul_f32 {vr(accA+2*i,2)}, {vr(accA+2*i,2)}, {sr(sT2)}")
        for i in range(4*h, 4*h+4): cvt(vQ2, accA, i)
    e(f"s_cmp_eq_u32 s{sBR}, 0"); e("s_cbranch_scc1 L_attnA")
    e.c("---- attention B")
    e.cond(f"s_cmp_eq_u32 s{sPEND}, 1", lambda: (flag_poll(), imp_dma(0)))
    e(f"s_add_u32 s{sIF}, s{sIF}, {F1V}")
    e("s_nop 6")
    qscale(0); qscale(1)
    def kbar():
        flag_ld("x")
        e(f"s_waitcnt vmcnt({3 if O.tchB else 2})")
        e.cond(f"s_cmp_lg_u32 s{sPEND}, 0", lambda: e("s_waitcnt vmcnt(1)"))
        if O.stamps == 1: e(f"s_mul_i32 s{sT0}, s{sPEND}, 1000"); e(f"s_add_u32 s{ST0+24}, s{ST0}, s{sT0}")
        e("s_barrier"); e.stamp(6)
    def vimp():
        e("s_waitcnt vmcnt(0)")
        flag_cmp()
        e(f"s_cselect_b32 s{sT0}, s{SIMP+2}, 0")
        e.cond(f"s_cmp_lg_u32 s{sT0}, 0", flag_poll)
        imp_dma(1)
    def vbar():
        e(f"s_waitcnt vmcnt({1 if O.tchA < O.lag else 0})"); e("s_barrier"); e.stamp(13)
    def tchA():
        if not O.tchB: touch_wo(SWO, vU0+2)
        e(f"s_mov_b64 {sr(SOWO)}, {sr(sOW)}"); e(f"s_mov_b32 s{SOWO+2}, {512*1024}")
        touch_wo(SOWO, vU0)
    def sample02():
        f3_addr()
        e("s_mov_b64 exec, 0x55555555")
        e(f"buffer_load_dwordx2 {vr(vFL,2)}, v{vF}, {srd(SWS)}, s{sF3} offen sc1")
        e("s_mov_b64 exec, -1")
    L = O.lag
    pv = {n: [] for n in range(19)}
    pv[L].append(0); m = 1
    for n in range(L+1, 19):
        for _ in range(2):
            if m < n and m < 18: pv[n].append(m); m += 1
    assert m == 18
    def P(m): return PB + 8*(m % 8)
    def V(m): return vV + 8*(m % 4)
    def ex(n, r): e(f"v_exp_f32 v{vS+16*(n%2)+r}, v{vS+16*(n%2)+r}")
    def pvm(m, kb):
        o = vO + 16*(m // 9)
        mfma(o, V(m)+4*kb, P(m)+4*kb, "0" if (m % 9 == 0 and kb == 0) else o)
    assert max(n for n in pv if 8 in pv[n]) < O.epi
    prio = {0: 2, 2: 1, 4: 0, L: 3, L+3: 2, L+6: 1, L+9: 0}
    e("s_waitcnt lgkmcnt(0)")
    mfma(vS, vK, vQ2, vML)
    e(f"s_mov_b32 s{sT2}, 0x3f803f80")
    for n in range(19):
        u, i = divmod(n, 9)
        s_ = vS + 16*(n % 2)
        e.c(f"task {n}")
        if n in (5, 13): e.stub()
        if n < 11: e.stamp(n+1, 4)
        if n >= 8: e.stamp(n-7, 5)
        if O.fair and n in prio: e(f"s_setprio {prio[n]}")
        if n == 0: kbar(); e("s_nop 4")
        if n == O.vpos: vimp()
        if n == L: vbar()
        if n == O.oflag:
            younger = sum(8*(t-O.wo_at+1)//O.wo_n - 8*(t-O.wo_at)//O.wo_n for t in range(O.epi+1, n) if O.wo_at <= t < O.wo_at + O.wo_n)
            e(f"s_waitcnt vmcnt({younger})")
            e(f"s_cmp_lg_u32 s{sBAD}, 0"); e("s_cbranch_scc1 L_noflag0"); flag_store(sF2); e.label("L_noflag0")
        if O.wo_at <= n < O.wo_at + O.wo_n:
            for p_ in range(8*(n-O.wo_at)//O.wo_n, 8*(n-O.wo_at+1)//O.wo_n): wo_piece(p_)
        if n == O.tchA: tchA()
        if n == O.tE: e.cond(f"s_cmp_lt_u32 s{sW}, 4", lambda: (f3_addr(), o_touch(0x00ff00ff, 0)))
        if n == O.smp_at: sample02()
        nxt = pv[n+1] if n < 18 else []
        fresh = [m for m in nxt if 9 <= m < 13]
        if fresh: e.cond(f"s_cmp_lt_u32 s{sT}, 8", lambda fresh=fresh: [e(f"v_mov_b32 v{V(m)+k}, s{sT2}") for m in fresh for k in range(8)])
        cnt = 0
        if n < 17: rdK((n+1) % 9, (n+1) // 9, vK+4*((n+1) % 2)); cnt += 1
        for k, m in enumerate(nxt): rdV(m % 9, m // 9, V(m), restore=(k == len(nxt)-1)); cnt += 2
        mf = [(m, kb) for m in pv[n] for kb in range(2)]
        if n == 18:
            e("s_waitcnt lgkmcnt(0)"); e("s_nop 0")
            for x in mf: pvm(*x)
            break
        first = [True]
        def slot():
            if mf:
                if first[0]: e(f"s_waitcnt lgkmcnt({cnt})"); first[0] = False
                pvm(*mf.pop(0))
        two = len(mf) > 2
        for r in range(4): ex(n, r)
        slot()
        for r in range(4, 8): ex(n, r)
        if n < 17:
            e(f"s_waitcnt lgkmcnt({cnt-1})")
            i1 = (n+1) % 9
            mfma(vS+16*((n+1) % 2), vK+4*((n+1) % 2), vQ2 + 4*((n+1) // 9), vML if i1 == 0 else (vMF if i1 == 8 else "0"))
        cvt8(P(n), s_)
        for r in range(8, 10): ex(n, r)
        if two: slot()
        for r in range(10, 12): ex(n, r)
        if not two: slot()
        for r in range(12, 14): ex(n, r)
        slot()
        for r in range(14, 16): ex(n, r)
        cvt8(P(n)+4, s_+8)
        slot()
        if n == O.epi:
            norm(vO, vP); check([vO], None)
            e(f"buffer_store_dwordx4 {vr(vP,4)}, v{vL16}, {srd(SWS)}, s{sOA} offen sc1")
    e("s_nop 11")
    norm(vO+16, vP+4); check([vO+16], "L_B_slow1")
    e.label("L_B_ok1")
    e(f"buffer_store_dwordx4 {vr(vP+4,4)}, v{vL16}, {srd(SWS)}, s{sOA} offen offset:1024 sc1")
    e(f"s_cmp_lg_u32 s{sBAD}, 0"); e("s_cbranch_scc1 L_B_slow0")
    e.label("L_B_ok0")
    e.stamp(7); e.stamp(12, 7)
    e(f"s_cmp_lt_u32 s{sW}, 4"); e("s_cbranch_scc0 L_young")
    e(f"s_mov_b32 s{sHM}, 0")
    f3_groups()
    if O.swp:
        e(f"s_and_b32 s{sT0}, s{sJ}, 1"); e(f"s_lshl_b32 s{sT0}, s{sT0}, 11")
        for q in range(4): e(f"s_xor_b32 s{sG0+q}, s{sG0+q}, s{sT0}")
    e("s_waitcnt vmcnt(1)")
    e("s_mov_b64 exec, 0x55555555")
    e(f"v_cmp_ne_u64 vcc, {sr(sNON)}, {vr(vFL,2)}")
    e("s_mov_b64 exec, -1")
    e(f"s_mov_b32 s{sT3}, 0"); e(f"s_mov_b32 s{sNR}, vcc_lo")
    e("s_cbranch_vccnz L_p3again")
    e.label("L_p3even")
    for k in range(O.ad): o_ld(k, sG0 + k//8)
    p3_setup()
    e(f"s_mov_b32 s{SLD+2}, 0")
    e(f"s_waitcnt vmcnt({O.ad})"); e.stamp(8); e("s_barrier")
    e("s_branch L_p3go")
    e.label("L_p3again")
    e(f"s_mov_b32 exec_lo, s{sNR}"); e("s_mov_b32 exec_hi, 0")
    e(f"buffer_load_dwordx2 {vr(vFL,2)}, v{vF}, {srd(SWS)}, s{sF3} offen sc1")
    e("s_waitcnt vmcnt(0)")
    e(f"v_cmp_ne_u64 vcc, {sr(sNON)}, {vr(vFL,2)}")
    e("s_mov_b64 exec, -1")
    e(f"s_mov_b32 s{sNR}, vcc_lo")
    e("s_cbranch_vccz L_p3even")
    p3_setup()
    e(f"s_mov_b32 s{SLD+2}, 0")
    e("s_barrier")
    poll3(0x55555555, 0x55555555)
    for k in range(O.ad): o_ld(k, sG0 + k//8)
    e("s_branch L_p3go")
    e.label("L_young"); e.stub()
    e("s_waitcnt vmcnt(0)")
    e.label("L_youngA")
    e("s_mov_b64 exec, 0xffff")
    e(f"s_cmp_eq_u32 s{sW}, 4"); e(f"s_cselect_b32 s{SEXP+2}, s{SWS+2}, 0")
    if O.fprio: e("s_setprio 3")
    e("s_waitcnt vmcnt(8)"); e.stamp(8); e("s_barrier")
    e.stamp(1, 8)
    e(f"buffer_store_dwordx2 {vr(vNON,2)}, v{vL8}, {srd(SEXP)}, s{sF2} offen offset:128 sc1")
    e("s_mov_b64 exec, -1")
    e.stamp(2, 8)
    if O.stamps == 8: e("s_waitcnt vmcnt(0)"); e.stamp(3, 8); e(f"s_memrealtime {sr(ST0+12)}")
    e(f"s_cmp_lg_u32 s{sW}, 4"); e("s_cbranch_scc1 L_rest")
    f3_addr()
    e(f"s_add_u32 s{sF3}, s{sF3}, {3*4096}")
    e(f"s_mov_b32 s{sT2}, s{sNON}"); e(f"s_mov_b32 s{sT3}, s{sNON}")
    if O.pdelay: e(f"s_sleep {O.pdelay}")
    spoll(sF3, [384 + 512*g_ for g_ in range(8)])
    e.stamp(10); e.stamp(4, 8)
    if O.stamps == 8:
        e(f"s_memrealtime {sr(ST0+14)}"); e("s_waitcnt lgkmcnt(0)"); e(f"s_add_u32 s{ST0+10}, s{ST0}, s{sCNT}")
        for q_ in (12, 14): e(f"s_and_b32 s{ST0+q_}, s{ST0+q_}, 0xffff"); e(f"s_add_u32 s{ST0+q_}, s{ST0+q_}, s{ST0}")
    e("s_waitcnt vmcnt(1)")
    e("s_barrier")
    e.label("L_rest")
    e("s_waitcnt vmcnt(0)")
    e("s_branch L_stamps" if O.stamps else "s_endpgm")
    e.flush()

    e.c("---- attention A")
    e.label("L_attnA")
    KP, VP = 176, 160
    if not O.spoll:
        e(f"s_and_b32 s{sIF}, s{sF1}, 0xffffff00"); e(f"s_sub_u32 s{sIF}, s{sIF}, 136")
        flag_ld("x")
    else: e("s_waitcnt vmcnt(1)"); e("s_nop 1")
    e.stamp(6)
    e(f"ds_read_b128 {vr(vK+4,4)}, v{vKA} offset:{7*8192 + 1024}")
    e(f"s_mov_b64 exec, {sr(sEX)}")
    for h in range(2):
        for kb in range(2): e(f"ds_read_b128 {vr(vV+8*h+4*kb,4)}, v{vVA} offset:{7*8192 + kb*1024 + h*256}")
    e("s_mov_b64 exec, -1"); e("s_nop 0")
    qscale(0); qscale(1)
    def halo():
        L = e.newlab("L_h")
        e(f"s_cmp_eq_u32 s{sT}, 0"); e(f"s_cbranch_scc1 L_A_nh")
        if O.spoll:
            e(f"s_sub_u32 s{sIF}, s{sF1}, 256"); spoll(sIF, [0])
        else:
            e("s_waitcnt vmcnt(0)")
            flag_cmp(); e(f"s_cbranch_scc0 {L}")
            flag_poll()
        e.label(L)
        e(f"s_sub_u32 s{sT0}, s{sKV}, {8192 + 4096}"); e(f"s_sub_u32 s{sT1}, s{sKV}, {8192 - 1024}")
        e(f"v_and_b32 v{vFL}, 0x2ff, v{vL16}")
        for h in range(2): e(f"buffer_load_dwordx4 {vr(KP+4*h,4)}, v{vL16}, {srd(SWS)}, s{sT0} offen offset:{h*1024} sc1")
        e(f"s_mov_b64 exec, {sr(sEX)}")
        for h in range(2): e(f"buffer_load_dwordx4 {vr(VP+4*h,4)}, v{vFL}, {srd(SWS)}, s{sT1} offen offset:{h*256} sc1")
        e("s_mov_b64 exec, -1")
        e("s_branch L_A_nh")
    e.cond(f"s_cmp_eq_u32 s{sTT}, 0", halo)
    for h in range(2): e(f"ds_read_b128 {vr(KP+4*h,4)}, v{vKA} offset:{6*8192 + h*1024}")
    e(f"s_mov_b64 exec, {sr(sEX)}")
    for h in range(2): e(f"ds_read_b128 {vr(VP+4*h,4)}, v{vVA} offset:{6*8192 + 1024 + h*256}")
    e("s_mov_b64 exec, -1")
    e.label("L_A_nh")
    e("s_waitcnt lgkmcnt(0)")
    def a_body(slow):
        def exs(s_, rs, h):
            for r in rs:
                if slow: e(f"v_sub_f32 v{s_+r}, v{s_+r}, v{vFL+h}")
                e(f"v_exp_f32 v{s_+r}, v{s_+r}")
        lab = "L_A_s2" if slow else "L_A_f2"
        for h in range(2): mfma(vS+16*h, vK+4*h, vQ2+4*h, vML)
        e("s_nop 10")
        for h in range(2):
            exs(vS+16*h, range(16), h); cvt8(vP+8*h, vS+16*h, 8); e("s_nop 1")
            mfma(vO+16*h, vV+8*h, vP+8*h, "0"); mfma(vO+16*h, vV+8*h+4, vP+8*h+4, vO+16*h)
        e("s_waitcnt vmcnt(0)")
        e(f"s_cmp_eq_u32 s{sT}, 0"); e(f"s_cbranch_scc1 {lab}")
        e.stamp(13)
        for h in range(2): mfma(vS+16*h, KP+4*h, vQ2+4*h, vMF)
        e("s_nop 10")
        for h in range(2):
            exs(vS+16*h, range(8, 16), h); cvt8(vP+8*h+4, vS+16*h+8); e("s_nop 1")
            mfma(vO+16*h, VP+4*h, vP+8*h+4, vO+16*h)
        e.label(lab)
        e("s_nop 11")
        for h in range(2): norm(vO+16*h, vP+4*h)
    a_body(False)
    check([vO, vO+16], "L_A_slow")
    e.label("L_A_ok"); e.stub()
    e("s_setprio 2")
    e(f"buffer_store_dwordx4 {vr(vP,4)}, v{vL16}, {srd(SWS)}, s{sOA} offen sc1")
    e(f"buffer_store_dwordx4 {vr(vP+4,4)}, v{vL16}, {srd(SWS)}, s{sOA} offen offset:1024 sc1")
    e.stamp(7)
    e("s_setprio 0")
    for i in range(8): wo_piece(i, L_KV)
    e(f"s_cmp_lt_u32 s{sW}, 4"); e("s_cbranch_scc0 L_youngA")
    e(f"s_and_b32 s{sHM}, s{sJ}, 3")
    f3_groups()
    e(f"s_mov_b32 s{sT3}, {L_KV}")
    e.label("L_p3all")
    e("s_waitcnt vmcnt(8)"); e.stamp(8); e("s_barrier")
    p3_setup()
    e(f"s_mov_b32 s{SLD+2}, s{SWS+2}")
    e("s_waitcnt vmcnt(0)")
    e("s_barrier"); e.stamp(10)
    if O.ltouch: o_touch(0xffffffff, 0)
    for k in range(O.ad): o_ld(k, sG0 + k//8)
    return a_body, KP

vA, vB, vO0, vO1, vF = 2, 3, 7, 5, 10
sO3, sF3, sOUT3, sHM = sIG, sIF, sOA, sPEND
A0, A1 = 40, 56
vTW, vTR = 18, 17
WB = 72
def OFR(k): return 136 + 4*k if k < 30 else 24 + 4*(k-30)
sG0 = sVMK; sHB = sVMK+4
vW = ((0, 4), (6, 16))
def f3_addr():
    e(f"s_lshl_b32 s{sT0}, s{sBR}, 6"); e(f"s_add_u32 s{sT0}, s{sT0}, s{sT3P}")
    e(f"s_lshl_b32 s{sO3}, s{sT0}, 15"); e(f"s_add_u32 s{sO3}, s{sO3}, {WS_O}")
    e(f"s_lshl_b32 s{sF3}, s{sT0}, 12"); e(f"s_add_u32 s{sF3}, s{sF3}, {WS_F2}")
    e(f"v_lshlrev_b32 v{vF}, 7, v{vL}")
def group(dst):
    e(f"s_brev_b32 s{sHB}, s{sHM}"); e(f"s_lshr_b32 s{sHB}, s{sHB}, 20")
    e(f"s_add_u32 s{dst}, s{sHB}, s{sO3}")
    e(f"s_add_u32 s{sHM}, s{sHM}, 1"); e(f"s_and_b32 s{sHM}, s{sHM}, 3")
def wbase(buf, src):
    e(f"s_and_b32 s{sT0}, s{src}, 0xc00"); e(f"s_lshl_b32 s{sT0}, s{sT0}, 1")
    e(f"v_add_u32 v{vW[buf][0]}, s{sT0}, v{vA}"); e(f"v_add_u32 v{vW[buf][1]}, s{sT0}, v{vB}")
def o_ld(k, base, s_=None):
    if k % 8: e(f"s_add_u32 s{sT0}, s{base}, {(k % 8)*4096}")
    e(f"buffer_load_dwordx4 {vr(OFR(k),4)}, v{vL16}, {srd(s_ or SWS)}, s{sT0 if k % 8 else base} offen sc1")
sNR = sVMK + 7
def poll3(need, look):
    L = e.newlab("L_poll"); D = L + "d"
    e(f"s_mov_b32 s{sCNT}, 0"); e("s_mov_b32 exec_hi, 0")
    e.label(L)
    e(f"s_and_b32 s{sT0}, s{sNR}, {need:#x}"); e(f"s_cbranch_scc0 {D}")
    e(f"s_and_b32 exec_lo, s{sNR}, {look:#x}")
    e(f"buffer_load_dwordx2 {vr(vFL,2)}, v{vF}, {srd(SWS)}, s{sF3} offen sc1")
    e(f"s_add_u32 s{sCNT}, s{sCNT}, 1")
    e("s_waitcnt vmcnt(0)")
    e(f"v_cmp_eq_u64 vcc, {sr(sNON)}, {vr(vFL,2)}")
    e(f"s_andn2_b32 s{sNR}, s{sNR}, vcc_lo")
    if O.sleep: e(f"s_sleep {O.sleep}")
    e(f"s_cmp_gt_u32 s{sCNT}, {O.pollmax}"); e(f"s_cbranch_scc0 {L}")
    e.label(D)
    e("s_mov_b64 exec, -1")
SLD = SDUM
def f3_groups():
    f3_addr()
    for q in range(4): group(sG0+q)
def o_touch(mask, dst):
    e(f"s_and_b32 s{sT0}, s{sJ}, 7"); e(f"s_lshl_b32 s{sT0}, s{sT0}, 12"); e(f"s_add_u32 s{sT0}, s{sT0}, s{sO3}")
    e(f"s_mov_b32 exec_lo, {mask:#x}"); e("s_mov_b32 exec_hi, 0")
    e(f"buffer_load_dword v{vFL+3}, v{vF}, {srd(SWS)}, s{sT0} offen sc1")
    e("s_mov_b64 exec, -1")
def p3_setup():
    e(f"s_mov_b64 {sr(SLD)}, {sr(SWS)}")
    e(f"v_bfe_u32 v{vU0}, v{vL}, 2, 2"); e(f"v_lshlrev_b32 v{vA}, 6, v{vU0}")
    e(f"v_and_b32 v{vU0}, 1, v{vL}"); e(f"v_mul_u32_u24 v{vU0}, 544, v{vU0}"); e(f"v_add_u32 v{vA}, v{vA}, v{vU0}")
    e(f"v_bfe_u32 v{vU0}, v{vL}, 4, 1"); e(f"v_lshl_add_u32 v{vA}, v{vU0}, 4, v{vA}")
    e(f"v_bfe_u32 v{vU0}, v{vL}, 1, 1"); e(f"v_lshl_add_u32 v{vA}, v{vU0}, 3, v{vA}")
    e(f"v_lshrrev_b32 v{vU0}, 5, v{vL}"); e(f"v_lshl_add_u32 v{vA}, v{vU0}, 8, v{vA}")
    e(f"v_add_u32 v{vA}, s{sT3}, v{vA}")
    e(f"v_xor_b32 v{vB}, 32, v{vA}")
    if O.tpose:
        e(f"s_lshl_b32 s{sT0}, s{sW}, 12"); e(f"s_add_u32 s{sT0}, s{sT0}, {L_WK}")
        e(f"v_mul_u32_u24 v{vU0}, 6, v{vU0}"); e(f"v_and_b32 v{vU1}, 7, v{vL}"); e(f"v_xor_b32 v{vU0}, v{vU0}, v{vU1}")
        e(f"v_and_b32 v{vTW}, 31, v{vL}"); e(f"v_lshlrev_b32 v{vTW}, 7, v{vTW}"); e(f"v_lshl_add_u32 v{vTW}, v{vU0}, 4, v{vTW}"); e(f"v_add_u32 v{vTW}, s{sT0}, v{vTW}")
        for i in range(1, 4): e(f"v_xor_b32 v{vTW+i}, {16*i}, v{vTW}")
        e(f"v_lshrrev_b32 v{vU0}, 3, v{vL}"); e(f"v_xor_b32 v{vTR}, v{vU0}, v{vU1}"); e(f"v_lshlrev_b32 v{vTR}, 4, v{vTR}")
        e(f"v_lshl_add_u32 v{vTR}, v{vU0}, 7, v{vTR}"); e(f"v_add_u32 v{vTR}, s{sT0}, v{vTR}")
        e(f"v_lshlrev_b32 v{vO0}, 11, v{vU0}"); e(f"v_lshl_add_u32 v{vO0}, v{vU1}, 4, v{vO0}")
    else:
        e(f"v_and_b32 v{vO0}, 31, v{vL}"); e(f"v_lshlrev_b32 v{vO0}, 11, v{vO0}"); e(f"v_mul_u32_u24 v{vU0}, 96, v{vU0}"); e(f"v_add_u32 v{vO0}, v{vO0}, v{vU0}")
        e(f"v_xor_b32 v{vO1}, 32, v{vO0}")
    e(f"s_lshl_b32 s{sOUT3}, s{sT3P}, 16"); e(f"s_lshl_b32 s{sT1}, s{sBR}, 10"); e(f"s_add_u32 s{sOUT3}, s{sOUT3}, s{sT1}")
    e(f"s_and_b32 s{sT1}, s{sJ}, 7"); e(f"s_lshl_b32 s{sT1}, s{sT1}, 7"); e(f"s_add_u32 s{sOUT3}, s{sOUT3}, s{sT1}")
    wbase(0, sG0); wbase(1, sG0+1)

def lds_wait(off, val):
    L = e.newlab("L_lw"); D = L + "d"
    e(f"s_mov_b32 s{sCNT}, 0")
    e.label(L)
    e(f"ds_read_b32 v{vFL}, v{vFL+3} offset:{off}")
    e(f"s_add_u32 s{sCNT}, s{sCNT}, 1"); e(f"s_cmp_gt_u32 s{sCNT}, {O.pollmax*8}")
    e("s_waitcnt lgkmcnt(0)")
    e(f"v_cmp_ne_u32 vcc, {val}, v{vFL}")
    e(f"s_cbranch_scc1 {D}")
    e(f"s_cbranch_vccz {D}"); e("s_sleep 1"); e(f"s_branch {L}")
    e.label(D)

def p3():
    e.c("---- P3 (waves 0..3)")
    def wrd(buf, k):
        for ct in range(2):
            d = WB + 8*k + 4*ct
            e(f"ds_read_b64_tr_b16 {vr(d,2)}, v{vW[buf][ct]} offset:{k*8192}")
            e(f"ds_read_b64_tr_b16 {vr(d+2,2)}, v{vW[buf][ct]} offset:{k*8192 + 1024}")
    e.label("L_p3go")
    for k in range(4): wrd(0, k)
    e.stamp(9); e.stamp(13, 7)
    for k in range(32):
        q, kk = divmod(k, 8)
        if k == 16:
            e(f"s_cmp_lg_u32 s{SLD+2}, 0"); e("s_cbranch_scc1 L_p3b")
            e.stamp(5, 7)
            e("s_barrier"); e.stamp(10); e.stamp(7, 7)
            if O.ltouch: o_touch(0xff00ff00, 0)
            for k2 in range(16, 16+O.ad): o_ld(k2, sG0 + k2//8)
            e.label("L_p3b")
            e.stamp(8, 7)
        e(f"s_waitcnt vmcnt({min(O.ad-1, 31-k)}) lgkmcnt({min(12, 4*(31-k))})")
        mfma(A0, WB + 8*kk, OFR(k), A0 if k else "0")
        if k + O.ad < 32: o_ld(k+O.ad, sG0+(k+O.ad)//8, SLD if (k < 16 <= k+O.ad) else SWS)
        mfma(A1, WB + 8*kk + 4, OFR(k), A1 if k else "0")
        if k + 4 < 32: wrd(((k+4)//8) % 2, (k+4) % 8)
        if kk == 3 and q < 2: wbase(q, sG0+q+2)
    e.stamp(9, 7)
    e("s_nop 10")
    cvt8(72, A0, 8); cvt8(80, A1, 8)
    fl = ["", " sc1", " nt", " sc1 nt", " sc0 sc1", " sc0 sc1 nt", " sc0 nt"][O.outsc]
    if O.tpose:
        for i in range(4): e(f"ds_write_b128 v{vTW+i}, {vr(72+4*i,4)}")
        for i in range(4): e(f"ds_read_b128 {vr(88+4*i,4)}, v{vTR} offset:{i*1024}")
        for i in range(4):
            e(f"s_waitcnt lgkmcnt({3-i})")
            e(f"buffer_store_dwordx4 {vr(88+4*i,4)}, v{vO0}, {srd(SOUT)}, s{sOUT3} offen{fl}")
            if i < 3: e(f"s_add_u32 s{sOUT3}, s{sOUT3}, 0x4000")
    else:
        for i in range(4): e(f"buffer_store_dwordx4 {vr(72+4*i,4)}, v{(vO0, vO1)[i//2]}, {srd(SOUT)}, s{sOUT3} offen offset:{16*(i%2)}{fl}")
    if O.stamps:
        e.stamp(10, 7); e("s_waitcnt vmcnt(0)"); e.stamp(11); e.stamp(11, 7)
        e.label("L_stamps")
        e(f"s_memrealtime {sr(sVM)}"); e("s_waitcnt lgkmcnt(0)")
        e(f"s_lshl_b32 s{sT0}, s2, 3"); e(f"s_add_u32 s{sT0}, s{sT0}, s{sW}"); e(f"s_lshl_b32 s{sT0}, s{sT0}, 6"); e(f"s_add_u32 s{sT0}, s{sT0}, {WS_ST}")
        e("s_mov_b64 exec, 1")
        for i in range(1, 14):
            e(f"s_sub_u32 s{sT1}, s{ST0+2*i}, s{ST0}"); e(f"v_mov_b32 v{vU1}, s{sT1}")
            e(f"buffer_store_dword v{vU1}, off, {srd(SWS)}, s{sT0} offset:{4*i}")
        e(f"v_mov_b32 v{vU1}, s100"); e(f"buffer_store_dword v{vU1}, off, {srd(SWS)}, s{sT0} offset:56")
        e(f"v_mov_b32 v{vU1}, s{sVM}"); e(f"buffer_store_dword v{vU1}, off, {srd(SWS)}, s{sT0} offset:60")
    if O.probe:
        if O.probe == 11: e("s_waitcnt vmcnt(0)"); e("s_memrealtime s[76:77]")
        e("s_waitcnt lgkmcnt(0)")
        e(f"s_cmp_lg_u32 s{sBR}, {O.pbr}"); e("s_cbranch_scc1 L_end")
        e("s_sub_u32 s76, s76, s72"); e("s_lshl_b32 s76, s76, 1"); e("s_add_u32 s76, s76, 3000")
        e.label("L_spin"); e("s_memrealtime s[74:75]"); e("s_waitcnt lgkmcnt(0)"); e("s_sub_u32 s74, s74, s72")
        e(f"s_cmp_lt_u32 s74, s76"); e("s_cbranch_scc1 L_spin")
    if O.spin:
        e.label("L_spin"); e("s_memrealtime s[74:75]"); e("s_waitcnt lgkmcnt(0)"); e("s_sub_u32 s74, s74, s72")
        e(f"s_cmp_lt_u32 s74, {O.spin}"); e("s_cbranch_scc1 L_spin")
    e.label("L_end")
    e("s_endpgm")
    e.flush()

def xmax(reg):
    e(f"v_mov_b32 v{vFL+2}, v{reg}"); e("s_nop 1")
    e(f"v_permlane32_swap_b32 v{vFL+2}, v{reg}"); e("s_nop 1")
    e(f"v_max_f32 v{reg}, v{reg}, v{vFL+2}")

def slow_paths(a_body, KP):
    e.c("---- rare path: the stand-in max was unsafe, redo the unit with the true row max")
    def shift(op):
        for r_, d_ in ((vKA, 0x400), (vKA8, 0x400), (vVA, 0x100), (vVA8, 0x100)): e(f"{op} v{r_}, {d_:#x}, v{r_}")
    for u in range(2):
        e.label(f"L_B_slow{u}")
        e(f"s_mov_b32 s{sU}, {u}")
        for i in range(4): e(f"v_mov_b32 v{vQ+i}, v{vQ2+4*u+i}")
        if u == 0: e("s_branch L_B_slow")
        else: shift("v_add_u32")
    e.label("L_B_slow")
    e("s_waitcnt vmcnt(0)")
    prefill(range(vV, vV+8))
    e(f"v_mov_b32 v{vFL}, {NEG}")
    for ps in range(2):
        for i in range(9):
            if i > 0: e(f"s_cmp_gt_u32 {i}, s{sT}"); e(f"s_cbranch_scc1 L_B_s{ps}")
            rdK(i, 0, vK)
            if ps: rdV(i, 0, vV, dyn=False)
            e("s_waitcnt lgkmcnt(0)")
            mfma(vS, vK, vQ, vML if i == 0 else (vMF if i == 8 else "0"))
            e("s_nop 11")
            if ps == 0:
                for r in range(0, 16, 2): e(f"v_max3_f32 v{vFL}, v{vFL}, v{vS+r}, v{vS+r+1}")
            else:
                for r in range(16): e(f"v_sub_f32 v{vS+r}, v{vS+r}, v{vFL}")
                for r in range(16): e(f"v_exp_f32 v{vS+r}, v{vS+r}")
                cvt8(PB, vS, 8); e("s_nop 1")
                mfma(vO, vV, PB, vO if i > 0 else "0"); mfma(vO, vV+4, PB+4, vO)
                e("s_nop 7")
        e.label(f"L_B_s{ps}")
        if ps == 0: xmax(vFL)
    e("s_nop 11")
    norm(vO, vP+4)
    e(f"s_cmp_eq_u32 s{sU}, 0"); e("s_cbranch_scc1 L_B_fin0")
    shift("v_subrev_u32")
    e("s_branch L_B_ok1")
    e.label("L_B_fin0")
    e(f"buffer_store_dwordx4 {vr(vP+4,4)}, v{vL16}, {srd(SWS)}, s{sOA} offen sc1")
    e("s_waitcnt vmcnt(0)"); flag_store(sF2)
    e("s_branch L_B_ok0")
    e.label("L_A_slow")
    for h in range(2):
        e(f"v_mov_b32 v{vFL+h}, {NEG}")
        mfma(vS, vK+4*h, vQ2+4*h, vML); e("s_nop 11")
        for r in range(0, 16, 2): e(f"v_max3_f32 v{vFL+h}, v{vFL+h}, v{vS+r}, v{vS+r+1}")
        e(f"s_cmp_eq_u32 s{sT}, 0"); e(f"s_cbranch_scc1 L_A_m{h}")
        mfma(vS, KP+4*h, vQ2+4*h, vMF); e("s_nop 11")
        for r in range(8, 16, 2): e(f"v_max3_f32 v{vFL+h}, v{vFL+h}, v{vS+r}, v{vS+r+1}")
        e.label(f"L_A_m{h}")
        xmax(vFL+h)
    a_body(True)
    e("s_branch L_A_ok")

prologue(); p1(); ab = attention(); p3(); slow_paths(*ab)
e("s_endpgm")

hdr = open("cdna_kernels/" + NAME + ".s.ref").read().split("; Override launch geometry")[0]
out = hdr + f"; @launch grid=(256,1,1) block=(512,1,1) lds={LDS_BYTES}\n"
out += f""".amdgcn_target "amdgcn-amd-amdhsa--gfx950"
.text
.globl {NAME}_kernel
{'.p2align 12' if O.al12 else ''}
.p2align 8
.type {NAME}_kernel,@function
{NAME}_kernel:
""" + "\n".join(e.L) + f"""
.section .rodata,"a"
.p2align 6
.amdhsa_kernel {NAME}_kernel
  .amdhsa_next_free_vgpr 256
  .amdhsa_next_free_sgpr {102 if O.stamps else (80 if (O.spin or O.probe) else 72)}
  .amdhsa_accum_offset 256
  .amdhsa_group_segment_fixed_size 0
  .amdhsa_kernarg_size 72
  .amdhsa_user_sgpr_count 2
  .amdhsa_user_sgpr_kernarg_segment_ptr 1
  .amdhsa_system_sgpr_workgroup_id_x 1
.end_amdhsa_kernel
"""
open(sys.argv[1], "w").write(out)
```

```python
import sys
NAME = "concat_heads__sliding_local_dilated__sliding_block__prompt"

class Opt:
    stamps = 0
    force_slow = 0
    pollmax = 400000
    only = 0
    delayA = 7
    lag = 6
    kflag = 50
    kchk = 65
    imp = 87
    oflag = 13
    vpos = 2
    uni = 0
    xspan = 1
    torder = 0
    tseq = 2
    tn = 12
    tnt = 0
    rotA = 1
    yprio = 0
    prew = 52
    imp1 = 77
    fair = 1
    tpose = 1
    pdelay = 0
    spin = 0
    x = 0
    wqs = 2
    p1prio = 1
    epi = 11
    tchB = 0
    wo_n = 4
    tchA = 6
    ctouch = 1
    warm = 0
    al12 = 1
    tE = 16
    ltouch = 0
    awo = 1
    pre = 8
    ad = 8
    spoll = 1
    stlb = 0
    sp32 = 1
    fprio = 1
    swp = 1
    probe = 0
    pbr = 0
    rt = 0
    tlb = 0
    tlbB = 0
    bpre = 8
    aflag = 81
    hsmp = 92
    sprio = 1
    smp_at = 17
    wo_at = 12
    tch_at = 4
    quiet = 1
    prio = 0
    outsc = 1
    stag = 0
    sleep = 0
O = Opt()
for a in sys.argv[2:]:
    k, v = a.split("="); assert hasattr(O, k), k
    setattr(O, k, int(v))

WS_O = 8 << 20
WS_F1 = 12 << 20
F1V = 262144
WS_F2 = WS_F1 + 524288
WS_ST = 13 << 20
WS_BYTES = 14 << 20
LDS_BYTES = 163840
L_WV = 65536; L_WK = 131072; L_KV = 65536

class E:
    def __init__(s): s.L = []; s.vq = []; s.lq = []; s.lab = 0; s.ool = []
    def __call__(s, t): s.L.append("    " + t)
    def label(s, n): s.L.append(n + ":")
    def c(s, t): s.L.append("    ; " + t)
    def vm(s, t, tag): s(t); s.vq.append(tag)
    def ds(s, t, tag): s(t); s.lq.append(tag)
    def _n(s, q, tag): return len(q) - 1 - max(i for i, x in enumerate(q) if x == tag)
    def wait_vm(s, tag):
        if tag not in s.vq: return
        n = s._n(s.vq, tag); assert n <= 63
        s(f"s_waitcnt vmcnt({n})"); s.vq = s.vq[len(s.vq)-n:]
    def wait_ds(s, tag):
        if tag not in s.lq: return
        n = s._n(s.lq, tag); assert n <= 15
        s(f"s_waitcnt lgkmcnt({n})"); s.lq = s.lq[len(s.lq)-n:]
    def wait_all(s): s("s_waitcnt vmcnt(0)"); s.vq = []
    def ds_all(s): s("s_waitcnt lgkmcnt(0)"); s.lq = []
    def stamp(s, i, mode=1):
        if O.probe == i and mode == 1: s("s_memrealtime s[76:77]")
        if O.stamps == mode: s(f"{'s_memrealtime' if O.rt else 's_memtime'} s[{ST0+2*i}:{ST0+1+2*i}]")
    def stub(s):
        if O.warm:
            s.nstub = getattr(s, "nstub", 0); s.label(f"L_stub{s.nstub}"); s("s_cbranch_execz L_warmed"); s.nstub += 1
    def newlab(s, p): s.lab += 1; return f"{p}_{s.lab}"
    def cond(s, cmp_, body):
        L = s.newlab("L_c"); s(cmp_); s(f"s_cbranch_scc1 {L}"); s.label(L + "r")
        s.ool.append((L, body))
    def flush(s):
        while s.ool:
            L, body = s.ool.pop(0)
            s.label(L); body(); s(f"s_branch {L}r")
e = E()
def vr(a, n): return f"v[{a}:{a+n-1}]"
def sr(a): return f"s[{a}:{a+1}]"
def srd(a): return f"s[{a}:{a+3}]"

SX, SW, SWO, SOUT, SWS, SDBG = 8, 12, 16, 20, 24, 28
SEXP = 8
SOWO = 28
sF1, sKV = 0, 1
sBR, sRB, sG, sW, sM0 = 3, 4, 5, 6, 7
sCX = 32; sCW = 40; sVMK = 32
sNON = 48
sT0, sT1, sT2, sT3 = 50, 51, 52, 53
sJ, sXCD, sTT, sFT, sCNT, sT = 54, 55, 56, 57, 58, 59
sEX = 60; sVM = 62
sIG, sIF, sIMP, sPEND = 64, 65, 66, 67
sOA, sF2 = 68, 69
sOW = 70
sU = 53
sT3P = 55
ST0 = 72
SOTH = 20
SIMP = 12
SDUM = 12
vL, vX0, vX1, vW0, vWR, vWR1, vWR2, vXR, vL16 = 1, 2, 3, 4, 5, 6, 7, 8, 12
vT0, vT1, vT2 = 13, 14, 15
vNON = 14
vEXP = 0
vKA, vVA, vKA8, vVA8 = 2, 3, 0, 7
vWO = 4
vFL = 8
vQ2 = 16; vCV = 24; vP = 24; vQ = 32
vML, vMF = 40, 56
accA, accB = 72, 88
vS = 72
WF = [104, 108, 112, 116, 120, 124, 16, 20]
vXF = 128
vO = 104; vK = 136; vV = 144; PB = 176
sBAD = 67
vU0, vU1, vU2 = 36, 37, 38
vL8 = 13
NEG = "0xff800000"

def mfma(d, a, b, c): e(f"v_mfma_f32_32x32x16_bf16 {vr(d,16)}, {vr(a,4)}, {vr(b,4)}, {c if isinstance(c,str) else vr(c,16)}")
def dma(v, s_, soff, ldsdst, tag):
    e(f"s_add_u32 m0, s{sM0}, {ldsdst}"); e("s_nop 0")
    e.vm(f"buffer_load_dwordx4 v{v}, {srd(s_)}, s{soff} offen lds", tag)
def st_pieces(t):
    sl = t % 4
    return [lambda: dma(vX0, SX, sCX+t, sl*16384, f"st{t}"),
            lambda: dma(vW0, SW, sCW+t, L_WK + sl*8192, f"st{t}"),
            lambda: dma(vX1, SX, sCX+t, sl*16384 + 8192, f"st{t}")]
def cvt(dst, src, i): e(f"v_cvt_pk_bf16_f32 v{dst+i}, v{src+2*i}, v{src+2*i+1}")
def cvt8(dst, src, n=4):
    for i in range(n): cvt(dst, src, i)

def masks(kind):
    e(f"v_and_b32 v{vT0}, 31, v{vL}"); e(f"v_lshrrev_b32 v{vT1}, 5, v{vL}")
    e(f"v_lshlrev_b32 v{vT1}, 2, v{vT1}"); e(f"v_sub_u32 v{vT0}, v{vT0}, v{vT1}")
    if kind == "B":
        e(f"s_mov_b32 s{sT0}, {NEG}")
        for r in range(16):
            c = 8*(r >> 2) + (r & 3)
            e(f"v_subrev_u32 v{vT1}, {c}, v{vT0}"); e(f"v_and_b32 v{vML+r}, s{sT0}, v{vT1}"); e(f"v_xor_b32 v{vMF+r}, s{sT0}, v{vML+r}")
    else:
        e(f"s_mov_b32 s{sT0}, 0xf149f2ca")
        for r in range(16):
            c = 8*(r >> 2) + (r & 3)
            e(f"v_subrev_u32 v{vT1}, {c}, v{vT0}"); e(f"v_and_b32 v{vT1}, -15, v{vT1}"); e(f"v_cvt_f32_u32 v{vT1}, v{vT1}"); e(f"v_mul_f32 v{vML+r}, s{sT0}, v{vT1}")
            if r >= 8:
                e(f"v_add_u32 v{vT1}, {32-c}, v{vT0}"); e(f"v_and_b32 v{vT1}, -15, v{vT1}"); e(f"v_cvt_f32_u32 v{vT1}, v{vT1}"); e(f"v_mul_f32 v{vMF+r}, s{sT0}, v{vT1}")
            else:
                e(f"v_mov_b32 v{vMF+r}, s{sT0}")

def prologue():
    e("s_cmp_ge_u32 s2, 256"); e("s_cbranch_scc1 L_end")
    if O.only == 1: e("s_cmp_ge_u32 s2, 128"); e("s_cbranch_scc1 L_end")
    if O.stamps: e(f"{'s_memrealtime' if O.rt else 's_memtime'} {sr(ST0)}"); e("s_memrealtime s[100:101]")
    if O.spin or O.probe: e("s_memrealtime s[72:73]")
    e("s_load_dwordx16 s[32:47], s[0:1], 0"); e("s_load_dwordx2 s[24:25], s[0:1], 64")
    if O.ctouch:
        e(f"s_getpc_b64 {sr(sVM)}")
        e(f"s_lshr_b32 s{sT0}, s2, 3"); e(f"s_mul_i32 s{sT0}, s{sT0}, 5"); e(f"v_add_u32 v{vT0}, s{sT0}, v0"); e(f"v_lshlrev_b32 v{vT0}, 7, v{vT0}")
        e(f"v_cmp_gt_u32 vcc, 5, v0"); e(f"s_and_saveexec_b64 {sr(sEX)}, vcc"); e("s_cbranch_execz L_noct")
        e(f"global_load_dword v254, v{vT0}, {sr(sVM)}")
        e.label("L_noct"); e("s_mov_b64 exec, -1")
    e(f"v_lshrrev_b32 v{vT0}, 6, v0"); e(f"v_and_b32 v{vL}, 63, v0")
    e(f"v_readfirstlane_b32 s{sW}, v{vT0}")
    e(f"s_and_b32 s{sXCD}, s2, 7"); e(f"s_lshr_b32 s{sJ}, s2, 3")
    e(f"s_lshr_b32 s{sT0}, s{sXCD}, 1"); e(f"s_lshl_b32 s{sT0}, s{sT0}, 2"); e(f"s_bfe_u32 s{sT1}, s{sJ}, 0x20002")
    e(f"s_add_u32 s{sRB}, s{sT0}, s{sT1}")
    e(f"s_and_b32 s{sT0}, s{sXCD}, 1"); e(f"s_lshl_b32 s{sT0}, s{sT0}, 2"); e(f"s_and_b32 s{sT2}, s{sJ}, 3")
    e(f"s_add_u32 s{sG}, s{sT0}, s{sT2}")
    e(f"s_add_u32 s{sT3}, s{sT1}, s{sT2}"); e(f"s_lshl_b32 s{sT3}, s{sT3}, 1")
    e(f"s_lshl_b32 s{sM0}, s{sW}, 10")
    e(f"v_lshrrev_b32 v{vT0}, 4, v{vL}")
    e(f"s_and_b32 s{sT0}, s{sW}, 1"); e(f"s_lshl_b32 s{sT0}, s{sT0}, 2")
    e(f"v_add_u32 v{vT0}, s{sT0}, v{vT0}")
    e(f"v_and_b32 v{vT1}, 7, v{vL}"); e(f"v_xor_b32 v{vT0}, v{vT0}, v{vT1}"); e(f"v_lshlrev_b32 v{vT0}, 4, v{vT0}")
    e(f"v_lshrrev_b32 v{vT1}, 3, v{vL}"); e(f"v_lshl_add_u32 v{vX0}, v{vT1}, 10, v{vT0}")
    e(f"s_lshl_b32 s{sT0}, s{sW}, 13"); e(f"v_add_u32 v{vX0}, s{sT0}, v{vX0}"); e(f"v_add_u32 v{vX1}, 0x10000, v{vX0}")
    e(f"v_bfe_u32 v{vT0}, v{vL}, 2, 3")
    e(f"s_lshl_b32 s{sT0}, s{sW}, 3"); e(f"v_add_u32 v{vT0}, s{sT0}, v{vT0}")
    e(f"v_lshrrev_b32 v{vT1}, 5, v{vL}"); e(f"v_lshlrev_b32 v{vT1}, 6, v{vT1}")
    e(f"v_and_b32 v{vT2}, 3, v{vL}"); e(f"v_lshl_add_u32 v{vT1}, v{vT2}, 4, v{vT1}")
    e(f"v_mul_u32_u24 v{vW0}, 3072, v{vT0}"); e(f"v_add_u32 v{vW0}, v{vW0}, v{vT1}"); e(f"v_add_u32 v{vW0}, 0x400, v{vW0}")
    e(f"s_mov_b32 s{SX+2}, {2048*1024}"); e(f"s_mov_b32 s{SX+3}, 0x20000")
    e(f"s_mov_b32 s{SW+2}, {512*3072}"); e(f"s_mov_b32 s{SW+3}, 0x20000")
    e(f"s_mov_b32 s{SOTH+3}, 0x20000")
    e(f"s_lshl_b32 s{sT0}, s{sRB}, 17"); e(f"s_lshl_b32 s{sT1}, s{sG}, 7")
    e(f"s_cmp_lt_u32 s2, 128"); e(f"s_cselect_b32 s{sBR}, 1, 0")
    e(f"s_cselect_b32 s{sT3}, 0, s{sT3}")
    e("s_waitcnt lgkmcnt(0)")
    e(f"s_cselect_b64 {sr(SX)}, s[38:39], s[32:33]")
    e(f"s_cselect_b64 {sr(SW)}, s[40:41], s[34:35]")
    e(f"s_cselect_b64 {sr(SWO)}, s[42:43], s[36:37]")
    e(f"s_cselect_b64 {sr(sOW)}, s[36:37], s[42:43]")
    e(f"s_mov_b64 {sr(SDBG)}, s[46:47]")
    e("s_cbranch_scc1 L_notouch")
    sp = O.xspan
    e(f"v_lshrrev_b32 v{vT0}, {sp}, v{vL}"); e(f"v_lshlrev_b32 v{vT0}, 10, v{vT0}")
    e(f"v_and_b32 v{vT1}, {(1 << sp) - 1}, v{vL}"); e(f"v_lshl_add_u32 v{vT0}, v{vT1}, 7, v{vT0}")
    e(f"v_lshrrev_b32 v{vT1}, 4, v{vL}"); e(f"v_bfe_u32 v{vT2}, v{vL}, 2, 2"); e(f"v_lshl_add_u32 v{vT1}, v{vT1}, 6, v{vT2}")
    e(f"v_mul_u32_u24 v{vT1}, 3072, v{vT1}"); e(f"v_and_b32 v{vT2}, 3, v{vL}"); e(f"v_lshl_add_u32 v{vT1}, v{vT2}, 7, v{vT1}")
    sXB, sWB = sIG, sIF
    e(f"s_and_b32 s{sXB}, s{sG}, 3"); e(f"s_lshl_b32 s{sXB}, s{sXB}, 15"); e(f"s_add_u32 s{sXB}, s{sXB}, s{sT0}")
    e(f"s_and_b32 s{sWB}, s{sJ}, 15"); e(f"s_mul_i32 s{sWB}, s{sWB}, {4*3072}"); e(f"s_and_b32 s{sT2}, s{sT1}, 512"); e(f"s_add_u32 s{sWB}, s{sWB}, s{sT2}")
    code = {0: [8, 2, 9, 10, 3, 11, 4, 5, 0, 1], 1: [8, 9, 10, 11, 2, 3, 4, 5, 0, 1]}[O.torder]
    items = [(1, c) for c in code] + [(0, c) for c in code]
    if O.tseq == 1:
        items = [(1, c) for c in code[:8]] + [(0, c) for c in code[:6]] + [(1, c) for c in code[8:]] + [(0, c) for c in code[6:]]
    if O.tseq == 2: items = [(1, c) for c in code] + [(0, c) for c in code[6:]]
    if O.tseq == 3: items = [(1, c) for c in code] + [(0, c) for c in (2, 3, 4, 5, 0, 1)]
    if O.tseq == 4: items = [(1, c) for c in code[:8]] + [(0, c) for c in (2, 3, 4, 5)] + [(1, c) for c in code[8:]] + [(0, c) for c in (0, 1)]
    items = items[:O.tn]
    for r in range((len(items) + 7) // 8):
        rnd = items[8*r:8*r+8]
        pk = sum(c << (4*i) for i, (b_, c) in enumerate(rnd)); bm = sum(b_ << i for i, (b_, c) in enumerate(rnd))
        if len(rnd) < 8: e(f"s_cmp_ge_u32 s{sW}, {len(rnd)}"); e(f"s_cbranch_scc1 L_t{r}d")
        e(f"s_lshl_b32 s{sT2}, s{sW}, 2"); e(f"s_lshr_b32 s{sT2}, {pk:#x}, s{sT2}")
        e(f"s_bitcmp1_b32 s{sT2}, 3"); e(f"s_cbranch_scc1 L_t{r}x")
        e(f"s_bitcmp1_b32 {bm:#x}, s{sW}"); e(f"s_cselect_b64 {sr(SOTH)}, s[40:41], s[34:35]"); e(f"s_mov_b32 s{SOTH+2}, {512*3072}")
        e(f"s_and_b32 s{sCNT}, s{sT2}, 1"); e(f"s_mul_i32 s{sCNT}, s{sCNT}, {256*3072}"); e(f"s_add_u32 s{sCNT}, s{sCNT}, s{sWB}")
        e(f"s_and_b32 s{sT2}, s{sT2}, 6"); e(f"s_lshl_b32 s{sT2}, s{sT2}, 9"); e(f"s_add_u32 s{sCNT}, s{sCNT}, s{sT2}")
        e(f"buffer_load_dword v{250+r}, v{vT1}, {srd(SOTH)}, s{sCNT} offen{' nt' if O.tnt else ''}")
        e(f"s_branch L_t{r}d")
        e.label(f"L_t{r}x")
        e(f"s_bitcmp1_b32 {bm:#x}, s{sW}"); e(f"s_cselect_b64 {sr(SOTH)}, s[38:39], s[32:33]"); e(f"s_mov_b32 s{SOTH+2}, {2048*1024}")
        e(f"s_and_b32 s{sT2}, s{sT2}, 3")
        if sp == 2:
            e(f"s_and_b32 s{sCNT}, s{sT2}, 1"); e(f"s_lshl_b32 s{sCNT}, s{sCNT}, 14"); e(f"s_lshr_b32 s{sT2}, s{sT2}, 1"); e(f"s_lshl_b32 s{sT2}, s{sT2}, 9"); e(f"s_add_u32 s{sT2}, s{sT2}, s{sCNT}")
        else: e(f"s_lshl_b32 s{sT2}, s{sT2}, {8 if sp == 1 else 13}")
        e(f"s_add_u32 s{sCNT}, s{sT2}, s{sXB}")
        e(f"buffer_load_dword v{250+r}, v{vT0}, {srd(SOTH)}, s{sCNT} offen{' nt' if O.tnt else ''}")
        e.label(f"L_t{r}d")
        e("s_barrier")
    if O.tlb:
        e(f"s_cmp_lg_u32 s{sW}, 7"); e("s_cbranch_scc1 L_notlb")
        if O.tlb >= 20: e(f"v_lshlrev_b32 v{vT0}, {O.tlb}, v{vL}")
        else:
            e(f"s_and_b32 s{sT2}, s{sJ}, 15"); e(f"v_lshlrev_b32 v{vT0}, 4, v{vL}"); e(f"v_add_u32 v{vT0}, s{sT2}, v{vT0}"); e(f"v_lshlrev_b32 v{vT0}, {O.tlb}, v{vT0}")
        for k_, (p_, n_) in enumerate((("s[24:25]", 13 << 20), ("s[44:45]", 4 << 20), ("s[36:37]", 512 << 10), ("s[42:43]", 512 << 10))):
            e(f"s_mov_b64 {sr(SOTH)}, {p_}"); e(f"s_mov_b32 s{SOTH+2}, {n_}")
            e(f"buffer_load_dword v{244+k_}, v{vT0}, {srd(SOTH)}, 0 offen")
        e.label("L_notlb")
    if not O.rotA: e(f"s_mov_b32 s{sT3}, 0")
    e.label("L_notouch")
    e(f"s_mov_b64 {sr(SOUT)}, s[44:45]")
    def chunk(t):
        e(f"s_add_u32 s{sT2}, s{sT3}, {t}"); e(f"s_and_b32 s{sT2}, s{sT2}, 7")
        e(f"s_lshl_b32 s{sCX+t}, s{sT2}, 7"); e(f"s_add_u32 s{sCX+t}, s{sCX+t}, s{sT0}")
        e(f"s_mul_i32 s{sCW+t}, s{sT2}, {64*3072}"); e(f"s_add_u32 s{sCW+t}, s{sCW+t}, s{sT1}")
    chunk(0)
    for p in st_pieces(0): p()
    e(f"s_mov_b32 s{SDBG+2}, 256"); e(f"s_mov_b32 s{SDBG+3}, 0x20000")
    e(f"s_xor_b32 s{sT2}, s{sW}, 7"); e(f"s_or_b32 s{sT2}, s2, s{sT2}")
    def tag():
        e(f"s_memrealtime {sr(sNON)}"); e("s_waitcnt lgkmcnt(0)")
        e(f"s_or_b32 s{sNON+1}, s{sNON+1}, 0x80000000")
        e(f"v_mov_b32 v{vCV}, s{sNON}"); e(f"v_mov_b32 v{vCV+1}, s{sNON+1}")
        e("s_mov_b64 exec, 1")
        e(f"buffer_store_dwordx2 {vr(vCV,2)}, off, {srd(SDBG)}, 0 sc1")
        e("s_mov_b64 exec, -1")
    e.cond(f"s_cmp_eq_u32 s{sT2}, 0", tag)
    chunk(1)
    for p in st_pieces(1): p()
    for t in range(2, 8): chunk(t)
    e(f"s_mov_b32 s{SWO+2}, {512*1024}"); e(f"s_mov_b32 s{SWO+3}, 0x20000")
    e(f"s_mov_b32 s{SOUT+2}, {2048*2048}")
    e(f"s_mov_b32 s{SWS+2}, {WS_BYTES}"); e(f"s_mov_b32 s{SWS+3}, 0x20000")
    e(f"s_lshr_b32 s{sFT}, s{sW}, 2"); e(f"s_mul_i32 s{sTT}, s{sFT}, 3"); e(f"s_and_b32 s{sT0}, s{sW}, 3"); e(f"s_xor_b32 s{sTT}, s{sTT}, s{sT0}")
    e(f"s_lshl_b32 s{sT}, s{sRB}, 2"); e(f"s_add_u32 s{sT}, s{sT}, s{sTT}")
    e(f"v_and_b32 v{vT0}, 31, v{vL}"); e(f"v_lshrrev_b32 v{vT1}, 5, v{vL}")
    e(f"v_bfe_u32 v{vT2}, v{vL}, 1, 3"); e(f"v_xor_b32 v{vT2}, v{vT2}, v{vT1}"); e(f"v_lshlrev_b32 v{vT2}, 4, v{vT2}")
    e(f"v_lshl_add_u32 v{vXR}, v{vT0}, 7, v{vT2}")
    e(f"s_lshl_b32 s{sT0}, s{sTT}, 12"); e(f"v_add_u32 v{vXR}, s{sT0}, v{vXR}")
    for s_ in range(1, 4): e(f"v_xor_b32 v{vXR+s_}, {s_*32}, v{vXR}")
    e(f"v_bfe_u32 v{vT2}, v{vL}, 2, 2"); e(f"v_lshlrev_b32 v{vWR}, 6, v{vT2}")
    e(f"v_bfe_u32 v{vT2}, v{vL}, 4, 1"); e(f"v_lshl_add_u32 v{vWR}, v{vT2}, 5, v{vWR}")
    e(f"v_and_b32 v{vT2}, 3, v{vL}"); e(f"v_lshl_add_u32 v{vWR}, v{vT2}, 3, v{vWR}")
    e(f"v_lshl_add_u32 v{vWR}, v{vT1}, 10, v{vWR}")
    e(f"s_lshl_b32 s{sT0}, s{sFT}, 9"); e(f"v_add_u32 v{vWR}, s{sT0}, v{vWR}")
    e(f"v_add_u32 v{vWR1}, 0x10000, v{vWR}"); e(f"v_add_u32 v{vWR2}, 0x20000, v{vWR}")
    e(f"v_lshlrev_b32 v{vL16}, 4, v{vL}")
    e(f"s_lshl_b32 s{sT0}, s{sTT}, 13"); e(f"s_lshl_b32 s{sT1}, s{sFT}, 11"); e(f"s_add_u32 s{sT0}, s{sT0}, s{sT1}")
    e(f"s_add_u32 s{sT0}, s{sT0}, {L_KV + 8*8192}"); e(f"v_add_u32 v{vEXP}, s{sT0}, v{vL16}")
    e(f"s_lshl_b32 s{sT0}, s{sBR}, 3"); e(f"s_add_u32 s{sT0}, s{sT0}, s{sG}"); e(f"s_lshl_b32 s{sT0}, s{sT0}, 6"); e(f"s_add_u32 s{sT0}, s{sT0}, s{sT}")
    e(f"s_lshl_b32 s{sKV}, s{sT0}, 13"); e(f"s_add_u32 s{sKV}, s{sKV}, s{sT1}")
    e(f"s_lshl_b32 s{sF1}, s{sT0}, 8"); e(f"s_lshl_b32 s{sT1}, s{sFT}, 7"); e(f"s_add_u32 s{sF1}, s{sF1}, s{sT1}"); e(f"s_add_u32 s{sF1}, s{sF1}, {WS_F1}")
    e(f"s_sub_u32 s{sT0}, s{sT0}, s{sTT}"); e(f"s_add_u32 s{sT0}, s{sT0}, s{sW}"); e(f"s_sub_u32 s{sT0}, s{sT0}, 8")
    e(f"s_lshl_b32 s{sT1}, s{sRB}, 2"); e(f"s_add_u32 s{sT1}, s{sT1}, s{sW}"); e(f"s_cmp_lt_u32 s{sT1}, 8"); e(f"s_cselect_b32 s{sIMP}, 1, 0")
    e(f"s_cselect_b32 s{sT0}, 0, s{sT0}")
    e(f"s_lshl_b32 s{sIG}, s{sT0}, 13"); e(f"s_lshl_b32 s{sIF}, s{sT0}, 8"); e(f"s_add_u32 s{sIF}, s{sIF}, {WS_F1 + 120}")
    e(f"s_cmp_eq_u32 s{sBR}, 0"); e(f"s_cselect_b32 s{sIMP}, 2, s{sIMP}")
    e(f"s_lshl_b32 s{sT0}, s{sBR}, 6"); e(f"s_add_u32 s{sT0}, s{sT0}, s{sT}")
    e(f"s_lshl_b32 s{sT1}, s{sT0}, 4"); e(f"s_lshl_b32 s{sT2}, s{sG}, 1"); e(f"s_add_u32 s{sT1}, s{sT1}, s{sT2}"); e(f"s_add_u32 s{sT1}, s{sT1}, s{sFT}")
    e(f"s_lshl_b32 s{sOA}, s{sT1}, 11"); e(f"s_add_u32 s{sOA}, s{sOA}, {WS_O}")
    e(f"s_lshl_b32 s{sF2}, s{sT1}, 8"); e(f"s_add_u32 s{sF2}, s{sF2}, {WS_F2}")
    e(f"s_mov_b32 s{sEX}, 0xffff"); e(f"s_mov_b32 s{sEX+1}, 0xffff")
    e(f"s_lshl_b32 s{sT0}, s{sXCD}, 1"); e(f"s_bfe_u32 s{sT1}, s{sJ}, 0x10003"); e(f"s_add_u32 s{sT0}, s{sT0}, s{sT1}")
    e(f"s_lshl_b32 s{sT0}, s{sT0}, 2"); e(f"s_and_b32 s{sT1}, s{sW}, 3"); e(f"s_add_u32 s{sT3P}, s{sT0}, s{sT1}")
    if O.stlb:
        e(f"s_add_u32 s{sVM}, s{SWS}, s{sF2}"); e(f"s_addc_u32 s{sVM+1}, s{SWS+1}, 0")
        e(f"s_load_dword s{sCNT}, {sr(sVM)}, 0 glc")
    e(f"s_cmp_eq_u32 s{sBR}, 0"); e("s_cbranch_scc1 L_maskA")
    masks("B"); e("s_branch L_maskdone")
    e.flush()
    e.label("L_maskA"); masks("A")
    e.label("L_maskdone")
    if O.warm:
        e("s_mov_b64 exec, 0")
        for i in range(7): e(f"s_cmp_eq_u32 s{sW}, {i}"); e(f"s_cbranch_scc1 L_stub{i}")
        e("s_branch L_stub7")
        e.label("L_warmed"); e("s_mov_b64 exec, -1")
    e(f"v_lshlrev_b32 v{vL8}, 3, v{vL}")

def flag_store(soff, s_=SWS, off=0):
    e("s_mov_b64 exec, 0xffff")
    e.vm(f"buffer_store_dwordx2 {vr(vNON,2)}, v{vL8}, {srd(s_)}, s{soff} offen{f' offset:{off}' if off else ''} sc1", "flag")
    e("s_mov_b64 exec, -1")
def flag_ld(tag):
    e.vm(f"buffer_load_dwordx4 {vr(vFL,4)}, off, {srd(SWS)}, s{sIF} sc1", tag)
def flag_cmp():
    e(f"v_cmp_ne_u64 vcc, {sr(sNON)}, {vr(vFL,2)}"); e(f"v_cmp_ne_u64 {sr(sVM)}, {sr(sNON)}, {vr(vFL+2,2)}")
    e(f"s_or_b64 {sr(sVM)}, {sr(sVM)}, vcc")
def flag_poll():
    L = e.newlab("L_fp"); D = L + "d"
    e(f"s_mov_b32 s{sCNT}, 0")
    e.label(L)
    e(f"buffer_load_dwordx4 {vr(vFL,4)}, off, {srd(SWS)}, s{sIF} sc1")
    e(f"s_add_u32 s{sCNT}, s{sCNT}, 1"); e(f"s_cmp_gt_u32 s{sCNT}, {O.pollmax}"); e(f"s_cbranch_scc1 {D}")
    e("s_waitcnt vmcnt(0)")
    flag_cmp(); e(f"s_cbranch_scc1 {L}")
    e.label(D)
def spoll(soff, offs):
    L = e.newlab("L_sp"); D = L + "d"
    e(f"s_add_u32 s{sVM}, s{SWS}, s{soff}"); e(f"s_addc_u32 s{sVM+1}, s{SWS+1}, 0"); e(f"s_mov_b32 s{sCNT}, 0")
    e.label(L)
    w32 = O.sp32 and len(offs) > 4
    for i, o in enumerate(offs): e(f"s_load_dword s{sVMK+i}, {sr(sVM)}, {o} glc" if w32 else f"s_load_dwordx2 {sr(sVMK+2*i)}, {sr(sVM)}, {o} glc")
    e(f"s_add_u32 s{sCNT}, s{sCNT}, 1"); e(f"s_cmp_gt_u32 s{sCNT}, {O.pollmax}")
    e("s_waitcnt lgkmcnt(0)")
    e(f"s_cbranch_scc1 {D}")
    n2 = len(offs)//2 if w32 else len(offs)
    for i in range(n2): e(f"s_xor_b64 {sr(sVMK+2*i)}, {sr(sVMK+2*i)}, {sr(sT2) if w32 else sr(sNON)}")
    for i in range(1, n2): e(f"s_or_b64 {sr(sVMK)}, {sr(sVMK)}, {sr(sVMK+2*i)}")
    e(f"s_cbranch_scc1 {L}")
    e.label(D)
def imp_dma(v, track=None):
    e(f"s_lshl_b32 s{sT1}, s{sW}, 13"); e(f"s_add_u32 m0, s{sT1}, {L_KV + v*4096}")
    e(f"s_add_u32 s{sT0}, s{sIG}, {v*4096}")
    for k in range(4):
        t = f"buffer_load_dwordx4 v{vL16}, {srd(SIMP)}, s{sT0} offen offset:{k*1024} sc1 lds"
        if track: e.vm(t, track)
        else: e(t)

def touch_wo(s_, tmp):
    e(f"s_and_b32 s{sT0}, s{sJ}, 15"); e(f"s_lshl_b32 s{sT0}, s{sT0}, 3"); e(f"s_add_u32 s{sT0}, s{sT0}, s{sW}")
    e(f"s_lshl_b32 s{sT0}, s{sT0}, 12"); e(f"v_lshlrev_b32 v{tmp}, 7, v{vL}")
    e("s_mov_b32 exec_hi, 0")
    e(f"buffer_load_dword v{tmp+1}, v{tmp}, {srd(s_)}, s{sT0} offen")
    e("s_mov_b32 exec_hi, -1")

def p1():
    e.stamp(12)
    def rd(ks):
        G, s_ = divmod(ks, 4)
        w = WF[ks % 8]
        if G < 8:
            e.ds(f"ds_read_b128 {vr(vXF+4*ks,4)}, v{vXR+s_} offset:{(G%4)*16384}", f"w{ks}")
            b, off = vWR2, (G % 4)*8192 + s_*2048
        elif G < 16: b, off = vWR1, (G-8)*8192 + s_*2048
        else: b, off = vWR, (G-16)*8192 + s_*2048
        e.ds(f"ds_read_b64_tr_b16 {vr(w,2)}, v{b} offset:{off}", f"w{ks}")
        e.ds(f"ds_read_b64_tr_b16 {vr(w+2,2)}, v{b} offset:{off+256}", f"w{ks}")
    syncs = {G: (f"st{G}", True) for G in range(8)}
    syncs.update({8: ("wv1", True), 10: ("wv3", False), 12: ("wv7", False), 16: ("wq3", False), 20: ("wq7", "exp")})
    def sync(G):
        if G not in syncs: return
        tag, lg = syncs[G]
        e.wait_vm(tag)
        if lg is True: e.ds_all()
        elif lg: e.wait_ds(lg)
        if not (O.x & 8 and G > 8): e("s_barrier")
    gap = {k: [] for k in range(-1, 96)}
    def I(t): return lambda: e(t)
    def wv(t): return lambda: dma(vW0, SW, sCW+t, L_WV + t*8192, f"wv{t}")
    def wq(t): return lambda: dma(vW0, SW, sCW+t, t*8192, f"wq{t}")
    gap[-1] += st_pieces(2)
    for t in range(3, 8):
        for i, p in enumerate(st_pieces(t)): gap[4*(t-3) + i].append(p)
    gap[19].append(I(f"v_add_u32 v{vW0}, 0x400, v{vW0}"))
    for t, k in enumerate([20, 22, 24, 26, 28, 30, 32, 33]): gap[k].append(wv(t))
    gap[29].append(lambda: e.vm(f"buffer_load_dwordx2 {vr(vNON,2)}, off, {srd(SDBG)}, 0 sc1", "non"))
    gap[21] += [I(f"s_mov_b64 {sr(SEXP)}, {sr(SWS)}"), I(f"s_lshl_b32 s{sT0}, s{sBR}, 2"), I(f"s_or_b32 s{sT0}, s{sT0}, s{sTT}")]
    gap[23] += [I(f"s_cmp_ge_u32 s{sT0}, 3"), I(f"s_cselect_b32 s{SEXP+2}, s{SWS+2}, 0")]
    def export(k0, acc, tmp, off, tag):
        for i in range(4): gap[k0].append(lambda i=i: cvt(tmp, acc, i))
        if off: gap[k0].append(I(f"s_add_u32 s{sKV}, s{sKV}, {off}"))
        if not O.x & 1: gap[k0+1].append(lambda: e.vm(f"buffer_store_dwordx4 {vr(tmp,4)}, v{vL16}, {srd(SEXP)}, s{sKV} offen sc1", tag))
        for i in range(4, 8): gap[k0+1].append(lambda i=i: cvt(tmp, acc, i))
        if not O.x & 1: gap[k0+2].append(lambda: e.vm(f"buffer_store_dwordx4 {vr(tmp+4,4)}, v{vL16}, {srd(SEXP)}, s{sKV} offen offset:1024 sc1", tag))
        if not O.x & 2: gap[k0+3].append(lambda: e.ds(f"ds_write_b128 v{vEXP}, {vr(tmp,4)} offset:{off}", "exp"))
        if not O.x & 2: gap[k0+4].append(lambda: e.ds(f"ds_write_b128 v{vEXP}, {vr(tmp+4,4)} offset:{off+1024}", "exp"))
    export(34, accA, vCV, 0, "kst")
    gap[39].append(I(f"v_subrev_u32 v{vW0}, 0x800, v{vW0}"))
    wqg = [[40, 43, 46, 49, 54, 57, 60, 63], [39, 40, 41, 42, 53, 55, 57, 59], [39, 41, 43, 45, 53, 55, 57, 59]][O.wqs]
    for t, k in enumerate(wqg):
        if not O.x & 4: gap[k].append(wq(t))
    def kflag():
        e.wait_vm("kst"); e.wait_vm("non")
        e(f"v_readfirstlane_b32 s{sNON}, v{vNON}"); e(f"v_readfirstlane_b32 s{sNON+1}, v{vNON+1}")
        def late():
            L = e.newlab("L_tag"); D = L + "d"
            e(f"s_mov_b32 s{sCNT}, 0")
            e.label(L)
            e(f"buffer_load_dwordx2 {vr(vNON,2)}, off, {srd(SDBG)}, 0 sc1"); e("s_waitcnt vmcnt(0)")
            e(f"v_readfirstlane_b32 s{sNON}, v{vNON}"); e(f"v_readfirstlane_b32 s{sNON+1}, v{vNON+1}")
            e(f"s_add_u32 s{sCNT}, s{sCNT}, 1"); e(f"s_cmp_gt_u32 s{sCNT}, {O.pollmax}"); e(f"s_cbranch_scc1 {D}")
            e(f"s_cmp_eq_u32 s{sNON+1}, 0"); e(f"s_cbranch_scc1 {L}")
            e.label(D)
        e("s_nop 0")
        e.cond(f"s_cmp_eq_u32 s{sNON+1}, 0", late)
        flag_store(sF1, SEXP)
    gap[O.kflag].append(kflag)
    def prew():
        e("s_mov_b32 exec_hi, 0")
        e.vm(f"buffer_store_dwordx2 {vr(vL16,2)}, v{vL8}, {srd(SWS)}, s{sF2} offen sc1", "prew")
        e("s_mov_b32 exec_hi, -1")
    if O.prew: gap[O.prew].append(prew)
    export(66, accB, vCV+8, 4096, "vst")
    gap[O.kchk].append(lambda: flag_ld("kchk"))
    gap[72] += [I(f"v_add_u32 v{vKA8}, {-8*8192 & 0xffffffff:#x}, v{vEXP}"), I(f"v_add_u32 v{vKA}, 0x2000, v{vKA8}"), I(f"v_and_b32 v{vVA8}, 0xfffffeff, v{vKA8}")]
    gap[73] += [I(f"v_add_u32 v{vVA8}, 0x1000, v{vVA8}"), I(f"v_add_u32 v{vVA}, 0x2000, v{vVA8}")]
    for i in range(1, 9):
        gap[73+i] += [I(f"s_cmp_le_u32 {i}, s{sT}"), I(f"s_cselect_b64 {sr(sVMK+2*(i-1))}, {sr(sEX)}, -1")]
    gap[61] += [I(f"v_bfe_u32 v{vWO}, v{vL}, 2, 3"), I(f"s_lshl_b32 s{sT0}, s{sW}, 3"), I(f"v_add_u32 v{vWO}, s{sT0}, v{vWO}"), I(f"v_lshlrev_b32 v{vWO}, 10, v{vWO}")]
    gap[62] += [I(f"v_lshrrev_b32 v{vWR1}, 5, v{vL}"), I(f"v_lshl_add_u32 v{vWO}, v{vWR1}, 6, v{vWO}"), I(f"v_and_b32 v{vWR1}, 3, v{vL}"), I(f"v_lshl_add_u32 v{vWO}, v{vWR1}, 4, v{vWO}")]
    gap[63] += [I(f"s_and_b32 s{sT0}, s{sJ}, 7"), I(f"s_lshl_b32 s{sT0}, s{sT0}, 7"), I(f"v_add_u32 v{vWO}, s{sT0}, v{vWO}")]
    gap[64] += [I(f"s_mov_b64 {sr(SIMP)}, {sr(SWS)}")]
    def imp_k1():
        e.wait_vm("kchk")
        flag_cmp()
        e(f"s_cselect_b32 s{sPEND}, 1, 0")
        e(f"s_cmp_lg_u32 s{sIMP}, 0"); e(f"s_cselect_b32 s{sPEND}, 0, s{sPEND}")
        flag_ld("kchk2")
        e(f"s_or_b32 s{sT0}, s{sPEND}, s{sIMP}"); e(f"s_cselect_b32 s{SIMP+2}, 0, s{SWS+2}")
        e.cond(f"s_cmp_eq_u32 s{sBR}, 0", lambda: ([e(f"buffer_load_dword v{vCV}, off, {srd(SIMP)}, 0") for i in range(4)], e("s_branch L_k1d")))
        imp_dma(0, "kimp")
        e.label("L_k1d")
    gap[O.imp1].append(imp_k1)
    def imp_k2():
        e.wait_vm("vst")
        e(f"s_add_u32 s{sF1}, s{sF1}, {F1V}")
        flag_store(sF1, SEXP); e.stamp(5)
        e(f"s_cmp_lg_u32 s{sIMP}, 0"); e(f"s_cselect_b32 s{SIMP+2}, 0, s{SWS+2}")
        def again():
            L = e.newlab("L_k2")
            e("s_waitcnt vmcnt(1)")
            flag_cmp(); e(f"s_cbranch_scc1 {L}")
            imp_dma(0); e(f"s_mov_b32 s{sPEND}, 2")
            e.label(L)
        e.cond(f"s_cmp_eq_u32 s{sPEND}, 1", again)
    gap[O.imp].append(imp_k2)
    if O.aflag:
        def aflag():
            e("s_waitcnt vmcnt(5)")
            e(f"s_add_u32 s{sT0}, s{sF1}, {F1V}")
            e("s_mov_b64 exec, 0xffff")
            e(f"buffer_store_dwordx2 {vr(vNON,2)}, v{vL8}, {srd(SEXP)}, s{sT0} offen sc1")
            e("s_mov_b64 exec, -1")
            e(f"s_mov_b32 s{SEXP+2}, 0")
        gap[O.aflag].append(lambda: e.cond(f"s_cmp_eq_u32 s{sBR}, 0", aflag))
        def hs():
            e(f"s_sub_u32 s{sIF}, s{sF1}, 256")
            e(f"s_add_u32 s{sVM}, s{SWS}, s{sIF}"); e(f"s_addc_u32 s{sVM+1}, s{SWS+1}, 0")
            e(f"s_load_dwordx2 {sr(sVMK)}, {sr(sVM)}, 0 glc")
        gap[O.hsmp].append(lambda: (e(f"s_or_b32 s{sT0}, s{sBR}, s{sTT}"), e.cond(f"s_cmp_eq_u32 s{sT0}, 0", hs)))
    def late_vm():
        if not O.awo: e.cond(f"s_cmp_eq_u32 s{sBR}, 0", lambda: ([wo_piece(i, L_KV) for i in range(4, 8)], e("s_branch L_tBd")))
        if O.tchB: touch_wo(SWO, vCV)
        e.label("L_tBd")
    gap[O.tchB or 90].append(late_vm)
    gap[86].append(I(f"s_mov_b32 s{sT2}, 0x3f803f80"))
    for i in range(32): gap[88 + i//4].append(I(f"v_mov_b32 v{vV+i}, s{sT2}"))
    gap[92].append(lambda: e.ds(f"ds_read_b128 {vr(vK,4)}, v{vKA} offset:{7*8192}", "k0"))
    gap[95] += [I(f"s_mov_b32 s{sT2}, 0x3eb8aa3b"), I(f"s_mov_b32 s{sT3}, 0x3eb8aa3b")]

    sync(0); e.stamp(1)
    for s_ in range(4): rd(s_)
    for f in gap[-1]: f()
    for ks in range(96):
        it, s_ = divmod(ks, 4)
        if s_ == 0:
            e.c(f"---- P1 group {it}")
            if it in (10, 20): e.stub()
            sync(it+1)
            if it in (8, 16): e.stamp({8: 2, 16: 3}[it])
            if it < 13: e.stamp(it+1, 2)
            if it >= 11: e.stamp(it-10, 3)
        if O.p1prio and ks >= 28:
            spans = [28, 36, 44, 60, 76, 96]
            a = max(x for x in spans if x <= ks); b_ = min(x for x in spans if x > ks)
            step = (b_ - a) // 4
            if (ks - a) % step == 0 and (ks - a) // step < 4: e(f"s_setprio {3 - (ks - a)//step}")
        e.wait_ds(f"w{ks}")
        acc = accB if 8 <= it < 16 else accA
        c = "0" if ks % 32 == 0 else acc
        if 8 <= it < 16: mfma(acc, vXF+4*(ks % 32), WF[ks % 8], c)
        else: mfma(acc, WF[ks % 8], vXF+4*(ks % 32), c)
        if it < 7:
            if s_ == 0:
                for q in range(4): rd(ks+4+q)
        elif ks + 4 < 96: rd(ks+4)
        for f in gap[ks]: f()

def wo_piece(i, base=0):
    e(f"s_add_u32 m0, s{sM0}, {base + i*8192}"); e(f"s_mov_b32 s{sT0}, {i*65536}")
    e(f"buffer_load_dwordx4 v{vWO}, {srd(SWO)}, s{sT0} offen lds")

def norm(o, dst):
    e(f"v_rcp_f32 v{o+10}, v{o+8}")
    e(f"v_pk_add_f32 {vr(o+12,2)}, {vr(o,2)}, {vr(o+2,2)}"); e(f"v_pk_add_f32 {vr(o+14,2)}, {vr(o+4,2)}, {vr(o+6,2)}")
    for i in range(4): e(f"v_pk_mul_f32 {vr(o+2*i,2)}, {vr(o+2*i,2)}, {vr(o+10,2)} op_sel_hi:[1,0]")
    e(f"v_pk_add_f32 {vr(o+12,2)}, {vr(o+12,2)}, {vr(o+14,2)}")
    cvt8(dst, o)
    e(f"v_add_f32 v{o+12}, v{o+12}, v{o+13}"); e(f"v_fma_f32 v{o+8}, v{o+12}, 0, v{o+8}")
def check(os_, slowlab):
    for n, o in enumerate(os_):
        e(f"v_subrev_u32 v{o+8}, 0x2b800000, v{o+8}")
        if n: e(f"v_max_u32 v{os_[0]+8}, v{os_[0]+8}, v{o+8}")
    e(f"v_cmp_lt_u32 vcc, 0x28000000, v{os_[0]+8}")
    if slowlab is None:
        e(f"s_or_b32 s{sBAD}, vcc_lo, vcc_hi")
        if O.force_slow: e(f"s_mov_b32 s{sBAD}, 1")
    elif O.force_slow: e(f"s_branch {slowlab}")
    else: e(f"s_cbranch_vccnz {slowlab}")
def prefill(regs):
    e(f"s_mov_b32 s{sT0}, 0x3f803f80")
    for i in regs: e(f"v_mov_b32 v{i}, s{sT0}")
def rdK(i, u, dst):
    if i < 8: e(f"ds_read_b128 {vr(dst,4)}, v{vKA} offset:{(7-i)*8192 + u*1024}")
    else: e(f"ds_read_b128 {vr(dst,4)}, v{vKA8} offset:{u*1024}")
def rdV(i, u, dst, dyn=True, restore=True):
    e(f"s_mov_b64 exec, {sr(sVMK+2*(i-1)) if dyn and i > 0 else sr(sEX)}")
    b, off = (vVA, (7-i)*8192) if i < 8 else (vVA8, 0)
    e(f"ds_read_b128 {vr(dst,4)}, v{b} offset:{off + u*256}")
    e(f"ds_read_b128 {vr(dst+4,4)}, v{b} offset:{off + u*256 + 1024}")
    if restore: e("s_mov_b64 exec, -1")

def attention():
    e.c("---- Q epilogue")
    e.stamp(4)
    def qscale(h):
        for i in range(4*h, 4*h+4): e(f"v_pk_mul_f32 {vr(accA+2*i,2)}, {vr(accA+2*i,2)}, {sr(sT2)}")
        for i in range(4*h, 4*h+4): cvt(vQ2, accA, i)
    e(f"s_cmp_eq_u32 s{sBR}, 0"); e("s_cbranch_scc1 L_attnA")
    e.c("---- attention B")
    e.cond(f"s_cmp_eq_u32 s{sPEND}, 1", lambda: (flag_poll(), imp_dma(0)))
    e(f"s_add_u32 s{sIF}, s{sIF}, {F1V}")
    e("s_nop 6")
    qscale(0); qscale(1)
    def kbar():
        flag_ld("x")
        e(f"s_waitcnt vmcnt({3 if O.tchB else 2})")
        e.cond(f"s_cmp_lg_u32 s{sPEND}, 0", lambda: e("s_waitcnt vmcnt(1)"))
        if O.stamps == 1: e(f"s_mul_i32 s{sT0}, s{sPEND}, 1000"); e(f"s_add_u32 s{ST0+24}, s{ST0}, s{sT0}")
        e("s_barrier"); e.stamp(6)
    def vimp():
        e("s_waitcnt vmcnt(0)")
        flag_cmp()
        e(f"s_cselect_b32 s{sT0}, s{SIMP+2}, 0")
        e.cond(f"s_cmp_lg_u32 s{sT0}, 0", flag_poll)
        imp_dma(1)
    def vbar():
        e(f"s_waitcnt vmcnt({1 if O.tchA < O.lag else 0})"); e("s_barrier"); e.stamp(13)
    def tchA():
        if not O.tchB: touch_wo(SWO, vU0+2)
        e(f"s_mov_b64 {sr(SOWO)}, {sr(sOW)}"); e(f"s_mov_b32 s{SOWO+2}, {512*1024}")
        touch_wo(SOWO, vU0)
    def sample02():
        f3_addr()
        e("s_mov_b64 exec, 0x55555555")
        e(f"buffer_load_dwordx2 {vr(vFL,2)}, v{vF}, {srd(SWS)}, s{sF3} offen sc1")
        e("s_mov_b64 exec, -1")
    L = O.lag
    pv = {n: [] for n in range(19)}
    pv[L].append(0); m = 1
    for n in range(L+1, 19):
        for _ in range(2):
            if m < n and m < 18: pv[n].append(m); m += 1
    assert m == 18
    def P(m): return PB + 8*(m % 8)
    def V(m): return vV + 8*(m % 4)
    def ex(n, r): e(f"v_exp_f32 v{vS+16*(n%2)+r}, v{vS+16*(n%2)+r}")
    def pvm(m, kb):
        o = vO + 16*(m // 9)
        mfma(o, V(m)+4*kb, P(m)+4*kb, "0" if (m % 9 == 0 and kb == 0) else o)
    assert max(n for n in pv if 8 in pv[n]) < O.epi
    prio = {0: 2, 2: 1, 4: 0, L: 3, L+3: 2, L+6: 1, L+9: 0}
    e("s_waitcnt lgkmcnt(0)")
    mfma(vS, vK, vQ2, vML)
    e(f"s_mov_b32 s{sT2}, 0x3f803f80")
    for n in range(19):
        u, i = divmod(n, 9)
        s_ = vS + 16*(n % 2)
        e.c(f"task {n}")
        if n in (5, 13): e.stub()
        if n < 11: e.stamp(n+1, 4)
        if n >= 8: e.stamp(n-7, 5)
        if O.fair and n in prio: e(f"s_setprio {prio[n]}")
        if n == 0: kbar(); e("s_nop 4")
        if n == O.vpos: vimp()
        if n == L: vbar()
        if n == O.oflag:
            younger = sum(8*(t-O.wo_at+1)//O.wo_n - 8*(t-O.wo_at)//O.wo_n for t in range(O.epi+1, n) if O.wo_at <= t < O.wo_at + O.wo_n)
            e(f"s_waitcnt vmcnt({younger})")
            e(f"s_cmp_lg_u32 s{sBAD}, 0"); e("s_cbranch_scc1 L_noflag0"); flag_store(sF2); e.label("L_noflag0")
        if O.wo_at <= n < O.wo_at + O.wo_n:
            for p_ in range(8*(n-O.wo_at)//O.wo_n, 8*(n-O.wo_at+1)//O.wo_n): wo_piece(p_)
        if n == O.tchA: tchA()
        if n == O.tE: e.cond(f"s_cmp_lt_u32 s{sW}, 4", lambda: (f3_addr(), o_touch(0x00ff00ff, 0)))
        if n == O.smp_at: sample02()
        nxt = pv[n+1] if n < 18 else []
        fresh = [m for m in nxt if 9 <= m < 13]
        if fresh: e.cond(f"s_cmp_lt_u32 s{sT}, 8", lambda fresh=fresh: [e(f"v_mov_b32 v{V(m)+k}, s{sT2}") for m in fresh for k in range(8)])
        cnt = 0
        if n < 17: rdK((n+1) % 9, (n+1) // 9, vK+4*((n+1) % 2)); cnt += 1
        for k, m in enumerate(nxt): rdV(m % 9, m // 9, V(m), restore=(k == len(nxt)-1)); cnt += 2
        mf = [(m, kb) for m in pv[n] for kb in range(2)]
        if n == 18:
            e("s_waitcnt lgkmcnt(0)"); e("s_nop 0")
            for x in mf: pvm(*x)
            break
        first = [True]
        def slot():
            if mf:
                if first[0]: e(f"s_waitcnt lgkmcnt({cnt})"); first[0] = False
                pvm(*mf.pop(0))
        two = len(mf) > 2
        for r in range(4): ex(n, r)
        slot()
        for r in range(4, 8): ex(n, r)
        if n < 17:
            e(f"s_waitcnt lgkmcnt({cnt-1})")
            i1 = (n+1) % 9
            mfma(vS+16*((n+1) % 2), vK+4*((n+1) % 2), vQ2 + 4*((n+1) // 9), vML if i1 == 0 else (vMF if i1 == 8 else "0"))
        cvt8(P(n), s_)
        for r in range(8, 10): ex(n, r)
        if two: slot()
        for r in range(10, 12): ex(n, r)
        if not two: slot()
        for r in range(12, 14): ex(n, r)
        slot()
        for r in range(14, 16): ex(n, r)
        cvt8(P(n)+4, s_+8)
        slot()
        if n == O.epi:
            norm(vO, vP); check([vO], None)
            e(f"buffer_store_dwordx4 {vr(vP,4)}, v{vL16}, {srd(SWS)}, s{sOA} offen sc1")
    e("s_nop 11")
    norm(vO+16, vP+4); check([vO+16], "L_B_slow1")
    e.label("L_B_ok1")
    if O.sprio: e("s_setprio 2")
    e(f"buffer_store_dwordx4 {vr(vP+4,4)}, v{vL16}, {srd(SWS)}, s{sOA} offen offset:1024 sc1")
    if O.sprio: e("s_setprio 0")
    e(f"s_cmp_lg_u32 s{sBAD}, 0"); e("s_cbranch_scc1 L_B_slow0")
    e.label("L_B_ok0")
    e.stamp(7); e.stamp(12, 7)
    e(f"s_cmp_lt_u32 s{sW}, 4"); e("s_cbranch_scc0 L_young")
    e(f"s_mov_b32 s{sHM}, 0")
    f3_groups()
    if O.swp:
        e(f"s_and_b32 s{sT0}, s{sJ}, 1"); e(f"s_lshl_b32 s{sT0}, s{sT0}, 11")
        for q in range(4): e(f"s_xor_b32 s{sG0+q}, s{sG0+q}, s{sT0}")
    e("s_waitcnt vmcnt(1)")
    e("s_mov_b64 exec, 0x55555555")
    e(f"v_cmp_ne_u64 vcc, {sr(sNON)}, {vr(vFL,2)}")
    e("s_mov_b64 exec, -1")
    e(f"s_mov_b32 s{sT3}, 0"); e(f"s_mov_b32 s{sNR}, vcc_lo")
    e("s_cbranch_vccnz L_p3again")
    e.label("L_p3even")
    if O.bpre > 8:
        pass
    for k in range(O.ad): o_ld(k, sG0 + k//8)
    p3_setup()
    e(f"s_mov_b32 s{SLD+2}, 0")
    e(f"s_waitcnt vmcnt({O.ad})"); e.stamp(8); e("s_barrier")
    e("s_branch L_p3go")
    e.label("L_p3again")
    e(f"s_mov_b32 exec_lo, s{sNR}"); e("s_mov_b32 exec_hi, 0")
    e(f"buffer_load_dwordx2 {vr(vFL,2)}, v{vF}, {srd(SWS)}, s{sF3} offen sc1")
    e("s_waitcnt vmcnt(0)")
    e(f"v_cmp_ne_u64 vcc, {sr(sNON)}, {vr(vFL,2)}")
    e("s_mov_b64 exec, -1")
    e(f"s_mov_b32 s{sNR}, vcc_lo")
    e("s_cbranch_vccz L_p3even")
    p3_setup()
    e(f"s_mov_b32 s{SLD+2}, 0")
    e("s_barrier")
    poll3(0x55555555, 0x55555555)
    for k in range(O.ad): o_ld(k, sG0 + k//8)
    e("s_branch L_p3go")
    e.label("L_young"); e.stub()
    e("s_waitcnt vmcnt(0)")
    e.label("L_youngA")
    e("s_mov_b64 exec, 0xffff")
    e(f"s_cmp_eq_u32 s{sW}, 4"); e(f"s_cselect_b32 s{SEXP+2}, s{SWS+2}, 0")
    if O.fprio: e("s_setprio 3")
    e("s_waitcnt vmcnt(8)"); e.stamp(8); e("s_barrier")
    e.stamp(1, 8)
    e(f"buffer_store_dwordx2 {vr(vNON,2)}, v{vL8}, {srd(SEXP)}, s{sF2} offen offset:128 sc1")
    e("s_mov_b64 exec, -1")
    e.stamp(2, 8)
    if O.stamps == 8: e("s_waitcnt vmcnt(0)"); e.stamp(3, 8); e(f"s_memrealtime {sr(ST0+12)}")
    e(f"s_cmp_lg_u32 s{sW}, 4"); e("s_cbranch_scc1 L_rest")
    f3_addr()
    e(f"s_add_u32 s{sF3}, s{sF3}, {3*4096}")
    e(f"s_mov_b32 s{sT2}, s{sNON}"); e(f"s_mov_b32 s{sT3}, s{sNON}")
    if O.pdelay: e(f"s_sleep {O.pdelay}")
    spoll(sF3, [384 + 512*g_ for g_ in range(8)])
    e.stamp(10); e.stamp(4, 8)
    if O.stamps == 8:
        e(f"s_memrealtime {sr(ST0+14)}"); e("s_waitcnt lgkmcnt(0)"); e(f"s_add_u32 s{ST0+10}, s{ST0}, s{sCNT}")
        for q_ in (12, 14): e(f"s_and_b32 s{ST0+q_}, s{ST0+q_}, 0xffff"); e(f"s_add_u32 s{ST0+q_}, s{ST0+q_}, s{ST0}")
    e("s_waitcnt vmcnt(1)")
    e("s_barrier")
    e.label("L_rest")
    e("s_waitcnt vmcnt(0)")
    e("s_branch L_stamps" if O.stamps else "s_endpgm")
    e.flush()

    e.c("---- attention A")
    e.label("L_attnA")
    KP, VP = 176, 160
    if not O.spoll:
        e(f"s_and_b32 s{sIF}, s{sF1}, 0xffffff00"); e(f"s_sub_u32 s{sIF}, s{sIF}, 136")
        flag_ld("x")
    else: e(f"s_waitcnt vmcnt({2 if O.aflag else 1})"); e("s_nop 1")
    e.stamp(6)
    def halo():
        L = e.newlab("L_h")
        e(f"s_cmp_eq_u32 s{sT}, 0"); e(f"s_cbranch_scc1 L_A_nh")
        if O.aflag:
            e("s_waitcnt lgkmcnt(0)")
            e(f"s_cmp_eq_u64 {sr(sVMK)}, {sr(sNON)}"); e(f"s_cbranch_scc1 {L}")
        if O.spoll:
            e(f"s_sub_u32 s{sIF}, s{sF1}, 256"); spoll(sIF, [0])
        else:
            e("s_waitcnt vmcnt(0)")
            flag_cmp(); e(f"s_cbranch_scc0 {L}")
            flag_poll()
        e.label(L)
        e(f"s_sub_u32 s{sT0}, s{sKV}, {8192 + 4096}"); e(f"s_sub_u32 s{sT1}, s{sKV}, {8192 - 1024}")
        e(f"v_and_b32 v{vFL}, 0x2ff, v{vL16}")
        for h in range(2): e(f"buffer_load_dwordx4 {vr(KP+4*h,4)}, v{vL16}, {srd(SWS)}, s{sT0} offen offset:{h*1024} sc1")
        e(f"s_mov_b64 exec, {sr(sEX)}")
        for h in range(2): e(f"buffer_load_dwordx4 {vr(VP+4*h,4)}, v{vFL}, {srd(SWS)}, s{sT1} offen offset:{h*256} sc1")
        e("s_mov_b64 exec, -1")
        e("s_branch L_A_nh")
    e.cond(f"s_cmp_eq_u32 s{sTT}, 0", halo)
    for h in range(2): e(f"ds_read_b128 {vr(KP+4*h,4)}, v{vKA} offset:{6*8192 + h*1024}")
    e(f"s_mov_b64 exec, {sr(sEX)}")
    for h in range(2): e(f"ds_read_b128 {vr(VP+4*h,4)}, v{vVA} offset:{6*8192 + 1024 + h*256}")
    e("s_mov_b64 exec, -1")
    e.label("L_A_nh")
    e(f"ds_read_b128 {vr(vK+4,4)}, v{vKA} offset:{7*8192 + 1024}")
    e(f"s_mov_b64 exec, {sr(sEX)}")
    for h in range(2):
        for kb in range(2): e(f"ds_read_b128 {vr(vV+8*h+4*kb,4)}, v{vVA} offset:{7*8192 + kb*1024 + h*256}")
    e("s_mov_b64 exec, -1"); e("s_nop 0")
    qscale(0); qscale(1)
    e("s_waitcnt lgkmcnt(0)")
    def a_body(slow):
        def exs(s_, rs, h):
            for r in rs:
                if slow: e(f"v_sub_f32 v{s_+r}, v{s_+r}, v{vFL+h}")
                e(f"v_exp_f32 v{s_+r}, v{s_+r}")
        lab = "L_A_s2" if slow else "L_A_f2"
        for h in range(2): mfma(vS+16*h, vK+4*h, vQ2+4*h, vML)
        e("s_nop 10")
        for h in range(2):
            exs(vS+16*h, range(16), h); cvt8(vP+8*h, vS+16*h, 8); e("s_nop 1")
            mfma(vO+16*h, vV+8*h, vP+8*h, "0"); mfma(vO+16*h, vV+8*h+4, vP+8*h+4, vO+16*h)
        e("s_waitcnt vmcnt(0)")
        e(f"s_cmp_eq_u32 s{sT}, 0"); e(f"s_cbranch_scc1 {lab}")
        e.stamp(13)
        for h in range(2): mfma(vS+16*h, KP+4*h, vQ2+4*h, vMF)
        e("s_nop 10")
        for h in range(2):
            exs(vS+16*h, range(8, 16), h); cvt8(vP+8*h+4, vS+16*h+8); e("s_nop 1")
            mfma(vO+16*h, VP+4*h, vP+8*h+4, vO+16*h)
        e.label(lab)
        e("s_nop 11")
        for h in range(2): norm(vO+16*h, vP+4*h)
    a_body(False)
    check([vO, vO+16], "L_A_slow")
    e.label("L_A_ok"); e.stub()
    e("s_setprio 2")
    e(f"buffer_store_dwordx4 {vr(vP,4)}, v{vL16}, {srd(SWS)}, s{sOA} offen sc1")
    e(f"buffer_store_dwordx4 {vr(vP+4,4)}, v{vL16}, {srd(SWS)}, s{sOA} offen offset:1024 sc1")
    e.stamp(7)
    e("s_setprio 0")
    for i in range(8): wo_piece(i, L_KV)
    e(f"s_cmp_lt_u32 s{sW}, 4"); e("s_cbranch_scc0 L_youngA")
    e(f"s_and_b32 s{sHM}, s{sJ}, 3")
    f3_groups()
    e(f"s_mov_b32 s{sT3}, {L_KV}")
    e.label("L_p3all")
    e("s_waitcnt vmcnt(8)"); e.stamp(8); e("s_barrier")
    p3_setup()
    e(f"s_mov_b32 s{SLD+2}, s{SWS+2}")
    e("s_waitcnt vmcnt(0)")
    e("s_barrier"); e.stamp(10)
    if O.ltouch: o_touch(0xffffffff, 0)
    for k in range(O.ad): o_ld(k, sG0 + k//8)
    return a_body, KP

vA, vB, vO0, vO1, vF = 2, 3, 7, 5, 10
sO3, sF3, sOUT3, sHM = sIG, sIF, sOA, sPEND
A0, A1 = 40, 56
vTW, vTR = 18, 17
WB = 72
def OFR(k): return 136 + 4*k if k < 30 else 24 + 4*(k-30)
sG0 = sVMK; sHB = sVMK+4
vW = ((0, 4), (6, 16))
def f3_addr():
    e(f"s_lshl_b32 s{sT0}, s{sBR}, 6"); e(f"s_add_u32 s{sT0}, s{sT0}, s{sT3P}")
    e(f"s_lshl_b32 s{sO3}, s{sT0}, 15"); e(f"s_add_u32 s{sO3}, s{sO3}, {WS_O}")
    e(f"s_lshl_b32 s{sF3}, s{sT0}, 12"); e(f"s_add_u32 s{sF3}, s{sF3}, {WS_F2}")
    e(f"v_lshlrev_b32 v{vF}, 7, v{vL}")
def group(dst):
    e(f"s_brev_b32 s{sHB}, s{sHM}"); e(f"s_lshr_b32 s{sHB}, s{sHB}, 20")
    e(f"s_add_u32 s{dst}, s{sHB}, s{sO3}")
    e(f"s_add_u32 s{sHM}, s{sHM}, 1"); e(f"s_and_b32 s{sHM}, s{sHM}, 3")
def wbase(buf, src):
    e(f"s_and_b32 s{sT0}, s{src}, 0xc00"); e(f"s_lshl_b32 s{sT0}, s{sT0}, 1")
    e(f"v_add_u32 v{vW[buf][0]}, s{sT0}, v{vA}"); e(f"v_add_u32 v{vW[buf][1]}, s{sT0}, v{vB}")
def o_ld(k, base, s_=None):
    if k % 8: e(f"s_add_u32 s{sT0}, s{base}, {(k % 8)*4096}")
    e(f"buffer_load_dwordx4 {vr(OFR(k),4)}, v{vL16}, {srd(s_ or SWS)}, s{sT0 if k % 8 else base} offen sc1")
sNR = sVMK + 7
def poll3(need, look):
    L = e.newlab("L_poll"); D = L + "d"
    e(f"s_mov_b32 s{sCNT}, 0"); e("s_mov_b32 exec_hi, 0")
    e.label(L)
    e(f"s_and_b32 s{sT0}, s{sNR}, {need:#x}"); e(f"s_cbranch_scc0 {D}")
    e(f"s_and_b32 exec_lo, s{sNR}, {look:#x}")
    e(f"buffer_load_dwordx2 {vr(vFL,2)}, v{vF}, {srd(SWS)}, s{sF3} offen sc1")
    e(f"s_add_u32 s{sCNT}, s{sCNT}, 1")
    e("s_waitcnt vmcnt(0)")
    e(f"v_cmp_eq_u64 vcc, {sr(sNON)}, {vr(vFL,2)}")
    e(f"s_andn2_b32 s{sNR}, s{sNR}, vcc_lo")
    if O.sleep: e(f"s_sleep {O.sleep}")
    e(f"s_cmp_gt_u32 s{sCNT}, {O.pollmax}"); e(f"s_cbranch_scc0 {L}")
    e.label(D)
    e("s_mov_b64 exec, -1")
SLD = SDUM
def f3_groups():
    f3_addr()
    for q in range(4): group(sG0+q)
def o_touch(mask, dst):
    e(f"s_and_b32 s{sT0}, s{sJ}, 7"); e(f"s_lshl_b32 s{sT0}, s{sT0}, 12"); e(f"s_add_u32 s{sT0}, s{sT0}, s{sO3}")
    e(f"s_mov_b32 exec_lo, {mask:#x}"); e("s_mov_b32 exec_hi, 0")
    e(f"buffer_load_dword v{vFL+3}, v{vF}, {srd(SWS)}, s{sT0} offen sc1")
    e("s_mov_b64 exec, -1")
def p3_setup():
    e(f"s_mov_b64 {sr(SLD)}, {sr(SWS)}")
    e(f"v_bfe_u32 v{vU0}, v{vL}, 2, 2"); e(f"v_lshlrev_b32 v{vA}, 6, v{vU0}")
    e(f"v_and_b32 v{vU0}, 1, v{vL}"); e(f"v_mul_u32_u24 v{vU0}, 544, v{vU0}"); e(f"v_add_u32 v{vA}, v{vA}, v{vU0}")
    e(f"v_bfe_u32 v{vU0}, v{vL}, 4, 1"); e(f"v_lshl_add_u32 v{vA}, v{vU0}, 4, v{vA}")
    e(f"v_bfe_u32 v{vU0}, v{vL}, 1, 1"); e(f"v_lshl_add_u32 v{vA}, v{vU0}, 3, v{vA}")
    e(f"v_lshrrev_b32 v{vU0}, 5, v{vL}"); e(f"v_lshl_add_u32 v{vA}, v{vU0}, 8, v{vA}")
    e(f"v_add_u32 v{vA}, s{sT3}, v{vA}")
    e(f"v_xor_b32 v{vB}, 32, v{vA}")
    if O.tpose:
        e(f"s_lshl_b32 s{sT0}, s{sW}, 12"); e(f"s_add_u32 s{sT0}, s{sT0}, {L_WK}")
        e(f"v_mul_u32_u24 v{vU0}, 6, v{vU0}"); e(f"v_and_b32 v{vU1}, 7, v{vL}"); e(f"v_xor_b32 v{vU0}, v{vU0}, v{vU1}")
        e(f"v_and_b32 v{vTW}, 31, v{vL}"); e(f"v_lshlrev_b32 v{vTW}, 7, v{vTW}"); e(f"v_lshl_add_u32 v{vTW}, v{vU0}, 4, v{vTW}"); e(f"v_add_u32 v{vTW}, s{sT0}, v{vTW}")
        for i in range(1, 4): e(f"v_xor_b32 v{vTW+i}, {16*i}, v{vTW}")
        e(f"v_lshrrev_b32 v{vU0}, 3, v{vL}"); e(f"v_xor_b32 v{vTR}, v{vU0}, v{vU1}"); e(f"v_lshlrev_b32 v{vTR}, 4, v{vTR}")
        e(f"v_lshl_add_u32 v{vTR}, v{vU0}, 7, v{vTR}"); e(f"v_add_u32 v{vTR}, s{sT0}, v{vTR}")
        e(f"v_lshlrev_b32 v{vO0}, 11, v{vU0}"); e(f"v_lshl_add_u32 v{vO0}, v{vU1}, 4, v{vO0}")
    else:
        e(f"v_and_b32 v{vO0}, 31, v{vL}"); e(f"v_lshlrev_b32 v{vO0}, 11, v{vO0}"); e(f"v_mul_u32_u24 v{vU0}, 96, v{vU0}"); e(f"v_add_u32 v{vO0}, v{vO0}, v{vU0}")
        e(f"v_xor_b32 v{vO1}, 32, v{vO0}")
    e(f"s_lshl_b32 s{sOUT3}, s{sT3P}, 16"); e(f"s_lshl_b32 s{sT1}, s{sBR}, 10"); e(f"s_add_u32 s{sOUT3}, s{sOUT3}, s{sT1}")
    e(f"s_and_b32 s{sT1}, s{sJ}, 7"); e(f"s_lshl_b32 s{sT1}, s{sT1}, 7"); e(f"s_add_u32 s{sOUT3}, s{sOUT3}, s{sT1}")
    wbase(0, sG0); wbase(1, sG0+1)

def lds_wait(off, val):
    L = e.newlab("L_lw"); D = L + "d"
    e(f"s_mov_b32 s{sCNT}, 0")
    e.label(L)
    e(f"ds_read_b32 v{vFL}, v{vFL+3} offset:{off}")
    e(f"s_add_u32 s{sCNT}, s{sCNT}, 1"); e(f"s_cmp_gt_u32 s{sCNT}, {O.pollmax*8}")
    e("s_waitcnt lgkmcnt(0)")
    e(f"v_cmp_ne_u32 vcc, {val}, v{vFL}")
    e(f"s_cbranch_scc1 {D}")
    e(f"s_cbranch_vccz {D}"); e("s_sleep 1"); e(f"s_branch {L}")
    e.label(D)

def p3():
    e.c("---- P3 (waves 0..3)")
    def wrd(buf, k):
        for ct in range(2):
            d = WB + 8*k + 4*ct
            e(f"ds_read_b64_tr_b16 {vr(d,2)}, v{vW[buf][ct]} offset:{k*8192}")
            e(f"ds_read_b64_tr_b16 {vr(d+2,2)}, v{vW[buf][ct]} offset:{k*8192 + 1024}")
    e.label("L_p3go")
    for k in range(4): wrd(0, k)
    e.stamp(9); e.stamp(13, 7)
    for k in range(32):
        q, kk = divmod(k, 8)
        if k == 16:
            e(f"s_cmp_lg_u32 s{SLD+2}, 0"); e("s_cbranch_scc1 L_p3b")
            e.stamp(5, 7)
            e("s_barrier"); e.stamp(10); e.stamp(7, 7)
            if O.ltouch: o_touch(0xff00ff00, 0)
            for k2 in range(16, 16+O.ad): o_ld(k2, sG0 + k2//8)
            e.label("L_p3b")
            e.stamp(8, 7)
        e(f"s_waitcnt vmcnt({min(O.ad-1, 31-k)}) lgkmcnt({min(12, 4*(31-k))})")
        mfma(A0, WB + 8*kk, OFR(k), A0 if k else "0")
        if k + O.ad < 32: o_ld(k+O.ad, sG0+(k+O.ad)//8, SLD if (k < 16 <= k+O.ad) else SWS)
        mfma(A1, WB + 8*kk + 4, OFR(k), A1 if k else "0")
        if k + 4 < 32: wrd(((k+4)//8) % 2, (k+4) % 8)
        if kk == 3 and q < 2: wbase(q, sG0+q+2)
    e.stamp(9, 7)
    e("s_nop 10")
    cvt8(72, A0, 8); cvt8(80, A1, 8)
    fl = ["", " sc1", " nt", " sc1 nt", " sc0 sc1", " sc0 sc1 nt", " sc0 nt"][O.outsc]
    if O.tpose:
        for i in range(4): e(f"ds_write_b128 v{vTW+i}, {vr(72+4*i,4)}")
        for i in range(4): e(f"ds_read_b128 {vr(88+4*i,4)}, v{vTR} offset:{i*1024}")
        for i in range(4):
            e(f"s_waitcnt lgkmcnt({3-i})")
            e(f"buffer_store_dwordx4 {vr(88+4*i,4)}, v{vO0}, {srd(SOUT)}, s{sOUT3} offen{fl}")
            if i < 3: e(f"s_add_u32 s{sOUT3}, s{sOUT3}, 0x4000")
    else:
        for i in range(4): e(f"buffer_store_dwordx4 {vr(72+4*i,4)}, v{(vO0, vO1)[i//2]}, {srd(SOUT)}, s{sOUT3} offen offset:{16*(i%2)}{fl}")
    if O.stamps:
        e.stamp(10, 7); e("s_waitcnt vmcnt(0)"); e.stamp(11); e.stamp(11, 7)
        e.label("L_stamps")
        e(f"s_memrealtime {sr(sVM)}"); e("s_waitcnt lgkmcnt(0)")
        e(f"s_lshl_b32 s{sT0}, s2, 3"); e(f"s_add_u32 s{sT0}, s{sT0}, s{sW}"); e(f"s_lshl_b32 s{sT0}, s{sT0}, 6"); e(f"s_add_u32 s{sT0}, s{sT0}, {WS_ST}")
        e("s_mov_b64 exec, 1")
        for i in range(1, 14):
            e(f"s_sub_u32 s{sT1}, s{ST0+2*i}, s{ST0}"); e(f"v_mov_b32 v{vU1}, s{sT1}")
            e(f"buffer_store_dword v{vU1}, off, {srd(SWS)}, s{sT0} offset:{4*i}")
        e(f"v_mov_b32 v{vU1}, s100"); e(f"buffer_store_dword v{vU1}, off, {srd(SWS)}, s{sT0} offset:56")
        e(f"v_mov_b32 v{vU1}, s{sVM}"); e(f"buffer_store_dword v{vU1}, off, {srd(SWS)}, s{sT0} offset:60")
    if O.probe:
        if O.probe == 11: e("s_waitcnt vmcnt(0)"); e("s_memrealtime s[76:77]")
        e("s_waitcnt lgkmcnt(0)")
        e(f"s_cmp_lg_u32 s{sBR}, {O.pbr}"); e("s_cbranch_scc1 L_end")
        e("s_sub_u32 s76, s76, s72"); e("s_lshl_b32 s76, s76, 1"); e("s_add_u32 s76, s76, 3000")
        e.label("L_spin"); e("s_memrealtime s[74:75]"); e("s_waitcnt lgkmcnt(0)"); e("s_sub_u32 s74, s74, s72")
        e(f"s_cmp_lt_u32 s74, s76"); e("s_cbranch_scc1 L_spin")
    if O.spin:
        e.label("L_spin"); e("s_memrealtime s[74:75]"); e("s_waitcnt lgkmcnt(0)"); e("s_sub_u32 s74, s74, s72")
        e(f"s_cmp_lt_u32 s74, {O.spin}"); e("s_cbranch_scc1 L_spin")
    e.label("L_end")
    e("s_endpgm")
    e.flush()

def xmax(reg):
    e(f"v_mov_b32 v{vFL+2}, v{reg}"); e("s_nop 1")
    e(f"v_permlane32_swap_b32 v{vFL+2}, v{reg}"); e("s_nop 1")
    e(f"v_max_f32 v{reg}, v{reg}, v{vFL+2}")

def slow_paths(a_body, KP):
    e.c("---- rare path: the stand-in max was unsafe, redo the unit with the true row max")
    def shift(op):
        for r_, d_ in ((vKA, 0x400), (vKA8, 0x400), (vVA, 0x100), (vVA8, 0x100)): e(f"{op} v{r_}, {d_:#x}, v{r_}")
    for u in range(2):
        e.label(f"L_B_slow{u}")
        e(f"s_mov_b32 s{sU}, {u}")
        for i in range(4): e(f"v_mov_b32 v{vQ+i}, v{vQ2+4*u+i}")
        if u == 0: e("s_branch L_B_slow")
        else: shift("v_add_u32")
    e.label("L_B_slow")
    e("s_waitcnt vmcnt(0)")
    prefill(range(vV, vV+8))
    e(f"v_mov_b32 v{vFL}, {NEG}")
    for ps in range(2):
        for i in range(9):
            if i > 0: e(f"s_cmp_gt_u32 {i}, s{sT}"); e(f"s_cbranch_scc1 L_B_s{ps}")
            rdK(i, 0, vK)
            if ps: rdV(i, 0, vV, dyn=False)
            e("s_waitcnt lgkmcnt(0)")
            mfma(vS, vK, vQ, vML if i == 0 else (vMF if i == 8 else "0"))
            e("s_nop 11")
            if ps == 0:
                for r in range(0, 16, 2): e(f"v_max3_f32 v{vFL}, v{vFL}, v{vS+r}, v{vS+r+1}")
            else:
                for r in range(16): e(f"v_sub_f32 v{vS+r}, v{vS+r}, v{vFL}")
                for r in range(16): e(f"v_exp_f32 v{vS+r}, v{vS+r}")
                cvt8(PB, vS, 8); e("s_nop 1")
                mfma(vO, vV, PB, vO if i > 0 else "0"); mfma(vO, vV+4, PB+4, vO)
                e("s_nop 7")
        e.label(f"L_B_s{ps}")
        if ps == 0: xmax(vFL)
    e("s_nop 11")
    norm(vO, vP+4)
    e(f"s_cmp_eq_u32 s{sU}, 0"); e("s_cbranch_scc1 L_B_fin0")
    shift("v_subrev_u32")
    e("s_branch L_B_ok1")
    e.label("L_B_fin0")
    e(f"buffer_store_dwordx4 {vr(vP+4,4)}, v{vL16}, {srd(SWS)}, s{sOA} offen sc1")
    e("s_waitcnt vmcnt(0)"); flag_store(sF2)
    e("s_branch L_B_ok0")
    e.label("L_A_slow")
    for h in range(2):
        e(f"v_mov_b32 v{vFL+h}, {NEG}")
        mfma(vS, vK+4*h, vQ2+4*h, vML); e("s_nop 11")
        for r in range(0, 16, 2): e(f"v_max3_f32 v{vFL+h}, v{vFL+h}, v{vS+r}, v{vS+r+1}")
        e(f"s_cmp_eq_u32 s{sT}, 0"); e(f"s_cbranch_scc1 L_A_m{h}")
        mfma(vS, KP+4*h, vQ2+4*h, vMF); e("s_nop 11")
        for r in range(8, 16, 2): e(f"v_max3_f32 v{vFL+h}, v{vFL+h}, v{vS+r}, v{vS+r+1}")
        e.label(f"L_A_m{h}")
        xmax(vFL+h)
    a_body(True)
    e("s_branch L_A_ok")

prologue(); p1(); ab = attention(); p3(); slow_paths(*ab)
e("s_endpgm")

hdr = open("cdna_kernels/" + NAME + ".s.ref").read().split("; Override launch geometry")[0]
out = hdr + f"; @launch grid=(256,1,1) block=(512,1,1) lds={LDS_BYTES}\n"
out += f""".amdgcn_target "amdgcn-amd-amdhsa--gfx950"
.text
.globl {NAME}_kernel
{'.p2align 12' if O.al12 else ''}
.p2align 8
.type {NAME}_kernel,@function
{NAME}_kernel:
""" + "\n".join(e.L) + f"""
.section .rodata,"a"
.p2align 6
.amdhsa_kernel {NAME}_kernel
  .amdhsa_next_free_vgpr 256
  .amdhsa_next_free_sgpr {102 if O.stamps else (80 if (O.spin or O.probe) else 72)}
  .amdhsa_accum_offset 256
  .amdhsa_group_segment_fixed_size 0
  .amdhsa_kernarg_size 72
  .amdhsa_user_sgpr_count 2
  .amdhsa_user_sgpr_kernarg_segment_ptr 1
  .amdhsa_system_sgpr_workgroup_id_x 1
.end_amdhsa_kernel
"""
open(sys.argv[1], "w").write(out)
```

```python
import sys
NAME = "concat_heads__sliding_local_dilated__sliding_block__prompt"

class Opt:
    stamps = 0
    force_slow = 0
    pollmax = 400000
    only = 0
    delayA = 7
    lag = 4
    kflag = 77
    kchk = 65
    imp = 87
    oflag = 13
    vpos = 2
    uni = 0
    xspan = 1
    torder = 2
    tseq = 2
    tn = 12
    tnt = 0
    rotA = 1
    yprio = 0
    prew = 62
    imp1 = 77
    fair = 1
    tpose = 1
    pdelay = 0
    spin = 0
    x = 0
    wqs = 2
    p1prio = 1
    epi = 11
    tchB = 0
    wo_n = 4
    tchA = 5
    ctouch = 1
    warm = 0
    al12 = 1
    tE = 16
    ltouch = 0
    awo = 1
    pre = 8
    ad = 8
    spoll = 1
    stlb = 0
    sp32 = 1
    fprio = 1
    swp = 1
    probe = 0
    pbr = 0
    rt = 0
    tlb = 0
    tlbB = 0
    bpre = 8
    aflag = 0
    hsmp = 90
    sprio = 1
    vflag = 81
    stg = 0
    impfirst = 1
    vex = 66
    ev = 0
    prew0 = 0
    vlate = 1
    prew2 = 0
    smp_at = 17
    wo_at = 12
    tch_at = 4
    quiet = 1
    prio = 0
    outsc = 1
    stag = 0
    sleep = 0
O = Opt()
for a in sys.argv[2:]:
    k, v = a.split("="); assert hasattr(O, k), k
    setattr(O, k, int(v))

WS_O = 8 << 20
WS_F1 = 12 << 20
F1V = 262144
WS_F2 = WS_F1 + 524288
WS_ST = 13 << 20
WS_BYTES = 14 << 20
LDS_BYTES = 163840
L_WV = 65536; L_WK = 131072; L_KV = 65536

class E:
    def __init__(s): s.L = []; s.vq = []; s.lq = []; s.lab = 0; s.ool = []
    def __call__(s, t): s.L.append("    " + t)
    def label(s, n): s.L.append(n + ":")
    def c(s, t): s.L.append("    ; " + t)
    def vm(s, t, tag): s(t); s.vq.append(tag)
    def ds(s, t, tag): s(t); s.lq.append(tag)
    def _n(s, q, tag): return len(q) - 1 - max(i for i, x in enumerate(q) if x == tag)
    def wait_vm(s, tag):
        if tag not in s.vq: return
        n = s._n(s.vq, tag); assert n <= 63
        s(f"s_waitcnt vmcnt({n})"); s.vq = s.vq[len(s.vq)-n:]
    def wait_ds(s, tag):
        if tag not in s.lq: return
        n = s._n(s.lq, tag); assert n <= 15
        s(f"s_waitcnt lgkmcnt({n})"); s.lq = s.lq[len(s.lq)-n:]
    def wait_all(s): s("s_waitcnt vmcnt(0)"); s.vq = []
    def ds_all(s): s("s_waitcnt lgkmcnt(0)"); s.lq = []
    def stamp(s, i, mode=1):
        if O.probe == i and mode == 1: s("s_memrealtime s[76:77]")
        if O.stamps == mode: s(f"{'s_memrealtime' if O.rt else 's_memtime'} s[{ST0+2*i}:{ST0+1+2*i}]")
    def stub(s):
        if O.warm:
            s.nstub = getattr(s, "nstub", 0); s.label(f"L_stub{s.nstub}"); s("s_cbranch_execz L_warmed"); s.nstub += 1
    def newlab(s, p): s.lab += 1; return f"{p}_{s.lab}"
    def cond(s, cmp_, body):
        L = s.newlab("L_c"); s(cmp_); s(f"s_cbranch_scc1 {L}"); s.label(L + "r")
        s.ool.append((L, body))
    def flush(s):
        while s.ool:
            L, body = s.ool.pop(0)
            s.label(L); body(); s(f"s_branch {L}r")
e = E()
def vr(a, n): return f"v[{a}:{a+n-1}]"
def sr(a): return f"s[{a}:{a+1}]"
def srd(a): return f"s[{a}:{a+3}]"

SX, SW, SWO, SOUT, SWS, SDBG = 8, 12, 16, 20, 24, 28
SEXP = 8
SOWO = 28
sF1, sKV = 0, 1
sBR, sRB, sG, sW, sM0 = 3, 4, 5, 6, 7
sCX = 32; sCW = 40; sVMK = 32
sNON = 48
sT0, sT1, sT2, sT3 = 50, 51, 52, 53
sJ, sXCD, sTT, sFT, sCNT, sT = 54, 55, 56, 57, 58, 59
sEX = 60; sVM = 62
sIG, sIF, sIMP, sPEND = 64, 65, 66, 67
sOA, sF2 = 68, 69
sOW = 70
sU = 53
sT3P = 55
ST0 = 72
SOTH = 20
SIMP = 12
SDUM = 12
vL, vX0, vX1, vW0, vWR, vWR1, vWR2, vXR, vL16 = 1, 2, 3, 4, 5, 6, 7, 8, 12
vT0, vT1, vT2 = 13, 14, 15
vNON = 14
vEXP = 0
vKA, vVA, vKA8, vVA8 = 2, 3, 0, 7
vWO = 4
vFL = 8
vQ2 = 16; vCV = 24; vP = 24; vQ = 32
vML, vMF = 40, 56
accA, accB, accQ = 72, 88, 24
vS = 72
WF = [104, 108, 112, 116, 120, 124, 16, 20]
vXF = 128
vO = 104; vK = 136; vV = 144; PB = 176
sBAD = 67
vU0, vU1, vU2 = 36, 37, 38
vL8 = 13
NEG = "0xff800000"

def mfma(d, a, b, c): e(f"v_mfma_f32_32x32x16_bf16 {vr(d,16)}, {vr(a,4)}, {vr(b,4)}, {c if isinstance(c,str) else vr(c,16)}")
def dma(v, s_, soff, ldsdst, tag):
    e(f"s_add_u32 m0, s{sM0}, {ldsdst}"); e("s_nop 0")
    e.vm(f"buffer_load_dwordx4 v{v}, {srd(s_)}, s{soff} offen lds", tag)
def st_pieces(t):
    sl = t % 4
    def wv():
        e(f"s_add_u32 m0, s{sM0}, {L_WV + sl*16384 + 8192 - 1024}"); e("s_nop 0")
        e.vm(f"buffer_load_dwordx4 v{vW0}, {srd(SW)}, s{sCW+t} offen offset:1024 lds", f"st{t}")
    return [lambda: dma(vX0, SX, sCX+t, sl*16384, f"st{t}"),
            lambda: dma(vW0, SW, sCW+t, L_WV + sl*16384, f"st{t}"),
            lambda: dma(vX1, SX, sCX+t, sl*16384 + 8192, f"st{t}"), wv]
def cvt(dst, src, i): e(f"v_cvt_pk_bf16_f32 v{dst+i}, v{src+2*i}, v{src+2*i+1}")
def cvt8(dst, src, n=4):
    for i in range(n): cvt(dst, src, i)

def masks(kind):
    e(f"v_and_b32 v{vT0}, 31, v{vL}"); e(f"v_lshrrev_b32 v{vT1}, 5, v{vL}")
    e(f"v_lshlrev_b32 v{vT1}, 2, v{vT1}"); e(f"v_sub_u32 v{vT0}, v{vT0}, v{vT1}")
    if kind == "B":
        e(f"s_mov_b32 s{sT0}, {NEG}")
        for r in range(16):
            c = 8*(r >> 2) + (r & 3)
            e(f"v_subrev_u32 v{vT1}, {c}, v{vT0}"); e(f"v_and_b32 v{vML+r}, s{sT0}, v{vT1}"); e(f"v_xor_b32 v{vMF+r}, s{sT0}, v{vML+r}")
    else:
        e(f"s_mov_b32 s{sT0}, 0xf149f2ca")
        for r in range(16):
            c = 8*(r >> 2) + (r & 3)
            e(f"v_subrev_u32 v{vT1}, {c}, v{vT0}"); e(f"v_and_b32 v{vT1}, -15, v{vT1}"); e(f"v_cvt_f32_u32 v{vT1}, v{vT1}"); e(f"v_mul_f32 v{vML+r}, s{sT0}, v{vT1}")
            if r >= 8:
                e(f"v_add_u32 v{vT1}, {32-c}, v{vT0}"); e(f"v_and_b32 v{vT1}, -15, v{vT1}"); e(f"v_cvt_f32_u32 v{vT1}, v{vT1}"); e(f"v_mul_f32 v{vMF+r}, s{sT0}, v{vT1}")
            else:
                e(f"v_mov_b32 v{vMF+r}, s{sT0}")

def prologue():
    e("s_cmp_ge_u32 s2, 256"); e("s_cbranch_scc1 L_end")
    if O.only == 1: e("s_cmp_ge_u32 s2, 128"); e("s_cbranch_scc1 L_end")
    if O.stamps: e(f"{'s_memrealtime' if O.rt else 's_memtime'} {sr(ST0)}"); e("s_memrealtime s[100:101]")
    if O.spin or O.probe: e("s_memrealtime s[72:73]")
    e("s_load_dwordx16 s[32:47], s[0:1], 0"); e("s_load_dwordx2 s[24:25], s[0:1], 64")
    if O.ctouch:
        e(f"s_getpc_b64 {sr(sVM)}")
        e(f"s_lshr_b32 s{sT0}, s2, 3"); e(f"s_mul_i32 s{sT0}, s{sT0}, 5"); e(f"v_add_u32 v{vT0}, s{sT0}, v0"); e(f"v_lshlrev_b32 v{vT0}, 7, v{vT0}")
        e(f"v_cmp_gt_u32 vcc, 5, v0"); e(f"s_and_saveexec_b64 {sr(sEX)}, vcc"); e("s_cbranch_execz L_noct")
        e(f"global_load_dword v254, v{vT0}, {sr(sVM)}")
        e.label("L_noct"); e("s_mov_b64 exec, -1")
    e(f"v_lshrrev_b32 v{vT0}, 6, v0"); e(f"v_and_b32 v{vL}, 63, v0")
    e(f"v_readfirstlane_b32 s{sW}, v{vT0}")
    e(f"s_and_b32 s{sXCD}, s2, 7"); e(f"s_lshr_b32 s{sJ}, s2, 3")
    e(f"s_lshr_b32 s{sT0}, s{sXCD}, 1"); e(f"s_lshl_b32 s{sT0}, s{sT0}, 2"); e(f"s_bfe_u32 s{sT1}, s{sJ}, 0x20002")
    e(f"s_add_u32 s{sRB}, s{sT0}, s{sT1}")
    e(f"s_and_b32 s{sT0}, s{sXCD}, 1"); e(f"s_lshl_b32 s{sT0}, s{sT0}, 2"); e(f"s_and_b32 s{sT2}, s{sJ}, 3")
    e(f"s_add_u32 s{sG}, s{sT0}, s{sT2}")
    e(f"s_add_u32 s{sT3}, s{sT1}, s{sT2}"); e(f"s_lshl_b32 s{sT3}, s{sT3}, 1")
    e(f"s_lshl_b32 s{sM0}, s{sW}, 10")
    e(f"v_lshrrev_b32 v{vT0}, 4, v{vL}")
    e(f"s_and_b32 s{sT0}, s{sW}, 1"); e(f"s_lshl_b32 s{sT0}, s{sT0}, 2")
    e(f"v_add_u32 v{vT0}, s{sT0}, v{vT0}")
    e(f"v_and_b32 v{vT1}, 7, v{vL}"); e(f"v_xor_b32 v{vT0}, v{vT0}, v{vT1}"); e(f"v_lshlrev_b32 v{vT0}, 4, v{vT0}")
    e(f"v_lshrrev_b32 v{vT1}, 3, v{vL}"); e(f"v_lshl_add_u32 v{vX0}, v{vT1}, 10, v{vT0}")
    e(f"s_lshl_b32 s{sT0}, s{sW}, 13"); e(f"v_add_u32 v{vX0}, s{sT0}, v{vX0}"); e(f"v_add_u32 v{vX1}, 0x10000, v{vX0}")
    e(f"v_bfe_u32 v{vT0}, v{vL}, 2, 3")
    e(f"s_lshl_b32 s{sT0}, s{sW}, 3"); e(f"v_add_u32 v{vT0}, s{sT0}, v{vT0}")
    e(f"v_lshrrev_b32 v{vT1}, 5, v{vL}"); e(f"v_lshlrev_b32 v{vT1}, 6, v{vT1}")
    e(f"v_and_b32 v{vT2}, 3, v{vL}"); e(f"v_lshl_add_u32 v{vT1}, v{vT2}, 4, v{vT1}")
    e(f"v_mul_u32_u24 v{vW0}, 3072, v{vT0}"); e(f"v_add_u32 v{vW0}, v{vW0}, v{vT1}"); e(f"v_add_u32 v{vW0}, 0x400, v{vW0}")
    e(f"s_mov_b32 s{SX+2}, {2048*1024}"); e(f"s_mov_b32 s{SX+3}, 0x20000")
    e(f"s_mov_b32 s{SW+2}, {512*3072}"); e(f"s_mov_b32 s{SW+3}, 0x20000")
    e(f"s_mov_b32 s{SOTH+3}, 0x20000")
    e(f"s_lshl_b32 s{sT0}, s{sRB}, 17"); e(f"s_lshl_b32 s{sT1}, s{sG}, 7")
    e(f"s_cmp_lt_u32 s2, 128"); e(f"s_cselect_b32 s{sBR}, 1, 0")
    e(f"s_cselect_b32 s{sT3}, 0, s{sT3}")
    e("s_waitcnt lgkmcnt(0)")
    e(f"s_cselect_b64 {sr(SX)}, s[38:39], s[32:33]")
    e(f"s_cselect_b64 {sr(SW)}, s[40:41], s[34:35]")
    e(f"s_cselect_b64 {sr(SWO)}, s[42:43], s[36:37]")
    e(f"s_cselect_b64 {sr(sOW)}, s[36:37], s[42:43]")
    e(f"s_mov_b64 {sr(SDBG)}, s[46:47]")
    e("s_cbranch_scc1 L_notouch")
    sp = O.xspan
    e(f"v_lshrrev_b32 v{vT0}, {sp}, v{vL}"); e(f"v_lshlrev_b32 v{vT0}, 10, v{vT0}")
    e(f"v_and_b32 v{vT1}, {(1 << sp) - 1}, v{vL}"); e(f"v_lshl_add_u32 v{vT0}, v{vT1}, 7, v{vT0}")
    e(f"v_lshrrev_b32 v{vT1}, 4, v{vL}"); e(f"v_bfe_u32 v{vT2}, v{vL}, 2, 2"); e(f"v_lshl_add_u32 v{vT1}, v{vT1}, 6, v{vT2}")
    e(f"v_mul_u32_u24 v{vT1}, 3072, v{vT1}"); e(f"v_and_b32 v{vT2}, 3, v{vL}"); e(f"v_lshl_add_u32 v{vT1}, v{vT2}, 7, v{vT1}")
    sXB, sWB = sIG, sIF
    e(f"s_and_b32 s{sXB}, s{sG}, 3"); e(f"s_lshl_b32 s{sXB}, s{sXB}, 15"); e(f"s_add_u32 s{sXB}, s{sXB}, s{sT0}")
    e(f"s_and_b32 s{sWB}, s{sJ}, 15"); e(f"s_mul_i32 s{sWB}, s{sWB}, {4*3072}"); e(f"s_and_b32 s{sT2}, s{sT1}, 512"); e(f"s_add_u32 s{sWB}, s{sWB}, s{sT2}")
    code = {0: [8, 2, 9, 10, 3, 11, 4, 5, 0, 1], 1: [8, 9, 10, 11, 2, 3, 4, 5, 0, 1], 2: [8, 2, 4, 9, 10, 3, 5, 11, 0, 1]}[O.torder]
    items = [(1, c) for c in code] + [(0, c) for c in code]
    if O.tseq == 1:
        items = [(1, c) for c in code[:8]] + [(0, c) for c in code[:6]] + [(1, c) for c in code[8:]] + [(0, c) for c in code[6:]]
    if O.tseq == 2: items = [(1, c) for c in code] + [(0, c) for c in (0, 1)]
    if O.tseq == 3: items = [(1, c) for c in code] + [(0, c) for c in (2, 3, 4, 5, 0, 1)]
    if O.tseq == 4: items = [(1, c) for c in code[:8]] + [(0, c) for c in (2, 3, 4, 5)] + [(1, c) for c in code[8:]] + [(0, c) for c in (0, 1)]
    items = items[:O.tn]
    for r in range((len(items) + 7) // 8):
        rnd = items[8*r:8*r+8]
        pk = sum(c << (4*i) for i, (b_, c) in enumerate(rnd)); bm = sum(b_ << i for i, (b_, c) in enumerate(rnd))
        if len(rnd) < 8: e(f"s_cmp_ge_u32 s{sW}, {len(rnd)}"); e(f"s_cbranch_scc1 L_t{r}d")
        e(f"s_lshl_b32 s{sT2}, s{sW}, 2"); e(f"s_lshr_b32 s{sT2}, {pk:#x}, s{sT2}")
        e(f"s_bitcmp1_b32 s{sT2}, 3"); e(f"s_cbranch_scc1 L_t{r}x")
        e(f"s_bitcmp1_b32 {bm:#x}, s{sW}"); e(f"s_cselect_b64 {sr(SOTH)}, s[40:41], s[34:35]"); e(f"s_mov_b32 s{SOTH+2}, {512*3072}")
        e(f"s_and_b32 s{sCNT}, s{sT2}, 1"); e(f"s_mul_i32 s{sCNT}, s{sCNT}, {256*3072}"); e(f"s_add_u32 s{sCNT}, s{sCNT}, s{sWB}")
        e(f"s_and_b32 s{sT2}, s{sT2}, 6"); e(f"s_lshl_b32 s{sT2}, s{sT2}, 9"); e(f"s_add_u32 s{sCNT}, s{sCNT}, s{sT2}")
        e(f"buffer_load_dword v{250+r}, v{vT1}, {srd(SOTH)}, s{sCNT} offen{' nt' if O.tnt else ''}")
        e(f"s_branch L_t{r}d")
        e.label(f"L_t{r}x")
        e(f"s_bitcmp1_b32 {bm:#x}, s{sW}"); e(f"s_cselect_b64 {sr(SOTH)}, s[38:39], s[32:33]"); e(f"s_mov_b32 s{SOTH+2}, {2048*1024}")
        e(f"s_and_b32 s{sT2}, s{sT2}, 3")
        if sp == 2:
            e(f"s_and_b32 s{sCNT}, s{sT2}, 1"); e(f"s_lshl_b32 s{sCNT}, s{sCNT}, 14"); e(f"s_lshr_b32 s{sT2}, s{sT2}, 1"); e(f"s_lshl_b32 s{sT2}, s{sT2}, 9"); e(f"s_add_u32 s{sT2}, s{sT2}, s{sCNT}")
        else: e(f"s_lshl_b32 s{sT2}, s{sT2}, {8 if sp == 1 else 13}")
        e(f"s_add_u32 s{sCNT}, s{sT2}, s{sXB}")
        e(f"buffer_load_dword v{250+r}, v{vT0}, {srd(SOTH)}, s{sCNT} offen{' nt' if O.tnt else ''}")
        e.label(f"L_t{r}d")
        e("s_barrier")
    if O.tlb:
        e(f"s_cmp_lg_u32 s{sW}, 7"); e("s_cbranch_scc1 L_notlb")
        if O.tlb >= 20: e(f"v_lshlrev_b32 v{vT0}, {O.tlb}, v{vL}")
        else:
            e(f"s_and_b32 s{sT2}, s{sJ}, 15"); e(f"v_lshlrev_b32 v{vT0}, 4, v{vL}"); e(f"v_add_u32 v{vT0}, s{sT2}, v{vT0}"); e(f"v_lshlrev_b32 v{vT0}, {O.tlb}, v{vT0}")
        for k_, (p_, n_) in enumerate((("s[24:25]", 13 << 20), ("s[44:45]", 4 << 20), ("s[36:37]", 512 << 10), ("s[42:43]", 512 << 10))):
            e(f"s_mov_b64 {sr(SOTH)}, {p_}"); e(f"s_mov_b32 s{SOTH+2}, {n_}")
            e(f"buffer_load_dword v{244+k_}, v{vT0}, {srd(SOTH)}, 0 offen")
        e.label("L_notlb")
    if not O.rotA: e(f"s_mov_b32 s{sT3}, 0")
    e.label("L_notouch")
    e(f"s_mov_b64 {sr(SOUT)}, s[44:45]")
    def chunk(t):
        e(f"s_add_u32 s{sT2}, s{sT3}, {t}"); e(f"s_and_b32 s{sT2}, s{sT2}, 7")
        e(f"s_lshl_b32 s{sCX+t}, s{sT2}, 7"); e(f"s_add_u32 s{sCX+t}, s{sCX+t}, s{sT0}")
        e(f"s_mul_i32 s{sCW+t}, s{sT2}, {64*3072}"); e(f"s_add_u32 s{sCW+t}, s{sCW+t}, s{sT1}")
    chunk(0)
    for p in st_pieces(0): p()
    e(f"s_mov_b32 s{SDBG+2}, 256"); e(f"s_mov_b32 s{SDBG+3}, 0x20000")
    e(f"s_xor_b32 s{sT2}, s{sW}, 7"); e(f"s_or_b32 s{sT2}, s2, s{sT2}")
    def tag():
        e(f"s_memrealtime {sr(sNON)}"); e("s_waitcnt lgkmcnt(0)")
        e(f"s_or_b32 s{sNON+1}, s{sNON+1}, 0x80000000")
        e(f"v_mov_b32 v{vCV}, s{sNON}"); e(f"v_mov_b32 v{vCV+1}, s{sNON+1}")
        e("s_mov_b64 exec, 1")
        e(f"buffer_store_dwordx2 {vr(vCV,2)}, off, {srd(SDBG)}, 0 sc1")
        e("s_mov_b64 exec, -1")
    e.cond(f"s_cmp_eq_u32 s{sT2}, 0", tag)
    chunk(1)
    for p in st_pieces(1): p()
    for t in range(2, 8): chunk(t)
    e(f"s_mov_b32 s{SWO+2}, {512*1024}"); e(f"s_mov_b32 s{SWO+3}, 0x20000")
    e(f"s_mov_b32 s{SOUT+2}, {2048*2048}")
    e(f"s_mov_b32 s{SWS+2}, {WS_BYTES}"); e(f"s_mov_b32 s{SWS+3}, 0x20000")
    e(f"s_lshr_b32 s{sFT}, s{sW}, 2"); e(f"s_mul_i32 s{sTT}, s{sFT}, 3"); e(f"s_and_b32 s{sT0}, s{sW}, 3"); e(f"s_xor_b32 s{sTT}, s{sTT}, s{sT0}")
    e(f"s_lshl_b32 s{sT}, s{sRB}, 2"); e(f"s_add_u32 s{sT}, s{sT}, s{sTT}")
    e(f"v_and_b32 v{vT0}, 31, v{vL}"); e(f"v_lshrrev_b32 v{vT1}, 5, v{vL}")
    e(f"v_bfe_u32 v{vT2}, v{vL}, 1, 3"); e(f"v_xor_b32 v{vT2}, v{vT2}, v{vT1}"); e(f"v_lshlrev_b32 v{vT2}, 4, v{vT2}")
    e(f"v_lshl_add_u32 v{vXR}, v{vT0}, 7, v{vT2}")
    e(f"s_lshl_b32 s{sT0}, s{sTT}, 12"); e(f"v_add_u32 v{vXR}, s{sT0}, v{vXR}")
    for s_ in range(1, 4): e(f"v_xor_b32 v{vXR+s_}, {s_*32}, v{vXR}")
    e(f"v_bfe_u32 v{vT2}, v{vL}, 2, 2"); e(f"v_lshlrev_b32 v{vWR}, 6, v{vT2}")
    e(f"v_bfe_u32 v{vT2}, v{vL}, 4, 1"); e(f"v_lshl_add_u32 v{vWR}, v{vT2}, 5, v{vWR}")
    e(f"v_and_b32 v{vT2}, 3, v{vL}"); e(f"v_lshl_add_u32 v{vWR}, v{vT2}, 3, v{vWR}")
    e(f"v_lshl_add_u32 v{vWR}, v{vT1}, 10, v{vWR}")
    e(f"s_lshl_b32 s{sT0}, s{sFT}, 9"); e(f"v_add_u32 v{vWR}, s{sT0}, v{vWR}")
    e(f"v_add_u32 v{vWR1}, 0x10000, v{vWR}"); e(f"v_add_u32 v{vWR2}, 0x20000, v{vWR}")
    e(f"v_lshlrev_b32 v{vL16}, 4, v{vL}")
    e(f"s_lshl_b32 s{sT0}, s{sTT}, 13"); e(f"s_lshl_b32 s{sT1}, s{sFT}, 11"); e(f"s_add_u32 s{sT0}, s{sT0}, s{sT1}")
    e(f"s_add_u32 s{sT0}, s{sT0}, {L_KV + 8*8192}"); e(f"v_add_u32 v{vEXP}, s{sT0}, v{vL16}")
    e(f"s_lshl_b32 s{sT0}, s{sBR}, 3"); e(f"s_add_u32 s{sT0}, s{sT0}, s{sG}"); e(f"s_lshl_b32 s{sT0}, s{sT0}, 6"); e(f"s_add_u32 s{sT0}, s{sT0}, s{sT}")
    e(f"s_lshl_b32 s{sKV}, s{sT0}, 13"); e(f"s_add_u32 s{sKV}, s{sKV}, s{sT1}")
    e(f"s_lshl_b32 s{sF1}, s{sT0}, 8"); e(f"s_lshl_b32 s{sT1}, s{sFT}, 7"); e(f"s_add_u32 s{sF1}, s{sF1}, s{sT1}"); e(f"s_add_u32 s{sF1}, s{sF1}, {WS_F1}")
    e(f"s_sub_u32 s{sT0}, s{sT0}, s{sTT}"); e(f"s_add_u32 s{sT0}, s{sT0}, s{sW}"); e(f"s_sub_u32 s{sT0}, s{sT0}, 8")
    e(f"s_lshl_b32 s{sT1}, s{sRB}, 2"); e(f"s_add_u32 s{sT1}, s{sT1}, s{sW}"); e(f"s_cmp_lt_u32 s{sT1}, 8"); e(f"s_cselect_b32 s{sIMP}, 1, 0")
    e(f"s_cselect_b32 s{sT0}, 0, s{sT0}")
    e(f"s_lshl_b32 s{sIG}, s{sT0}, 13"); e(f"s_lshl_b32 s{sIF}, s{sT0}, 8"); e(f"s_add_u32 s{sIF}, s{sIF}, {WS_F1}")
    e(f"s_and_b32 s{sT0}, s{sF1}, 0xffffff00"); e(f"s_sub_u32 s{sT0}, s{sT0}, 256")
    e(f"s_cmp_eq_u32 s{sBR}, 0"); e(f"s_cselect_b32 s{sIMP}, s{sTT}, s{sIMP}"); e(f"s_cselect_b32 s{sIF}, s{sT0}, s{sIF}")
    e(f"s_lshl_b32 s{sT0}, s{sBR}, 6"); e(f"s_add_u32 s{sT0}, s{sT0}, s{sT}")
    e(f"s_lshl_b32 s{sT1}, s{sT0}, 4"); e(f"s_lshl_b32 s{sT2}, s{sG}, 1"); e(f"s_add_u32 s{sT1}, s{sT1}, s{sT2}"); e(f"s_add_u32 s{sT1}, s{sT1}, s{sFT}")
    e(f"s_lshl_b32 s{sOA}, s{sT1}, 11"); e(f"s_add_u32 s{sOA}, s{sOA}, {WS_O}")
    e(f"s_lshl_b32 s{sF2}, s{sT1}, 8"); e(f"s_add_u32 s{sF2}, s{sF2}, {WS_F2}")
    e(f"s_mov_b32 s{sEX}, 0xffff"); e(f"s_mov_b32 s{sEX+1}, 0xffff")
    e(f"s_lshl_b32 s{sT0}, s{sXCD}, 1"); e(f"s_bfe_u32 s{sT1}, s{sJ}, 0x10003"); e(f"s_add_u32 s{sT0}, s{sT0}, s{sT1}")
    e(f"s_lshl_b32 s{sT0}, s{sT0}, 2"); e(f"s_and_b32 s{sT1}, s{sW}, 3"); e(f"s_add_u32 s{sT3P}, s{sT0}, s{sT1}")
    e(f"s_cmp_eq_u32 s{sBR}, 0"); e("s_cbranch_scc1 L_maskA")
    masks("B"); e("s_branch L_maskdone")
    e.flush()
    e.label("L_maskA"); masks("A")
    e.label("L_maskdone")
    if O.warm:
        e("s_mov_b64 exec, 0")
        for i in range(7): e(f"s_cmp_eq_u32 s{sW}, {i}"); e(f"s_cbranch_scc1 L_stub{i}")
        e("s_branch L_stub7")
        e.label("L_warmed"); e("s_mov_b64 exec, -1")
    e(f"v_lshlrev_b32 v{vL8}, 3, v{vL}")
    if O.prew0:
        e("s_mov_b32 exec_hi, 0")
        e.vm(f"buffer_store_dwordx2 {vr(vL16,2)}, v{vL8}, {srd(SWS)}, s{sF2} offen sc1", "prew")
        e("s_mov_b32 exec_lo, 0xffff"); e(f"s_add_u32 s{sT0}, s{sF1}, {F1V}")
        e.vm(f"buffer_store_dwordx2 {vr(vL16,2)}, v{vL8}, {srd(SWS)}, s{sF1} offen sc1", "prew")
        e.vm(f"buffer_store_dwordx2 {vr(vL16,2)}, v{vL8}, {srd(SWS)}, s{sT0} offen sc1", "prew")
        e("s_mov_b64 exec, -1")
    if O.stlb:
        e(f"s_add_u32 s{sVM}, s{SWS}, {WS_F1 + 0xff000}"); e(f"s_addc_u32 s{sVM+1}, s{SWS+1}, 0")
        e.cond(f"s_cmp_eq_u32 s{sW}, 0", lambda: e(f"s_load_dword s{sPEND}, {sr(sVM)}, 0"))

def flag_store(soff, s_=SWS, off=0):
    e("s_mov_b64 exec, 0xffff")
    e.vm(f"buffer_store_dwordx2 {vr(vNON,2)}, v{vL8}, {srd(s_)}, s{soff} offen{f' offset:{off}' if off else ''} sc1", "flag")
    e("s_mov_b64 exec, -1")
def flag_ld(tag):
    e.vm(f"buffer_load_dwordx4 {vr(vFL,4)}, off, {srd(SWS)}, s{sIF} sc1", tag)
def flag_cmp():
    e(f"v_cmp_ne_u64 vcc, {sr(sNON)}, {vr(vFL,2)}"); e(f"v_cmp_ne_u64 {sr(sVM)}, {sr(sNON)}, {vr(vFL+2,2)}")
    e(f"s_or_b64 {sr(sVM)}, {sr(sVM)}, vcc")
def flag_poll():
    L = e.newlab("L_fp"); D = L + "d"
    e(f"s_mov_b32 s{sCNT}, 0")
    e.label(L)
    e(f"buffer_load_dwordx4 {vr(vFL,4)}, off, {srd(SWS)}, s{sIF} sc1")
    e(f"s_add_u32 s{sCNT}, s{sCNT}, 1"); e(f"s_cmp_gt_u32 s{sCNT}, {O.pollmax}"); e(f"s_cbranch_scc1 {D}")
    e("s_waitcnt vmcnt(0)")
    flag_cmp(); e(f"s_cbranch_scc1 {L}")
    e.label(D)
def spoll(soff, offs):
    L = e.newlab("L_sp"); D = L + "d"
    e(f"s_add_u32 s{sVM}, s{SWS}, s{soff}"); e(f"s_addc_u32 s{sVM+1}, s{SWS+1}, 0"); e(f"s_mov_b32 s{sCNT}, 0")
    e.label(L)
    w32 = O.sp32 and len(offs) > 4
    for i, o in enumerate(offs): e(f"s_load_dword s{sVMK+i}, {sr(sVM)}, {o} glc" if w32 else f"s_load_dwordx2 {sr(sVMK+2*i)}, {sr(sVM)}, {o} glc")
    e(f"s_add_u32 s{sCNT}, s{sCNT}, 1"); e(f"s_cmp_gt_u32 s{sCNT}, {O.pollmax}")
    e("s_waitcnt lgkmcnt(0)")
    e(f"s_cbranch_scc1 {D}")
    n2 = len(offs)//2 if w32 else len(offs)
    for i in range(n2): e(f"s_xor_b64 {sr(sVMK+2*i)}, {sr(sVMK+2*i)}, {sr(sT2) if w32 else sr(sNON)}")
    for i in range(1, n2): e(f"s_or_b64 {sr(sVMK)}, {sr(sVMK)}, {sr(sVMK+2*i)}")
    e(f"s_cbranch_scc1 {L}")
    e.label(D)
def vpoll(mask):
    L = e.newlab("L_vp"); D = L + "d"
    e(f"s_mov_b32 s{sCNT}, 0"); e(f"s_mov_b64 exec, {mask}")
    e.label(L)
    e(f"buffer_load_dwordx2 {vr(vFL,2)}, v{vFL+2}, {srd(SWS)}, s{sIF} offen sc1")
    e(f"s_add_u32 s{sCNT}, s{sCNT}, 1"); e(f"s_cmp_gt_u32 s{sCNT}, {O.pollmax}")
    e("s_waitcnt vmcnt(0)")
    e(f"v_cmp_ne_u64 vcc, {sr(sNON)}, {vr(vFL,2)}")
    e(f"s_cbranch_scc1 {D}"); e(f"s_cbranch_vccnz {L}")
    e.label(D)
    e("s_mov_b64 exec, -1")
def imp_dma(v, track=None):
    e(f"s_lshl_b32 s{sT1}, s{sW}, 13"); e(f"s_add_u32 m0, s{sT1}, {L_KV + v*4096}")
    e(f"s_add_u32 s{sT0}, s{sIG}, {v*4096}")
    for k in range(4):
        t = f"buffer_load_dwordx4 v{vL16}, {srd(SIMP)}, s{sT0} offen offset:{k*1024} sc1 lds"
        if track: e.vm(t, track)
        else: e(t)

def touch_wo(s_, tmp):
    e(f"s_and_b32 s{sT0}, s{sJ}, 15"); e(f"s_lshl_b32 s{sT0}, s{sT0}, 3"); e(f"s_add_u32 s{sT0}, s{sT0}, s{sW}")
    e(f"s_lshl_b32 s{sT0}, s{sT0}, 12"); e(f"v_lshlrev_b32 v{tmp}, 7, v{vL}")
    e("s_mov_b32 exec_hi, 0")
    e(f"buffer_load_dword v{tmp+1}, v{tmp}, {srd(s_)}, s{sT0} offen")
    e("s_mov_b32 exec_hi, -1")

def imports():
    e("s_waitcnt vmcnt(0)")
    e(f"v_cmp_ne_u64 vcc, {sr(sNON)}, {vr(vFL,2)}")
    e(f"s_and_b32 s{sPEND}, vcc_lo, 12"); e(f"s_cselect_b32 s{sPEND}, s{SIMP+2}, 0")
    e(f"s_and_b32 s{sT0}, vcc_lo, 3"); e(f"s_cselect_b32 s{sT0}, s{SIMP+2}, 0")
    if O.stamps == 1:
        e(f"s_min_u32 s{ST0+24}, s{sT0}, 1000"); e(f"s_min_u32 s{ST0+6}, s{sPEND}, 1000")
        e(f"s_add_u32 s{ST0+24}, s{ST0+24}, s{ST0}"); e(f"s_add_u32 s{ST0+6}, s{ST0+6}, s{ST0}")
    e.cond(f"s_cmp_lg_u32 s{sT0}, 0", lambda: vpoll(3))
    imp_dma(0)
    if not O.vlate:
        e(f"s_cmp_lg_u32 s{sPEND}, 0"); e("s_cbranch_scc1 L_nov")
        imp_dma(1)
    e.label("L_nov")

def p1():
    e.stamp(12)
    def rd(q):
        w = WF[q % 8]
        if q < 64:
            ks = q >> 1; t, s_ = divmod(ks, 4)
            if q % 2 == 0: e.ds(f"ds_read_b128 {vr(vXF+4*ks,4)}, v{vXR+s_} offset:{(t%4)*16384}", f"w{q}")
            b, off = vWR1, (t % 4)*16384 + (q % 2)*8192 + s_*2048
        elif q < 80: b, off = vWR1, (q-64)*2048
        else: b, off = vWR, (q-80)*2048
        e.ds(f"ds_read_b64_tr_b16 {vr(w,2)}, v{b} offset:{off}", f"w{q}")
        e.ds(f"ds_read_b64_tr_b16 {vr(w+2,2)}, v{b} offset:{off+256}", f"w{q}")
    syncs = {8*t - 4: (f"st{t}", None) for t in range(1, 8)}
    syncs.update({60: ("wq1", None), 68: ("wq7", None), 80: ("none", "exp")})
    gap = {k: [] for k in range(-1, 96)}
    def I(t): return lambda: e(t)
    def wq(t): return lambda: dma(vW0, SW, sCW+t, (L_WV + t*8192) if t < 4 else (t-4)*8192, f"wq{t}")
    for i, p in enumerate(st_pieces(2)): gap[[-1, 0, 1, 2][i]].append(p)
    for t in range(3, 8):
        for i, p in enumerate(st_pieces(t)): gap[8*(t-2) - 4 + [[0, 2, 4, 6], [0, 1, 2, 3], [0, 1, 3, 5]][O.stg][i]].append(p)
    gap[43].append(I(f"v_subrev_u32 v{vW0}, 0x400, v{vW0}"))
    for t, k in enumerate([44, 46, 52, 54, 48, 50, 56, 58]): gap[k].append(wq(t))
    gap[60].append(lambda: e.vm(f"buffer_load_dwordx2 {vr(vNON,2)}, off, {srd(SDBG)}, 0 sc1", "non"))
    gap[47] += [I(f"s_mov_b64 {sr(SEXP)}, {sr(SWS)}"), I(f"s_lshl_b32 s{sT0}, s{sBR}, 2"), I(f"s_or_b32 s{sT0}, s{sT0}, s{sTT}")]
    gap[49] += [I(f"s_cmp_ge_u32 s{sT0}, 3"), I(f"s_cselect_b32 s{SEXP+2}, s{SWS+2}, 0")]
    def export(k0, kd, acc, off, tag):
        for h in range(2):
            for i in range(4*h, 4*h+4): gap[k0+h].append(lambda i=i: cvt(acc, acc, i))
            if off and not h: gap[k0].append(I(f"s_add_u32 s{sKV}, s{sKV}, {off}"))
            gap[k0+h].append(lambda h=h: e.vm(f"buffer_store_dwordx4 {vr(acc+4*h,4)}, v{vL16}, {srd(SEXP)}, s{sKV} offen offset:{1024*h} sc1", tag))
            gap[kd+2*h].append(lambda h=h: e.ds(f"ds_write_b128 v{vEXP}, {vr(acc+4*h,4)} offset:{off+1024*h}", "exp"))
    gap[64].append(I("s_nop 1"))
    export(64, 71, accA, 0, "kst"); export(O.vex, 75, accB, 4096, "vst")
    def tagrd():
        e.wait_vm("non")
        e(f"v_readfirstlane_b32 s{sNON}, v{vNON}"); e(f"v_readfirstlane_b32 s{sNON+1}, v{vNON+1}")
        def late():
            L = e.newlab("L_tag"); D = L + "d"
            e(f"s_mov_b32 s{sCNT}, 0")
            e.label(L)
            e(f"buffer_load_dwordx2 {vr(vNON,2)}, off, {srd(SDBG)}, 0 sc1"); e("s_waitcnt vmcnt(0)")
            e(f"v_readfirstlane_b32 s{sNON}, v{vNON}"); e(f"v_readfirstlane_b32 s{sNON+1}, v{vNON+1}")
            e(f"s_add_u32 s{sCNT}, s{sCNT}, 1"); e(f"s_cmp_gt_u32 s{sCNT}, {O.pollmax}"); e(f"s_cbranch_scc1 {D}")
            e(f"s_cmp_eq_u32 s{sNON+1}, 0"); e(f"s_cbranch_scc1 {L}")
            e.label(D)
        e("s_nop 0")
        e.cond(f"s_cmp_eq_u32 s{sNON+1}, 0", late)
    gap[72].append(tagrd)
    gap[O.kflag].append(lambda: (e.wait_vm("kst"), flag_store(sF1, SEXP)))
    gap[O.vflag].append(lambda: (e(f"s_add_u32 s{sF1}, s{sF1}, {F1V}"), e.wait_vm("vst"), flag_store(sF1, SEXP), e.stamp(5)))
    def prew():
        e("s_mov_b32 exec_hi, 0")
        e.vm(f"buffer_store_dwordx2 {vr(vL16,2)}, v{vL8}, {srd(SWS)}, s{sF2} offen sc1", "prew")
        e("s_mov_b32 exec_hi, -1")
    if O.prew and not O.prew0: gap[O.prew].append(prew)
    def prew2():
        e("s_mov_b64 exec, 0xffff"); e(f"s_add_u32 s{sT1}, s{sF1}, {F1V}")
        e.vm(f"buffer_store_dwordx2 {vr(vL16,2)}, v{vL8}, {srd(SEXP)}, s{sF1} offen sc1", "prew")
        e.vm(f"buffer_store_dwordx2 {vr(vL16,2)}, v{vL8}, {srd(SEXP)}, s{sT1} offen sc1", "prew")
        e("s_mov_b64 exec, -1")
    if O.prew2: gap[O.prew2].append(prew2)
    gap[78] += [I(f"v_add_u32 v{vKA8}, {-8*8192 & 0xffffffff:#x}, v{vEXP}"), I(f"v_add_u32 v{vKA}, 0x2000, v{vKA8}"), I(f"v_and_b32 v{vVA8}, 0xfffffeff, v{vKA8}")]
    gap[79] += [I(f"v_add_u32 v{vVA8}, 0x1000, v{vVA8}"), I(f"v_add_u32 v{vVA}, 0x2000, v{vVA8}")]
    for i, k in zip(range(1, 9), [59, 59, 61, 61, 63, 63, 74, 74]):
        gap[k] += [I(f"s_cmp_le_u32 {i}, s{sT}"), I(f"s_cselect_b64 {sr(sVMK+2*(i-1))}, {sr(sEX)}, -1")]
    gap[82] += [I(f"v_bfe_u32 v{vWO}, v{vL}, 2, 3"), I(f"s_lshl_b32 s{sT0}, s{sW}, 3"), I(f"v_add_u32 v{vWO}, s{sT0}, v{vWO}"), I(f"v_lshlrev_b32 v{vWO}, 10, v{vWO}")]
    gap[83] += [I(f"v_lshrrev_b32 v{vWR1}, 5, v{vL}"), I(f"v_lshl_add_u32 v{vWO}, v{vWR1}, 6, v{vWO}"), I(f"v_and_b32 v{vWR1}, 3, v{vL}"), I(f"v_lshl_add_u32 v{vWO}, v{vWR1}, 4, v{vWO}")]
    gap[84] += [I(f"s_and_b32 s{sT0}, s{sJ}, 7"), I(f"s_lshl_b32 s{sT0}, s{sT0}, 7"), I(f"v_add_u32 v{vWO}, s{sT0}, v{vWO}")]
    gap[76] += [I(f"s_mov_b64 {sr(SIMP)}, {sr(SWS)}"), I(f"s_cmp_lg_u32 s{sIMP}, 0"), I(f"s_cselect_b32 s{SIMP+2}, 0, s{SWS+2}"), I(f"v_and_b32 v{vFL+2}, 1, v{vL}"), I(f"v_lshlrev_b32 v{vFL+2}, 7, v{vFL+2}")]
    gap[79] += [I(f"v_and_b32 v{vFL+3}, 2, v{vL}"), I(f"v_lshl_add_u32 v{vFL+2}, v{vFL+3}, 17, v{vFL+2}")]
    gap[87].append(I(f"s_mov_b32 s{sT2}, 0x3f803f80"))
    for i in range(32): gap[88 + i//4].append(I(f"v_mov_b32 v{vV+i}, s{sT2}"))
    gap[91].append(lambda: e.ds(f"ds_read_b128 {vr(vK,4)}, v{vKA} offset:{7*8192 + 1024}", "k0"))
    gap[91].append(lambda: e.ds(f"ds_read_b128 {vr(vK+4,4)}, v{vKA} offset:{7*8192}", "k0"))
    def looks():
        e("s_mov_b64 exec, 15")
        e.vm(f"buffer_load_dwordx2 {vr(vFL,2)}, v{vFL+2}, {srd(SIMP)}, s{sIF} offen sc1", "look")
        e("s_mov_b64 exec, -1")
    gap[O.hsmp].insert(0, looks)
    def ev():
        e(f"s_cmp_eq_u32 s{sBR}, 0"); e("s_cbranch_scc1 L_nov"); imports()
    if O.ev: gap[O.ev].append(ev)
    gap[95] += [I(f"s_mov_b32 s{sT2}, 0x3eb8aa3b"), I(f"s_mov_b32 s{sT3}, 0x3eb8aa3b")]

    e.wait_vm("st0"); e("s_barrier"); e.stamp(1)
    for q in range(4): rd(q)
    for f in gap[-1]: f()
    bars = sorted(syncs) + [96]
    for q in range(96):
        if q % 8 == 0: e.c(f"---- P1 mfma {q}")
        if q in syncs:
            tag, lg = syncs[q]
            e.wait_vm(tag)
            if lg is True: e.ds_all()
            elif lg: e.wait_ds(lg)
            e("s_barrier")
        if q == 64: e.stamp(2)
        if q % 8 == 4: e.stamp(q//8 + 1, 2)
        if O.p1prio and q >= 4:
            a = max(x for x in bars if x <= q); b_ = min(x for x in bars if x > q)
            step = (b_ - a) // 4
            if (q - a) % step == 0 and (q - a) // step < 4: e(f"s_setprio {3 - (q - a)//step}")
        e.wait_ds(f"w{q}")
        if q < 64:
            x = vXF + 4*(q >> 1)
            if q % 2 == 0: mfma(accA, WF[q % 8], x, accA if q > 1 else "0")
            else: mfma(accB, x, WF[q % 8], accB if q > 1 else "0")
        else: mfma(accQ, WF[q % 8], vXF + 4*(q-64), accQ if q > 64 else "0")
        if q + 4 < 96: rd(q+4)
        for f in gap[q]: f()

def wo_piece(i, base=0):
    e(f"s_add_u32 m0, s{sM0}, {base + i*8192}"); e(f"s_mov_b32 s{sT0}, {i*65536}")
    e(f"buffer_load_dwordx4 v{vWO}, {srd(SWO)}, s{sT0} offen lds")

def norm(o, dst):
    e(f"v_rcp_f32 v{o+10}, v{o+8}")
    e(f"v_pk_add_f32 {vr(o+12,2)}, {vr(o,2)}, {vr(o+2,2)}"); e(f"v_pk_add_f32 {vr(o+14,2)}, {vr(o+4,2)}, {vr(o+6,2)}")
    for i in range(4): e(f"v_pk_mul_f32 {vr(o+2*i,2)}, {vr(o+2*i,2)}, {vr(o+10,2)} op_sel_hi:[1,0]")
    e(f"v_pk_add_f32 {vr(o+12,2)}, {vr(o+12,2)}, {vr(o+14,2)}")
    cvt8(dst, o)
    e(f"v_add_f32 v{o+12}, v{o+12}, v{o+13}"); e(f"v_fma_f32 v{o+8}, v{o+12}, 0, v{o+8}")
def check(os_, slowlab):
    for n, o in enumerate(os_):
        e(f"v_subrev_u32 v{o+8}, 0x2b800000, v{o+8}")
        if n: e(f"v_max_u32 v{os_[0]+8}, v{os_[0]+8}, v{o+8}")
    e(f"v_cmp_lt_u32 vcc, 0x28000000, v{os_[0]+8}")
    if slowlab is None:
        e(f"s_or_b32 s{sBAD}, vcc_lo, vcc_hi")
        if O.force_slow: e(f"s_mov_b32 s{sBAD}, 1")
    elif O.force_slow: e(f"s_branch {slowlab}")
    else: e(f"s_cbranch_vccnz {slowlab}")
def prefill(regs):
    e(f"s_mov_b32 s{sT0}, 0x3f803f80")
    for i in regs: e(f"v_mov_b32 v{i}, s{sT0}")
def rdK(i, u, dst):
    if i < 8: e(f"ds_read_b128 {vr(dst,4)}, v{vKA} offset:{(7-i)*8192 + u*1024}")
    else: e(f"ds_read_b128 {vr(dst,4)}, v{vKA8} offset:{u*1024}")
def rdV(i, u, dst, dyn=True, restore=True):
    e(f"s_mov_b64 exec, {sr(sVMK+2*(i-1)) if dyn and i > 0 else sr(sEX)}")
    b, off = (vVA, (7-i)*8192) if i < 8 else (vVA8, 0)
    e(f"ds_read_b128 {vr(dst,4)}, v{b} offset:{off + u*256}")
    e(f"ds_read_b128 {vr(dst+4,4)}, v{b} offset:{off + u*256 + 1024}")
    if restore: e("s_mov_b64 exec, -1")

def attention():
    e.c("---- Q epilogue")
    e.stamp(4)
    def qscale(h):
        for i in range(4*h, 4*h+4): e(f"v_pk_mul_f32 {vr(accQ+2*i,2)}, {vr(accQ+2*i,2)}, {sr(sT2)}")
        for i in range(4*h, 4*h+4): cvt(vQ2, accQ, i)
    e(f"s_cmp_eq_u32 s{sBR}, 0"); e("s_cbranch_scc1 L_attnA")
    e.c("---- attention B")
    if O.impfirst and not O.ev: imports()
    else: e("s_nop 3")
    qscale(1); qscale(0)
    def kbar():
        e(f"s_waitcnt vmcnt({0 if O.vlate == 2 else 4})"); e("s_barrier"); e.stamp(6)
    def vbar():
        e(f"s_waitcnt vmcnt({2 if O.tchA < O.lag else 0})"); e("s_barrier"); e.stamp(13)
    def tchA():
        if not O.tchB: touch_wo(SWO, vU0+2)
        e(f"s_mov_b64 {sr(SOWO)}, {sr(sOW)}"); e(f"s_mov_b32 s{SOWO+2}, {512*1024}")
        touch_wo(SOWO, vU0)
    def sample02():
        f3_addr()
        e("s_mov_b64 exec, 0x55555555")
        e(f"buffer_load_dwordx2 {vr(vFL,2)}, v{vF}, {srd(SWS)}, s{sF3} offen sc1")
        e("s_mov_b64 exec, -1")
    L = O.lag
    seq = [(1, 0), (0, 0)] + [(0, i) for i in range(1, 9)] + [(1, i) for i in range(1, 9)]
    pv = {n: [] for n in range(19)}
    pv[1].append(0); pv[2].append(1); m = 2
    for n in range(L+1, 19):
        for _ in range(2):
            if m < n and m < 18: pv[n].append(m); m += 1
    assert m == 18
    def P(m): return PB + 8*(m % 8)
    def V(m): return vV + 8*(m % 4)
    def ex(n, r): e(f"v_exp_f32 v{vS+16*(n%2)+r}, v{vS+16*(n%2)+r}")
    def pvm(m, kb):
        o = vO + 16*seq[m][0]
        mfma(o, V(m)+4*kb, P(m)+4*kb, "0" if (m < 2 and kb == 0) else o)
    def qk(n):
        u1, i1 = seq[n]
        mfma(vS+16*(n % 2), vK+4*(n % 2), vQ2 + 4*u1, vML if i1 == 0 else (vMF if i1 == 8 else "0"))
    assert max(n for n in pv if 9 in pv[n]) < O.epi
    q4 = (18 - L) // 4
    prio = {0: 1, 1: 0, 2: 1, 3: 0, L: 3, L+q4+1: 2, L+2*q4+1: 1, L+3*q4+2: 0}
    qk(0)
    e(f"s_mov_b32 s{sT2}, 0x3f803f80")
    if not O.impfirst and not O.ev: imports()
    else: e("s_nop 6")
    for n in range(19):
        s_ = vS + 16*(n % 2)
        e.c(f"task {n}")
        if n < 11: e.stamp(n+1, 4)
        if n >= 8: e.stamp(n-7, 5)
        if O.fair and n in prio: e(f"s_setprio {prio[n]}")
        if n == 1 and not O.vlate: e.cond(f"s_cmp_lg_u32 s{sPEND}, 0", lambda: (vpoll(12), imp_dma(1)))
        if n == 1 and O.vlate == 1: e.cond(f"s_cmp_lg_u32 s{sPEND}, 0", lambda: vpoll(12)); imp_dma(1)
        if n == 2 and O.vlate == 2: e.cond(f"s_cmp_lg_u32 s{sPEND}, 0", lambda: vpoll(12)); imp_dma(1)
        if n == L: vbar()
        if n == O.oflag:
            younger = sum(8*(t-O.wo_at+1)//O.wo_n - 8*(t-O.wo_at)//O.wo_n for t in range(O.epi+1, n) if O.wo_at <= t < O.wo_at + O.wo_n)
            e(f"s_waitcnt vmcnt({younger})")
            e(f"s_cmp_lg_u32 s{sBAD}, 0"); e("s_cbranch_scc1 L_noflag0"); flag_store(sF2); e.label("L_noflag0")
        if O.wo_at <= n < O.wo_at + O.wo_n:
            for p_ in range(8*(n-O.wo_at)//O.wo_n, 8*(n-O.wo_at+1)//O.wo_n): wo_piece(p_)
        if n == O.tchA: tchA()
        if n == O.tE: e.cond(f"s_cmp_lt_u32 s{sW}, 4", lambda: (f3_addr(), o_touch(0x00ff00ff, 0)))
        if n == O.smp_at: sample02()
        nxt = pv[n+1] if n < 18 else []
        fresh = [m for m in nxt if 10 <= m < 14]
        if fresh: e.cond(f"s_cmp_lt_u32 s{sT}, 8", lambda fresh=fresh: [e(f"v_mov_b32 v{V(m)+k}, s{sT2}") for m in fresh for k in range(8)])
        cnt = 0
        if 1 < n < 17: rdK(seq[n+1][1], seq[n+1][0], vK+4*((n+1) % 2)); cnt += 1
        for k, m in enumerate(nxt): rdV(seq[m][1], seq[m][0], V(m), restore=(k == len(nxt)-1)); cnt += 2
        mf = [(m, kb) for m in pv[n] for kb in range(2)]
        if n == 18:
            e("s_waitcnt lgkmcnt(0)"); e("s_nop 0")
            for x in mf: pvm(*x)
            break
        first = [True]
        def slot():
            if mf:
                if first[0]: e(f"s_waitcnt lgkmcnt({cnt})"); first[0] = False
                pvm(*mf.pop(0))
        two = len(mf) > 2
        for r in range(4): ex(n, r)
        slot()
        for r in range(4, 8): ex(n, r)
        if n == 1: slot(); kbar(); rdK(1, 0, vK)
        elif n < 17:
            if n: e(f"s_waitcnt lgkmcnt({cnt-1})")
            qk(n+1)
        cvt8(P(n), s_)
        for r in range(8, 10): ex(n, r)
        if two: slot()
        for r in range(10, 12): ex(n, r)
        if not two: slot()
        if n == 1: e("s_waitcnt lgkmcnt(0)"); qk(2)
        for r in range(12, 14): ex(n, r)
        slot()
        for r in range(14, 16): ex(n, r)
        cvt8(P(n)+4, s_+8)
        slot()
        if n == 1: e("s_nop 3")
        if n == O.epi:
            norm(vO, vP); check([vO], None)
            e(f"buffer_store_dwordx4 {vr(vP,4)}, v{vL16}, {srd(SWS)}, s{sOA} offen sc1")
    e("s_nop 11")
    norm(vO+16, vP+4); check([vO+16], "L_B_slow1")
    e.label("L_B_ok1")
    if O.sprio: e("s_setprio 2")
    e(f"buffer_store_dwordx4 {vr(vP+4,4)}, v{vL16}, {srd(SWS)}, s{sOA} offen offset:1024 sc1")
    if O.sprio: e("s_setprio 0")
    e(f"s_cmp_lg_u32 s{sBAD}, 0"); e("s_cbranch_scc1 L_B_slow0")
    e.label("L_B_ok0")
    e.stamp(7); e.stamp(12, 7)
    e(f"s_cmp_lt_u32 s{sW}, 4"); e("s_cbranch_scc0 L_young")
    e(f"s_mov_b32 s{sHM}, 0")
    f3_groups()
    if O.swp:
        e(f"s_and_b32 s{sT0}, s{sJ}, 1"); e(f"s_lshl_b32 s{sT0}, s{sT0}, 11")
        for q in range(4): e(f"s_xor_b32 s{sG0+q}, s{sG0+q}, s{sT0}")
    e("s_waitcnt vmcnt(1)")
    e("s_mov_b64 exec, 0x55555555")
    e(f"v_cmp_ne_u64 vcc, {sr(sNON)}, {vr(vFL,2)}")
    e("s_mov_b64 exec, -1")
    e(f"s_mov_b32 s{sT3}, 0"); e(f"s_mov_b32 s{sNR}, vcc_lo")
    e("s_cbranch_vccnz L_p3again")
    e.label("L_p3even")
    if O.bpre > 8:
        pass
    for k in range(O.ad): o_ld(k, sG0 + k//8)
    p3_setup()
    e(f"s_mov_b32 s{SLD+2}, 0")
    e(f"s_waitcnt vmcnt({O.ad})"); e.stamp(8); e("s_barrier")
    e("s_branch L_p3go")
    e.label("L_p3again")
    e(f"s_mov_b32 exec_lo, s{sNR}"); e("s_mov_b32 exec_hi, 0")
    e(f"buffer_load_dwordx2 {vr(vFL,2)}, v{vF}, {srd(SWS)}, s{sF3} offen sc1")
    e("s_waitcnt vmcnt(0)")
    e(f"v_cmp_ne_u64 vcc, {sr(sNON)}, {vr(vFL,2)}")
    e("s_mov_b64 exec, -1")
    e(f"s_mov_b32 s{sNR}, vcc_lo")
    e("s_cbranch_vccz L_p3even")
    p3_setup()
    e(f"s_mov_b32 s{SLD+2}, 0")
    e("s_barrier")
    poll3(0x55555555, 0x55555555)
    for k in range(O.ad): o_ld(k, sG0 + k//8)
    e("s_branch L_p3go")
    e.label("L_young"); e.stub()
    e("s_waitcnt vmcnt(0)")
    e.label("L_youngA")
    e("s_mov_b64 exec, 0xffff")
    e(f"s_cmp_eq_u32 s{sW}, 4"); e(f"s_cselect_b32 s{SEXP+2}, s{SWS+2}, 0")
    if O.fprio: e("s_setprio 3")
    e("s_waitcnt vmcnt(8)"); e.stamp(8); e("s_barrier")
    e.stamp(1, 8)
    e(f"buffer_store_dwordx2 {vr(vNON,2)}, v{vL8}, {srd(SEXP)}, s{sF2} offen offset:128 sc1")
    e("s_mov_b64 exec, -1")
    e.stamp(2, 8)
    if O.stamps == 8: e("s_waitcnt vmcnt(0)"); e.stamp(3, 8); e(f"s_memrealtime {sr(ST0+12)}")
    e(f"s_cmp_lg_u32 s{sW}, 4"); e("s_cbranch_scc1 L_rest")
    f3_addr()
    e(f"s_add_u32 s{sF3}, s{sF3}, {3*4096}")
    e(f"s_mov_b32 s{sT2}, s{sNON}"); e(f"s_mov_b32 s{sT3}, s{sNON}")
    if O.pdelay: e(f"s_sleep {O.pdelay}")
    spoll(sF3, [384 + 512*g_ for g_ in range(8)])
    e.stamp(10); e.stamp(4, 8)
    if O.stamps == 8:
        e(f"s_memrealtime {sr(ST0+14)}"); e("s_waitcnt lgkmcnt(0)"); e(f"s_add_u32 s{ST0+10}, s{ST0}, s{sCNT}")
        for q_ in (12, 14): e(f"s_and_b32 s{ST0+q_}, s{ST0+q_}, 0xffff"); e(f"s_add_u32 s{ST0+q_}, s{ST0+q_}, s{ST0}")
    e("s_waitcnt vmcnt(1)")
    e("s_barrier")
    e.label("L_rest")
    e("s_waitcnt vmcnt(0)")
    e("s_branch L_stamps" if O.stamps else "s_endpgm")
    e.flush()

    e.c("---- attention A")
    e.label("L_attnA")
    KP, VP = 176, 160
    if not O.spoll:
        e(f"s_and_b32 s{sIF}, s{sF1}, 0xffffff00"); e(f"s_sub_u32 s{sIF}, s{sIF}, 136")
        flag_ld("x")
    e.stamp(6)
    def halo():
        L = e.newlab("L_h")
        e(f"s_cmp_eq_u32 s{sT}, 0"); e(f"s_cbranch_scc1 L_A_nh")
        e("s_waitcnt vmcnt(0)")
        e(f"v_cmp_ne_u64 vcc, {sr(sNON)}, {vr(vFL,2)}")
        e(f"s_and_b32 s{sT0}, vcc_lo, 12"); e(f"s_cbranch_scc0 {L}")
        vpoll(12)
        e.label(L)
        e(f"s_sub_u32 s{sT0}, s{sKV}, {8192 + 4096}"); e(f"s_sub_u32 s{sT1}, s{sKV}, {8192 - 1024}")
        e(f"v_and_b32 v{vFL}, 0x2ff, v{vL16}")
        for h in range(2): e(f"buffer_load_dwordx4 {vr(KP+4*h,4)}, v{vL16}, {srd(SWS)}, s{sT0} offen offset:{h*1024} sc1")
        e(f"s_mov_b64 exec, {sr(sEX)}")
        for h in range(2): e(f"buffer_load_dwordx4 {vr(VP+4*h,4)}, v{vFL}, {srd(SWS)}, s{sT1} offen offset:{h*256} sc1")
        e("s_mov_b64 exec, -1")
        e("s_branch L_A_nh")
    e.cond(f"s_cmp_eq_u32 s{sTT}, 0", halo)
    for h in range(2): e(f"ds_read_b128 {vr(KP+4*h,4)}, v{vKA} offset:{6*8192 + h*1024}")
    e(f"s_mov_b64 exec, {sr(sEX)}")
    for h in range(2): e(f"ds_read_b128 {vr(VP+4*h,4)}, v{vVA} offset:{6*8192 + 1024 + h*256}")
    e("s_mov_b64 exec, -1")
    e.label("L_A_nh")
    e(f"s_mov_b64 exec, {sr(sEX)}")
    for h in range(2):
        for kb in range(2): e(f"ds_read_b128 {vr(vV+8*h+4*kb,4)}, v{vVA} offset:{7*8192 + kb*1024 + h*256}")
    e("s_mov_b64 exec, -1"); e("s_nop 0")
    qscale(0); qscale(1)
    e("s_waitcnt lgkmcnt(0)")
    def a_body(slow):
        def exs(s_, rs, h):
            for r in rs:
                if slow: e(f"v_sub_f32 v{s_+r}, v{s_+r}, v{vFL+h}")
                e(f"v_exp_f32 v{s_+r}, v{s_+r}")
        lab = "L_A_s2" if slow else "L_A_f2"
        for h in range(2): mfma(vS+16*h, vK+4-4*h, vQ2+4*h, vML)
        e("s_nop 10")
        for h in range(2):
            exs(vS+16*h, range(16), h); cvt8(vP+8*h, vS+16*h, 8); e("s_nop 1")
            mfma(vO+16*h, vV+8*h, vP+8*h, "0"); mfma(vO+16*h, vV+8*h+4, vP+8*h+4, vO+16*h)
        e("s_waitcnt vmcnt(0)")
        e(f"s_cmp_eq_u32 s{sT}, 0"); e(f"s_cbranch_scc1 {lab}")
        e.stamp(13)
        for h in range(2): mfma(vS+16*h, KP+4*h, vQ2+4*h, vMF)
        e("s_nop 10")
        for h in range(2):
            exs(vS+16*h, range(8, 16), h); cvt8(vP+8*h+4, vS+16*h+8); e("s_nop 1")
            mfma(vO+16*h, VP+4*h, vP+8*h+4, vO+16*h)
        e.label(lab)
        e("s_nop 11")
        for h in range(2): norm(vO+16*h, vP+4*h)
    a_body(False)
    check([vO, vO+16], "L_A_slow")
    e.label("L_A_ok"); e.stub()
    e("s_setprio 2")
    e(f"buffer_store_dwordx4 {vr(vP,4)}, v{vL16}, {srd(SWS)}, s{sOA} offen sc1")
    e(f"buffer_store_dwordx4 {vr(vP+4,4)}, v{vL16}, {srd(SWS)}, s{sOA} offen offset:1024 sc1")
    e.stamp(7)
    e("s_setprio 0")
    for i in range(8): wo_piece(i, L_KV)
    e(f"s_cmp_lt_u32 s{sW}, 4"); e("s_cbranch_scc0 L_youngA")
    e(f"s_and_b32 s{sHM}, s{sJ}, 3")
    f3_groups()
    e(f"s_mov_b32 s{sT3}, {L_KV}")
    e.label("L_p3all")
    e("s_waitcnt vmcnt(8)"); e.stamp(8); e("s_barrier")
    p3_setup()
    e(f"s_mov_b32 s{SLD+2}, s{SWS+2}")
    e("s_waitcnt vmcnt(0)")
    e("s_barrier"); e.stamp(10)
    if O.ltouch: o_touch(0xffffffff, 0)
    for k in range(O.ad): o_ld(k, sG0 + k//8)
    return a_body, KP

vA, vB, vO0, vO1, vF = 2, 3, 7, 5, 10
sO3, sF3, sOUT3, sHM = sIG, sIF, sOA, sPEND
A0, A1 = 40, 56
vTW, vTR = 18, 17
WB = 72
def OFR(k): return 136 + 4*k if k < 30 else 24 + 4*(k-30)
sG0 = sVMK; sHB = sVMK+4
vW = ((0, 4), (6, 16))
def f3_addr():
    e(f"s_lshl_b32 s{sT0}, s{sBR}, 6"); e(f"s_add_u32 s{sT0}, s{sT0}, s{sT3P}")
    e(f"s_lshl_b32 s{sO3}, s{sT0}, 15"); e(f"s_add_u32 s{sO3}, s{sO3}, {WS_O}")
    e(f"s_lshl_b32 s{sF3}, s{sT0}, 12"); e(f"s_add_u32 s{sF3}, s{sF3}, {WS_F2}")
    e(f"v_lshlrev_b32 v{vF}, 7, v{vL}")
def group(dst):
    e(f"s_brev_b32 s{sHB}, s{sHM}"); e(f"s_lshr_b32 s{sHB}, s{sHB}, 20")
    e(f"s_add_u32 s{dst}, s{sHB}, s{sO3}")
    e(f"s_add_u32 s{sHM}, s{sHM}, 1"); e(f"s_and_b32 s{sHM}, s{sHM}, 3")
def wbase(buf, src):
    e(f"s_and_b32 s{sT0}, s{src}, 0xc00"); e(f"s_lshl_b32 s{sT0}, s{sT0}, 1")
    e(f"v_add_u32 v{vW[buf][0]}, s{sT0}, v{vA}"); e(f"v_add_u32 v{vW[buf][1]}, s{sT0}, v{vB}")
def o_ld(k, base, s_=None):
    if k % 8: e(f"s_add_u32 s{sT0}, s{base}, {(k % 8)*4096}")
    e(f"buffer_load_dwordx4 {vr(OFR(k),4)}, v{vL16}, {srd(s_ or SWS)}, s{sT0 if k % 8 else base} offen sc1")
sNR = sVMK + 7
def poll3(need, look):
    L = e.newlab("L_poll"); D = L + "d"
    e(f"s_mov_b32 s{sCNT}, 0"); e("s_mov_b32 exec_hi, 0")
    e.label(L)
    e(f"s_and_b32 s{sT0}, s{sNR}, {need:#x}"); e(f"s_cbranch_scc0 {D}")
    e(f"s_and_b32 exec_lo, s{sNR}, {look:#x}")
    e(f"buffer_load_dwordx2 {vr(vFL,2)}, v{vF}, {srd(SWS)}, s{sF3} offen sc1")
    e(f"s_add_u32 s{sCNT}, s{sCNT}, 1")
    e("s_waitcnt vmcnt(0)")
    e(f"v_cmp_eq_u64 vcc, {sr(sNON)}, {vr(vFL,2)}")
    e(f"s_andn2_b32 s{sNR}, s{sNR}, vcc_lo")
    if O.sleep: e(f"s_sleep {O.sleep}")
    e(f"s_cmp_gt_u32 s{sCNT}, {O.pollmax}"); e(f"s_cbranch_scc0 {L}")
    e.label(D)
    e("s_mov_b64 exec, -1")
SLD = SDUM
def f3_groups():
    f3_addr()
    for q in range(4): group(sG0+q)
def o_touch(mask, dst):
    e(f"s_and_b32 s{sT0}, s{sJ}, 7"); e(f"s_lshl_b32 s{sT0}, s{sT0}, 12"); e(f"s_add_u32 s{sT0}, s{sT0}, s{sO3}")
    e(f"s_mov_b32 exec_lo, {mask:#x}"); e("s_mov_b32 exec_hi, 0")
    e(f"buffer_load_dword v{vFL+3}, v{vF}, {srd(SWS)}, s{sT0} offen sc1")
    e("s_mov_b64 exec, -1")
def p3_setup():
    e(f"s_mov_b64 {sr(SLD)}, {sr(SWS)}")
    e(f"v_bfe_u32 v{vU0}, v{vL}, 2, 2"); e(f"v_lshlrev_b32 v{vA}, 6, v{vU0}")
    e(f"v_and_b32 v{vU0}, 1, v{vL}"); e(f"v_mul_u32_u24 v{vU0}, 544, v{vU0}"); e(f"v_add_u32 v{vA}, v{vA}, v{vU0}")
    e(f"v_bfe_u32 v{vU0}, v{vL}, 4, 1"); e(f"v_lshl_add_u32 v{vA}, v{vU0}, 4, v{vA}")
    e(f"v_bfe_u32 v{vU0}, v{vL}, 1, 1"); e(f"v_lshl_add_u32 v{vA}, v{vU0}, 3, v{vA}")
    e(f"v_lshrrev_b32 v{vU0}, 5, v{vL}"); e(f"v_lshl_add_u32 v{vA}, v{vU0}, 8, v{vA}")
    e(f"v_add_u32 v{vA}, s{sT3}, v{vA}")
    e(f"v_xor_b32 v{vB}, 32, v{vA}")
    if O.tpose:
        e(f"s_lshl_b32 s{sT0}, s{sW}, 12"); e(f"s_add_u32 s{sT0}, s{sT0}, {L_WK}")
        e(f"v_mul_u32_u24 v{vU0}, 6, v{vU0}"); e(f"v_and_b32 v{vU1}, 7, v{vL}"); e(f"v_xor_b32 v{vU0}, v{vU0}, v{vU1}")
        e(f"v_and_b32 v{vTW}, 31, v{vL}"); e(f"v_lshlrev_b32 v{vTW}, 7, v{vTW}"); e(f"v_lshl_add_u32 v{vTW}, v{vU0}, 4, v{vTW}"); e(f"v_add_u32 v{vTW}, s{sT0}, v{vTW}")
        for i in range(1, 4): e(f"v_xor_b32 v{vTW+i}, {16*i}, v{vTW}")
        e(f"v_lshrrev_b32 v{vU0}, 3, v{vL}"); e(f"v_xor_b32 v{vTR}, v{vU0}, v{vU1}"); e(f"v_lshlrev_b32 v{vTR}, 4, v{vTR}")
        e(f"v_lshl_add_u32 v{vTR}, v{vU0}, 7, v{vTR}"); e(f"v_add_u32 v{vTR}, s{sT0}, v{vTR}")
        e(f"v_lshlrev_b32 v{vO0}, 11, v{vU0}"); e(f"v_lshl_add_u32 v{vO0}, v{vU1}, 4, v{vO0}")
    else:
        e(f"v_and_b32 v{vO0}, 31, v{vL}"); e(f"v_lshlrev_b32 v{vO0}, 11, v{vO0}"); e(f"v_mul_u32_u24 v{vU0}, 96, v{vU0}"); e(f"v_add_u32 v{vO0}, v{vO0}, v{vU0}")
        e(f"v_xor_b32 v{vO1}, 32, v{vO0}")
    e(f"s_lshl_b32 s{sOUT3}, s{sT3P}, 16"); e(f"s_lshl_b32 s{sT1}, s{sBR}, 10"); e(f"s_add_u32 s{sOUT3}, s{sOUT3}, s{sT1}")
    e(f"s_and_b32 s{sT1}, s{sJ}, 7"); e(f"s_lshl_b32 s{sT1}, s{sT1}, 7"); e(f"s_add_u32 s{sOUT3}, s{sOUT3}, s{sT1}")
    wbase(0, sG0); wbase(1, sG0+1)

def lds_wait(off, val):
    L = e.newlab("L_lw"); D = L + "d"
    e(f"s_mov_b32 s{sCNT}, 0")
    e.label(L)
    e(f"ds_read_b32 v{vFL}, v{vFL+3} offset:{off}")
    e(f"s_add_u32 s{sCNT}, s{sCNT}, 1"); e(f"s_cmp_gt_u32 s{sCNT}, {O.pollmax*8}")
    e("s_waitcnt lgkmcnt(0)")
    e(f"v_cmp_ne_u32 vcc, {val}, v{vFL}")
    e(f"s_cbranch_scc1 {D}")
    e(f"s_cbranch_vccz {D}"); e("s_sleep 1"); e(f"s_branch {L}")
    e.label(D)

def p3():
    e.c("---- P3 (waves 0..3)")
    def wrd(buf, k):
        for ct in range(2):
            d = WB + 8*k + 4*ct
            e(f"ds_read_b64_tr_b16 {vr(d,2)}, v{vW[buf][ct]} offset:{k*8192}")
            e(f"ds_read_b64_tr_b16 {vr(d+2,2)}, v{vW[buf][ct]} offset:{k*8192 + 1024}")
    e.label("L_p3go")
    for k in range(4): wrd(0, k)
    e.stamp(9); e.stamp(13, 7)
    for k in range(32):
        q, kk = divmod(k, 8)
        if k == 16:
            e(f"s_cmp_lg_u32 s{SLD+2}, 0"); e("s_cbranch_scc1 L_p3b")
            e.stamp(5, 7)
            e("s_barrier"); e.stamp(10); e.stamp(7, 7)
            if O.ltouch: o_touch(0xff00ff00, 0)
            for k2 in range(16, 16+O.ad): o_ld(k2, sG0 + k2//8)
            e.label("L_p3b")
            e.stamp(8, 7)
        e(f"s_waitcnt vmcnt({min(O.ad-1, 31-k)}) lgkmcnt({min(12, 4*(31-k))})")
        mfma(A0, WB + 8*kk, OFR(k), A0 if k else "0")
        if k + O.ad < 32: o_ld(k+O.ad, sG0+(k+O.ad)//8, SLD if (k < 16 <= k+O.ad) else SWS)
        mfma(A1, WB + 8*kk + 4, OFR(k), A1 if k else "0")
        if k + 4 < 32: wrd(((k+4)//8) % 2, (k+4) % 8)
        if kk == 3 and q < 2: wbase(q, sG0+q+2)
    e.stamp(9, 7)
    e("s_nop 10")
    cvt8(72, A0, 8); cvt8(80, A1, 8)
    fl = ["", " sc1", " nt", " sc1 nt", " sc0 sc1", " sc0 sc1 nt", " sc0 nt"][O.outsc]
    if O.tpose:
        for i in range(4): e(f"ds_write_b128 v{vTW+i}, {vr(72+4*i,4)}")
        for i in range(4): e(f"ds_read_b128 {vr(88+4*i,4)}, v{vTR} offset:{i*1024}")
        for i in range(4):
            e(f"s_waitcnt lgkmcnt({3-i})")
            e(f"buffer_store_dwordx4 {vr(88+4*i,4)}, v{vO0}, {srd(SOUT)}, s{sOUT3} offen{fl}")
            if i < 3: e(f"s_add_u32 s{sOUT3}, s{sOUT3}, 0x4000")
    else:
        for i in range(4): e(f"buffer_store_dwordx4 {vr(72+4*i,4)}, v{(vO0, vO1)[i//2]}, {srd(SOUT)}, s{sOUT3} offen offset:{16*(i%2)}{fl}")
    if O.stamps:
        e.stamp(10, 7); e("s_waitcnt vmcnt(0)"); e.stamp(11); e.stamp(11, 7)
        e.label("L_stamps")
        e(f"s_memrealtime {sr(sVM)}"); e("s_waitcnt lgkmcnt(0)")
        e(f"s_lshl_b32 s{sT0}, s2, 3"); e(f"s_add_u32 s{sT0}, s{sT0}, s{sW}"); e(f"s_lshl_b32 s{sT0}, s{sT0}, 6"); e(f"s_add_u32 s{sT0}, s{sT0}, {WS_ST}")
        e("s_mov_b64 exec, 1")
        for i in range(1, 14):
            e(f"s_sub_u32 s{sT1}, s{ST0+2*i}, s{ST0}"); e(f"v_mov_b32 v{vU1}, s{sT1}")
            e(f"buffer_store_dword v{vU1}, off, {srd(SWS)}, s{sT0} offset:{4*i}")
        e(f"v_mov_b32 v{vU1}, s100"); e(f"buffer_store_dword v{vU1}, off, {srd(SWS)}, s{sT0} offset:56")
        e(f"v_mov_b32 v{vU1}, s{sVM}"); e(f"buffer_store_dword v{vU1}, off, {srd(SWS)}, s{sT0} offset:60")
    if O.probe:
        if O.probe == 11: e("s_waitcnt vmcnt(0)"); e("s_memrealtime s[76:77]")
        e("s_waitcnt lgkmcnt(0)")
        e(f"s_cmp_lg_u32 s{sBR}, {O.pbr}"); e("s_cbranch_scc1 L_end")
        e("s_sub_u32 s76, s76, s72"); e("s_lshl_b32 s76, s76, 1"); e("s_add_u32 s76, s76, 3000")
        e.label("L_spin"); e("s_memrealtime s[74:75]"); e("s_waitcnt lgkmcnt(0)"); e("s_sub_u32 s74, s74, s72")
        e(f"s_cmp_lt_u32 s74, s76"); e("s_cbranch_scc1 L_spin")
    if O.spin:
        e.label("L_spin"); e("s_memrealtime s[74:75]"); e("s_waitcnt lgkmcnt(0)"); e("s_sub_u32 s74, s74, s72")
        e(f"s_cmp_lt_u32 s74, {O.spin}"); e("s_cbranch_scc1 L_spin")
    e.label("L_end")
    e("s_endpgm")
    e.flush()

def xmax(reg):
    e(f"v_mov_b32 v{vFL+2}, v{reg}"); e("s_nop 1")
    e(f"v_permlane32_swap_b32 v{vFL+2}, v{reg}"); e("s_nop 1")
    e(f"v_max_f32 v{reg}, v{reg}, v{vFL+2}")

def slow_paths(a_body, KP):
    e.c("---- rare path: the stand-in max was unsafe, redo the unit with the true row max")
    def shift(op):
        for r_, d_ in ((vKA, 0x400), (vKA8, 0x400), (vVA, 0x100), (vVA8, 0x100)): e(f"{op} v{r_}, {d_:#x}, v{r_}")
    for u in range(2):
        e.label(f"L_B_slow{u}")
        e(f"s_mov_b32 s{sU}, {u}")
        for i in range(4): e(f"v_mov_b32 v{vQ+i}, v{vQ2+4*u+i}")
        if u == 0: e("s_branch L_B_slow")
        else: shift("v_add_u32")
    e.label("L_B_slow")
    e("s_waitcnt vmcnt(0)")
    prefill(range(vV, vV+8))
    e(f"v_mov_b32 v{vFL}, {NEG}")
    for ps in range(2):
        for i in range(9):
            if i > 0: e(f"s_cmp_gt_u32 {i}, s{sT}"); e(f"s_cbranch_scc1 L_B_s{ps}")
            rdK(i, 0, vK)
            if ps: rdV(i, 0, vV, dyn=False)
            e("s_waitcnt lgkmcnt(0)")
            mfma(vS, vK, vQ, vML if i == 0 else (vMF if i == 8 else "0"))
            e("s_nop 11")
            if ps == 0:
                for r in range(0, 16, 2): e(f"v_max3_f32 v{vFL}, v{vFL}, v{vS+r}, v{vS+r+1}")
            else:
                for r in range(16): e(f"v_sub_f32 v{vS+r}, v{vS+r}, v{vFL}")
                for r in range(16): e(f"v_exp_f32 v{vS+r}, v{vS+r}")
                cvt8(PB, vS, 8); e("s_nop 1")
                mfma(vO, vV, PB, vO if i > 0 else "0"); mfma(vO, vV+4, PB+4, vO)
                e("s_nop 7")
        e.label(f"L_B_s{ps}")
        if ps == 0: xmax(vFL)
    e("s_nop 11")
    norm(vO, vP+4)
    e(f"s_cmp_eq_u32 s{sU}, 0"); e("s_cbranch_scc1 L_B_fin0")
    shift("v_subrev_u32")
    e("s_branch L_B_ok1")
    e.label("L_B_fin0")
    e(f"buffer_store_dwordx4 {vr(vP+4,4)}, v{vL16}, {srd(SWS)}, s{sOA} offen sc1")
    e("s_waitcnt vmcnt(0)"); flag_store(sF2)
    e("s_branch L_B_ok0")
    e.label("L_A_slow")
    for h in range(2):
        e(f"v_mov_b32 v{vFL+h}, {NEG}")
        mfma(vS, vK+4-4*h, vQ2+4*h, vML); e("s_nop 11")
        for r in range(0, 16, 2): e(f"v_max3_f32 v{vFL+h}, v{vFL+h}, v{vS+r}, v{vS+r+1}")
        e(f"s_cmp_eq_u32 s{sT}, 0"); e(f"s_cbranch_scc1 L_A_m{h}")
        mfma(vS, KP+4*h, vQ2+4*h, vMF); e("s_nop 11")
        for r in range(8, 16, 2): e(f"v_max3_f32 v{vFL+h}, v{vFL+h}, v{vS+r}, v{vS+r+1}")
        e.label(f"L_A_m{h}")
        xmax(vFL+h)
    a_body(True)
    e("s_branch L_A_ok")

prologue(); p1(); ab = attention(); p3(); slow_paths(*ab)
e("s_endpgm")

hdr = open("cdna_kernels/" + NAME + ".s.ref").read().split("; Override launch geometry")[0]
out = hdr + f"; @launch grid=(256,1,1) block=(512,1,1) lds={LDS_BYTES}\n"
out += f""".amdgcn_target "amdgcn-amd-amdhsa--gfx950"
.text
.globl {NAME}_kernel
{'.p2align 12' if O.al12 else ''}
.p2align 8
.type {NAME}_kernel,@function
{NAME}_kernel:
""" + "\n".join(e.L) + f"""
.section .rodata,"a"
.p2align 6
.amdhsa_kernel {NAME}_kernel
  .amdhsa_next_free_vgpr 256
  .amdhsa_next_free_sgpr {102 if O.stamps else (80 if (O.spin or O.probe) else 72)}
  .amdhsa_accum_offset 256
  .amdhsa_group_segment_fixed_size 0
  .amdhsa_kernarg_size 72
  .amdhsa_user_sgpr_count 2
  .amdhsa_user_sgpr_kernarg_segment_ptr 1
  .amdhsa_system_sgpr_workgroup_id_x 1
.end_amdhsa_kernel
"""
open(sys.argv[1], "w").write(out)
```

```python
import sys
NAME = "concat_heads__sliding_local_dilated__sliding_block__prompt"

class Opt:
    stamps = 0
    force_slow = 0
    pollmax = 400000
    only = 0
    delayA = 7
    lag = 4
    kflag = 77
    kchk = 65
    imp = 87
    oflag = 13
    vpos = 2
    uni = 0
    xspan = 1
    torder = 2
    tseq = 2
    tn = 12
    tnt = 0
    rotA = 1
    yprio = 0
    prew = 62
    imp1 = 77
    fair = 1
    tpose = 1
    pdelay = 0
    spin = 0
    x = 0
    wqs = 2
    p1prio = 1
    epi = 11
    tchB = 0
    wo_n = 4
    tchA = 5
    ctouch = 1
    warm = 0
    al12 = 1
    tE = 99
    ltouch = 0
    awo = 1
    pre = 8
    ad = 8
    spoll = 1
    stlb = 0
    sp32 = 1
    fprio = 1
    swp = 1
    probe = 0
    pbr = 0
    rt = 0
    tlb = 0
    tlbB = 0
    bpre = 8
    aflag = 0
    hsmp = 90
    sprio = 1
    vflag = 81
    stg = 0
    impfirst = 1
    vex = 66
    ev = 0
    prew0 = 0
    vlate = 1
    prew2 = 0
    hint = 0
    poi_at = 7
    b2 = 8
    late1 = 4
    zrow = 1
    fredo = 0
    remap = 1
    smp_at = 17
    wo_at = 9
    tch_at = 4
    quiet = 1
    prio = 0
    outsc = 1
    stag = 0
    sleep = 0
O = Opt()
for a in sys.argv[2:]:
    k, v = a.split("="); assert hasattr(O, k), k
    setattr(O, k, int(v))

WS_O = 8 << 20
WS_F1 = 12 << 20
F1V = 262144
WS_F2 = WS_F1 + 524288
WS_ST = 13 << 20
WS_BYTES = 14 << 20
LDS_BYTES = 163840
L_WV = 65536; L_WK = 131072; L_KV = 65536

class E:
    def __init__(s): s.L = []; s.vq = []; s.lq = []; s.lab = 0; s.ool = []
    def __call__(s, t): s.L.append("    " + t)
    def label(s, n): s.L.append(n + ":")
    def c(s, t): s.L.append("    ; " + t)
    def vm(s, t, tag): s(t); s.vq.append(tag)
    def ds(s, t, tag): s(t); s.lq.append(tag)
    def _n(s, q, tag): return len(q) - 1 - max(i for i, x in enumerate(q) if x == tag)
    def wait_vm(s, tag):
        if tag not in s.vq: return
        n = s._n(s.vq, tag); assert n <= 63
        s(f"s_waitcnt vmcnt({n})"); s.vq = s.vq[len(s.vq)-n:]
    def wait_ds(s, tag):
        if tag not in s.lq: return
        n = s._n(s.lq, tag); assert n <= 15
        s(f"s_waitcnt lgkmcnt({n})"); s.lq = s.lq[len(s.lq)-n:]
    def wait_all(s): s("s_waitcnt vmcnt(0)"); s.vq = []
    def ds_all(s): s("s_waitcnt lgkmcnt(0)"); s.lq = []
    def stamp(s, i, mode=1):
        if O.probe == i and mode == 1: s("s_memrealtime s[76:77]")
        if O.stamps == mode: s(f"{'s_memrealtime' if O.rt else 's_memtime'} s[{ST0+2*i}:{ST0+1+2*i}]")
    def stub(s):
        if O.warm:
            s.nstub = getattr(s, "nstub", 0); s.label(f"L_stub{s.nstub}"); s("s_cbranch_execz L_warmed"); s.nstub += 1
    def newlab(s, p): s.lab += 1; return f"{p}_{s.lab}"
    def cond(s, cmp_, body):
        L = s.newlab("L_c"); s(cmp_); s(f"s_cbranch_scc1 {L}"); s.label(L + "r")
        s.ool.append((L, body))
    def flush(s):
        while s.ool:
            L, body = s.ool.pop(0)
            s.label(L); body(); s(f"s_branch {L}r")
e = E()
def vr(a, n): return f"v[{a}:{a+n-1}]"
def sr(a): return f"s[{a}:{a+1}]"
def srd(a): return f"s[{a}:{a+3}]"

SX, SW, SWO, SOUT, SWS, SDBG = 8, 12, 16, 20, 24, 28
SEXP = 8
SOWO = 28
sF1, sKV = 0, 1
sBR, sRB, sG, sW, sM0 = 3, 4, 5, 6, 7
sCX = 32; sCW = 40; sVMK = 32
sNON = 48
sT0, sT1, sT2, sT3 = 50, 51, 52, 53
sJ, sXCD, sTT, sFT, sCNT, sT = 54, 55, 56, 57, 58, 59
sEX = 60; sVM = 62
sIG, sIF, sIMP, sPEND = 64, 65, 66, 67
sOA, sF2 = 68, 69
sOW = 70
sU = 53
sT3P = 55
ST0 = 72
SOTH = 20
SIMP = 12
SDUM = 12
vL, vX0, vX1, vW0, vWR, vWR1, vWR2, vXR, vL16 = 1, 2, 3, 4, 5, 6, 7, 8, 12
vT0, vT1, vT2 = 13, 14, 15
vNON = 14
vEXP = 0
vKA, vVA, vKA8, vVA8 = 2, 3, 0, 7
vWO = 4
vFL = 8
vQ2 = 16; vCV = 24; vP = 24; vQ = 32
vML, vMF = 40, 56
accA, accB, accQ = 72, 88, 24
vS = 72
WF = [104, 108, 112, 116, 120, 124, 16, 20]
vXF = 128
vO = 104; vK = 136; vV = 144; PB = 176
sBAD = 67
vU0, vU1, vU2 = 36, 37, 38
vONE = 6
vL8 = 13
NEG = "0xff800000"

def mfma(d, a, b, c): e(f"v_mfma_f32_32x32x16_bf16 {vr(d,16)}, {vr(a,4)}, {vr(b,4)}, {c if isinstance(c,str) else vr(c,16)}")
def dma(v, s_, soff, ldsdst, tag):
    e(f"s_add_u32 m0, s{sM0}, {ldsdst}"); e("s_nop 0")
    e.vm(f"buffer_load_dwordx4 v{v}, {srd(s_)}, s{soff} offen lds", tag)
def st_pieces(t):
    sl = t % 4
    def wv():
        e(f"s_add_u32 m0, s{sM0}, {L_WV + sl*16384 + 8192 - 1024}"); e("s_nop 0")
        e.vm(f"buffer_load_dwordx4 v{vW0}, {srd(SW)}, s{sCW+t} offen offset:1024 lds", f"st{t}")
    return [lambda: dma(vX0, SX, sCX+t, sl*16384, f"st{t}"),
            lambda: dma(vW0, SW, sCW+t, L_WV + sl*16384, f"st{t}"),
            lambda: dma(vX1, SX, sCX+t, sl*16384 + 8192, f"st{t}"), wv]
def cvt(dst, src, i): e(f"v_cvt_pk_bf16_f32 v{dst+i}, v{src+2*i}, v{src+2*i+1}")
def cvt8(dst, src, n=4):
    for i in range(n): cvt(dst, src, i)

def masks(kind):
    e(f"v_and_b32 v{vT0}, 31, v{vL}"); e(f"v_lshrrev_b32 v{vT1}, 5, v{vL}")
    e(f"v_lshlrev_b32 v{vT1}, 2, v{vT1}"); e(f"v_sub_u32 v{vT0}, v{vT0}, v{vT1}")
    if kind == "B":
        e(f"s_mov_b32 s{sT0}, {NEG}")
        for r in range(16):
            c = 8*(r >> 2) + (r & 3)
            e(f"v_subrev_u32 v{vT1}, {c}, v{vT0}"); e(f"v_and_b32 v{vML+r}, s{sT0}, v{vT1}"); e(f"v_xor_b32 v{vMF+r}, s{sT0}, v{vML+r}")
    else:
        e(f"s_mov_b32 s{sT0}, 0xf149f2ca")
        for r in range(16):
            c = 8*(r >> 2) + (r & 3)
            e(f"v_subrev_u32 v{vT1}, {c}, v{vT0}"); e(f"v_and_b32 v{vT1}, -15, v{vT1}"); e(f"v_cvt_f32_u32 v{vT1}, v{vT1}"); e(f"v_mul_f32 v{vML+r}, s{sT0}, v{vT1}")
            if r >= 8:
                e(f"v_add_u32 v{vT1}, {32-c}, v{vT0}"); e(f"v_and_b32 v{vT1}, -15, v{vT1}"); e(f"v_cvt_f32_u32 v{vT1}, v{vT1}"); e(f"v_mul_f32 v{vMF+r}, s{sT0}, v{vT1}")
            else:
                e(f"v_mov_b32 v{vMF+r}, s{sT0}")

def prologue():
    e("s_cmp_ge_u32 s2, 256"); e("s_cbranch_scc1 L_end")
    if O.only == 1: e("s_cmp_ge_u32 s2, 128"); e("s_cbranch_scc1 L_end")
    if O.stamps: e(f"{'s_memrealtime' if O.rt else 's_memtime'} {sr(ST0)}"); e("s_memrealtime s[100:101]")
    if O.spin or O.probe: e("s_memrealtime s[72:73]")
    e("s_load_dwordx16 s[32:47], s[0:1], 0"); e("s_load_dwordx2 s[24:25], s[0:1], 64")
    if O.ctouch:
        e(f"s_getpc_b64 {sr(sVM)}")
        e(f"s_lshr_b32 s{sT0}, s2, 3"); e(f"s_mul_i32 s{sT0}, s{sT0}, 5"); e(f"v_add_u32 v{vT0}, s{sT0}, v0"); e(f"v_lshlrev_b32 v{vT0}, 7, v{vT0}")
        e(f"v_cmp_gt_u32 vcc, 5, v0"); e(f"s_and_saveexec_b64 {sr(sEX)}, vcc"); e("s_cbranch_execz L_noct")
        e(f"global_load_dword v254, v{vT0}, {sr(sVM)}")
        e.label("L_noct"); e("s_mov_b64 exec, -1")
    e(f"v_lshrrev_b32 v{vT0}, 6, v0"); e(f"v_and_b32 v{vL}, 63, v0")
    e(f"v_readfirstlane_b32 s{sW}, v{vT0}")
    e(f"s_and_b32 s{sXCD}, s2, 7"); e(f"s_lshr_b32 s{sJ}, s2, 3")
    if O.remap: e(f"s_bfe_u32 s{sT0}, s2, 0x10002"); e(f"s_lshl_b32 s{sT0}, s{sT0}, 1"); e(f"s_xor_b32 s{sXCD}, s{sXCD}, s{sT0}")
    e(f"s_lshr_b32 s{sT0}, s{sXCD}, 1"); e(f"s_lshl_b32 s{sT0}, s{sT0}, 2"); e(f"s_bfe_u32 s{sT1}, s{sJ}, 0x20002")
    e(f"s_add_u32 s{sRB}, s{sT0}, s{sT1}")
    e(f"s_and_b32 s{sT0}, s{sXCD}, 1"); e(f"s_lshl_b32 s{sT0}, s{sT0}, 2"); e(f"s_and_b32 s{sT2}, s{sJ}, 3")
    e(f"s_add_u32 s{sG}, s{sT0}, s{sT2}")
    e(f"s_add_u32 s{sT3}, s{sT1}, s{sT2}"); e(f"s_lshl_b32 s{sT3}, s{sT3}, 1")
    e(f"s_lshl_b32 s{sM0}, s{sW}, 10")
    e(f"v_lshrrev_b32 v{vT0}, 4, v{vL}")
    e(f"s_and_b32 s{sT0}, s{sW}, 1"); e(f"s_lshl_b32 s{sT0}, s{sT0}, 2")
    e(f"v_add_u32 v{vT0}, s{sT0}, v{vT0}")
    e(f"v_and_b32 v{vT1}, 7, v{vL}"); e(f"v_xor_b32 v{vT0}, v{vT0}, v{vT1}"); e(f"v_lshlrev_b32 v{vT0}, 4, v{vT0}")
    e(f"v_lshrrev_b32 v{vT1}, 3, v{vL}"); e(f"v_lshl_add_u32 v{vX0}, v{vT1}, 10, v{vT0}")
    e(f"s_lshl_b32 s{sT0}, s{sW}, 13"); e(f"v_add_u32 v{vX0}, s{sT0}, v{vX0}"); e(f"v_add_u32 v{vX1}, 0x10000, v{vX0}")
    e(f"v_bfe_u32 v{vT0}, v{vL}, 2, 3")
    e(f"s_lshl_b32 s{sT0}, s{sW}, 3"); e(f"v_add_u32 v{vT0}, s{sT0}, v{vT0}")
    e(f"v_lshrrev_b32 v{vT1}, 5, v{vL}"); e(f"v_lshlrev_b32 v{vT1}, 6, v{vT1}")
    e(f"v_and_b32 v{vT2}, 3, v{vL}"); e(f"v_lshl_add_u32 v{vT1}, v{vT2}, 4, v{vT1}")
    e(f"v_mul_u32_u24 v{vW0}, 3072, v{vT0}"); e(f"v_add_u32 v{vW0}, v{vW0}, v{vT1}"); e(f"v_add_u32 v{vW0}, 0x400, v{vW0}")
    e(f"s_mov_b32 s{SX+2}, {2048*1024}"); e(f"s_mov_b32 s{SX+3}, 0x20000")
    e(f"s_mov_b32 s{SW+2}, {512*3072}"); e(f"s_mov_b32 s{SW+3}, 0x20000")
    e(f"s_mov_b32 s{SOTH+3}, 0x20000")
    e(f"s_lshl_b32 s{sT0}, s{sRB}, 17"); e(f"s_lshl_b32 s{sT1}, s{sG}, 7")
    e(f"s_cmp_lt_u32 s2, 128"); e(f"s_cselect_b32 s{sBR}, 1, 0")
    e(f"s_cselect_b32 s{sT3}, 0, s{sT3}")
    e("s_waitcnt lgkmcnt(0)")
    e(f"s_cselect_b64 {sr(SX)}, s[38:39], s[32:33]")
    e(f"s_cselect_b64 {sr(SW)}, s[40:41], s[34:35]")
    e(f"s_cselect_b64 {sr(SWO)}, s[42:43], s[36:37]")
    e(f"s_cselect_b64 {sr(sOW)}, s[36:37], s[42:43]")
    e(f"s_mov_b64 {sr(SDBG)}, s[46:47]")
    e("s_cbranch_scc1 L_notouch")
    sp = O.xspan
    e(f"v_lshrrev_b32 v{vT0}, {sp}, v{vL}"); e(f"v_lshlrev_b32 v{vT0}, 10, v{vT0}")
    e(f"v_and_b32 v{vT1}, {(1 << sp) - 1}, v{vL}"); e(f"v_lshl_add_u32 v{vT0}, v{vT1}, 7, v{vT0}")
    e(f"v_lshrrev_b32 v{vT1}, 4, v{vL}"); e(f"v_bfe_u32 v{vT2}, v{vL}, 2, 2"); e(f"v_lshl_add_u32 v{vT1}, v{vT1}, 6, v{vT2}")
    e(f"v_mul_u32_u24 v{vT1}, 3072, v{vT1}"); e(f"v_and_b32 v{vT2}, 3, v{vL}"); e(f"v_lshl_add_u32 v{vT1}, v{vT2}, 7, v{vT1}")
    sXB, sWB = sIG, sIF
    e(f"s_and_b32 s{sXB}, s{sG}, 3"); e(f"s_lshl_b32 s{sXB}, s{sXB}, 15"); e(f"s_add_u32 s{sXB}, s{sXB}, s{sT0}")
    e(f"s_and_b32 s{sWB}, s{sJ}, 15"); e(f"s_mul_i32 s{sWB}, s{sWB}, {4*3072}"); e(f"s_and_b32 s{sT2}, s{sT1}, 512"); e(f"s_add_u32 s{sWB}, s{sWB}, s{sT2}")
    code = {0: [8, 2, 9, 10, 3, 11, 4, 5, 0, 1], 1: [8, 9, 10, 11, 2, 3, 4, 5, 0, 1], 2: [8, 2, 4, 9, 10, 3, 5, 11, 0, 1]}[O.torder]
    items = [(1, c) for c in code] + [(0, c) for c in code]
    if O.tseq == 1:
        items = [(1, c) for c in code[:8]] + [(0, c) for c in code[:6]] + [(1, c) for c in code[8:]] + [(0, c) for c in code[6:]]
    if O.tseq == 2: items = [(1, c) for c in code] + [(0, c) for c in (0, 1)]
    if O.tseq == 3: items = [(1, c) for c in code] + [(0, c) for c in (2, 3, 4, 5, 0, 1)]
    if O.tseq == 4: items = [(1, c) for c in code[:8]] + [(0, c) for c in (2, 3, 4, 5)] + [(1, c) for c in code[8:]] + [(0, c) for c in (0, 1)]
    items = items[:O.tn]
    for r in range((len(items) + 7) // 8):
        rnd = items[8*r:8*r+8]
        pk = sum(c << (4*i) for i, (b_, c) in enumerate(rnd)); bm = sum(b_ << i for i, (b_, c) in enumerate(rnd))
        if len(rnd) < 8: e(f"s_cmp_ge_u32 s{sW}, {len(rnd)}"); e(f"s_cbranch_scc1 L_t{r}d")
        e(f"s_lshl_b32 s{sT2}, s{sW}, 2"); e(f"s_lshr_b32 s{sT2}, {pk:#x}, s{sT2}")
        e(f"s_bitcmp1_b32 s{sT2}, 3"); e(f"s_cbranch_scc1 L_t{r}x")
        e(f"s_bitcmp1_b32 {bm:#x}, s{sW}"); e(f"s_cselect_b64 {sr(SOTH)}, s[40:41], s[34:35]"); e(f"s_mov_b32 s{SOTH+2}, {512*3072}")
        e(f"s_and_b32 s{sCNT}, s{sT2}, 1"); e(f"s_mul_i32 s{sCNT}, s{sCNT}, {256*3072}"); e(f"s_add_u32 s{sCNT}, s{sCNT}, s{sWB}")
        e(f"s_and_b32 s{sT2}, s{sT2}, 6"); e(f"s_lshl_b32 s{sT2}, s{sT2}, 9"); e(f"s_add_u32 s{sCNT}, s{sCNT}, s{sT2}")
        e(f"buffer_load_dword v{250+r}, v{vT1}, {srd(SOTH)}, s{sCNT} offen{' nt' if O.tnt else ''}")
        e(f"s_branch L_t{r}d")
        e.label(f"L_t{r}x")
        e(f"s_bitcmp1_b32 {bm:#x}, s{sW}"); e(f"s_cselect_b64 {sr(SOTH)}, s[38:39], s[32:33]"); e(f"s_mov_b32 s{SOTH+2}, {2048*1024}")
        e(f"s_and_b32 s{sT2}, s{sT2}, 3")
        if sp == 2:
            e(f"s_and_b32 s{sCNT}, s{sT2}, 1"); e(f"s_lshl_b32 s{sCNT}, s{sCNT}, 14"); e(f"s_lshr_b32 s{sT2}, s{sT2}, 1"); e(f"s_lshl_b32 s{sT2}, s{sT2}, 9"); e(f"s_add_u32 s{sT2}, s{sT2}, s{sCNT}")
        else: e(f"s_lshl_b32 s{sT2}, s{sT2}, {8 if sp == 1 else 13}")
        e(f"s_add_u32 s{sCNT}, s{sT2}, s{sXB}")
        e(f"buffer_load_dword v{250+r}, v{vT0}, {srd(SOTH)}, s{sCNT} offen{' nt' if O.tnt else ''}")
        e.label(f"L_t{r}d")
        e("s_barrier")
    if O.tlb:
        e(f"s_cmp_lg_u32 s{sW}, 7"); e("s_cbranch_scc1 L_notlb")
        if O.tlb >= 20: e(f"v_lshlrev_b32 v{vT0}, {O.tlb}, v{vL}")
        else:
            e(f"s_and_b32 s{sT2}, s{sJ}, 15"); e(f"v_lshlrev_b32 v{vT0}, 4, v{vL}"); e(f"v_add_u32 v{vT0}, s{sT2}, v{vT0}"); e(f"v_lshlrev_b32 v{vT0}, {O.tlb}, v{vT0}")
        for k_, (p_, n_) in enumerate((("s[24:25]", 13 << 20), ("s[44:45]", 4 << 20), ("s[36:37]", 512 << 10), ("s[42:43]", 512 << 10))):
            e(f"s_mov_b64 {sr(SOTH)}, {p_}"); e(f"s_mov_b32 s{SOTH+2}, {n_}")
            e(f"buffer_load_dword v{244+k_}, v{vT0}, {srd(SOTH)}, 0 offen")
        e.label("L_notlb")
    if not O.rotA: e(f"s_mov_b32 s{sT3}, 0")
    e.label("L_notouch")
    e(f"s_mov_b64 {sr(SOUT)}, s[44:45]")
    def chunk(t):
        e(f"s_add_u32 s{sT2}, s{sT3}, {t}"); e(f"s_and_b32 s{sT2}, s{sT2}, 7")
        e(f"s_lshl_b32 s{sCX+t}, s{sT2}, 7"); e(f"s_add_u32 s{sCX+t}, s{sCX+t}, s{sT0}")
        e(f"s_mul_i32 s{sCW+t}, s{sT2}, {64*3072}"); e(f"s_add_u32 s{sCW+t}, s{sCW+t}, s{sT1}")
    chunk(0)
    for p in st_pieces(0): p()
    e(f"s_mov_b32 s{SDBG+2}, 256"); e(f"s_mov_b32 s{SDBG+3}, 0x20000")
    e(f"s_xor_b32 s{sT2}, s{sW}, 7"); e(f"s_or_b32 s{sT2}, s2, s{sT2}")
    def tag():
        e(f"s_memrealtime {sr(sNON)}"); e("s_waitcnt lgkmcnt(0)")
        e(f"s_or_b32 s{sNON+1}, s{sNON+1}, 0x80000000")
        e(f"v_mov_b32 v{vCV}, s{sNON}"); e(f"v_mov_b32 v{vCV+1}, s{sNON+1}")
        e("s_mov_b64 exec, 1")
        e(f"buffer_store_dwordx2 {vr(vCV,2)}, off, {srd(SDBG)}, 0 sc1")
        e("s_mov_b64 exec, -1")
    e.cond(f"s_cmp_eq_u32 s{sT2}, 0", tag)
    chunk(1)
    for p in st_pieces(1)[:4-O.late1]: p()
    for t in range(2, 8): chunk(t)
    e(f"s_mov_b32 s{SWO+2}, {512*1024}"); e(f"s_mov_b32 s{SWO+3}, 0x20000")
    e(f"s_mov_b32 s{SOUT+2}, {2048*2048}")
    e(f"s_mov_b32 s{SWS+2}, {WS_BYTES}"); e(f"s_mov_b32 s{SWS+3}, 0x20000")
    e(f"s_lshr_b32 s{sFT}, s{sW}, 2"); e(f"s_mul_i32 s{sTT}, s{sFT}, 3"); e(f"s_and_b32 s{sT0}, s{sW}, 3"); e(f"s_xor_b32 s{sTT}, s{sTT}, s{sT0}")
    e(f"s_lshl_b32 s{sT}, s{sRB}, 2"); e(f"s_add_u32 s{sT}, s{sT}, s{sTT}")
    e(f"v_and_b32 v{vT0}, 31, v{vL}"); e(f"v_lshrrev_b32 v{vT1}, 5, v{vL}")
    e(f"v_bfe_u32 v{vT2}, v{vL}, 1, 3"); e(f"v_xor_b32 v{vT2}, v{vT2}, v{vT1}"); e(f"v_lshlrev_b32 v{vT2}, 4, v{vT2}")
    e(f"v_lshl_add_u32 v{vXR}, v{vT0}, 7, v{vT2}")
    e(f"s_lshl_b32 s{sT0}, s{sTT}, 12"); e(f"v_add_u32 v{vXR}, s{sT0}, v{vXR}")
    for s_ in range(1, 4): e(f"v_xor_b32 v{vXR+s_}, {s_*32}, v{vXR}")
    e(f"v_bfe_u32 v{vT2}, v{vL}, 2, 2"); e(f"v_lshlrev_b32 v{vWR}, 6, v{vT2}")
    e(f"v_bfe_u32 v{vT2}, v{vL}, 4, 1"); e(f"v_lshl_add_u32 v{vWR}, v{vT2}, 5, v{vWR}")
    e(f"v_and_b32 v{vT2}, 3, v{vL}"); e(f"v_lshl_add_u32 v{vWR}, v{vT2}, 3, v{vWR}")
    e(f"v_lshl_add_u32 v{vWR}, v{vT1}, 10, v{vWR}")
    e(f"s_lshl_b32 s{sT0}, s{sFT}, 9"); e(f"v_add_u32 v{vWR}, s{sT0}, v{vWR}")
    e(f"v_add_u32 v{vWR1}, 0x10000, v{vWR}"); e(f"v_add_u32 v{vWR2}, 0x20000, v{vWR}")
    e(f"v_lshlrev_b32 v{vL16}, 4, v{vL}")
    e(f"s_lshl_b32 s{sT0}, s{sTT}, 13"); e(f"s_lshl_b32 s{sT1}, s{sFT}, 11"); e(f"s_add_u32 s{sT0}, s{sT0}, s{sT1}")
    e(f"s_add_u32 s{sT0}, s{sT0}, {L_KV + 8*8192}"); e(f"v_add_u32 v{vEXP}, s{sT0}, v{vL16}")
    e(f"s_lshl_b32 s{sT0}, s{sBR}, 3"); e(f"s_add_u32 s{sT0}, s{sT0}, s{sG}"); e(f"s_lshl_b32 s{sT0}, s{sT0}, 6"); e(f"s_add_u32 s{sT0}, s{sT0}, s{sT}")
    e(f"s_lshl_b32 s{sKV}, s{sT0}, 13"); e(f"s_add_u32 s{sKV}, s{sKV}, s{sT1}")
    e(f"s_lshl_b32 s{sF1}, s{sT0}, 8"); e(f"s_lshl_b32 s{sT1}, s{sFT}, 7"); e(f"s_add_u32 s{sF1}, s{sF1}, s{sT1}"); e(f"s_add_u32 s{sF1}, s{sF1}, {WS_F1}")
    e(f"s_sub_u32 s{sT0}, s{sT0}, s{sTT}"); e(f"s_add_u32 s{sT0}, s{sT0}, s{sW}"); e(f"s_sub_u32 s{sT0}, s{sT0}, 8")
    e(f"s_lshl_b32 s{sT1}, s{sRB}, 2"); e(f"s_add_u32 s{sT1}, s{sT1}, s{sW}"); e(f"s_cmp_lt_u32 s{sT1}, 8"); e(f"s_cselect_b32 s{sIMP}, 1, 0")
    e(f"s_cselect_b32 s{sT0}, 0, s{sT0}")
    e(f"s_lshl_b32 s{sIG}, s{sT0}, 13"); e(f"s_lshl_b32 s{sIF}, s{sT0}, 8"); e(f"s_add_u32 s{sIF}, s{sIF}, {WS_F1}")
    e(f"s_and_b32 s{sT0}, s{sF1}, 0xffffff00"); e(f"s_sub_u32 s{sT0}, s{sT0}, 256")
    e(f"s_cmp_eq_u32 s{sBR}, 0"); e(f"s_cselect_b32 s{sIMP}, s{sTT}, s{sIMP}"); e(f"s_cselect_b32 s{sIF}, s{sT0}, s{sIF}")
    e(f"s_lshl_b32 s{sT0}, s{sBR}, 6"); e(f"s_add_u32 s{sT0}, s{sT0}, s{sT}")
    e(f"s_lshl_b32 s{sT1}, s{sT0}, 4"); e(f"s_lshl_b32 s{sT2}, s{sG}, 1"); e(f"s_add_u32 s{sT1}, s{sT1}, s{sT2}"); e(f"s_add_u32 s{sT1}, s{sT1}, s{sFT}")
    e(f"s_lshl_b32 s{sOA}, s{sT1}, 11"); e(f"s_add_u32 s{sOA}, s{sOA}, {WS_O}")
    e(f"s_lshl_b32 s{sF2}, s{sT1}, 8"); e(f"s_add_u32 s{sF2}, s{sF2}, {WS_F2}")
    e(f"s_mov_b32 s{sEX}, 0xffff"); e(f"s_mov_b32 s{sEX+1}, 0xffff")
    e(f"s_lshl_b32 s{sT0}, s{sXCD}, 1"); e(f"s_bfe_u32 s{sT1}, s{sJ}, 0x10003"); e(f"s_add_u32 s{sT0}, s{sT0}, s{sT1}")
    e(f"s_lshl_b32 s{sT0}, s{sT0}, 2"); e(f"s_and_b32 s{sT1}, s{sW}, 3"); e(f"s_add_u32 s{sT3P}, s{sT0}, s{sT1}")
    e(f"s_cmp_eq_u32 s{sBR}, 0"); e("s_cbranch_scc1 L_maskA")
    masks("B"); e("s_branch L_maskdone")
    e.flush()
    e.label("L_maskA"); masks("A")
    e.label("L_maskdone")
    if O.warm:
        e("s_mov_b64 exec, 0")
        for i in range(7): e(f"s_cmp_eq_u32 s{sW}, {i}"); e(f"s_cbranch_scc1 L_stub{i}")
        e("s_branch L_stub7")
        e.label("L_warmed"); e("s_mov_b64 exec, -1")
    e(f"v_lshlrev_b32 v{vL8}, 3, v{vL}")
    for p in st_pieces(1)[4-O.late1:]: p()
    if O.prew0:
        e("s_mov_b32 exec_hi, 0")
        e.vm(f"buffer_store_dwordx2 {vr(vL16,2)}, v{vL8}, {srd(SWS)}, s{sF2} offen sc1", "prew")
        e("s_mov_b32 exec_lo, 0xffff"); e(f"s_add_u32 s{sT0}, s{sF1}, {F1V}")
        e.vm(f"buffer_store_dwordx2 {vr(vL16,2)}, v{vL8}, {srd(SWS)}, s{sF1} offen sc1", "prew")
        e.vm(f"buffer_store_dwordx2 {vr(vL16,2)}, v{vL8}, {srd(SWS)}, s{sT0} offen sc1", "prew")
        e("s_mov_b64 exec, -1")
    if O.stlb:
        e(f"s_add_u32 s{sVM}, s{SWS}, {WS_F1 + 0xff000}"); e(f"s_addc_u32 s{sVM+1}, s{SWS+1}, 0")
        e.cond(f"s_cmp_eq_u32 s{sW}, 0", lambda: e(f"s_load_dword s{sPEND}, {sr(sVM)}, 0"))

def flag_store(soff, s_=SWS, off=0):
    e("s_mov_b64 exec, 0xffff")
    e.vm(f"buffer_store_dwordx2 {vr(vNON,2)}, v{vL8}, {srd(s_)}, s{soff} offen{f' offset:{off}' if off else ''} sc1", "flag")
    e("s_mov_b64 exec, -1")
def flag_ld(tag):
    e.vm(f"buffer_load_dwordx4 {vr(vFL,4)}, off, {srd(SWS)}, s{sIF} sc1", tag)
def flag_cmp():
    e(f"v_cmp_ne_u64 vcc, {sr(sNON)}, {vr(vFL,2)}"); e(f"v_cmp_ne_u64 {sr(sVM)}, {sr(sNON)}, {vr(vFL+2,2)}")
    e(f"s_or_b64 {sr(sVM)}, {sr(sVM)}, vcc")
def flag_poll():
    L = e.newlab("L_fp"); D = L + "d"
    e(f"s_mov_b32 s{sCNT}, 0")
    e.label(L)
    e(f"buffer_load_dwordx4 {vr(vFL,4)}, off, {srd(SWS)}, s{sIF} sc1")
    e(f"s_add_u32 s{sCNT}, s{sCNT}, 1"); e(f"s_cmp_gt_u32 s{sCNT}, {O.pollmax}"); e(f"s_cbranch_scc1 {D}")
    e("s_waitcnt vmcnt(0)")
    flag_cmp(); e(f"s_cbranch_scc1 {L}")
    e.label(D)
def spoll(soff, offs):
    L = e.newlab("L_sp"); D = L + "d"
    e(f"s_add_u32 s{sVM}, s{SWS}, s{soff}"); e(f"s_addc_u32 s{sVM+1}, s{SWS+1}, 0"); e(f"s_mov_b32 s{sCNT}, 0")
    e.label(L)
    w32 = O.sp32 and len(offs) > 4
    for i, o in enumerate(offs): e(f"s_load_dword s{sVMK+i}, {sr(sVM)}, {o} glc" if w32 else f"s_load_dwordx2 {sr(sVMK+2*i)}, {sr(sVM)}, {o} glc")
    e(f"s_add_u32 s{sCNT}, s{sCNT}, 1"); e(f"s_cmp_gt_u32 s{sCNT}, {O.pollmax}")
    e("s_waitcnt lgkmcnt(0)")
    e(f"s_cbranch_scc1 {D}")
    n2 = len(offs)//2 if w32 else len(offs)
    for i in range(n2): e(f"s_xor_b64 {sr(sVMK+2*i)}, {sr(sVMK+2*i)}, {sr(sT2) if w32 else sr(sNON)}")
    for i in range(1, n2): e(f"s_or_b64 {sr(sVMK)}, {sr(sVMK)}, {sr(sVMK+2*i)}")
    e(f"s_cbranch_scc1 {L}")
    e.label(D)
def vpoll(mask):
    L = e.newlab("L_vp"); D = L + "d"
    e(f"s_mov_b32 s{sCNT}, 0"); e(f"s_mov_b64 exec, {mask}")
    e.label(L)
    e(f"buffer_load_dwordx2 {vr(vFL,2)}, v{vFL+2}, {srd(SWS)}, s{sIF} offen sc1")
    e(f"s_add_u32 s{sCNT}, s{sCNT}, 1"); e(f"s_cmp_gt_u32 s{sCNT}, {O.pollmax}")
    e("s_waitcnt vmcnt(0)")
    e(f"v_cmp_ne_u64 vcc, {sr(sNON)}, {vr(vFL,2)}")
    e(f"s_cbranch_scc1 {D}"); e(f"s_cbranch_vccnz {L}")
    e.label(D)
    e("s_mov_b64 exec, -1")
def imp_dma(v, track=None):
    e(f"s_lshl_b32 s{sT1}, s{sW}, 13"); e(f"s_add_u32 m0, s{sT1}, {L_KV + v*4096}")
    e(f"s_add_u32 s{sT0}, s{sIG}, {v*4096}")
    for k in range(4):
        t = f"buffer_load_dwordx4 v{vL16}, {srd(SIMP)}, s{sT0} offen offset:{k*1024} sc1 lds"
        if track: e.vm(t, track)
        else: e(t)

def touch_wo(s_, tmp):
    e(f"s_and_b32 s{sT0}, s{sJ}, 15"); e(f"s_lshl_b32 s{sT0}, s{sT0}, 3"); e(f"s_add_u32 s{sT0}, s{sT0}, s{sW}")
    e(f"s_lshl_b32 s{sT0}, s{sT0}, 12"); e(f"v_lshlrev_b32 v{tmp}, 7, v{vL}")
    e("s_mov_b32 exec_hi, 0")
    e(f"buffer_load_dword v{tmp+1}, v{tmp}, {srd(s_)}, s{sT0} offen")
    e("s_mov_b32 exec_hi, -1")

def imports():
    e("s_waitcnt vmcnt(0)")
    e(f"v_cmp_ne_u64 vcc, {sr(sNON)}, {vr(vFL,2)}")
    e(f"s_and_b32 s{sPEND}, vcc_lo, 12"); e(f"s_cselect_b32 s{sPEND}, s{SIMP+2}, 0")
    e(f"s_and_b32 s{sT0}, vcc_lo, 3"); e(f"s_cselect_b32 s{sT0}, s{SIMP+2}, 0")
    if O.stamps == 1:
        e(f"s_min_u32 s{ST0+24}, s{sT0}, 1000"); e(f"s_min_u32 s{ST0+6}, s{sPEND}, 1000")
        e(f"s_add_u32 s{ST0+24}, s{ST0+24}, s{ST0}"); e(f"s_add_u32 s{ST0+6}, s{ST0+6}, s{ST0}")
    e.cond(f"s_cmp_lg_u32 s{sT0}, 0", lambda: vpoll(3))
    imp_dma(0)
    if not O.vlate:
        e(f"s_cmp_lg_u32 s{sPEND}, 0"); e("s_cbranch_scc1 L_nov")
        imp_dma(1)
    e.label("L_nov")

def p1():
    e.stamp(12)
    def rd(q):
        w = WF[q % 8]
        if q < 64:
            ks = q >> 1; t, s_ = divmod(ks, 4)
            if q % 2 == 0: e.ds(f"ds_read_b128 {vr(vXF+4*ks,4)}, v{vXR+s_} offset:{(t%4)*16384}", f"w{q}")
            b, off = vWR1, (t % 4)*16384 + (q % 2)*8192 + s_*2048
        elif q < 80: b, off = vWR1, (q-64)*2048
        else: b, off = vWR, (q-80)*2048
        e.ds(f"ds_read_b64_tr_b16 {vr(w,2)}, v{b} offset:{off}", f"w{q}")
        e.ds(f"ds_read_b64_tr_b16 {vr(w+2,2)}, v{b} offset:{off+256}", f"w{q}")
    syncs = {8*t - 4: (f"st{t}", None) for t in range(1, 8)}
    syncs.update({60: ("wq1", None), 68: ("wq7", None), 80: ("none", "exp")})
    gap = {k: [] for k in range(-1, 96)}
    def I(t): return lambda: e(t)
    def wq(t): return lambda: dma(vW0, SW, sCW+t, (L_WV + t*8192) if t < 4 else (t-4)*8192, f"wq{t}")
    for i, p in enumerate(st_pieces(2)): gap[[-1, 0, 1, 2][i]].append(p)
    for t in range(3, 8):
        for i, p in enumerate(st_pieces(t)): gap[8*(t-2) - 4 + [[0, 2, 4, 6], [0, 1, 2, 3], [0, 1, 3, 5]][O.stg][i]].append(p)
    gap[43].append(I(f"v_subrev_u32 v{vW0}, 0x400, v{vW0}"))
    for t, k in enumerate([44, 46, 52, 54, 48, 50, 56, 58]): gap[k].append(wq(t))
    gap[60].append(lambda: e.vm(f"buffer_load_dwordx2 {vr(vNON,2)}, off, {srd(SDBG)}, 0 sc1", "non"))
    gap[47] += [I(f"s_mov_b64 {sr(SEXP)}, {sr(SWS)}"), I(f"s_lshl_b32 s{sT0}, s{sBR}, 2"), I(f"s_or_b32 s{sT0}, s{sT0}, s{sTT}")]
    gap[49] += [I(f"s_cmp_ge_u32 s{sT0}, 3"), I(f"s_cselect_b32 s{SEXP+2}, s{SWS+2}, 0")]
    def export(k0, kd, acc, off, tag):
        for h in range(2):
            for i in range(4*h, 4*h+4): gap[k0+h].append(lambda i=i: cvt(acc, acc, i))
            if off and not h: gap[k0].append(I(f"s_add_u32 s{sKV}, s{sKV}, {off}"))
            gap[k0+h].append(lambda h=h: e.vm(f"buffer_store_dwordx4 {vr(acc+4*h,4)}, v{vL16}, {srd(SEXP)}, s{sKV} offen offset:{1024*h} sc1", tag))
            gap[kd+2*h].append(lambda h=h: e.ds(f"ds_write_b128 v{vEXP}, {vr(acc+4*h,4)} offset:{off+1024*h}", "exp"))
    gap[64].append(I("s_nop 1"))
    export(64, 71, accA, 0, "kst"); export(O.vex, 75, accB, 4096, "vst")
    def tagrd():
        e.wait_vm("non")
        e(f"v_readfirstlane_b32 s{sNON}, v{vNON}"); e(f"v_readfirstlane_b32 s{sNON+1}, v{vNON+1}")
        def late():
            L = e.newlab("L_tag"); D = L + "d"
            e(f"s_mov_b32 s{sCNT}, 0")
            e.label(L)
            e(f"buffer_load_dwordx2 {vr(vNON,2)}, off, {srd(SDBG)}, 0 sc1"); e("s_waitcnt vmcnt(0)")
            e(f"v_readfirstlane_b32 s{sNON}, v{vNON}"); e(f"v_readfirstlane_b32 s{sNON+1}, v{vNON+1}")
            e(f"s_add_u32 s{sCNT}, s{sCNT}, 1"); e(f"s_cmp_gt_u32 s{sCNT}, {O.pollmax}"); e(f"s_cbranch_scc1 {D}")
            e(f"s_cmp_eq_u32 s{sNON+1}, 0"); e(f"s_cbranch_scc1 {L}")
            e.label(D)
        e("s_nop 0")
        e.cond(f"s_cmp_eq_u32 s{sNON+1}, 0", late)
    gap[72].append(tagrd)
    gap[O.kflag].append(lambda: (e.wait_vm("kst"), flag_store(sF1, SEXP)))
    gap[O.vflag].append(lambda: (e(f"s_add_u32 s{sF1}, s{sF1}, {F1V}"), e.wait_vm("vst"), flag_store(sF1, SEXP), e.stamp(5)))
    def prew():
        e("s_mov_b32 exec_hi, 0")
        e.vm(f"buffer_store_dwordx2 {vr(vL16,2)}, v{vL8}, {srd(SWS)}, s{sF2} offen sc1", "prew")
        e("s_mov_b32 exec_hi, -1")
    if O.prew and not O.prew0: gap[O.prew].append(prew)
    def prew2():
        e("s_mov_b64 exec, 0xffff"); e(f"s_add_u32 s{sT1}, s{sF1}, {F1V}")
        e.vm(f"buffer_store_dwordx2 {vr(vL16,2)}, v{vL8}, {srd(SEXP)}, s{sF1} offen sc1", "prew")
        e.vm(f"buffer_store_dwordx2 {vr(vL16,2)}, v{vL8}, {srd(SEXP)}, s{sT1} offen sc1", "prew")
        e("s_mov_b64 exec, -1")
    if O.prew2: gap[O.prew2].append(prew2)
    gap[78] += [I(f"v_add_u32 v{vKA8}, {-8*8192 & 0xffffffff:#x}, v{vEXP}"), I(f"v_add_u32 v{vKA}, 0x2000, v{vKA8}"), I(f"v_and_b32 v{vVA8}, 0xfffffeff, v{vKA8}")]
    gap[79] += [I(f"v_add_u32 v{vVA8}, 0x1000, v{vVA8}"), I(f"v_add_u32 v{vVA}, 0x2000, v{vVA8}")]
    for i, k in zip(range(1, 9), [59, 59, 61, 61, 63, 63, 74, 74]):
        gap[k] += [I(f"s_cmp_le_u32 {i}, s{sT}"), I(f"s_cselect_b64 {sr(sVMK+2*(i-1))}, {sr(sEX)}, -1")]
    gap[82] += [I(f"v_bfe_u32 v{vWO}, v{vL}, 2, 3"), I(f"s_lshl_b32 s{sT0}, s{sW}, 3"), I(f"v_add_u32 v{vWO}, s{sT0}, v{vWO}"), I(f"v_lshlrev_b32 v{vWO}, 10, v{vWO}")]
    gap[83] += [I(f"v_lshrrev_b32 v{vWR1}, 5, v{vL}"), I(f"v_lshl_add_u32 v{vWO}, v{vWR1}, 6, v{vWO}"), I(f"v_and_b32 v{vWR1}, 3, v{vL}"), I(f"v_lshl_add_u32 v{vWO}, v{vWR1}, 4, v{vWO}")]
    gap[84] += [I(f"s_and_b32 s{sT0}, s{sJ}, 7"), I(f"s_lshl_b32 s{sT0}, s{sT0}, 7"), I(f"v_add_u32 v{vWO}, s{sT0}, v{vWO}")]
    gap[76] += [I(f"s_mov_b64 {sr(SIMP)}, {sr(SWS)}"), I(f"s_cmp_lg_u32 s{sIMP}, 0"), I(f"s_cselect_b32 s{SIMP+2}, 0, s{SWS+2}"), I(f"v_and_b32 v{vFL+2}, 1, v{vL}"), I(f"v_lshlrev_b32 v{vFL+2}, 7, v{vFL+2}")]
    gap[79] += [I(f"v_and_b32 v{vFL+3}, 2, v{vL}"), I(f"v_lshl_add_u32 v{vFL+2}, v{vFL+3}, 17, v{vFL+2}")]
    gap[86] += [I(f"v_mov_b32 v{vONE}, 0"), I("s_mov_b32 exec_lo, 0x110000" if O.zrow else "s_nop 0"), I("s_mov_b32 exec_hi, 0x110000" if O.zrow else "s_nop 0"), I(f"v_mov_b32 v{vONE}, 0x3f803f80"), I("s_mov_b64 exec, -1")]
    for i in range(32): gap[88 + i//4].append(I(f"v_mov_b32 v{vV+i}, v{vONE}"))
    gap[91].append(lambda: e.ds(f"ds_read_b128 {vr(vK,4)}, v{vKA} offset:{7*8192 + 1024}", "k0"))
    gap[91].append(lambda: e.ds(f"ds_read_b128 {vr(vK+4,4)}, v{vKA} offset:{7*8192}", "k0"))
    def looks():
        e("s_mov_b64 exec, 15")
        e.vm(f"buffer_load_dwordx2 {vr(vFL,2)}, v{vFL+2}, {srd(SIMP)}, s{sIF} offen sc1", "look")
        e("s_mov_b64 exec, -1")
    gap[O.hsmp].insert(0, looks)
    def ev():
        e(f"s_cmp_eq_u32 s{sBR}, 0"); e("s_cbranch_scc1 L_nov"); imports()
    if O.ev: gap[O.ev].append(ev)
    gap[95] += [I(f"s_mov_b32 s{sT2}, 0x3eb8aa3b"), I(f"s_mov_b32 s{sT3}, 0x3eb8aa3b")]

    e.wait_vm("st0"); e("s_barrier"); e.stamp(1)
    for q in range(4): rd(q)
    for f in gap[-1]: f()
    bars = sorted(syncs) + [96]
    for q in range(96):
        if q % 8 == 0: e.c(f"---- P1 mfma {q}")
        if q in syncs:
            tag, lg = syncs[q]
            e.wait_vm(tag)
            if lg is True: e.ds_all()
            elif lg: e.wait_ds(lg)
            e("s_barrier")
        if q == 64: e.stamp(2)
        if q % 8 == 4: e.stamp(q//8 + 1, 2)
        if O.p1prio and q >= 4:
            a = max(x for x in bars if x <= q); b_ = min(x for x in bars if x > q)
            step = (b_ - a) // 4
            if (q - a) % step == 0 and (q - a) // step < 4: e(f"s_setprio {3 - (q - a)//step}")
        e.wait_ds(f"w{q}")
        if q < 64:
            x = vXF + 4*(q >> 1)
            if q % 2 == 0: mfma(accA, WF[q % 8], x, accA if q > 1 else "0")
            else: mfma(accB, x, WF[q % 8], accB if q > 1 else "0")
        else: mfma(accQ, WF[q % 8], vXF + 4*(q-64), accQ if q > 64 else "0")
        if q + 4 < 96: rd(q+4)
        for f in gap[q]: f()

def wo_piece(i, base=0):
    e(f"s_add_u32 m0, s{sM0}, {base + i*8192}"); e(f"s_mov_b32 s{sT0}, {i*65536}")
    e(f"buffer_load_dwordx4 v{vWO}, {srd(SWO)}, s{sT0} offen lds")

def norm(o, dst):
    e(f"v_rcp_f32 v{o+10}, v{o+8}")
    e(f"v_pk_add_f32 {vr(o+12,2)}, {vr(o,2)}, {vr(o+2,2)}"); e(f"v_pk_add_f32 {vr(o+14,2)}, {vr(o+4,2)}, {vr(o+6,2)}")
    for i in range(4): e(f"v_pk_mul_f32 {vr(o+2*i,2)}, {vr(o+2*i,2)}, {vr(o+10,2)} op_sel_hi:[1,0]")
    e(f"v_pk_add_f32 {vr(o+12,2)}, {vr(o+12,2)}, {vr(o+14,2)}")
    cvt8(dst, o)
    e(f"v_add_f32 v{o+12}, v{o+12}, v{o+13}"); e(f"v_fma_f32 v{o+8}, v{o+12}, 0, v{o+8}")
def check(os_, slowlab):
    for n, o in enumerate(os_):
        e(f"v_subrev_u32 v{o+8}, 0x2b800000, v{o+8}")
        if n: e(f"v_max_u32 v{os_[0]+8}, v{os_[0]+8}, v{o+8}")
    e(f"v_cmp_lt_u32 vcc, 0x28000000, v{os_[0]+8}")
    if slowlab is None:
        e(f"s_or_b32 s{sBAD}, vcc_lo, vcc_hi")
        if O.force_slow: e(f"s_mov_b32 s{sBAD}, 1")
    elif O.force_slow: e(f"s_branch {slowlab}")
    else: e(f"s_cbranch_vccnz {slowlab}")
def prefill(regs):
    e(f"s_mov_b32 s{sT0}, 0x3f803f80")
    for i in regs: e(f"v_mov_b32 v{i}, s{sT0}")
def rdK(i, u, dst):
    if i < 8: e(f"ds_read_b128 {vr(dst,4)}, v{vKA} offset:{(7-i)*8192 + u*1024}")
    else: e(f"ds_read_b128 {vr(dst,4)}, v{vKA8} offset:{u*1024}")
def rdV(i, u, dst, dyn=True, restore=True):
    e(f"s_mov_b64 exec, {sr(sVMK+2*(i-1)) if dyn and i > 0 else sr(sEX)}")
    b, off = (vVA, (7-i)*8192) if i < 8 else (vVA8, 0)
    e(f"ds_read_b128 {vr(dst,4)}, v{b} offset:{off + u*256}")
    e(f"ds_read_b128 {vr(dst+4,4)}, v{b} offset:{off + u*256 + 1024}")
    if restore: e("s_mov_b64 exec, -1")

def attention():
    e.c("---- Q epilogue")
    e.stamp(4)
    def qscale(h):
        for i in range(4*h, 4*h+4): e(f"v_pk_mul_f32 {vr(accQ+2*i,2)}, {vr(accQ+2*i,2)}, {sr(sT2)}")
        for i in range(4*h, 4*h+4): cvt(vQ2, accQ, i)
    e(f"s_cmp_eq_u32 s{sBR}, 0"); e("s_cbranch_scc1 L_attnA")
    e.c("---- attention B")
    if O.impfirst and not O.ev: imports()
    else: e("s_nop 3")
    qscale(1); qscale(0)
    def kbar():
        e(f"s_waitcnt vmcnt({0 if O.vlate == 2 else 4})"); e("s_barrier"); e.stamp(6)
    def vbar():
        e(f"s_waitcnt vmcnt({2 if O.tchA < O.lag else 0})"); e("s_barrier"); e.stamp(13)
    def tchA():
        if not O.tchB: touch_wo(SWO, vU0+2)
        e(f"s_mov_b64 {sr(SOWO)}, {sr(sOW)}"); e(f"s_mov_b32 s{SOWO+2}, {512*1024}")
        touch_wo(SOWO, vU0)
    def sample02():
        f3_addr()
        e("s_mov_b64 exec, 0x55555555")
        e(f"buffer_load_dwordx2 {vr(vFL,2)}, v{vF}, {srd(SWS)}, s{sF3} offen sc1")
        e("s_mov_b64 exec, -1")
    L = O.lag
    seq = [(1, 0), (0, 0)] + [(0, i) for i in range(1, 9)] + [(1, i) for i in range(1, 9)]
    pv = {n: [] for n in range(19)}
    pv[1].append(0); pv[2].append(1); m = 2
    for n in range(L+1, 19):
        for _ in range(2):
            if m < n and m < 18: pv[n].append(m); m += 1
    assert m == 18
    def P(m): return PB + 8*(m % 8)
    def V(m): return vV + 8*(m % 4)
    def ex(n, r): e(f"v_exp_f32 v{vS+16*(n%2)+r}, v{vS+16*(n%2)+r}")
    def pvm(m, kb):
        o = vO + 16*seq[m][0]
        mfma(o, V(m)+4*kb, P(m)+4*kb, "0" if (m < 2 and kb == 0) else o)
    def qk(n):
        u1, i1 = seq[n]
        mfma(vS+16*(n % 2), vK+4*(n % 2), vQ2 + 4*u1, vML if i1 == 0 else (vMF if i1 == 8 else "0"))
    assert max(n for n in pv if 9 in pv[n]) < O.epi
    q4 = (18 - L) // 4
    prio = {0: 1, 1: 0, 2: 1, 3: 0, L: 3, L+q4+1: 2, L+2*q4+1: 1, L+3*q4+2: 0}
    qk(0)
    e("s_nop 0")
    if not O.impfirst and not O.ev: imports()
    else: e("s_nop 6")
    for n in range(19):
        s_ = vS + 16*(n % 2)
        e.c(f"task {n}")
        if n < 11: e.stamp(n+1, 4)
        if n >= 8: e.stamp(n-7, 5)
        if O.fair and n in prio: e(f"s_setprio {prio[n]}")
        if n == 1 and not O.vlate: e.cond(f"s_cmp_lg_u32 s{sPEND}, 0", lambda: (vpoll(12), imp_dma(1)))
        if n == 1 and O.vlate == 1: e.cond(f"s_cmp_lg_u32 s{sPEND}, 0", lambda: vpoll(12)); imp_dma(1)
        if n == 2 and O.vlate == 2: e.cond(f"s_cmp_lg_u32 s{sPEND}, 0", lambda: vpoll(12)); imp_dma(1)
        if n == L: vbar()
        if n == O.oflag:
            younger = sum(8*(t-O.wo_at+1)//O.wo_n - 8*(t-O.wo_at)//O.wo_n for t in range(O.epi+1, n) if O.wo_at <= t < O.wo_at + O.wo_n)
            e(f"s_waitcnt vmcnt({younger})")
            e(f"s_cmp_lg_u32 s{sBAD}, 0"); e("s_cbranch_scc1 L_noflag0"); flag_store(sF2); e.label("L_noflag0")
        if O.wo_at <= n < O.wo_at + O.wo_n:
            for p_ in range(8*(n-O.wo_at)//O.wo_n, 8*(n-O.wo_at+1)//O.wo_n): wo_piece(p_)
        if n == O.poi_at and O.hint:
            for i_ in range(4): e(f"v_mov_b32 v{vP+4+i_}, -1")
            e(f"buffer_store_dwordx4 {vr(vP+4,4)}, v{vL16}, {srd(SWS)}, s{sOA} offen offset:1024 sc1")
        if n == O.tchA: tchA()
        if n == O.tE: e.cond(f"s_cmp_lt_u32 s{sW}, 4", lambda: (f3_addr(), o_touch(0x00ff00ff, 0)))
        if n == O.smp_at: e.cond(f"s_cmp_lt_u32 s{sW}, 4", sample02)
        nxt = pv[n+1] if n < 18 else []
        fresh = [m for m in nxt if 10 <= m < 14]
        if fresh: e.cond(f"s_cmp_lt_u32 s{sT}, 8", lambda fresh=fresh: [e(f"v_mov_b32 v{V(m)+k}, v{vONE}") for m in fresh for k in range(8)])
        cnt = 0
        if 1 < n < 17: rdK(seq[n+1][1], seq[n+1][0], vK+4*((n+1) % 2)); cnt += 1
        for k, m in enumerate(nxt): rdV(seq[m][1], seq[m][0], V(m), restore=(k == len(nxt)-1)); cnt += 2
        mf = [(m, kb) for m in pv[n] for kb in range(2)]
        if n == 18:
            e("s_waitcnt lgkmcnt(0)"); e("s_nop 0")
            for x in mf: pvm(*x)
            break
        first = [True]
        def slot():
            if mf:
                if first[0]: e(f"s_waitcnt lgkmcnt({cnt})"); first[0] = False
                pvm(*mf.pop(0))
        two = len(mf) > 2
        for r in range(4): ex(n, r)
        slot()
        for r in range(4, 8): ex(n, r)
        if n == 1: slot(); kbar(); rdK(1, 0, vK)
        elif n < 17:
            if n: e(f"s_waitcnt lgkmcnt({cnt-1})")
            qk(n+1)
        cvt8(P(n), s_)
        for r in range(8, 10): ex(n, r)
        if two: slot()
        for r in range(10, 12): ex(n, r)
        if not two: slot()
        if n == 1: e("s_waitcnt lgkmcnt(0)"); qk(2)
        for r in range(12, 14): ex(n, r)
        slot()
        for r in range(14, 16): ex(n, r)
        cvt8(P(n)+4, s_+8)
        slot()
        if n == 1: e("s_nop 3")
        if n == O.epi:
            norm(vO, vP); check([vO], None)
            e(f"buffer_store_dwordx4 {vr(vP,4)}, v{vL16}, {srd(SWS)}, s{sOA} offen sc1")
    e("s_nop 11")
    norm(vO+16, vP+4); check([vO+16], "L_B_slow1")
    e.label("L_B_ok1")
    if O.hint:
        for i_ in range(4): e(f"v_min_u32 v{vP+4+i_}, -2, v{vP+4+i_}")
    if O.sprio: e("s_setprio 2")
    e(f"buffer_store_dwordx4 {vr(vP+4,4)}, v{vL16}, {srd(SWS)}, s{sOA} offen offset:1024 sc1")
    if O.sprio: e("s_setprio 0")
    e(f"s_cmp_lg_u32 s{sBAD}, 0"); e("s_cbranch_scc1 L_B_slow0")
    e.label("L_B_ok0")
    e.stamp(7); e.stamp(12, 7)
    e(f"s_cmp_lt_u32 s{sW}, 4"); e("s_cbranch_scc0 L_young")
    e(f"s_mov_b32 s{sHM}, 0")
    f3_groups()
    if O.swp:
        e(f"s_and_b32 s{sT0}, s{sJ}, 1"); e(f"s_lshl_b32 s{sT0}, s{sT0}, 11")
        for q in range(4): e(f"s_xor_b32 s{sG0+q}, s{sG0+q}, s{sT0}")
    e("s_waitcnt vmcnt(1)")
    e("s_mov_b64 exec, 0x55555555")
    e(f"v_cmp_ne_u64 vcc, {sr(sNON)}, {vr(vFL,2)}")
    e("s_mov_b64 exec, -1")
    e(f"s_mov_b32 s{sT3}, 0"); e(f"s_mov_b32 s{sNR}, vcc_lo")
    e("s_cbranch_vccnz L_p3again")
    e.label("L_p3even")
    if O.bpre > 8:
        pass
    for k in range(O.ad): o_ld(k, sG0 + k//8)
    p3_setup()
    e(f"s_mov_b32 s{SLD+2}, 0")
    if not O.hint: e(f"s_waitcnt vmcnt({O.ad})")
    e.stamp(8); e("s_barrier")
    e("s_branch L_p3go")
    e.label("L_p3again")
    e(f"s_mov_b32 exec_lo, s{sNR}"); e("s_mov_b32 exec_hi, 0")
    e(f"buffer_load_dwordx2 {vr(vFL,2)}, v{vF}, {srd(SWS)}, s{sF3} offen sc1")
    e("s_mov_b64 exec, -1")
    p3_setup()
    e(f"s_mov_b32 s{SLD+2}, 0")
    if not O.hint: e("s_waitcnt vmcnt(1)")
    e.stamp(8); e("s_barrier")
    e("s_waitcnt vmcnt(0)")
    e(f"v_cmp_eq_u64 vcc, {sr(sNON)}, {vr(vFL,2)}")
    e(f"s_andn2_b32 s{sNR}, s{sNR}, vcc_lo")
    poll3(0x55555555, 0x55555555)
    for k in range(O.ad): o_ld(k, sG0 + k//8)
    e("s_branch L_p3go")
    e.label("L_young"); e.stub()
    e(f"s_waitcnt vmcnt({1 if O.hint else 0})")
    e.label("L_youngA")
    e("s_mov_b64 exec, 0xffff")
    e(f"s_cmp_eq_u32 s{sW}, 4"); e(f"s_cselect_b32 s{SEXP+2}, s{SWS+2}, 0")
    if O.fprio: e("s_setprio 3")
    e("s_waitcnt vmcnt(8)"); e.stamp(8); e("s_barrier")
    e.stamp(1, 8)
    e(f"buffer_store_dwordx2 {vr(vNON,2)}, v{vL8}, {srd(SEXP)}, s{sF2} offen offset:128 sc1")
    e("s_mov_b64 exec, -1")
    e.stamp(2, 8)
    if O.stamps == 8: e("s_waitcnt vmcnt(0)"); e.stamp(3, 8); e(f"s_memrealtime {sr(ST0+12)}")
    e(f"s_cmp_lg_u32 s{sW}, 4"); e("s_cbranch_scc1 L_rest")
    f3_addr()
    e(f"s_add_u32 s{sF3}, s{sF3}, {3*4096}")
    e(f"s_mov_b32 s{sT2}, s{sNON}"); e(f"s_mov_b32 s{sT3}, s{sNON}")
    if O.pdelay: e(f"s_sleep {O.pdelay}")
    spoll(sF3, [384 + 512*g_ for g_ in range(8)])
    e.stamp(10); e.stamp(4, 8)
    if O.stamps == 8:
        e(f"s_memrealtime {sr(ST0+14)}"); e("s_waitcnt lgkmcnt(0)"); e(f"s_add_u32 s{ST0+10}, s{ST0}, s{sCNT}")
        for q_ in (12, 14): e(f"s_and_b32 s{ST0+q_}, s{ST0+q_}, 0xffff"); e(f"s_add_u32 s{ST0+q_}, s{ST0+q_}, s{ST0}")
    e("s_waitcnt vmcnt(1)")
    e("s_barrier")
    e.label("L_rest")
    e("s_waitcnt vmcnt(0)")
    e("s_branch L_stamps" if O.stamps else "s_endpgm")
    e.flush()

    e.c("---- attention A")
    e.label("L_attnA")
    KP, VP = 176, 160
    if not O.spoll:
        e(f"s_and_b32 s{sIF}, s{sF1}, 0xffffff00"); e(f"s_sub_u32 s{sIF}, s{sIF}, 136")
        flag_ld("x")
    e.stamp(6)
    def halo():
        L = e.newlab("L_h")
        e(f"s_cmp_eq_u32 s{sT}, 0"); e(f"s_cbranch_scc1 L_A_nh")
        e("s_waitcnt vmcnt(0)")
        e(f"v_cmp_ne_u64 vcc, {sr(sNON)}, {vr(vFL,2)}")
        e(f"s_and_b32 s{sT0}, vcc_lo, 12"); e(f"s_cbranch_scc0 {L}")
        vpoll(12)
        e.label(L)
        e(f"s_sub_u32 s{sT0}, s{sKV}, {8192 + 4096}"); e(f"s_sub_u32 s{sT1}, s{sKV}, {8192 - 1024}")
        e(f"v_and_b32 v{vFL}, 0x2ff, v{vL16}")
        for h in range(2): e(f"buffer_load_dwordx4 {vr(KP+4*h,4)}, v{vL16}, {srd(SWS)}, s{sT0} offen offset:{h*1024} sc1")
        e(f"s_mov_b64 exec, {sr(sEX)}")
        for h in range(2): e(f"buffer_load_dwordx4 {vr(VP+4*h,4)}, v{vFL}, {srd(SWS)}, s{sT1} offen offset:{h*256} sc1")
        e("s_mov_b64 exec, -1")
        e("s_branch L_A_nh")
    e.cond(f"s_cmp_eq_u32 s{sTT}, 0", halo)
    for h in range(2): e(f"ds_read_b128 {vr(KP+4*h,4)}, v{vKA} offset:{6*8192 + h*1024}")
    e(f"s_mov_b64 exec, {sr(sEX)}")
    for h in range(2): e(f"ds_read_b128 {vr(VP+4*h,4)}, v{vVA} offset:{6*8192 + 1024 + h*256}")
    e("s_mov_b64 exec, -1")
    e.label("L_A_nh")
    e(f"s_mov_b64 exec, {sr(sEX)}")
    for h in range(2):
        for kb in range(2): e(f"ds_read_b128 {vr(vV+8*h+4*kb,4)}, v{vVA} offset:{7*8192 + kb*1024 + h*256}")
    e("s_mov_b64 exec, -1"); e("s_nop 0")
    qscale(0); qscale(1)
    e("s_waitcnt lgkmcnt(0)")
    def a_body(slow):
        def exs(s_, rs, h):
            for r in rs:
                if slow: e(f"v_sub_f32 v{s_+r}, v{s_+r}, v{vFL+h}")
                e(f"v_exp_f32 v{s_+r}, v{s_+r}")
        lab = "L_A_s2" if slow else "L_A_f2"
        for h in range(2): mfma(vS+16*h, vK+4-4*h, vQ2+4*h, vML)
        e("s_nop 10")
        for h in range(2):
            exs(vS+16*h, range(16), h); cvt8(vP+8*h, vS+16*h, 8); e("s_nop 1")
            mfma(vO+16*h, vV+8*h, vP+8*h, "0"); mfma(vO+16*h, vV+8*h+4, vP+8*h+4, vO+16*h)
        e("s_waitcnt vmcnt(0)")
        e(f"s_cmp_eq_u32 s{sT}, 0"); e(f"s_cbranch_scc1 {lab}")
        e.stamp(13)
        for h in range(2): mfma(vS+16*h, KP+4*h, vQ2+4*h, vMF)
        e("s_nop 10")
        for h in range(2):
            exs(vS+16*h, range(8, 16), h); cvt8(vP+8*h+4, vS+16*h+8); e("s_nop 1")
            mfma(vO+16*h, VP+4*h, vP+8*h+4, vO+16*h)
        e.label(lab)
        e("s_nop 11")
        for h in range(2): norm(vO+16*h, vP+4*h)
    a_body(False)
    check([vO, vO+16], "L_A_slow")
    e.label("L_A_ok"); e.stub()
    e("s_setprio 2")
    e(f"buffer_store_dwordx4 {vr(vP,4)}, v{vL16}, {srd(SWS)}, s{sOA} offen sc1")
    e(f"buffer_store_dwordx4 {vr(vP+4,4)}, v{vL16}, {srd(SWS)}, s{sOA} offen offset:1024 sc1")
    e.stamp(7)
    e("s_setprio 0")
    for i in range(8): wo_piece(i, L_KV)
    e(f"s_cmp_lt_u32 s{sW}, 4"); e("s_cbranch_scc0 L_youngA")
    e(f"s_and_b32 s{sHM}, s{sJ}, 3")
    f3_groups()
    e(f"s_mov_b32 s{sT3}, {L_KV}")
    e.label("L_p3all")
    e("s_waitcnt vmcnt(8)"); e.stamp(8); e("s_barrier")
    p3_setup(); p3_setup2()
    e(f"s_mov_b32 s{SLD+2}, s{SWS+2}")
    e("s_waitcnt vmcnt(0)")
    e("s_barrier"); e.stamp(10)
    if O.ltouch: o_touch(0xffffffff, 0)
    for k in range(O.ad): o_ld(k, sG0 + k//8)
    return a_body, KP

vA, vB, vO0, vO1, vF = 2, 3, 7, 5, 10
sO3, sF3, sOUT3, sHM = sIG, sIF, sOA, sPEND
A0, A1 = 40, 56
vTW, vTR = 18, 17
WB = 72
def OFR(k): return 136 + 4*k if k < 30 else 24 + 4*(k-30)
sG0 = sVMK; sHB = sVMK+4
vW = ((0, 4), (6, 16))
def f3_addr():
    e(f"s_lshl_b32 s{sT0}, s{sBR}, 6"); e(f"s_add_u32 s{sT0}, s{sT0}, s{sT3P}")
    e(f"s_lshl_b32 s{sO3}, s{sT0}, 15"); e(f"s_add_u32 s{sO3}, s{sO3}, {WS_O}")
    e(f"s_lshl_b32 s{sF3}, s{sT0}, 12"); e(f"s_add_u32 s{sF3}, s{sF3}, {WS_F2}")
    e(f"v_lshlrev_b32 v{vF}, 7, v{vL}")
def group(dst):
    e(f"s_brev_b32 s{sHB}, s{sHM}"); e(f"s_lshr_b32 s{sHB}, s{sHB}, 20")
    e(f"s_add_u32 s{dst}, s{sHB}, s{sO3}")
    e(f"s_add_u32 s{sHM}, s{sHM}, 1"); e(f"s_and_b32 s{sHM}, s{sHM}, 3")
def wbase(buf, src):
    e(f"s_and_b32 s{sT0}, s{src}, 0xc00"); e(f"s_lshl_b32 s{sT0}, s{sT0}, 1")
    e(f"v_add_u32 v{vW[buf][0]}, s{sT0}, v{vA}"); e(f"v_add_u32 v{vW[buf][1]}, s{sT0}, v{vB}")
def o_ld(k, base, s_=None):
    if k % 8: e(f"s_add_u32 s{sT0}, s{base}, {(k % 8)*4096}")
    e(f"buffer_load_dwordx4 {vr(OFR(k),4)}, v{vL16}, {srd(s_ or SWS)}, s{sT0 if k % 8 else base} offen sc1")
sNR = sVMK + 7
def poll3(need, look):
    L = e.newlab("L_poll"); D = L + "d"
    e(f"s_mov_b32 s{sCNT}, 0"); e("s_mov_b32 exec_hi, 0")
    e.label(L)
    e(f"s_and_b32 s{sT0}, s{sNR}, {need:#x}"); e(f"s_cbranch_scc0 {D}")
    e(f"s_and_b32 exec_lo, s{sNR}, {look:#x}")
    e(f"buffer_load_dwordx2 {vr(vFL,2)}, v{vF}, {srd(SWS)}, s{sF3} offen sc1")
    e(f"s_add_u32 s{sCNT}, s{sCNT}, 1")
    e("s_waitcnt vmcnt(0)")
    e(f"v_cmp_eq_u64 vcc, {sr(sNON)}, {vr(vFL,2)}")
    e(f"s_andn2_b32 s{sNR}, s{sNR}, vcc_lo")
    if O.sleep: e(f"s_sleep {O.sleep}")
    e(f"s_cmp_gt_u32 s{sCNT}, {O.pollmax}"); e(f"s_cbranch_scc0 {L}")
    e.label(D)
    e("s_mov_b64 exec, -1")
SLD = SDUM
def f3_groups():
    f3_addr()
    for q in range(4): group(sG0+q)
def o_touch(mask, dst):
    e(f"s_and_b32 s{sT0}, s{sJ}, 7"); e(f"s_lshl_b32 s{sT0}, s{sT0}, 12"); e(f"s_add_u32 s{sT0}, s{sT0}, s{sO3}")
    e(f"s_mov_b32 exec_lo, {mask:#x}"); e("s_mov_b32 exec_hi, 0")
    e(f"buffer_load_dword v{vFL+3}, v{vF}, {srd(SWS)}, s{sT0} offen sc1")
    e("s_mov_b64 exec, -1")
def p3_setup():
    e(f"s_mov_b64 {sr(SLD)}, {sr(SWS)}")
    e(f"v_bfe_u32 v{vU0}, v{vL}, 2, 2"); e(f"v_lshlrev_b32 v{vA}, 6, v{vU0}")
    e(f"v_and_b32 v{vU0}, 1, v{vL}"); e(f"v_mul_u32_u24 v{vU0}, 544, v{vU0}"); e(f"v_add_u32 v{vA}, v{vA}, v{vU0}")
    e(f"v_bfe_u32 v{vU0}, v{vL}, 4, 1"); e(f"v_lshl_add_u32 v{vA}, v{vU0}, 4, v{vA}")
    e(f"v_bfe_u32 v{vU0}, v{vL}, 1, 1"); e(f"v_lshl_add_u32 v{vA}, v{vU0}, 3, v{vA}")
    e(f"v_lshrrev_b32 v{vU0}, 5, v{vL}"); e(f"v_lshl_add_u32 v{vA}, v{vU0}, 8, v{vA}")
    e(f"v_add_u32 v{vA}, s{sT3}, v{vA}")
    e(f"v_xor_b32 v{vB}, 32, v{vA}")
    wbase(0, sG0); wbase(1, sG0+1)
def p3_setup2():
    e(f"v_lshrrev_b32 v{vU0}, 5, v{vL}")
    if O.tpose:
        e(f"s_lshl_b32 s{sT0}, s{sW}, 12"); e(f"s_add_u32 s{sT0}, s{sT0}, {L_WK}")
        e(f"v_mul_u32_u24 v{vU0}, 6, v{vU0}"); e(f"v_and_b32 v{vU1}, 7, v{vL}"); e(f"v_xor_b32 v{vU0}, v{vU0}, v{vU1}")
        e(f"v_and_b32 v{vTW}, 31, v{vL}"); e(f"v_lshlrev_b32 v{vTW}, 7, v{vTW}"); e(f"v_lshl_add_u32 v{vTW}, v{vU0}, 4, v{vTW}"); e(f"v_add_u32 v{vTW}, s{sT0}, v{vTW}")
        for i in range(1, 4): e(f"v_xor_b32 v{vTW+i}, {16*i}, v{vTW}")
        e(f"v_lshrrev_b32 v{vU0}, 3, v{vL}"); e(f"v_xor_b32 v{vTR}, v{vU0}, v{vU1}"); e(f"v_lshlrev_b32 v{vTR}, 4, v{vTR}")
        e(f"v_lshl_add_u32 v{vTR}, v{vU0}, 7, v{vTR}"); e(f"v_add_u32 v{vTR}, s{sT0}, v{vTR}")
        e(f"v_lshlrev_b32 v{vO0}, 11, v{vU0}"); e(f"v_lshl_add_u32 v{vO0}, v{vU1}, 4, v{vO0}")
    else:
        e(f"v_and_b32 v{vO0}, 31, v{vL}"); e(f"v_lshlrev_b32 v{vO0}, 11, v{vO0}"); e(f"v_mul_u32_u24 v{vU0}, 96, v{vU0}"); e(f"v_add_u32 v{vO0}, v{vO0}, v{vU0}")
        e(f"v_xor_b32 v{vO1}, 32, v{vO0}")
    e(f"s_lshl_b32 s{sOUT3}, s{sT3P}, 16"); e(f"s_lshl_b32 s{sT1}, s{sBR}, 10"); e(f"s_add_u32 s{sOUT3}, s{sOUT3}, s{sT1}")
    e(f"s_and_b32 s{sT1}, s{sJ}, 7"); e(f"s_lshl_b32 s{sT1}, s{sT1}, 7"); e(f"s_add_u32 s{sOUT3}, s{sOUT3}, s{sT1}")

def lds_wait(off, val):
    L = e.newlab("L_lw"); D = L + "d"
    e(f"s_mov_b32 s{sCNT}, 0")
    e.label(L)
    e(f"ds_read_b32 v{vFL}, v{vFL+3} offset:{off}")
    e(f"s_add_u32 s{sCNT}, s{sCNT}, 1"); e(f"s_cmp_gt_u32 s{sCNT}, {O.pollmax*8}")
    e("s_waitcnt lgkmcnt(0)")
    e(f"v_cmp_ne_u32 vcc, {val}, v{vFL}")
    e(f"s_cbranch_scc1 {D}")
    e(f"s_cbranch_vccz {D}"); e("s_sleep 1"); e(f"s_branch {L}")
    e.label(D)

def p3():
    e.c("---- P3 (waves 0..3)")
    def wrd(buf, k):
        for ct in range(2):
            d = WB + 8*k + 4*ct
            e(f"ds_read_b64_tr_b16 {vr(d,2)}, v{vW[buf][ct]} offset:{k*8192}")
            e(f"ds_read_b64_tr_b16 {vr(d+2,2)}, v{vW[buf][ct]} offset:{k*8192 + 1024}")
    e.label("L_p3go")
    for k in range(4): wrd(0, k)
    e.stamp(9); e.stamp(13, 7)
    A2, A3 = OFR(0), OFR(4); vMX = vFL
    e(f"s_mov_b32 s{sCNT}, 0")
    for k in range(32):
        q, kk = divmod(k, 8)
        if k == O.b2:
            e(f"s_cmp_eq_u32 s{sBR}, 0"); e("s_cbranch_scc1 L_p3b")
            p3_setup2()
            e.stamp(5, 7)
            e("s_barrier"); e.stamp(10); e.stamp(7, 7)
            for k2 in range(16, O.b2+O.ad): o_ld(k2, sG0 + k2//8)
            e.label("L_p3b")
            e.stamp(8, 7)
        if k == 16: e.label("L_p3late"); e(f"v_mov_b32 v{vMX}, 0")
        e(f"s_waitcnt vmcnt({min(O.ad-1, 31-k)}) lgkmcnt({min(12, 4*(31-k))})")
        o = OFR(k)
        mfma(A0 if k < 16 else A2, WB + 8*kk, o, "0" if k == 0 else (A0 if k <= 16 else A2))
        if k + O.ad < 32: o_ld(k+O.ad, sG0+(k+O.ad)//8, SLD if (k < O.b2 and k+O.ad >= 16) else SWS)
        if k >= 16 and O.hint: e(f"v_max3_u32 v{vMX}, v{vMX}, v{o}, v{o+1}")
        mfma(A1 if k < 16 else A3, WB + 8*kk + 4, o, "0" if k == 0 else (A1 if k <= 16 else A3))
        if k >= 16 and O.hint: e(f"v_max3_u32 v{vMX}, v{vMX}, v{o+2}, v{o+3}")
        if k + 4 < 32: wrd(((k+4)//8) % 2, (k+4) % 8)
        if kk == 3 and q < 2: wbase(q, sG0+q+2)
    e.stamp(9, 7)
    if O.hint:
        e(f"v_cmp_eq_u32 vcc, -1, v{vMX}")
        if O.fredo: e(f"s_cmp_lt_u32 s{sCNT}, 2"); e("s_cselect_b64 vcc, -1, vcc")
        def redo():
            e(f"s_cmp_eq_u32 s{sBR}, 0"); e("s_cbranch_scc1 L_p3fin")
            e(f"s_add_u32 s{sCNT}, s{sCNT}, 1"); e(f"s_cmp_gt_u32 s{sCNT}, {O.pollmax}"); e("s_cbranch_scc1 L_p3fin")
            for k2 in range(16, 16+O.ad): o_ld(k2, sG0 + k2//8)
            for k2 in range(4): wrd(0, k2)
            e("s_branch L_p3late")
        e.cond("s_cmp_lg_u64 vcc, 0", redo)
        e.label("L_p3fin")
        if O.stamps == 1: e(f"s_mul_i32 s{ST0+6}, s{sCNT}, 1000"); e(f"s_add_u32 s{ST0+6}, s{ST0+6}, s{ST0}")
        e("s_nop 7")
    else: e("s_nop 10")
    cvt8(72, A2, 8); cvt8(80, A3, 8)
    fl = ["", " sc1", " nt", " sc1 nt", " sc0 sc1", " sc0 sc1 nt", " sc0 nt"][O.outsc]
    if O.tpose:
        for i in range(4): e(f"ds_write_b128 v{vTW+i}, {vr(72+4*i,4)}")
        for i in range(4): e(f"ds_read_b128 {vr(88+4*i,4)}, v{vTR} offset:{i*1024}")
        for i in range(4):
            e(f"s_waitcnt lgkmcnt({3-i})")
            e(f"buffer_store_dwordx4 {vr(88+4*i,4)}, v{vO0}, {srd(SOUT)}, s{sOUT3} offen{fl}")
            if i < 3: e(f"s_add_u32 s{sOUT3}, s{sOUT3}, 0x4000")
    else:
        for i in range(4): e(f"buffer_store_dwordx4 {vr(72+4*i,4)}, v{(vO0, vO1)[i//2]}, {srd(SOUT)}, s{sOUT3} offen offset:{16*(i%2)}{fl}")
    if O.stamps:
        e.stamp(10, 7); e("s_waitcnt vmcnt(0)"); e.stamp(11); e.stamp(11, 7)
        e.label("L_stamps")
        e(f"s_memrealtime {sr(sVM)}"); e("s_waitcnt lgkmcnt(0)")
        e(f"s_lshl_b32 s{sT0}, s2, 3"); e(f"s_add_u32 s{sT0}, s{sT0}, s{sW}"); e(f"s_lshl_b32 s{sT0}, s{sT0}, 6"); e(f"s_add_u32 s{sT0}, s{sT0}, {WS_ST}")
        e("s_mov_b64 exec, 1")
        for i in range(1, 14):
            e(f"s_sub_u32 s{sT1}, s{ST0+2*i}, s{ST0}"); e(f"v_mov_b32 v{vU1}, s{sT1}")
            e(f"buffer_store_dword v{vU1}, off, {srd(SWS)}, s{sT0} offset:{4*i}")
        e(f"v_mov_b32 v{vU1}, s100"); e(f"buffer_store_dword v{vU1}, off, {srd(SWS)}, s{sT0} offset:56")
        e(f"v_mov_b32 v{vU1}, s{sVM}"); e(f"buffer_store_dword v{vU1}, off, {srd(SWS)}, s{sT0} offset:60")
    if O.probe:
        if O.probe == 11: e("s_waitcnt vmcnt(0)"); e("s_memrealtime s[76:77]")
        e("s_waitcnt lgkmcnt(0)")
        e(f"s_cmp_lg_u32 s{sBR}, {O.pbr}"); e("s_cbranch_scc1 L_end")
        e("s_sub_u32 s76, s76, s72"); e("s_lshl_b32 s76, s76, 1"); e("s_add_u32 s76, s76, 3000")
        e.label("L_spin"); e("s_memrealtime s[74:75]"); e("s_waitcnt lgkmcnt(0)"); e("s_sub_u32 s74, s74, s72")
        e(f"s_cmp_lt_u32 s74, s76"); e("s_cbranch_scc1 L_spin")
    if O.spin:
        e.label("L_spin"); e("s_memrealtime s[74:75]"); e("s_waitcnt lgkmcnt(0)"); e("s_sub_u32 s74, s74, s72")
        e(f"s_cmp_lt_u32 s74, {O.spin}"); e("s_cbranch_scc1 L_spin")
    e.label("L_end")
    e("s_endpgm")
    e.flush()

def xmax(reg):
    e(f"v_mov_b32 v{vFL+2}, v{reg}"); e("s_nop 1")
    e(f"v_permlane32_swap_b32 v{vFL+2}, v{reg}"); e("s_nop 1")
    e(f"v_max_f32 v{reg}, v{reg}, v{vFL+2}")

def slow_paths(a_body, KP):
    e.c("---- rare path: the stand-in max was unsafe, redo the unit with the true row max")
    def shift(op):
        for r_, d_ in ((vKA, 0x400), (vKA8, 0x400), (vVA, 0x100), (vVA8, 0x100)): e(f"{op} v{r_}, {d_:#x}, v{r_}")
    for u in range(2):
        e.label(f"L_B_slow{u}")
        e(f"s_mov_b32 s{sU}, {u}")
        for i in range(4): e(f"v_mov_b32 v{vQ+i}, v{vQ2+4*u+i}")
        if u == 0: e("s_branch L_B_slow")
        else: shift("v_add_u32")
    e.label("L_B_slow")
    e("s_waitcnt vmcnt(0)")
    prefill(range(vV, vV+8))
    e(f"v_mov_b32 v{vFL}, {NEG}")
    for ps in range(2):
        for i in range(9):
            if i > 0: e(f"s_cmp_gt_u32 {i}, s{sT}"); e(f"s_cbranch_scc1 L_B_s{ps}")
            rdK(i, 0, vK)
            if ps: rdV(i, 0, vV, dyn=False)
            e("s_waitcnt lgkmcnt(0)")
            mfma(vS, vK, vQ, vML if i == 0 else (vMF if i == 8 else "0"))
            e("s_nop 11")
            if ps == 0:
                for r in range(0, 16, 2): e(f"v_max3_f32 v{vFL}, v{vFL}, v{vS+r}, v{vS+r+1}")
            else:
                for r in range(16): e(f"v_sub_f32 v{vS+r}, v{vS+r}, v{vFL}")
                for r in range(16): e(f"v_exp_f32 v{vS+r}, v{vS+r}")
                cvt8(PB, vS, 8); e("s_nop 1")
                mfma(vO, vV, PB, vO if i > 0 else "0"); mfma(vO, vV+4, PB+4, vO)
                e("s_nop 7")
        e.label(f"L_B_s{ps}")
        if ps == 0: xmax(vFL)
    e("s_nop 11")
    norm(vO, vP+4)
    e(f"s_cmp_eq_u32 s{sU}, 0"); e("s_cbranch_scc1 L_B_fin0")
    shift("v_subrev_u32")
    e("s_branch L_B_ok1")
    e.label("L_B_fin0")
    e(f"buffer_store_dwordx4 {vr(vP+4,4)}, v{vL16}, {srd(SWS)}, s{sOA} offen sc1")
    e("s_waitcnt vmcnt(0)"); flag_store(sF2)
    e("s_branch L_B_ok0")
    e.label("L_A_slow")
    for h in range(2):
        e(f"v_mov_b32 v{vFL+h}, {NEG}")
        mfma(vS, vK+4-4*h, vQ2+4*h, vML); e("s_nop 11")
        for r in range(0, 16, 2): e(f"v_max3_f32 v{vFL+h}, v{vFL+h}, v{vS+r}, v{vS+r+1}")
        e(f"s_cmp_eq_u32 s{sT}, 0"); e(f"s_cbranch_scc1 L_A_m{h}")
        mfma(vS, KP+4*h, vQ2+4*h, vMF); e("s_nop 11")
        for r in range(8, 16, 2): e(f"v_max3_f32 v{vFL+h}, v{vFL+h}, v{vS+r}, v{vS+r+1}")
        e.label(f"L_A_m{h}")
        xmax(vFL+h)
    a_body(True)
    e("s_branch L_A_ok")

prologue(); p1(); ab = attention(); p3(); slow_paths(*ab)
e("s_endpgm")

hdr = open("cdna_kernels/" + NAME + ".s.ref").read().split("; Override launch geometry")[0]
out = hdr + f"; @launch grid=(256,1,1) block=(512,1,1) lds={LDS_BYTES}\n"
out += f""".amdgcn_target "amdgcn-amd-amdhsa--gfx950"
.text
.globl {NAME}_kernel
{'.p2align 12' if O.al12 else ''}
.p2align 8
.type {NAME}_kernel,@function
{NAME}_kernel:
""" + "\n".join(e.L) + f"""
.section .rodata,"a"
.p2align 6
.amdhsa_kernel {NAME}_kernel
  .amdhsa_next_free_vgpr 256
  .amdhsa_next_free_sgpr {102 if O.stamps else (80 if (O.spin or O.probe) else 72)}
  .amdhsa_accum_offset 256
  .amdhsa_group_segment_fixed_size 0
  .amdhsa_kernarg_size 72
  .amdhsa_user_sgpr_count 2
  .amdhsa_user_sgpr_kernarg_segment_ptr 1
  .amdhsa_system_sgpr_workgroup_id_x 1
.end_amdhsa_kernel
"""
open(sys.argv[1], "w").write(out)
```

```python
import sys
NAME = "concat_heads__sliding_local_dilated__sliding_block__prompt"

class Opt:
    stamps = 0
    force_slow = 0
    pollmax = 400000
    only = 0
    delayA = 7
    lag = 5
    kflag = 50
    kchk = 65
    imp = 87
    oflag = 13
    vpos = 2
    uni = 0
    xspan = 1
    torder = 0
    tseq = 2
    tn = 12
    tnt = 0
    rotA = 1
    yprio = 0
    prew = 52
    imp1 = 77
    fair = 1
    tpose = 1
    pdelay = 0
    spin = 0
    x = 0
    wqs = 2
    p1prio = 1
    epi = 11
    tchB = 0
    wo_n = 4
    tchA = 5
    ctouch = 1
    warm = 0
    al12 = 1
    tE = 99
    ltouch = 0
    awo = 1
    pre = 8
    ad = 8
    spoll = 1
    stlb = 0
    sp32 = 1
    fprio = 1
    swp = 1
    probe = 0
    pbr = 0
    rt = 0
    hold = 0
    tlb = 0
    tlbB = 0
    bpre = 8
    aflag = 0
    y = 0
    pstep = 3
    npre = 2
    late1 = 3
    zrow = 1
    spread = 1
    wvs = 2
    hint = 0
    poi_at = 7
    b2 = 8
    fredo = 0
    remap = 1
    vsmp = 0
    early = 1
    defer = 0
    st2 = 0
    pp1 = 28
    hsmp = 92
    sprio = 1
    smp_at = 17
    wo_at = 8
    tch_at = 4
    quiet = 1
    prio = 0
    outsc = 1
    stag = 0
    sleep = 0
O = Opt()
for a in sys.argv[2:]:
    k, v = a.split("="); assert hasattr(O, k), k
    setattr(O, k, int(v))

WS_O = 8 << 20
WS_F1 = 12 << 20
F1V = 262144
WS_F2 = WS_F1 + 524288
WS_ST = 13 << 20
WS_BYTES = 14 << 20
LDS_BYTES = 163840
L_WV = 65536; L_WK = 131072; L_KV = 65536

class E:
    def __init__(s): s.L = []; s.vq = []; s.lq = []; s.lab = 0; s.ool = []
    def __call__(s, t): s.L.append("    " + t)
    def label(s, n): s.L.append(n + ":")
    def c(s, t): s.L.append("    ; " + t)
    def vm(s, t, tag): s(t); s.vq.append(tag)
    def ds(s, t, tag): s(t); s.lq.append(tag)
    def _n(s, q, tag): return len(q) - 1 - max(i for i, x in enumerate(q) if x == tag)
    def wait_vm(s, tag):
        if tag not in s.vq: return
        n = s._n(s.vq, tag); assert n <= 63
        s(f"s_waitcnt vmcnt({n})"); s.vq = s.vq[len(s.vq)-n:]
    def wait_ds(s, tag):
        if tag not in s.lq: return
        n = s._n(s.lq, tag); assert n <= 15
        s(f"s_waitcnt lgkmcnt({n})"); s.lq = s.lq[len(s.lq)-n:]
    def wait_all(s): s("s_waitcnt vmcnt(0)"); s.vq = []
    def ds_all(s): s("s_waitcnt lgkmcnt(0)"); s.lq = []
    def stamp(s, i, mode=1):
        if O.probe == i and mode == 1: s("s_memrealtime s[76:77]")
        if O.stamps == mode: s(f"{'s_memrealtime' if O.rt else 's_memtime'} s[{ST0+2*i}:{ST0+1+2*i}]")
    def stub(s):
        if O.warm:
            s.nstub = getattr(s, "nstub", 0); s.label(f"L_stub{s.nstub}"); s("s_cbranch_execz L_warmed"); s.nstub += 1
    def newlab(s, p): s.lab += 1; return f"{p}_{s.lab}"
    def cond(s, cmp_, body):
        L = s.newlab("L_c"); s(cmp_); s(f"s_cbranch_scc1 {L}"); s.label(L + "r")
        s.ool.append((L, body))
    def flush(s):
        while s.ool:
            L, body = s.ool.pop(0)
            s.label(L); body(); s(f"s_branch {L}r")
e = E()
def capture(f):
    saved = e.L; e.L = []; f(); out = e.L; e.L = saved
    return out
DEFER = {}
def vr(a, n): return f"v[{a}:{a+n-1}]"
def sr(a): return f"s[{a}:{a+1}]"
def srd(a): return f"s[{a}:{a+3}]"

SX, SW, SWO, SOUT, SWS, SDBG = 8, 12, 16, 20, 24, 28
SEXP = 8
SOWO = 28
sF1, sKV = 0, 1
sBR, sRB, sG, sW, sM0 = 3, 4, 5, 6, 7
sCX = 32; sCW = 40; sVMK = 32
sNON = 48
sT0, sT1, sT2, sT3 = 50, 51, 52, 53
sJ, sXCD, sTT, sFT, sCNT, sT = 54, 55, 56, 57, 58, 59
sEX = 60; sVM = 62
sIG, sIF, sIMP, sPEND = 64, 65, 66, 67
sOA, sF2 = 68, 69
sOW = 70
sU = 53
sXB0, sWB0 = 62, 63
sMK = 67
sT3P = 55
ST0 = 72
SOTH = 20
SIMP = 12
SDUM = 12
vL, vX0, vX1, vW0, vWR, vWR1, vWR2, vXR, vL16 = 1, 2, 3, 4, 5, 6, 7, 8, 12
vT0, vT1, vT2 = 13, 14, 15
vNON = 14
vEXP = 0
vKA, vVA, vKA8, vVA8 = 2, 3, 0, 7
vWO = 4
vFL = 8
vQ2 = 16; vCV = 24; vP = 24; vQ = 32
vML, vMF = 40, 56
accA, accB = 72, 88
vS = 72
WF = [104, 108, 112, 116, 120, 124, 16, 20]
vXF = 128
vO = 104; vK = 136; vV = 144; PB = 176
sBAD = 67
vU0, vU1, vU2 = 36, 37, 38
vONE = 6
vL8 = 13
NEG = "0xff800000"

def mfma(d, a, b, c): e(f"v_mfma_f32_32x32x16_bf16 {vr(d,16)}, {vr(a,4)}, {vr(b,4)}, {c if isinstance(c,str) else vr(c,16)}")
def dma(v, s_, soff, ldsdst, tag):
    e(f"s_add_u32 m0, s{sM0}, {ldsdst}"); e("s_nop 0")
    e.vm(f"buffer_load_dwordx4 v{v}, {srd(s_)}, s{soff} offen lds", tag)
def st_pieces(t):
    sl = t % 4
    return [lambda: dma(vX0, SX, sCX+t, sl*16384, f"st{t}"),
            lambda: dma(vW0, SW, sCW+t, L_WK + sl*8192, f"st{t}"),
            lambda: dma(vX1, SX, sCX+t, sl*16384 + 8192, f"st{t}")]
def cvt(dst, src, i): e(f"v_cvt_pk_bf16_f32 v{dst+i}, v{src+2*i}, v{src+2*i+1}")
def cvt8(dst, src, n=4):
    for i in range(n): cvt(dst, src, i)

def masks(kind):
    e(f"v_and_b32 v{vT0}, 31, v{vL}"); e(f"v_lshrrev_b32 v{vT1}, 5, v{vL}")
    e(f"v_lshlrev_b32 v{vT1}, 2, v{vT1}"); e(f"v_sub_u32 v{vT0}, v{vT0}, v{vT1}")
    if kind == "B":
        e(f"s_mov_b32 s{sMK}, {NEG}")
        for r in range(16):
            c = 8*(r >> 2) + (r & 3)
            e(f"v_subrev_u32 v{vT1}, {c}, v{vT0}"); e(f"v_and_b32 v{vML+r}, s{sMK}, v{vT1}"); e(f"v_xor_b32 v{vMF+r}, s{sMK}, v{vML+r}")
    else:
        e(f"s_mov_b32 s{sMK}, 0xf149f2ca")
        for r in range(16):
            c = 8*(r >> 2) + (r & 3)
            e(f"v_subrev_u32 v{vT1}, {c}, v{vT0}"); e(f"v_and_b32 v{vT1}, -15, v{vT1}"); e(f"v_cvt_f32_u32 v{vT1}, v{vT1}"); e(f"v_mul_f32 v{vML+r}, s{sMK}, v{vT1}")
            if r >= 8:
                e(f"v_add_u32 v{vT1}, {32-c}, v{vT0}"); e(f"v_and_b32 v{vT1}, -15, v{vT1}"); e(f"v_cvt_f32_u32 v{vT1}, v{vT1}"); e(f"v_mul_f32 v{vMF+r}, s{sMK}, v{vT1}")
            else:
                e(f"v_mov_b32 v{vMF+r}, s{sMK}")

def prologue():
    e("s_cmp_ge_u32 s2, 256"); e("s_cbranch_scc1 L_end")
    if O.only == 1: e("s_cmp_ge_u32 s2, 128"); e("s_cbranch_scc1 L_end")
    if O.stamps: e(f"{'s_memrealtime' if O.rt else 's_memtime'} {sr(ST0)}"); e("s_memrealtime s[100:101]")
    if O.spin or O.probe: e("s_memrealtime s[72:73]")
    e("s_load_dwordx16 s[32:47], s[0:1], 0"); e("s_load_dwordx2 s[24:25], s[0:1], 64")
    if O.ctouch:
        e(f"s_getpc_b64 {sr(sVM)}")
        e(f"s_lshr_b32 s{sT0}, s2, 3"); e(f"s_mul_i32 s{sT0}, s{sT0}, 5"); e(f"v_add_u32 v{vT0}, s{sT0}, v0"); e(f"v_lshlrev_b32 v{vT0}, 7, v{vT0}")
        e(f"v_cmp_gt_u32 vcc, 5, v0"); e(f"s_and_saveexec_b64 {sr(sEX)}, vcc"); e("s_cbranch_execz L_noct")
        e(f"global_load_dword v254, v{vT0}, {sr(sVM)}")
        e.label("L_noct"); e("s_mov_b64 exec, -1")
    e(f"v_lshrrev_b32 v{vT0}, 6, v0"); e(f"v_and_b32 v{vL}, 63, v0")
    e(f"v_readfirstlane_b32 s{sW}, v{vT0}")
    e(f"s_and_b32 s{sXCD}, s2, 7"); e(f"s_lshr_b32 s{sJ}, s2, 3")
    if O.remap: e(f"s_bfe_u32 s{sT0}, s2, 0x10002"); e(f"s_lshl_b32 s{sT0}, s{sT0}, 1"); e(f"s_xor_b32 s{sXCD}, s{sXCD}, s{sT0}")
    e(f"s_lshr_b32 s{sT0}, s{sXCD}, 1"); e(f"s_lshl_b32 s{sT0}, s{sT0}, 2"); e(f"s_bfe_u32 s{sT1}, s{sJ}, 0x20002")
    e(f"s_add_u32 s{sRB}, s{sT0}, s{sT1}")
    e(f"s_and_b32 s{sT0}, s{sXCD}, 1"); e(f"s_lshl_b32 s{sT0}, s{sT0}, 2"); e(f"s_and_b32 s{sT2}, s{sJ}, 3")
    e(f"s_add_u32 s{sG}, s{sT0}, s{sT2}")
    e(f"s_add_u32 s{sT3}, s{sT1}, s{sT2}"); e(f"s_lshl_b32 s{sT3}, s{sT3}, 1")
    e(f"s_lshl_b32 s{sM0}, s{sW}, 10")
    e(f"v_lshrrev_b32 v{vT0}, 4, v{vL}")
    e(f"s_and_b32 s{sT0}, s{sW}, 1"); e(f"s_lshl_b32 s{sT0}, s{sT0}, 2")
    e(f"v_add_u32 v{vT0}, s{sT0}, v{vT0}")
    e(f"v_and_b32 v{vT1}, 7, v{vL}"); e(f"v_xor_b32 v{vT0}, v{vT0}, v{vT1}"); e(f"v_lshlrev_b32 v{vT0}, 4, v{vT0}")
    e(f"v_lshrrev_b32 v{vT1}, 3, v{vL}"); e(f"v_lshl_add_u32 v{vX0}, v{vT1}, 10, v{vT0}")
    e(f"s_lshl_b32 s{sT0}, s{sW}, 13"); e(f"v_add_u32 v{vX0}, s{sT0}, v{vX0}"); e(f"v_add_u32 v{vX1}, 0x10000, v{vX0}")
    e(f"v_bfe_u32 v{vT0}, v{vL}, 2, 3")
    e(f"s_lshl_b32 s{sT0}, s{sW}, 3"); e(f"v_add_u32 v{vT0}, s{sT0}, v{vT0}")
    e(f"v_lshrrev_b32 v{vT1}, 5, v{vL}"); e(f"v_lshlrev_b32 v{vT1}, 6, v{vT1}")
    e(f"v_and_b32 v{vT2}, 3, v{vL}"); e(f"v_lshl_add_u32 v{vT1}, v{vT2}, 4, v{vT1}")
    e(f"v_mul_u32_u24 v{vW0}, 3072, v{vT0}"); e(f"v_add_u32 v{vW0}, v{vW0}, v{vT1}"); e(f"v_add_u32 v{vW0}, 0x400, v{vW0}")
    def need():
        e(f"s_lshr_b32 s{sFT}, s{sW}, 2"); e(f"s_mul_i32 s{sTT}, s{sFT}, 3"); e(f"s_and_b32 s{sT0}, s{sW}, 3"); e(f"s_xor_b32 s{sTT}, s{sTT}, s{sT0}")
        e(f"v_and_b32 v{vT0}, 31, v{vL}"); e(f"v_lshrrev_b32 v{vT1}, 5, v{vL}")
        e(f"v_bfe_u32 v{vT2}, v{vL}, 1, 3"); e(f"v_xor_b32 v{vT2}, v{vT2}, v{vT1}"); e(f"v_lshlrev_b32 v{vT2}, 4, v{vT2}")
        e(f"v_lshl_add_u32 v{vXR}, v{vT0}, 7, v{vT2}")
        e(f"s_lshl_b32 s{sT0}, s{sTT}, 12"); e(f"v_add_u32 v{vXR}, s{sT0}, v{vXR}")
        for s_ in range(1, 4): e(f"v_xor_b32 v{vXR+s_}, {s_*32}, v{vXR}")
        e(f"v_bfe_u32 v{vT2}, v{vL}, 2, 2"); e(f"v_lshlrev_b32 v{vWR}, 6, v{vT2}")
        e(f"v_bfe_u32 v{vT2}, v{vL}, 4, 1"); e(f"v_lshl_add_u32 v{vWR}, v{vT2}, 5, v{vWR}")
        e(f"v_and_b32 v{vT2}, 3, v{vL}"); e(f"v_lshl_add_u32 v{vWR}, v{vT2}, 3, v{vWR}")
        e(f"v_lshl_add_u32 v{vWR}, v{vT1}, 10, v{vWR}")
        e(f"s_lshl_b32 s{sT0}, s{sFT}, 9"); e(f"v_add_u32 v{vWR}, s{sT0}, v{vWR}")
        e(f"v_add_u32 v{vWR1}, 0x10000, v{vWR}"); e(f"v_add_u32 v{vWR2}, 0x20000, v{vWR}")
    if O.early: need()
    e(f"s_mov_b32 s{SX+2}, {2048*1024}"); e(f"s_mov_b32 s{SX+3}, 0x20000")
    e(f"s_mov_b32 s{SW+2}, {512*3072}"); e(f"s_mov_b32 s{SW+3}, 0x20000")
    e(f"s_mov_b32 s{SOTH+3}, 0x20000")
    e(f"s_lshl_b32 s{sT0}, s{sRB}, 17"); e(f"s_lshl_b32 s{sT1}, s{sG}, 7")
    e(f"s_cmp_lt_u32 s2, 128"); e(f"s_cselect_b32 s{sBR}, 1, 0")
    e(f"s_cselect_b32 s{sT3}, 0, s{sT3}")
    e.stamp(1, 10)
    e("s_waitcnt lgkmcnt(0)")
    e.stamp(2, 10)
    e(f"s_cselect_b64 {sr(SX)}, s[38:39], s[32:33]")
    e(f"s_cselect_b64 {sr(SW)}, s[40:41], s[34:35]")
    e(f"s_cselect_b64 {sr(SWO)}, s[42:43], s[36:37]")
    e(f"s_cselect_b64 {sr(sOW)}, s[36:37], s[42:43]")
    e(f"s_mov_b64 {sr(SDBG)}, s[46:47]")
    e("s_cbranch_scc1 L_notouch")
    sp = O.xspan
    e(f"v_lshrrev_b32 v{vT0}, {sp}, v{vL}"); e(f"v_lshlrev_b32 v{vT0}, 10, v{vT0}")
    e(f"v_and_b32 v{vT1}, {(1 << sp) - 1}, v{vL}"); e(f"v_lshl_add_u32 v{vT0}, v{vT1}, 7, v{vT0}")
    e(f"v_lshrrev_b32 v{vT1}, 4, v{vL}"); e(f"v_bfe_u32 v{vT2}, v{vL}, 2, 2"); e(f"v_lshl_add_u32 v{vT1}, v{vT1}, 6, v{vT2}")
    e(f"v_mul_u32_u24 v{vT1}, 3072, v{vT1}"); e(f"v_and_b32 v{vT2}, 3, v{vL}"); e(f"v_lshl_add_u32 v{vT1}, v{vT2}, 7, v{vT1}")
    sXB, sWB = sIG, sIF
    e(f"s_and_b32 s{sXB}, s{sG}, 3"); e(f"s_lshl_b32 s{sXB}, s{sXB}, 15"); e(f"s_add_u32 s{sXB}, s{sXB}, s{sT0}")
    e(f"s_and_b32 s{sWB}, s{sJ}, 15"); e(f"s_mul_i32 s{sWB}, s{sWB}, {4*3072}"); e(f"s_and_b32 s{sT2}, s{sT1}, 512"); e(f"s_add_u32 s{sWB}, s{sWB}, s{sT2}")
    code = {0: [8, 2, 9, 10, 3, 11, 4, 5, 0, 1], 1: [8, 9, 10, 11, 2, 3, 4, 5, 0, 1]}[O.torder]
    items = [(1, c) for c in code] + [(0, c) for c in code]
    if O.tseq == 1:
        items = [(1, c) for c in code[:8]] + [(0, c) for c in code[:6]] + [(1, c) for c in code[8:]] + [(0, c) for c in code[6:]]
    if O.tseq == 2: items = [(1, c) for c in code] + [(0, c) for c in code[6:]]
    if O.tseq == 3: items = [(1, c) for c in code] + [(0, c) for c in (2, 3, 4, 5, 0, 1)]
    if O.tseq == 4: items = [(1, c) for c in code[:8]] + [(0, c) for c in (2, 3, 4, 5)] + [(1, c) for c in code[8:]] + [(0, c) for c in (0, 1)]
    items = items[:O.tn]
    for r in range((len(items) + 7) // 8):
        rnd = items[8*r:8*r+8]
        pk = sum(c << (4*i) for i, (b_, c) in enumerate(rnd)); bm = sum(b_ << i for i, (b_, c) in enumerate(rnd))
        if len(rnd) < 8: e(f"s_cmp_ge_u32 s{sW}, {len(rnd)}"); e(f"s_cbranch_scc1 L_t{r}d")
        e(f"s_lshl_b32 s{sT2}, s{sW}, 2"); e(f"s_lshr_b32 s{sT2}, {pk:#x}, s{sT2}")
        e(f"s_bitcmp1_b32 s{sT2}, 3"); e(f"s_cbranch_scc1 L_t{r}x")
        e(f"s_bitcmp1_b32 {bm:#x}, s{sW}"); e(f"s_cselect_b64 {sr(SOTH)}, s[40:41], s[34:35]"); e(f"s_mov_b32 s{SOTH+2}, {512*3072}")
        e(f"s_and_b32 s{sCNT}, s{sT2}, 1"); e(f"s_mul_i32 s{sCNT}, s{sCNT}, {256*3072}"); e(f"s_add_u32 s{sCNT}, s{sCNT}, s{sWB}")
        e(f"s_and_b32 s{sT2}, s{sT2}, 6"); e(f"s_lshl_b32 s{sT2}, s{sT2}, 9"); e(f"s_add_u32 s{sCNT}, s{sCNT}, s{sT2}")
        e(f"buffer_load_dword v{250+r}, v{vT1}, {srd(SOTH)}, s{sCNT} offen{' nt' if O.tnt else ''}")
        e(f"s_branch L_t{r}d")
        e.label(f"L_t{r}x")
        e(f"s_bitcmp1_b32 {bm:#x}, s{sW}"); e(f"s_cselect_b64 {sr(SOTH)}, s[38:39], s[32:33]"); e(f"s_mov_b32 s{SOTH+2}, {2048*1024}")
        e(f"s_and_b32 s{sT2}, s{sT2}, 3")
        if sp == 2:
            e(f"s_and_b32 s{sCNT}, s{sT2}, 1"); e(f"s_lshl_b32 s{sCNT}, s{sCNT}, 14"); e(f"s_lshr_b32 s{sT2}, s{sT2}, 1"); e(f"s_lshl_b32 s{sT2}, s{sT2}, 9"); e(f"s_add_u32 s{sT2}, s{sT2}, s{sCNT}")
        else: e(f"s_lshl_b32 s{sT2}, s{sT2}, {8 if sp == 1 else 13}")
        e(f"s_add_u32 s{sCNT}, s{sT2}, s{sXB}")
        e(f"buffer_load_dword v{250+r}, v{vT0}, {srd(SOTH)}, s{sCNT} offen{' nt' if O.tnt else ''}")
        e.label(f"L_t{r}d")
        e.stamp(7+r, 10)
        e("s_barrier")
    if O.tlb:
        e(f"s_cmp_lg_u32 s{sW}, 7"); e("s_cbranch_scc1 L_notlb")
        if O.tlb >= 20: e(f"v_lshlrev_b32 v{vT0}, {O.tlb}, v{vL}")
        else:
            e(f"s_and_b32 s{sT2}, s{sJ}, 15"); e(f"v_lshlrev_b32 v{vT0}, 4, v{vL}"); e(f"v_add_u32 v{vT0}, s{sT2}, v{vT0}"); e(f"v_lshlrev_b32 v{vT0}, {O.tlb}, v{vT0}")
        for k_, (p_, n_) in enumerate((("s[24:25]", 13 << 20), ("s[44:45]", 4 << 20), ("s[36:37]", 512 << 10), ("s[42:43]", 512 << 10))):
            e(f"s_mov_b64 {sr(SOTH)}, {p_}"); e(f"s_mov_b32 s{SOTH+2}, {n_}")
            e(f"buffer_load_dword v{244+k_}, v{vT0}, {srd(SOTH)}, 0 offen")
        e.label("L_notlb")
    if not O.rotA: e(f"s_mov_b32 s{sT3}, 0")
    e.label("L_notouch")
    e(f"s_mov_b64 {sr(SOUT)}, s[44:45]")
    def chunk(t):
        e(f"s_add_u32 s{sT2}, s{sT3}, {t}"); e(f"s_and_b32 s{sT2}, s{sT2}, 7")
        e(f"s_lshl_b32 s{sCX+t}, s{sT2}, 7"); e(f"s_add_u32 s{sCX+t}, s{sCX+t}, s{sT0}")
        e(f"s_mul_i32 s{sCW+t}, s{sT2}, {64*3072}"); e(f"s_add_u32 s{sCW+t}, s{sCW+t}, s{sT1}")
    e.stamp(3, 10)
    chunk(0)
    for p in st_pieces(0): p()
    e.stamp(4, 10)
    chunk(1)
    for p in st_pieces(1): p()
    e.stamp(5, 10)
    chunk(2)
    e(f"s_mov_b32 s{sXB0}, s{sT0}"); e(f"s_mov_b32 s{sWB0}, s{sT1}")
    if not O.early: need()
    e(f"s_mov_b32 s{SDBG+2}, 256"); e(f"s_mov_b32 s{SDBG+3}, 0x20000")
    e(f"s_xor_b32 s{sT2}, s{sW}, 7"); e(f"s_or_b32 s{sT2}, s2, s{sT2}")
    def tag():
        e(f"s_memrealtime {sr(sNON)}"); e("s_waitcnt lgkmcnt(0)")
        e(f"s_or_b32 s{sNON+1}, s{sNON+1}, 0x80000000")
        e(f"v_mov_b32 v{vCV}, s{sNON}"); e(f"v_mov_b32 v{vCV+1}, s{sNON+1}")
        e("s_mov_b64 exec, 1")
        e(f"buffer_store_dwordx2 {vr(vCV,2)}, off, {srd(SDBG)}, 0 sc1")
        e("s_mov_b64 exec, -1")
    e.cond(f"s_cmp_eq_u32 s{sT2}, 0", tag)
    e.stamp(6, 10)
    def chunk2(t):
        e(f"s_add_u32 s{sCNT}, s{sT3}, {t}"); e(f"s_and_b32 s{sCNT}, s{sCNT}, 7")
        e(f"s_lshl_b32 s{sCX+t}, s{sCNT}, 7"); e(f"s_add_u32 s{sCX+t}, s{sCX+t}, s{sXB0}")
        e(f"s_mul_i32 s{sCW+t}, s{sCNT}, {64*3072}"); e(f"s_add_u32 s{sCW+t}, s{sCW+t}, s{sWB0}")
    for t in range(3, 8): DEFER[f"c{t}"] = capture(lambda: chunk2(t))
    def rest():
        e(f"s_mov_b32 s{SWO+2}, {512*1024}"); e(f"s_mov_b32 s{SWO+3}, 0x20000")
        e(f"s_mov_b32 s{SOUT+2}, {2048*2048}")
        e(f"s_mov_b32 s{SWS+2}, {WS_BYTES}"); e(f"s_mov_b32 s{SWS+3}, 0x20000")
        e(f"s_lshl_b32 s{sT}, s{sRB}, 2"); e(f"s_add_u32 s{sT}, s{sT}, s{sTT}")
        e(f"v_lshlrev_b32 v{vL16}, 4, v{vL}")
        e(f"s_lshl_b32 s{sT0}, s{sTT}, 13"); e(f"s_lshl_b32 s{sT1}, s{sFT}, 11"); e(f"s_add_u32 s{sT0}, s{sT0}, s{sT1}")
        e(f"s_add_u32 s{sT0}, s{sT0}, {L_KV + 8*8192}"); e(f"v_add_u32 v{vEXP}, s{sT0}, v{vL16}")
        e(f"s_lshl_b32 s{sT0}, s{sBR}, 3"); e(f"s_add_u32 s{sT0}, s{sT0}, s{sG}"); e(f"s_lshl_b32 s{sT0}, s{sT0}, 6"); e(f"s_add_u32 s{sT0}, s{sT0}, s{sT}")
        e(f"s_lshl_b32 s{sKV}, s{sT0}, 13"); e(f"s_add_u32 s{sKV}, s{sKV}, s{sT1}")
        e(f"s_lshl_b32 s{sF1}, s{sT0}, 8"); e(f"s_lshl_b32 s{sT1}, s{sFT}, 7"); e(f"s_add_u32 s{sF1}, s{sF1}, s{sT1}"); e(f"s_add_u32 s{sF1}, s{sF1}, {WS_F1}")
        e(f"s_sub_u32 s{sT0}, s{sT0}, s{sTT}"); e(f"s_add_u32 s{sT0}, s{sT0}, s{sW}"); e(f"s_sub_u32 s{sT0}, s{sT0}, 8")
        e(f"s_lshl_b32 s{sT1}, s{sRB}, 2"); e(f"s_add_u32 s{sT1}, s{sT1}, s{sW}"); e(f"s_cmp_lt_u32 s{sT1}, 8"); e(f"s_cselect_b32 s{sIMP}, 1, 0")
        e(f"s_cselect_b32 s{sT0}, 0, s{sT0}")
        e(f"s_lshl_b32 s{sIG}, s{sT0}, 13"); e(f"s_lshl_b32 s{sIF}, s{sT0}, 8"); e(f"s_add_u32 s{sIF}, s{sIF}, {WS_F1 + 120}")
        e(f"s_cmp_eq_u32 s{sBR}, 0"); e(f"s_cselect_b32 s{sIMP}, 2, s{sIMP}")
        e(f"s_lshl_b32 s{sT0}, s{sBR}, 6"); e(f"s_add_u32 s{sT0}, s{sT0}, s{sT}")
        e(f"s_lshl_b32 s{sT1}, s{sT0}, 4"); e(f"s_lshl_b32 s{sT2}, s{sG}, 1"); e(f"s_add_u32 s{sT1}, s{sT1}, s{sT2}"); e(f"s_add_u32 s{sT1}, s{sT1}, s{sFT}")
        e(f"s_lshl_b32 s{sOA}, s{sT1}, 11"); e(f"s_add_u32 s{sOA}, s{sOA}, {WS_O}")
        e(f"s_lshl_b32 s{sF2}, s{sT1}, 8"); e(f"s_add_u32 s{sF2}, s{sF2}, {WS_F2}")
        e(f"s_mov_b32 s{sEX}, 0xffff"); e(f"s_mov_b32 s{sEX+1}, 0xffff")
        e(f"s_lshl_b32 s{sT0}, s{sXCD}, 1"); e(f"s_bfe_u32 s{sT1}, s{sJ}, 0x10003"); e(f"s_add_u32 s{sT0}, s{sT0}, s{sT1}")
        e(f"s_lshl_b32 s{sT0}, s{sT0}, 2"); e(f"s_and_b32 s{sT1}, s{sW}, 3"); e(f"s_add_u32 s{sT3P}, s{sT0}, s{sT1}")

    DEFER["rest"] = capture(rest)
    DEFER["mA"] = capture(lambda: masks("A")); DEFER["mB"] = capture(lambda: masks("B"))
    if O.st2 == 1:
        for p in st_pieces(2): p()
    if not O.defer:
        for t in range(3, 8): e.L.extend(DEFER[f"c{t}"])
        e.L.extend(DEFER["rest"])
        e.cond(f"s_cmp_eq_u32 s{sBR}, 0", lambda: (e.L.extend(DEFER["mA"]), e("s_branch L_mdone")))
        e.L.extend(DEFER["mB"]); e.label("L_mdone")
    if O.st2 == 2:
        for p in st_pieces(2): p()
    e.stamp(11, 10)

def flag_store(soff, s_=SWS, off=0):
    e("s_mov_b64 exec, 0xffff")
    e.vm(f"buffer_store_dwordx2 {vr(vNON,2)}, v{vL8}, {srd(s_)}, s{soff} offen{f' offset:{off}' if off else ''} sc1", "flag")
    e("s_mov_b64 exec, -1")
def flag_ld(tag):
    e.vm(f"buffer_load_dwordx4 {vr(vFL,4)}, off, {srd(SWS)}, s{sIF} sc1", tag)
def flag_cmp():
    e(f"v_cmp_ne_u64 vcc, {sr(sNON)}, {vr(vFL,2)}"); e(f"v_cmp_ne_u64 {sr(sVM)}, {sr(sNON)}, {vr(vFL+2,2)}")
    e(f"s_or_b64 {sr(sVM)}, {sr(sVM)}, vcc")
def flag_poll():
    L = e.newlab("L_fp"); D = L + "d"
    e(f"s_mov_b32 s{sCNT}, 0")
    e.label(L)
    e(f"buffer_load_dwordx4 {vr(vFL,4)}, off, {srd(SWS)}, s{sIF} sc1")
    e(f"s_add_u32 s{sCNT}, s{sCNT}, 1"); e(f"s_cmp_gt_u32 s{sCNT}, {O.pollmax}"); e(f"s_cbranch_scc1 {D}")
    e("s_waitcnt vmcnt(0)")
    flag_cmp(); e(f"s_cbranch_scc1 {L}")
    e.label(D)
def spoll(soff, offs):
    L = e.newlab("L_sp"); D = L + "d"
    e(f"s_add_u32 s{sVM}, s{SWS}, s{soff}"); e(f"s_addc_u32 s{sVM+1}, s{SWS+1}, 0"); e(f"s_mov_b32 s{sCNT}, 0")
    e.label(L)
    w32 = O.sp32 and len(offs) > 4
    for i, o in enumerate(offs): e(f"s_load_dword s{sVMK+i}, {sr(sVM)}, {o} glc" if w32 else f"s_load_dwordx2 {sr(sVMK+2*i)}, {sr(sVM)}, {o} glc")
    e(f"s_add_u32 s{sCNT}, s{sCNT}, 1"); e(f"s_cmp_gt_u32 s{sCNT}, {O.pollmax}")
    e("s_waitcnt lgkmcnt(0)")
    e(f"s_cbranch_scc1 {D}")
    n2 = len(offs)//2 if w32 else len(offs)
    for i in range(n2): e(f"s_xor_b64 {sr(sVMK+2*i)}, {sr(sVMK+2*i)}, {sr(sT2) if w32 else sr(sNON)}")
    for i in range(1, n2): e(f"s_or_b64 {sr(sVMK)}, {sr(sVMK)}, {sr(sVMK+2*i)}")
    e(f"s_cbranch_scc1 {L}")
    e.label(D)
def imp_dma(v, track=None):
    e(f"s_lshl_b32 s{sT1}, s{sW}, 13"); e(f"s_add_u32 m0, s{sT1}, {L_KV + v*4096}")
    e(f"s_add_u32 s{sT0}, s{sIG}, {v*4096}")
    for k in range(4):
        t = f"buffer_load_dwordx4 v{vL16}, {srd(SIMP)}, s{sT0} offen offset:{k*1024} sc1 lds"
        if track: e.vm(t, track)
        else: e(t)

def touch_wo(s_, tmp):
    e(f"s_and_b32 s{sT0}, s{sJ}, 15"); e(f"s_lshl_b32 s{sT0}, s{sT0}, 3"); e(f"s_add_u32 s{sT0}, s{sT0}, s{sW}")
    e(f"s_lshl_b32 s{sT0}, s{sT0}, 12"); e(f"v_lshlrev_b32 v{tmp}, 7, v{vL}")
    e("s_mov_b32 exec_hi, 0")
    e(f"buffer_load_dword v{tmp+1}, v{tmp}, {srd(s_)}, s{sT0} offen")
    e("s_mov_b32 exec_hi, -1")

def p1():
    e.stamp(12)
    def rd(ks):
        G, s_ = divmod(ks, 4)
        w = WF[ks % 8]
        if G < 8:
            e.ds(f"ds_read_b128 {vr(vXF+4*ks,4)}, v{vXR+s_} offset:{(G%4)*16384}", f"w{ks}")
            b, off = vWR2, (G % 4)*8192 + s_*2048
        elif G < 16: b, off = vWR1, (G-8)*8192 + s_*2048
        else: b, off = vWR, (G-16)*8192 + s_*2048
        e.ds(f"ds_read_b64_tr_b16 {vr(w,2)}, v{b} offset:{off}", f"w{ks}")
        e.ds(f"ds_read_b64_tr_b16 {vr(w+2,2)}, v{b} offset:{off+256}", f"w{ks}")
    syncs = {G: (f"st{G}", not O.spread) for G in range(8)}
    syncs.update({8: ("wv1", not O.spread), 10: ("wv3", False), 12: ("wv7", False), 16: ("wq3", False), 20: ("wq7", "exp")})
    def sync(G):
        if G not in syncs: return
        tag, lg = syncs[G]
        e.wait_vm(tag)
        if lg is True: e.ds_all()
        elif lg: e.wait_ds(lg)
        if not (O.x & 8 and G > 8): e("s_barrier")
    gap = {k: [] for k in range(-1, 96)}
    def I(t): return lambda: e(t)
    def wv(t): return lambda: dma(vW0, SW, sCW+t, L_WV + t*8192, f"wv{t}")
    def wq(t): return lambda: dma(vW0, SW, sCW+t, t*8192, f"wq{t}")
    if O.npre == 2:
        if not O.st2: gap[-1] += st_pieces(2)
        for t in range(3, 8):
            for i, p in enumerate(st_pieces(t)): gap[(4*(t-3) + i) if not (O.st2 and t == 3) else -1].append(p)
    else:
        if O.npre == 3: gap[-1] += st_pieces(3)
        for t in range(4, 8):
            for i, p in enumerate(st_pieces(t)): gap[4*(t-4) + i].append(p)
    def raw(ls): return lambda: e.L.extend(ls)
    if O.defer:
        for t in range(3, 8): gap[4*(t-3) - 1].insert(0, raw(DEFER[f"c{t}"]))
    groups = []; cur = []
    R = DEFER["rest"]
    for i, l in enumerate(R):
        cur.append(l)
        nxt = R[i+1] if i+1 < len(R) else ""
        if len(cur) >= 5 and "s_cselect" not in nxt: groups.append(cur); cur = []
    if cur: groups.append(cur)
    slots = [k for k in range(0, 19) if k % 4 != 3]
    assert len(groups) <= len(slots), len(groups)
    if O.defer:
        for k, gr in zip(slots, groups): gap[k].append(raw(gr))
    mg = [3, 7, 11, 15, 21, 24]
    def mpart(i):
        def cut(M): return M[len(M)*i//len(mg):len(M)*(i+1)//len(mg)]
        def f():
            L = e.newlab("L_mk")
            e.cond(f"s_cmp_eq_u32 s{sBR}, 0", lambda: (e.L.extend(cut(DEFER["mA"])), e(f"s_branch {L}")))
            e.L.extend(cut(DEFER["mB"])); e.label(L)
        return f
    if O.defer:
        for i, k in enumerate(mg): gap[k].append(mpart(i))
    gap[26].append(I(f"v_lshlrev_b32 v{vL8}, 3, v{vL}"))
    gap[19].append(I(f"v_add_u32 v{vW0}, 0x400, v{vW0}"))
    for t, k in enumerate([[20, 22, 24, 26, 28, 30, 32, 33], [20, 21, 22, 24, 26, 28, 30, 32], [19, 20, 22, 23, 25, 27, 29, 31]][O.wvs]): gap[k].append(wv(t))
    gap[29].append(lambda: e.vm(f"buffer_load_dwordx2 {vr(vNON,2)}, off, {srd(SDBG)}, 0 sc1", "non"))
    gap[21] += [I(f"s_mov_b64 {sr(SEXP)}, {sr(SWS)}"), I(f"s_lshl_b32 s{sT0}, s{sBR}, 2"), I(f"s_or_b32 s{sT0}, s{sT0}, s{sTT}")]
    gap[23] += [I(f"s_cmp_ge_u32 s{sT0}, 3"), I(f"s_cselect_b32 s{SEXP+2}, s{SWS+2}, 0")]
    def export(k0, acc, tmp, off, tag):
        for i in range(4): gap[k0].append(lambda i=i: cvt(tmp, acc, i))
        if off: gap[k0].append(I(f"s_add_u32 s{sKV}, s{sKV}, {off}"))
        if not O.x & 1: gap[k0+1].append(lambda: e.vm(f"buffer_store_dwordx4 {vr(tmp,4)}, v{vL16}, {srd(SEXP)}, s{sKV} offen sc1", tag))
        for i in range(4, 8): gap[k0+1].append(lambda i=i: cvt(tmp, acc, i))
        if not O.x & 1: gap[k0+2].append(lambda: e.vm(f"buffer_store_dwordx4 {vr(tmp+4,4)}, v{vL16}, {srd(SEXP)}, s{sKV} offen offset:1024 sc1", tag))
        if not O.x & 2: gap[k0+3].append(lambda: e.ds(f"ds_write_b128 v{vEXP}, {vr(tmp,4)} offset:{off}", "exp"))
        if not O.x & 2: gap[k0+4].append(lambda: e.ds(f"ds_write_b128 v{vEXP}, {vr(tmp+4,4)} offset:{off+1024}", "exp"))
    export(34, accA, vCV, 0, "kst")
    gap[39].append(I(f"v_subrev_u32 v{vW0}, 0x800, v{vW0}"))
    wqg = [[40, 43, 46, 49, 54, 57, 60, 63], [39, 40, 41, 42, 53, 55, 57, 59], [39, 41, 43, 45, 53, 55, 57, 59]][O.wqs]
    for t, k in enumerate(wqg):
        if not O.x & 4: gap[k].append(wq(t))
    def kflag():
        e.wait_vm("kst"); e.wait_vm("non")
        e(f"v_readfirstlane_b32 s{sNON}, v{vNON}"); e(f"v_readfirstlane_b32 s{sNON+1}, v{vNON+1}")
        def late():
            L = e.newlab("L_tag"); D = L + "d"
            e(f"s_mov_b32 s{sCNT}, 0")
            e.label(L)
            e(f"buffer_load_dwordx2 {vr(vNON,2)}, off, {srd(SDBG)}, 0 sc1"); e("s_waitcnt vmcnt(0)")
            e(f"v_readfirstlane_b32 s{sNON}, v{vNON}"); e(f"v_readfirstlane_b32 s{sNON+1}, v{vNON+1}")
            e(f"s_add_u32 s{sCNT}, s{sCNT}, 1"); e(f"s_cmp_gt_u32 s{sCNT}, {O.pollmax}"); e(f"s_cbranch_scc1 {D}")
            e(f"s_cmp_eq_u32 s{sNON+1}, 0"); e(f"s_cbranch_scc1 {L}")
            e.label(D)
        e("s_nop 0")
        e.cond(f"s_cmp_eq_u32 s{sNON+1}, 0", late)
        flag_store(sF1, SEXP)
    gap[O.kflag].append(kflag)
    def prew():
        e("s_mov_b32 exec_hi, 0")
        e.vm(f"buffer_store_dwordx2 {vr(vL16,2)}, v{vL8}, {srd(SWS)}, s{sF2} offen sc1", "prew")
        e("s_mov_b32 exec_hi, -1")
    if O.prew: gap[O.prew].append(prew)
    export(66, accB, vCV+8, 4096, "vst")
    gap[O.kchk].append(lambda: flag_ld("kchk"))
    gap[72] += [I(f"v_add_u32 v{vKA8}, {-8*8192 & 0xffffffff:#x}, v{vEXP}"), I(f"v_add_u32 v{vKA}, 0x2000, v{vKA8}"), I(f"v_and_b32 v{vVA8}, 0xfffffeff, v{vKA8}")]
    gap[73] += [I(f"v_add_u32 v{vVA8}, 0x1000, v{vVA8}"), I(f"v_add_u32 v{vVA}, 0x2000, v{vVA8}")]
    for i in range(1, 9):
        gap[73+i] += [I(f"s_cmp_le_u32 {i}, s{sT}"), I(f"s_cselect_b64 {sr(sVMK+2*(i-1))}, {sr(sEX)}, -1")]
    gap[61] += [I(f"v_bfe_u32 v{vWO}, v{vL}, 2, 3"), I(f"s_lshl_b32 s{sT0}, s{sW}, 3"), I(f"v_add_u32 v{vWO}, s{sT0}, v{vWO}"), I(f"v_lshlrev_b32 v{vWO}, 10, v{vWO}")]
    gap[62] += [I(f"v_lshrrev_b32 v{vWR1}, 5, v{vL}"), I(f"v_lshl_add_u32 v{vWO}, v{vWR1}, 6, v{vWO}"), I(f"v_and_b32 v{vWR1}, 3, v{vL}"), I(f"v_lshl_add_u32 v{vWO}, v{vWR1}, 4, v{vWO}")]
    gap[63] += [I(f"s_and_b32 s{sT0}, s{sJ}, 7"), I(f"s_lshl_b32 s{sT0}, s{sT0}, 7"), I(f"v_add_u32 v{vWO}, s{sT0}, v{vWO}")]
    gap[64] += [I(f"s_mov_b64 {sr(SIMP)}, {sr(SWS)}")]
    def imp_k1():
        e.wait_vm("kchk")
        flag_cmp()
        e(f"s_cselect_b32 s{sPEND}, 1, 0")
        e(f"s_cmp_lg_u32 s{sIMP}, 0"); e(f"s_cselect_b32 s{sPEND}, 0, s{sPEND}")
        flag_ld("kchk2")
        e(f"s_or_b32 s{sT0}, s{sPEND}, s{sIMP}"); e(f"s_cselect_b32 s{SIMP+2}, 0, s{SWS+2}")
        e.cond(f"s_cmp_eq_u32 s{sBR}, 0", lambda: ([e(f"buffer_load_dword v{vCV}, off, {srd(SIMP)}, 0") for i in range(4)], e("s_branch L_k1d")))
        imp_dma(0, "kimp")
        e.label("L_k1d")
    gap[O.imp1].append(imp_k1)
    def imp_k2():
        e.wait_vm("vst")
        e(f"s_add_u32 s{sF1}, s{sF1}, {F1V}")
        flag_store(sF1, SEXP); e.stamp(5)
        e(f"s_cmp_lg_u32 s{sIMP}, 0"); e(f"s_cselect_b32 s{SIMP+2}, 0, s{SWS+2}")
        def again():
            L = e.newlab("L_k2")
            e("s_waitcnt vmcnt(1)")
            flag_cmp(); e(f"s_cbranch_scc1 {L}")
            imp_dma(0); e(f"s_mov_b32 s{sPEND}, 2")
            e.label(L)
        e.cond(f"s_cmp_eq_u32 s{sPEND}, 1", again)
    gap[O.imp].append(imp_k2)
    if O.aflag:
        def aflag():
            e("s_waitcnt vmcnt(5)")
            e(f"s_add_u32 s{sT0}, s{sF1}, {F1V}")
            e("s_mov_b64 exec, 0xffff")
            e(f"buffer_store_dwordx2 {vr(vNON,2)}, v{vL8}, {srd(SEXP)}, s{sT0} offen sc1")
            e("s_mov_b64 exec, -1")
            e(f"s_mov_b32 s{SEXP+2}, 0")
        gap[O.aflag].append(lambda: e.cond(f"s_cmp_eq_u32 s{sBR}, 0", aflag))
        def hs():
            e(f"s_sub_u32 s{sIF}, s{sF1}, 256")
            e(f"s_add_u32 s{sVM}, s{SWS}, s{sIF}"); e(f"s_addc_u32 s{sVM+1}, s{SWS+1}, 0")
            e(f"s_load_dwordx2 {sr(sVMK)}, {sr(sVM)}, 0 glc")
        gap[O.hsmp].append(lambda: (e(f"s_or_b32 s{sT0}, s{sBR}, s{sTT}"), e.cond(f"s_cmp_eq_u32 s{sT0}, 0", hs)))
    def late_vm():
        if not O.awo: e.cond(f"s_cmp_eq_u32 s{sBR}, 0", lambda: ([wo_piece(i, L_KV) for i in range(4, 8)], e("s_branch L_tBd")))
        if O.tchB: touch_wo(SWO, vCV)
        e.label("L_tBd")
    gap[O.tchB or 90].append(late_vm)
    gap[85] += [I(f"v_mov_b32 v{vONE}, 0"), I("s_mov_b32 exec_lo, 0x110000" if O.zrow else "s_nop 0"), I("s_mov_b32 exec_hi, 0x110000" if O.zrow else "s_nop 0"), I(f"v_mov_b32 v{vONE}, 0x3f803f80"), I("s_mov_b64 exec, -1")]
    for i in range(32): gap[88 + i//4].append(I(f"v_mov_b32 v{vV+i}, v{vONE}"))
    gap[92].append(lambda: e.ds(f"ds_read_b128 {vr(vK,4)}, v{vKA} offset:{7*8192 + 1024}", "k0"))
    gap[92].append(lambda: e.ds(f"ds_read_b128 {vr(vK+4,4)}, v{vKA} offset:{7*8192}", "k0"))
    gap[95] += [I(f"s_mov_b32 s{sT2}, 0x3eb8aa3b"), I(f"s_mov_b32 s{sT3}, 0x3eb8aa3b")]

    if O.hold:
        e(f"s_cmp_lg_u32 s{sBR}, 0"); e("s_cbranch_scc1 L_nohold")
        e.label("L_hold"); e("s_sleep 2"); e(f"s_memrealtime {sr(sVM)}"); e("s_waitcnt lgkmcnt(0)"); e(f"s_sub_u32 s{sVM}, s{sVM}, s100")
        e(f"s_cmp_lt_u32 s{sVM}, {O.hold}"); e("s_cbranch_scc1 L_hold")
        e.label("L_nohold")
    if O.stamps == 10: e.wait_vm("st0"); e.stamp(9, 10)
    sync(0); e.stamp(1); e.stamp(10, 10)
    for s_ in range(4): rd(s_)
    for f in gap[-1]: f()
    for ks in range(96):
        it, s_ = divmod(ks, 4)
        if s_ == 0:
            e.c(f"---- P1 group {it}")
            if it in (10, 20): e.stub()
            sync(it+1)
            if it in (8, 16): e.stamp({8: 2, 16: 3}[it])
            if it < 13: e.stamp(it+1, 2)
            if it >= 11: e.stamp(it-10, 3)
        if O.p1prio and ks >= O.pp1:
            spans = [0, 4, 8, 12, 16, 20, 24, 28, 36, 44, 60, 76, 96]
            a = max(x for x in spans if x <= ks); b_ = min(x for x in spans if x > ks)
            step = (b_ - a) // 4
            if (ks - a) % step == 0 and (ks - a) // step < 4: e(f"s_setprio {3 - (ks - a)//step}")
        e.wait_ds(f"w{ks}")
        acc = accB if 8 <= it < 16 else accA
        c = "0" if ks % 32 == 0 else acc
        if 8 <= it < 16: mfma(acc, vXF+4*(ks % 32), WF[ks % 8], c)
        else: mfma(acc, WF[ks % 8], vXF+4*(ks % 32), c)
        if it < 7 and not O.spread:
            if s_ == 0:
                for q in range(4): rd(ks+4+q)
        elif ks + 4 < 96: rd(ks+4)
        for f in gap[ks]: f()

def wo_piece(i, base=0):
    e(f"s_add_u32 m0, s{sM0}, {base + i*8192}"); e(f"s_mov_b32 s{sT0}, {i*65536}")
    e(f"buffer_load_dwordx4 v{vWO}, {srd(SWO)}, s{sT0} offen lds")

def norm(o, dst):
    e(f"v_rcp_f32 v{o+10}, v{o+8}")
    e(f"v_pk_add_f32 {vr(o+12,2)}, {vr(o,2)}, {vr(o+2,2)}"); e(f"v_pk_add_f32 {vr(o+14,2)}, {vr(o+4,2)}, {vr(o+6,2)}")
    for i in range(4): e(f"v_pk_mul_f32 {vr(o+2*i,2)}, {vr(o+2*i,2)}, {vr(o+10,2)} op_sel_hi:[1,0]")
    e(f"v_pk_add_f32 {vr(o+12,2)}, {vr(o+12,2)}, {vr(o+14,2)}")
    cvt8(dst, o)
    e(f"v_add_f32 v{o+12}, v{o+12}, v{o+13}"); e(f"v_fma_f32 v{o+8}, v{o+12}, 0, v{o+8}")
def check(os_, slowlab):
    for n, o in enumerate(os_):
        e(f"v_subrev_u32 v{o+8}, 0x2b800000, v{o+8}")
        if n: e(f"v_max_u32 v{os_[0]+8}, v{os_[0]+8}, v{o+8}")
    e(f"v_cmp_lt_u32 vcc, 0x28000000, v{os_[0]+8}")
    if slowlab is None:
        e(f"s_or_b32 s{sBAD}, vcc_lo, vcc_hi")
        if O.y: e(f"s_mov_b32 s{sBAD}, 0")
        if O.force_slow: e(f"s_mov_b32 s{sBAD}, 1")
    elif O.force_slow: e(f"s_branch {slowlab}")
    elif not O.y: e(f"s_cbranch_vccnz {slowlab}")
def prefill(regs):
    e(f"s_mov_b32 s{sT0}, 0x3f803f80")
    for i in regs: e(f"v_mov_b32 v{i}, s{sT0}")
def rdK(i, u, dst):
    if i < 8: e(f"ds_read_b128 {vr(dst,4)}, v{vKA} offset:{(7-i)*8192 + u*1024}")
    else: e(f"ds_read_b128 {vr(dst,4)}, v{vKA8} offset:{u*1024}")
def rdV(i, u, dst, dyn=True, restore=True):
    if O.y & 2 and dyn: e("s_nop 0") if False else None
    if not (O.y & 1 and dyn): e(f"s_mov_b64 exec, {sr(sVMK+2*(i-1)) if dyn and i > 0 else sr(sEX)}")
    b, off = (vVA, (7-i)*8192) if i < 8 else (vVA8, 0)
    e(f"ds_read_b128 {vr(dst,4)}, v{b} offset:{off + u*256}")
    e(f"ds_read_b128 {vr(dst+4,4)}, v{b} offset:{off + u*256 + 1024}")
    if restore and not (O.y & 1 and dyn): e("s_mov_b64 exec, -1")

def attention():
    e.c("---- Q epilogue")
    e.stamp(4)
    def qscale(h):
        for i in range(4*h, 4*h+4): e(f"v_pk_mul_f32 {vr(accA+2*i,2)}, {vr(accA+2*i,2)}, {sr(sT2)}")
        for i in range(4*h, 4*h+4): cvt(vQ2, accA, i)
    e(f"s_cmp_eq_u32 s{sBR}, 0"); e("s_cbranch_scc1 L_attnA")
    e.c("---- attention B")
    e.cond(f"s_cmp_eq_u32 s{sPEND}, 1", lambda: (flag_poll(), imp_dma(0)))
    e(f"s_add_u32 s{sIF}, s{sIF}, {F1V}")
    e("s_nop 0")
    qscale(1); qscale(0)
    def kbar():
        e(f"s_waitcnt vmcnt({3 if O.tchB else 2})")
        e.cond(f"s_cmp_lg_u32 s{sPEND}, 0", lambda: e("s_waitcnt vmcnt(1)"))
        if O.stamps == 1: e(f"s_mul_i32 s{sT0}, s{sPEND}, 1000"); e(f"s_add_u32 s{ST0+24}, s{ST0}, s{sT0}")
        e("s_barrier"); e.stamp(6)
    def vimp():
        e("s_waitcnt vmcnt(0)")
        flag_cmp()
        e(f"s_cselect_b32 s{sT0}, s{SIMP+2}, 0")
        e.cond(f"s_cmp_lg_u32 s{sT0}, 0", flag_poll)
        imp_dma(1)
    def vbar():
        e(f"s_waitcnt vmcnt({1 if O.tchA < O.lag else 0})"); e("s_barrier"); e.stamp(13)
    def tchA():
        if not O.tchB: touch_wo(SWO, vU0+2)
        e(f"s_mov_b64 {sr(SOWO)}, {sr(sOW)}"); e(f"s_mov_b32 s{SOWO+2}, {512*1024}")
        touch_wo(SOWO, vU0)
    def sample02():
        f3_addr()
        e("s_mov_b64 exec, 0x55555555")
        e(f"buffer_load_dwordx2 {vr(vFL,2)}, v{vF}, {srd(SWS)}, s{sF3} offen sc1")
        e("s_mov_b64 exec, -1")
    L = O.lag
    seq = [(1, 0), (0, 0)] + [(0, i) for i in range(1, 9)] + [(1, i) for i in range(1, 9)]
    pv = {n: [] for n in range(19)}
    pv[1].append(0); pv[2].append(1); m = 2
    for n in range(L+1, 19):
        for _ in range(2):
            if m < n and m < 18: pv[n].append(m); m += 1
    assert m == 18
    def P(m): return PB + 8*(m % 8)
    def V(m): return vV + 8*(m % 4)
    def ex(n, r): e(f"v_exp_f32 v{vS+16*(n%2)+r}, v{vS+16*(n%2)+r}")
    def pvm(m, kb):
        o = vO + 16*seq[m][0]
        mfma(o, V(m)+4*kb, P(m)+4*kb, "0" if (m < 2 and kb == 0) else o)
    def qk(n):
        u1, i1 = seq[n]
        mfma(vS+16*(n % 2), vK+4*(n % 2), vQ2 + 4*u1, vML if i1 == 0 else (vMF if i1 == 8 else "0"))
    assert max(n for n in pv if 9 in pv[n]) < O.epi
    q4 = (18 - L) // 4
    prio = {0: 1, 1: 0, 2: 1, (L+2)//2: 0, L: 3, L+q4: 2, L+2*q4: 1, L+3*q4: 0}
    e("s_waitcnt lgkmcnt(0)")
    qk(0)
    e("s_nop 6")
    for n in range(19):
        s_ = vS + 16*(n % 2)
        e.c(f"task {n}")
        if n < 11: e.stamp(n+1, 4)
        if n >= 8: e.stamp(n-7, 5)
        if O.fair and n in prio: e(f"s_setprio {prio[n]}")
        if n == O.vsmp: flag_ld("x")
        if n == O.vpos: vimp()
        if n == L: vbar()
        if n == O.oflag:
            younger = sum(8*(t-O.wo_at+1)//O.wo_n - 8*(t-O.wo_at)//O.wo_n for t in range(O.epi+1, n) if O.wo_at <= t < O.wo_at + O.wo_n)
            e(f"s_waitcnt vmcnt({younger})")
            e(f"s_cmp_lg_u32 s{sBAD}, 0"); e("s_cbranch_scc1 L_noflag0"); flag_store(sF2); e.label("L_noflag0")
        if O.wo_at <= n < O.wo_at + O.wo_n:
            for p_ in range(8*(n-O.wo_at)//O.wo_n, 8*(n-O.wo_at+1)//O.wo_n): wo_piece(p_)
        if n == O.poi_at and O.hint:
            for i_ in range(4): e(f"v_mov_b32 v{vP+4+i_}, -1")
            e(f"buffer_store_dwordx4 {vr(vP+4,4)}, v{vL16}, {srd(SWS)}, s{sOA} offen offset:1024 sc1")
        if n == O.tchA: tchA()
        if n == O.tE: e.cond(f"s_cmp_lt_u32 s{sW}, 4", lambda: (f3_addr(), o_touch(0x00ff00ff, 0)))
        if n == O.smp_at: e.cond(f"s_cmp_lt_u32 s{sW}, 4", sample02)
        nxt = pv[n+1] if n < 18 else []
        fresh = [m for m in nxt if 10 <= m < 14]
        if fresh: e.cond(f"s_cmp_lt_u32 s{sT}, 8", lambda fresh=fresh: [e(f"v_mov_b32 v{V(m)+k}, v{vONE}") for m in fresh for k in range(8)])
        cnt = 0
        if 1 < n < 17: rdK(seq[n+1][1], seq[n+1][0], vK+4*((n+1) % 2)); cnt += 1
        for k, m in enumerate(nxt): rdV(seq[m][1], seq[m][0], V(m), restore=(k == len(nxt)-1)); cnt += 2
        mf = [(m, kb) for m in pv[n] for kb in range(2)]
        if n == 18:
            e("s_waitcnt lgkmcnt(0)"); e("s_nop 0")
            for x in mf: pvm(*x)
            break
        first = [True]
        def slot():
            if mf:
                if first[0]: e(f"s_waitcnt lgkmcnt({cnt})"); first[0] = False
                pvm(*mf.pop(0))
        two = len(mf) > 2
        for r in range(4): ex(n, r)
        slot()
        for r in range(4, 8): ex(n, r)
        if n == 1: slot(); kbar(); rdK(1, 0, vK)
        elif n < 17:
            if n: e(f"s_waitcnt lgkmcnt({cnt-1})")
            qk(n+1)
        cvt8(P(n), s_)
        for r in range(8, 10): ex(n, r)
        if two: slot()
        for r in range(10, 12): ex(n, r)
        if not two: slot()
        if n == 1: e("s_waitcnt lgkmcnt(0)"); qk(2)
        for r in range(12, 14): ex(n, r)
        slot()
        for r in range(14, 16): ex(n, r)
        cvt8(P(n)+4, s_+8)
        slot()
        if n == 1: e("s_nop 3")
        if n == O.epi:
            norm(vO, vP); check([vO], None)
            e(f"buffer_store_dwordx4 {vr(vP,4)}, v{vL16}, {srd(SWS)}, s{sOA} offen sc1")
    e("s_nop 11")
    norm(vO+16, vP+4); check([vO+16], "L_B_slow1")
    e.label("L_B_ok1")
    if O.hint:
        for i_ in range(4): e(f"v_min_u32 v{vP+4+i_}, -2, v{vP+4+i_}")
    if O.sprio: e("s_setprio 2")
    e(f"buffer_store_dwordx4 {vr(vP+4,4)}, v{vL16}, {srd(SWS)}, s{sOA} offen offset:1024 sc1")
    if O.sprio: e("s_setprio 0")
    e(f"s_cmp_lg_u32 s{sBAD}, 0"); e("s_cbranch_scc1 L_B_slow0")
    e.label("L_B_ok0")
    e.stamp(7); e.stamp(12, 7)
    e(f"s_cmp_lt_u32 s{sW}, 4"); e("s_cbranch_scc0 L_young")
    e(f"s_mov_b32 s{sHM}, 0")
    f3_groups()
    if O.swp:
        e(f"s_and_b32 s{sT0}, s{sJ}, 1"); e(f"s_lshl_b32 s{sT0}, s{sT0}, 11")
        for q in range(4): e(f"s_xor_b32 s{sG0+q}, s{sG0+q}, s{sT0}")
    e("s_waitcnt vmcnt(1)")
    e("s_mov_b64 exec, 0x55555555")
    e(f"v_cmp_ne_u64 vcc, {sr(sNON)}, {vr(vFL,2)}")
    e("s_mov_b64 exec, -1")
    e(f"s_mov_b32 s{sT3}, 0"); e(f"s_mov_b32 s{sNR}, vcc_lo")
    e("s_cbranch_vccnz L_p3again")
    e.label("L_p3even")
    if O.bpre > 8:
        pass
    for k in range(O.ad): o_ld(k, sG0 + k//8)
    p3_setup()
    e(f"s_mov_b32 s{SLD+2}, 0")
    if not O.hint: e(f"s_waitcnt vmcnt({O.ad})")
    e.stamp(8); e("s_barrier")
    e("s_branch L_p3go")
    e.label("L_p3again")
    e(f"s_mov_b32 exec_lo, s{sNR}"); e("s_mov_b32 exec_hi, 0")
    e(f"buffer_load_dwordx2 {vr(vFL,2)}, v{vF}, {srd(SWS)}, s{sF3} offen sc1")
    e("s_mov_b64 exec, -1")
    p3_setup()
    e(f"s_mov_b32 s{SLD+2}, 0")
    if not O.hint: e("s_waitcnt vmcnt(1)")
    e.stamp(8); e("s_barrier")
    e("s_waitcnt vmcnt(0)")
    e(f"v_cmp_eq_u64 vcc, {sr(sNON)}, {vr(vFL,2)}")
    e(f"s_andn2_b32 s{sNR}, s{sNR}, vcc_lo")
    poll3(0x55555555, 0x55555555)
    for k in range(O.ad): o_ld(k, sG0 + k//8)
    e("s_branch L_p3go")
    e.label("L_young"); e.stub()
    e(f"s_waitcnt vmcnt({1 if O.hint else 0})")
    e.label("L_youngA")
    e("s_mov_b64 exec, 0xffff")
    e(f"s_cmp_eq_u32 s{sW}, 4"); e(f"s_cselect_b32 s{SEXP+2}, s{SWS+2}, 0")
    if O.fprio: e("s_setprio 3")
    e("s_waitcnt vmcnt(8)"); e.stamp(8); e("s_barrier")
    e.stamp(1, 8)
    e(f"buffer_store_dwordx2 {vr(vNON,2)}, v{vL8}, {srd(SEXP)}, s{sF2} offen offset:128 sc1")
    e("s_mov_b64 exec, -1")
    e.stamp(2, 8)
    if O.stamps == 8: e("s_waitcnt vmcnt(0)"); e.stamp(3, 8); e(f"s_memrealtime {sr(ST0+12)}")
    e(f"s_cmp_lg_u32 s{sW}, 4"); e("s_cbranch_scc1 L_rest")
    f3_addr()
    e(f"s_add_u32 s{sF3}, s{sF3}, {3*4096}")
    e(f"s_mov_b32 s{sT2}, s{sNON}"); e(f"s_mov_b32 s{sT3}, s{sNON}")
    if O.pdelay: e(f"s_sleep {O.pdelay}")
    spoll(sF3, [384 + 512*g_ for g_ in range(8)])
    e.stamp(10); e.stamp(4, 8)
    if O.stamps == 8:
        e(f"s_memrealtime {sr(ST0+14)}"); e("s_waitcnt lgkmcnt(0)"); e(f"s_add_u32 s{ST0+10}, s{ST0}, s{sCNT}")
        for q_ in (12, 14): e(f"s_and_b32 s{ST0+q_}, s{ST0+q_}, 0xffff"); e(f"s_add_u32 s{ST0+q_}, s{ST0+q_}, s{ST0}")
    e("s_waitcnt vmcnt(1)")
    e("s_barrier")
    e.label("L_rest")
    e("s_waitcnt vmcnt(0)")
    e("s_branch L_stamps" if O.stamps else "s_endpgm")
    e.flush()

    e.c("---- attention A")
    e.label("L_attnA")
    KP, VP = 176, 160
    if not O.spoll:
        e(f"s_and_b32 s{sIF}, s{sF1}, 0xffffff00"); e(f"s_sub_u32 s{sIF}, s{sIF}, 136")
        flag_ld("x")
    else: e(f"s_waitcnt vmcnt({2 if O.aflag else 1})"); e("s_nop 1")
    e.stamp(6)
    def halo():
        L = e.newlab("L_h")
        e(f"s_cmp_eq_u32 s{sT}, 0"); e(f"s_cbranch_scc1 L_A_nh")
        if O.aflag:
            e("s_waitcnt lgkmcnt(0)")
            e(f"s_cmp_eq_u64 {sr(sVMK)}, {sr(sNON)}"); e(f"s_cbranch_scc1 {L}")
        if O.spoll:
            e(f"s_sub_u32 s{sIF}, s{sF1}, 256"); spoll(sIF, [0])
        else:
            e("s_waitcnt vmcnt(0)")
            flag_cmp(); e(f"s_cbranch_scc0 {L}")
            flag_poll()
        e.label(L)
        e(f"s_sub_u32 s{sT0}, s{sKV}, {8192 + 4096}"); e(f"s_sub_u32 s{sT1}, s{sKV}, {8192 - 1024}")
        e(f"v_and_b32 v{vFL}, 0x2ff, v{vL16}")
        for h in range(2): e(f"buffer_load_dwordx4 {vr(KP+4*h,4)}, v{vL16}, {srd(SWS)}, s{sT0} offen offset:{h*1024} sc1")
        e(f"s_mov_b64 exec, {sr(sEX)}")
        for h in range(2): e(f"buffer_load_dwordx4 {vr(VP+4*h,4)}, v{vFL}, {srd(SWS)}, s{sT1} offen offset:{h*256} sc1")
        e("s_mov_b64 exec, -1")
        e("s_branch L_A_nh")
    e.cond(f"s_cmp_eq_u32 s{sTT}, 0", halo)
    for h in range(2): e(f"ds_read_b128 {vr(KP+4*h,4)}, v{vKA} offset:{6*8192 + h*1024}")
    e(f"s_mov_b64 exec, {sr(sEX)}")
    for h in range(2): e(f"ds_read_b128 {vr(VP+4*h,4)}, v{vVA} offset:{6*8192 + 1024 + h*256}")
    e("s_mov_b64 exec, -1")
    e.label("L_A_nh")
    e(f"s_mov_b64 exec, {sr(sEX)}")
    for h in range(2):
        for kb in range(2): e(f"ds_read_b128 {vr(vV+8*h+4*kb,4)}, v{vVA} offset:{7*8192 + kb*1024 + h*256}")
    e("s_mov_b64 exec, -1"); e("s_nop 0")
    qscale(0); qscale(1)
    e("s_waitcnt lgkmcnt(0)")
    def a_body(slow):
        def exs(s_, rs, h):
            for r in rs:
                if slow: e(f"v_sub_f32 v{s_+r}, v{s_+r}, v{vFL+h}")
                e(f"v_exp_f32 v{s_+r}, v{s_+r}")
        lab = "L_A_s2" if slow else "L_A_f2"
        for h in range(2): mfma(vS+16*h, vK+4-4*h, vQ2+4*h, vML)
        e("s_nop 10")
        for h in range(2):
            exs(vS+16*h, range(16), h); cvt8(vP+8*h, vS+16*h, 8); e("s_nop 1")
            mfma(vO+16*h, vV+8*h, vP+8*h, "0"); mfma(vO+16*h, vV+8*h+4, vP+8*h+4, vO+16*h)
        e("s_waitcnt vmcnt(0)")
        e(f"s_cmp_eq_u32 s{sT}, 0"); e(f"s_cbranch_scc1 {lab}")
        e.stamp(13)
        for h in range(2): mfma(vS+16*h, KP+4*h, vQ2+4*h, vMF)
        e("s_nop 10")
        for h in range(2):
            exs(vS+16*h, range(8, 16), h); cvt8(vP+8*h+4, vS+16*h+8); e("s_nop 1")
            mfma(vO+16*h, VP+4*h, vP+8*h+4, vO+16*h)
        e.label(lab)
        e("s_nop 11")
        for h in range(2): norm(vO+16*h, vP+4*h)
    a_body(False)
    check([vO, vO+16], "L_A_slow")
    e.label("L_A_ok"); e.stub()
    e("s_setprio 2")
    e(f"buffer_store_dwordx4 {vr(vP,4)}, v{vL16}, {srd(SWS)}, s{sOA} offen sc1")
    e(f"buffer_store_dwordx4 {vr(vP+4,4)}, v{vL16}, {srd(SWS)}, s{sOA} offen offset:1024 sc1")
    e.stamp(7)
    e("s_setprio 0")
    for i in range(8): wo_piece(i, L_KV)
    e(f"s_cmp_lt_u32 s{sW}, 4"); e("s_cbranch_scc0 L_youngA")
    e(f"s_and_b32 s{sHM}, s{sJ}, 3")
    f3_groups()
    e(f"s_mov_b32 s{sT3}, {L_KV}")
    e.label("L_p3all")
    e("s_waitcnt vmcnt(8)"); e.stamp(8); e("s_barrier")
    p3_setup(); p3_setup2()
    e(f"s_mov_b32 s{SLD+2}, s{SWS+2}")
    e("s_waitcnt vmcnt(0)")
    e("s_barrier"); e.stamp(10)
    if O.ltouch: o_touch(0xffffffff, 0)
    for k in range(O.ad): o_ld(k, sG0 + k//8)
    return a_body, KP

vA, vB, vO0, vO1, vF = 2, 3, 7, 5, 10
sO3, sF3, sOUT3, sHM = sIG, sIF, sOA, sPEND
A0, A1 = 40, 56
vTW, vTR = 18, 17
WB = 72
def OFR(k): return 136 + 4*k if k < 30 else 24 + 4*(k-30)
sG0 = sVMK; sHB = sVMK+4
vW = ((0, 4), (6, 16))
def f3_addr():
    e(f"s_lshl_b32 s{sT0}, s{sBR}, 6"); e(f"s_add_u32 s{sT0}, s{sT0}, s{sT3P}")
    e(f"s_lshl_b32 s{sO3}, s{sT0}, 15"); e(f"s_add_u32 s{sO3}, s{sO3}, {WS_O}")
    e(f"s_lshl_b32 s{sF3}, s{sT0}, 12"); e(f"s_add_u32 s{sF3}, s{sF3}, {WS_F2}")
    e(f"v_lshlrev_b32 v{vF}, 7, v{vL}")
def group(dst):
    e(f"s_brev_b32 s{sHB}, s{sHM}"); e(f"s_lshr_b32 s{sHB}, s{sHB}, 20")
    e(f"s_add_u32 s{dst}, s{sHB}, s{sO3}")
    e(f"s_add_u32 s{sHM}, s{sHM}, 1"); e(f"s_and_b32 s{sHM}, s{sHM}, 3")
def wbase(buf, src):
    e(f"s_and_b32 s{sT0}, s{src}, 0xc00"); e(f"s_lshl_b32 s{sT0}, s{sT0}, 1")
    e(f"v_add_u32 v{vW[buf][0]}, s{sT0}, v{vA}"); e(f"v_add_u32 v{vW[buf][1]}, s{sT0}, v{vB}")
def o_ld(k, base, s_=None):
    if k % 8: e(f"s_add_u32 s{sT0}, s{base}, {(k % 8)*4096}")
    e(f"buffer_load_dwordx4 {vr(OFR(k),4)}, v{vL16}, {srd(s_ or SWS)}, s{sT0 if k % 8 else base} offen sc1")
sNR = sVMK + 7
def poll3(need, look):
    L = e.newlab("L_poll"); D = L + "d"
    e(f"s_mov_b32 s{sCNT}, 0"); e("s_mov_b32 exec_hi, 0")
    e.label(L)
    e(f"s_and_b32 s{sT0}, s{sNR}, {need:#x}"); e(f"s_cbranch_scc0 {D}")
    e(f"s_and_b32 exec_lo, s{sNR}, {look:#x}")
    e(f"buffer_load_dwordx2 {vr(vFL,2)}, v{vF}, {srd(SWS)}, s{sF3} offen sc1")
    e(f"s_add_u32 s{sCNT}, s{sCNT}, 1")
    e("s_waitcnt vmcnt(0)")
    e(f"v_cmp_eq_u64 vcc, {sr(sNON)}, {vr(vFL,2)}")
    e(f"s_andn2_b32 s{sNR}, s{sNR}, vcc_lo")
    if O.sleep: e(f"s_sleep {O.sleep}")
    e(f"s_cmp_gt_u32 s{sCNT}, {O.pollmax}"); e(f"s_cbranch_scc0 {L}")
    e.label(D)
    e("s_mov_b64 exec, -1")
SLD = SDUM
def f3_groups():
    f3_addr()
    for q in range(4): group(sG0+q)
def o_touch(mask, dst):
    e(f"s_and_b32 s{sT0}, s{sJ}, 7"); e(f"s_lshl_b32 s{sT0}, s{sT0}, 12"); e(f"s_add_u32 s{sT0}, s{sT0}, s{sO3}")
    e(f"s_mov_b32 exec_lo, {mask:#x}"); e("s_mov_b32 exec_hi, 0")
    e(f"buffer_load_dword v{vFL+3}, v{vF}, {srd(SWS)}, s{sT0} offen sc1")
    e("s_mov_b64 exec, -1")
def p3_setup():
    e(f"s_mov_b64 {sr(SLD)}, {sr(SWS)}")
    e(f"v_bfe_u32 v{vU0}, v{vL}, 2, 2"); e(f"v_lshlrev_b32 v{vA}, 6, v{vU0}")
    e(f"v_and_b32 v{vU0}, 1, v{vL}"); e(f"v_mul_u32_u24 v{vU0}, 544, v{vU0}"); e(f"v_add_u32 v{vA}, v{vA}, v{vU0}")
    e(f"v_bfe_u32 v{vU0}, v{vL}, 4, 1"); e(f"v_lshl_add_u32 v{vA}, v{vU0}, 4, v{vA}")
    e(f"v_bfe_u32 v{vU0}, v{vL}, 1, 1"); e(f"v_lshl_add_u32 v{vA}, v{vU0}, 3, v{vA}")
    e(f"v_lshrrev_b32 v{vU0}, 5, v{vL}"); e(f"v_lshl_add_u32 v{vA}, v{vU0}, 8, v{vA}")
    e(f"v_add_u32 v{vA}, s{sT3}, v{vA}")
    e(f"v_xor_b32 v{vB}, 32, v{vA}")
    wbase(0, sG0); wbase(1, sG0+1)
def p3_setup2():
    e(f"v_lshrrev_b32 v{vU0}, 5, v{vL}")
    if O.tpose:
        e(f"s_lshl_b32 s{sT0}, s{sW}, 12"); e(f"s_add_u32 s{sT0}, s{sT0}, {L_WK}")
        e(f"v_mul_u32_u24 v{vU0}, 6, v{vU0}"); e(f"v_and_b32 v{vU1}, 7, v{vL}"); e(f"v_xor_b32 v{vU0}, v{vU0}, v{vU1}")
        e(f"v_and_b32 v{vTW}, 31, v{vL}"); e(f"v_lshlrev_b32 v{vTW}, 7, v{vTW}"); e(f"v_lshl_add_u32 v{vTW}, v{vU0}, 4, v{vTW}"); e(f"v_add_u32 v{vTW}, s{sT0}, v{vTW}")
        for i in range(1, 4): e(f"v_xor_b32 v{vTW+i}, {16*i}, v{vTW}")
        e(f"v_lshrrev_b32 v{vU0}, 3, v{vL}"); e(f"v_xor_b32 v{vTR}, v{vU0}, v{vU1}"); e(f"v_lshlrev_b32 v{vTR}, 4, v{vTR}")
        e(f"v_lshl_add_u32 v{vTR}, v{vU0}, 7, v{vTR}"); e(f"v_add_u32 v{vTR}, s{sT0}, v{vTR}")
        e(f"v_lshlrev_b32 v{vO0}, 11, v{vU0}"); e(f"v_lshl_add_u32 v{vO0}, v{vU1}, 4, v{vO0}")
    else:
        e(f"v_and_b32 v{vO0}, 31, v{vL}"); e(f"v_lshlrev_b32 v{vO0}, 11, v{vO0}"); e(f"v_mul_u32_u24 v{vU0}, 96, v{vU0}"); e(f"v_add_u32 v{vO0}, v{vO0}, v{vU0}")
        e(f"v_xor_b32 v{vO1}, 32, v{vO0}")
    e(f"s_lshl_b32 s{sOUT3}, s{sT3P}, 16"); e(f"s_lshl_b32 s{sT1}, s{sBR}, 10"); e(f"s_add_u32 s{sOUT3}, s{sOUT3}, s{sT1}")
    e(f"s_and_b32 s{sT1}, s{sJ}, 7"); e(f"s_lshl_b32 s{sT1}, s{sT1}, 7"); e(f"s_add_u32 s{sOUT3}, s{sOUT3}, s{sT1}")

def lds_wait(off, val):
    L = e.newlab("L_lw"); D = L + "d"
    e(f"s_mov_b32 s{sCNT}, 0")
    e.label(L)
    e(f"ds_read_b32 v{vFL}, v{vFL+3} offset:{off}")
    e(f"s_add_u32 s{sCNT}, s{sCNT}, 1"); e(f"s_cmp_gt_u32 s{sCNT}, {O.pollmax*8}")
    e("s_waitcnt lgkmcnt(0)")
    e(f"v_cmp_ne_u32 vcc, {val}, v{vFL}")
    e(f"s_cbranch_scc1 {D}")
    e(f"s_cbranch_vccz {D}"); e("s_sleep 1"); e(f"s_branch {L}")
    e.label(D)

def p3():
    e.c("---- P3 (waves 0..3)")
    def wrd(buf, k):
        for ct in range(2):
            d = WB + 8*k + 4*ct
            e(f"ds_read_b64_tr_b16 {vr(d,2)}, v{vW[buf][ct]} offset:{k*8192}")
            e(f"ds_read_b64_tr_b16 {vr(d+2,2)}, v{vW[buf][ct]} offset:{k*8192 + 1024}")
    e.label("L_p3go")
    for k in range(4): wrd(0, k)
    e.stamp(9); e.stamp(13, 7)
    A2, A3 = OFR(0), OFR(4); vMX = vFL
    e(f"s_mov_b32 s{sCNT}, 0")
    for k in range(32):
        q, kk = divmod(k, 8)
        if k == O.b2:
            e(f"s_cmp_eq_u32 s{sBR}, 0"); e("s_cbranch_scc1 L_p3b")
            p3_setup2()
            e.stamp(5, 7)
            e("s_barrier"); e.stamp(10); e.stamp(7, 7)
            for k2 in range(16, O.b2+O.ad): o_ld(k2, sG0 + k2//8)
            e.label("L_p3b")
            e.stamp(8, 7)
        if k == 16: e.label("L_p3late"); e(f"v_mov_b32 v{vMX}, 0")
        e(f"s_waitcnt vmcnt({min(O.ad-1, 31-k)}) lgkmcnt({min(12, 4*(31-k))})")
        o = OFR(k)
        mfma(A0 if k < 16 else A2, WB + 8*kk, o, "0" if k == 0 else (A0 if k <= 16 else A2))
        if k + O.ad < 32: o_ld(k+O.ad, sG0+(k+O.ad)//8, SLD if (k < O.b2 and k+O.ad >= 16) else SWS)
        if k >= 16 and O.hint: e(f"v_max3_u32 v{vMX}, v{vMX}, v{o}, v{o+1}")
        mfma(A1 if k < 16 else A3, WB + 8*kk + 4, o, "0" if k == 0 else (A1 if k <= 16 else A3))
        if k >= 16 and O.hint: e(f"v_max3_u32 v{vMX}, v{vMX}, v{o+2}, v{o+3}")
        if k + 4 < 32: wrd(((k+4)//8) % 2, (k+4) % 8)
        if kk == 3 and q < 2: wbase(q, sG0+q+2)
    e.stamp(9, 7)
    if O.hint:
        e(f"v_cmp_eq_u32 vcc, -1, v{vMX}")
        if O.fredo: e(f"s_cmp_lt_u32 s{sCNT}, 2"); e("s_cselect_b64 vcc, -1, vcc")
        def redo():
            e(f"s_cmp_eq_u32 s{sBR}, 0"); e("s_cbranch_scc1 L_p3fin")
            e(f"s_add_u32 s{sCNT}, s{sCNT}, 1"); e(f"s_cmp_gt_u32 s{sCNT}, {O.pollmax}"); e("s_cbranch_scc1 L_p3fin")
            for k2 in range(16, 16+O.ad): o_ld(k2, sG0 + k2//8)
            for k2 in range(4): wrd(0, k2)
            e("s_branch L_p3late")
        e.cond("s_cmp_lg_u64 vcc, 0", redo)
        e.label("L_p3fin")
        if O.stamps == 1: e(f"s_mul_i32 s{ST0+6}, s{sCNT}, 1000"); e(f"s_add_u32 s{ST0+6}, s{ST0+6}, s{ST0}")
        e("s_nop 7")
    else: e("s_nop 10")
    cvt8(72, A2, 8); cvt8(80, A3, 8)
    fl = ["", " sc1", " nt", " sc1 nt", " sc0 sc1", " sc0 sc1 nt", " sc0 nt"][O.outsc]
    if O.tpose:
        for i in range(4): e(f"ds_write_b128 v{vTW+i}, {vr(72+4*i,4)}")
        for i in range(4): e(f"ds_read_b128 {vr(88+4*i,4)}, v{vTR} offset:{i*1024}")
        for i in range(4):
            e(f"s_waitcnt lgkmcnt({3-i})")
            e(f"buffer_store_dwordx4 {vr(88+4*i,4)}, v{vO0}, {srd(SOUT)}, s{sOUT3} offen{fl}")
            if i < 3: e(f"s_add_u32 s{sOUT3}, s{sOUT3}, 0x4000")
    else:
        for i in range(4): e(f"buffer_store_dwordx4 {vr(72+4*i,4)}, v{(vO0, vO1)[i//2]}, {srd(SOUT)}, s{sOUT3} offen offset:{16*(i%2)}{fl}")
    if O.stamps:
        e.stamp(10, 7); e("s_waitcnt vmcnt(0)"); e.stamp(11); e.stamp(11, 7)
        e.label("L_stamps")
        e(f"s_memrealtime {sr(sVM)}"); e("s_waitcnt lgkmcnt(0)")
        e(f"s_lshl_b32 s{sT0}, s2, 3"); e(f"s_add_u32 s{sT0}, s{sT0}, s{sW}"); e(f"s_lshl_b32 s{sT0}, s{sT0}, 6"); e(f"s_add_u32 s{sT0}, s{sT0}, {WS_ST}")
        e("s_mov_b64 exec, 1")
        for i in range(1, 14):
            e(f"s_sub_u32 s{sT1}, s{ST0+2*i}, s{ST0}"); e(f"v_mov_b32 v{vU1}, s{sT1}")
            e(f"buffer_store_dword v{vU1}, off, {srd(SWS)}, s{sT0} offset:{4*i}")
        e(f"v_mov_b32 v{vU1}, s100"); e(f"buffer_store_dword v{vU1}, off, {srd(SWS)}, s{sT0} offset:56")
        e(f"v_mov_b32 v{vU1}, s{sVM}"); e(f"buffer_store_dword v{vU1}, off, {srd(SWS)}, s{sT0} offset:60")
    if O.probe:
        if O.probe == 11: e("s_waitcnt vmcnt(0)"); e("s_memrealtime s[76:77]")
        e("s_waitcnt lgkmcnt(0)")
        e(f"s_cmp_lg_u32 s{sBR}, {O.pbr}"); e("s_cbranch_scc1 L_end")
        e("s_sub_u32 s76, s76, s72"); e("s_lshl_b32 s76, s76, 1"); e("s_add_u32 s76, s76, 3000")
        e.label("L_spin"); e("s_memrealtime s[74:75]"); e("s_waitcnt lgkmcnt(0)"); e("s_sub_u32 s74, s74, s72")
        e(f"s_cmp_lt_u32 s74, s76"); e("s_cbranch_scc1 L_spin")
    if O.spin:
        e.label("L_spin"); e("s_memrealtime s[74:75]"); e("s_waitcnt lgkmcnt(0)"); e("s_sub_u32 s74, s74, s72")
        e(f"s_cmp_lt_u32 s74, {O.spin}"); e("s_cbranch_scc1 L_spin")
    e.label("L_end")
    e("s_endpgm")
    e.flush()

def xmax(reg):
    e(f"v_mov_b32 v{vFL+2}, v{reg}"); e("s_nop 1")
    e(f"v_permlane32_swap_b32 v{vFL+2}, v{reg}"); e("s_nop 1")
    e(f"v_max_f32 v{reg}, v{reg}, v{vFL+2}")

def slow_paths(a_body, KP):
    e.c("---- rare path: the stand-in max was unsafe, redo the unit with the true row max")
    def shift(op):
        for r_, d_ in ((vKA, 0x400), (vKA8, 0x400), (vVA, 0x100), (vVA8, 0x100)): e(f"{op} v{r_}, {d_:#x}, v{r_}")
    for u in range(2):
        e.label(f"L_B_slow{u}")
        e(f"s_mov_b32 s{sU}, {u}")
        for i in range(4): e(f"v_mov_b32 v{vQ+i}, v{vQ2+4*u+i}")
        if u == 0: e("s_branch L_B_slow")
        else: shift("v_add_u32")
    e.label("L_B_slow")
    e("s_waitcnt vmcnt(0)")
    prefill(range(vV, vV+8))
    e(f"v_mov_b32 v{vFL}, {NEG}")
    for ps in range(2):
        for i in range(9):
            if i > 0: e(f"s_cmp_gt_u32 {i}, s{sT}"); e(f"s_cbranch_scc1 L_B_s{ps}")
            rdK(i, 0, vK)
            if ps: rdV(i, 0, vV, dyn=False)
            e("s_waitcnt lgkmcnt(0)")
            mfma(vS, vK, vQ, vML if i == 0 else (vMF if i == 8 else "0"))
            e("s_nop 11")
            if ps == 0:
                for r in range(0, 16, 2): e(f"v_max3_f32 v{vFL}, v{vFL}, v{vS+r}, v{vS+r+1}")
            else:
                for r in range(16): e(f"v_sub_f32 v{vS+r}, v{vS+r}, v{vFL}")
                for r in range(16): e(f"v_exp_f32 v{vS+r}, v{vS+r}")
                cvt8(PB, vS, 8); e("s_nop 1")
                mfma(vO, vV, PB, vO if i > 0 else "0"); mfma(vO, vV+4, PB+4, vO)
                e("s_nop 7")
        e.label(f"L_B_s{ps}")
        if ps == 0: xmax(vFL)
    e("s_nop 11")
    norm(vO, vP+4)
    e(f"s_cmp_eq_u32 s{sU}, 0"); e("s_cbranch_scc1 L_B_fin0")
    shift("v_subrev_u32")
    e("s_branch L_B_ok1")
    e.label("L_B_fin0")
    e(f"buffer_store_dwordx4 {vr(vP+4,4)}, v{vL16}, {srd(SWS)}, s{sOA} offen sc1")
    e("s_waitcnt vmcnt(0)"); flag_store(sF2)
    e("s_branch L_B_ok0")
    e.label("L_A_slow")
    for h in range(2):
        e(f"v_mov_b32 v{vFL+h}, {NEG}")
        mfma(vS, vK+4-4*h, vQ2+4*h, vML); e("s_nop 11")
        for r in range(0, 16, 2): e(f"v_max3_f32 v{vFL+h}, v{vFL+h}, v{vS+r}, v{vS+r+1}")
        e(f"s_cmp_eq_u32 s{sT}, 0"); e(f"s_cbranch_scc1 L_A_m{h}")
        mfma(vS, KP+4*h, vQ2+4*h, vMF); e("s_nop 11")
        for r in range(8, 16, 2): e(f"v_max3_f32 v{vFL+h}, v{vFL+h}, v{vS+r}, v{vS+r+1}")
        e.label(f"L_A_m{h}")
        xmax(vFL+h)
    a_body(True)
    e("s_branch L_A_ok")

prologue(); p1(); ab = attention(); p3(); slow_paths(*ab)
e("s_endpgm")

hdr = open("cdna_kernels/" + NAME + ".s.ref").read().split("; Override launch geometry")[0]
out = hdr + f"; @launch grid=(256,1,1) block=(512,1,1) lds={LDS_BYTES}\n"
out += f""".amdgcn_target "amdgcn-amd-amdhsa--gfx950"
.text
.globl {NAME}_kernel
{'.p2align 12' if O.al12 else ''}
.p2align 8
.type {NAME}_kernel,@function
{NAME}_kernel:
""" + "\n".join(e.L) + f"""
.section .rodata,"a"
.p2align 6
.amdhsa_kernel {NAME}_kernel
  .amdhsa_next_free_vgpr 256
  .amdhsa_next_free_sgpr {102 if O.stamps else (80 if (O.spin or O.probe) else 72)}
  .amdhsa_accum_offset 256
  .amdhsa_group_segment_fixed_size 0
  .amdhsa_kernarg_size 72
  .amdhsa_user_sgpr_count 2
  .amdhsa_user_sgpr_kernarg_segment_ptr 1
  .amdhsa_system_sgpr_workgroup_id_x 1
.end_amdhsa_kernel
"""
open(sys.argv[1], "w").write(out)
```

```python
import sys
NAME = "concat_heads__sliding_local_dilated__sliding_block__prompt"

class Opt:
    stamps = 0
    force_slow = 0
    pollmax = 400000
    only = 0
    delayA = 7
    lag = 5
    kflag = 50
    kchk = 65
    imp = 87
    oflag = 13
    vpos = 2
    uni = 0
    xspan = 1
    torder = 0
    tseq = 3
    tn = 16
    tnt = 0
    rotA = 1
    yprio = 0
    prew = 52
    imp1 = 77
    fair = 1
    tpose = 1
    pdelay = 0
    spin = 0
    x = 0
    wqs = 2
    p1prio = 1
    epi = 11
    tchB = 0
    wo_n = 4
    tchA = 5
    ctouch = 1
    warm = 0
    al12 = 1
    tE = 99
    ltouch = 0
    awo = 1
    pre = 8
    ad = 8
    spoll = 1
    stlb = 0
    sp32 = 1
    fprio = 1
    swp = 1
    probe = 0
    pbr = 0
    rt = 0
    hold = 0
    tlb = 0
    tlbB = 0
    bpre = 8
    aflag = 0
    y = 0
    pstep = 3
    npre = 2
    late1 = 3
    zrow = 1
    spread = 1
    wvs = 2
    hint = 0
    poi_at = 7
    b2 = 8
    fredo = 0
    remap = 1
    vsmp = 0
    early = 1
    defer = 0
    st2 = 2
    burn = 0
    burn0 = 0
    pp1 = 28
    hsmp = 92
    sprio = 1
    smp_at = 17
    wo_at = 8
    tch_at = 4
    quiet = 1
    prio = 0
    outsc = 1
    stag = 0
    sleep = 0
O = Opt()
for a in sys.argv[2:]:
    k, v = a.split("="); assert hasattr(O, k), k
    setattr(O, k, int(v))

WS_O = 8 << 20
WS_F1 = 12 << 20
F1V = 262144
WS_F2 = WS_F1 + 524288
WS_ST = 13 << 20
WS_BYTES = 14 << 20
LDS_BYTES = 163840
L_WV = 65536; L_WK = 131072; L_KV = 65536

class E:
    def __init__(s): s.L = []; s.vq = []; s.lq = []; s.lab = 0; s.ool = []
    def __call__(s, t): s.L.append("    " + t)
    def label(s, n): s.L.append(n + ":")
    def c(s, t): s.L.append("    ; " + t)
    def vm(s, t, tag): s(t); s.vq.append(tag)
    def ds(s, t, tag): s(t); s.lq.append(tag)
    def _n(s, q, tag): return len(q) - 1 - max(i for i, x in enumerate(q) if x == tag)
    def wait_vm(s, tag):
        if tag not in s.vq: return
        n = s._n(s.vq, tag); assert n <= 63
        s(f"s_waitcnt vmcnt({n})"); s.vq = s.vq[len(s.vq)-n:]
    def wait_ds(s, tag):
        if tag not in s.lq: return
        n = s._n(s.lq, tag); assert n <= 15
        s(f"s_waitcnt lgkmcnt({n})"); s.lq = s.lq[len(s.lq)-n:]
    def wait_all(s): s("s_waitcnt vmcnt(0)"); s.vq = []
    def ds_all(s): s("s_waitcnt lgkmcnt(0)"); s.lq = []
    def stamp(s, i, mode=1):
        if O.probe == i and mode == 1: s("s_memrealtime s[76:77]")
        if O.stamps == mode: s(f"{'s_memrealtime' if O.rt else 's_memtime'} s[{ST0+2*i}:{ST0+1+2*i}]")
    def stub(s):
        if O.warm:
            s.nstub = getattr(s, "nstub", 0); s.label(f"L_stub{s.nstub}"); s("s_cbranch_execz L_warmed"); s.nstub += 1
    def newlab(s, p): s.lab += 1; return f"{p}_{s.lab}"
    def cond(s, cmp_, body):
        L = s.newlab("L_c"); s(cmp_); s(f"s_cbranch_scc1 {L}"); s.label(L + "r")
        s.ool.append((L, body))
    def flush(s):
        while s.ool:
            L, body = s.ool.pop(0)
            s.label(L); body(); s(f"s_branch {L}r")
e = E()
def capture(f):
    saved = e.L; e.L = []; f(); out = e.L; e.L = saved
    return out
DEFER = {}
def vr(a, n): return f"v[{a}:{a+n-1}]"
def sr(a): return f"s[{a}:{a+1}]"
def srd(a): return f"s[{a}:{a+3}]"

SX, SW, SWO, SOUT, SWS, SDBG = 8, 12, 16, 20, 24, 28
SEXP = 8
SOWO = 28
sF1, sKV = 0, 1
sBR, sRB, sG, sW, sM0 = 3, 4, 5, 6, 7
sCX = 32; sCW = 40; sVMK = 32
sNON = 48
sT0, sT1, sT2, sT3 = 50, 51, 52, 53
sJ, sXCD, sTT, sFT, sCNT, sT = 54, 55, 56, 57, 58, 59
sEX = 60; sVM = 62
sIG, sIF, sIMP, sPEND = 64, 65, 66, 67
sOA, sF2 = 68, 69
sOW = 70
sU = 53
sXB0, sWB0 = 62, 63
sMK = 67
sT3P = 55
ST0 = 72
SOTH = 20
SIMP = 12
SDUM = 12
vL, vX0, vX1, vW0, vWR, vWR1, vWR2, vXR, vL16 = 1, 2, 3, 4, 5, 6, 7, 8, 12
vT0, vT1, vT2 = 13, 14, 15
vNON = 14
vEXP = 0
vKA, vVA, vKA8, vVA8 = 2, 3, 0, 7
vWO = 4
vFL = 8
vQ2 = 16; vCV = 24; vP = 24; vQ = 32
vML, vMF = 40, 56
accA, accB = 72, 88
vS = 72
WF = [104, 108, 112, 116, 120, 124, 16, 20]
vXF = 128
vO = 104; vK = 136; vV = 144; PB = 176
sBAD = 67
vU0, vU1, vU2 = 36, 37, 38
vONE = 6
vL8 = 13
NEG = "0xff800000"

def mfma(d, a, b, c): e(f"v_mfma_f32_32x32x16_bf16 {vr(d,16)}, {vr(a,4)}, {vr(b,4)}, {c if isinstance(c,str) else vr(c,16)}")
def dma(v, s_, soff, ldsdst, tag):
    e(f"s_add_u32 m0, s{sM0}, {ldsdst}"); e("s_nop 0")
    e.vm(f"buffer_load_dwordx4 v{v}, {srd(s_)}, s{soff} offen lds", tag)
def st_pieces(t):
    sl = t % 4
    return [lambda: dma(vX0, SX, sCX+t, sl*16384, f"st{t}"),
            lambda: dma(vW0, SW, sCW+t, L_WK + sl*8192, f"st{t}"),
            lambda: dma(vX1, SX, sCX+t, sl*16384 + 8192, f"st{t}")]
def cvt(dst, src, i): e(f"v_cvt_pk_bf16_f32 v{dst+i}, v{src+2*i}, v{src+2*i+1}")
def cvt8(dst, src, n=4):
    for i in range(n): cvt(dst, src, i)

def masks(kind):
    e(f"v_and_b32 v{vT0}, 31, v{vL}"); e(f"v_lshrrev_b32 v{vT1}, 5, v{vL}")
    e(f"v_lshlrev_b32 v{vT1}, 2, v{vT1}"); e(f"v_sub_u32 v{vT0}, v{vT0}, v{vT1}")
    if kind == "B":
        e(f"s_mov_b32 s{sMK}, {NEG}")
        for r in range(16):
            c = 8*(r >> 2) + (r & 3)
            e(f"v_subrev_u32 v{vT1}, {c}, v{vT0}"); e(f"v_and_b32 v{vML+r}, s{sMK}, v{vT1}"); e(f"v_xor_b32 v{vMF+r}, s{sMK}, v{vML+r}")
    else:
        e(f"s_mov_b32 s{sMK}, 0xf149f2ca")
        for r in range(16):
            c = 8*(r >> 2) + (r & 3)
            e(f"v_subrev_u32 v{vT1}, {c}, v{vT0}"); e(f"v_and_b32 v{vT1}, -15, v{vT1}"); e(f"v_cvt_f32_u32 v{vT1}, v{vT1}"); e(f"v_mul_f32 v{vML+r}, s{sMK}, v{vT1}")
            if r >= 8:
                e(f"v_add_u32 v{vT1}, {32-c}, v{vT0}"); e(f"v_and_b32 v{vT1}, -15, v{vT1}"); e(f"v_cvt_f32_u32 v{vT1}, v{vT1}"); e(f"v_mul_f32 v{vMF+r}, s{sMK}, v{vT1}")
            else:
                e(f"v_mov_b32 v{vMF+r}, s{sMK}")

def prologue():
    e("s_cmp_ge_u32 s2, 256"); e("s_cbranch_scc1 L_end")
    if O.only == 1: e("s_cmp_ge_u32 s2, 128"); e("s_cbranch_scc1 L_end")
    if O.stamps: e(f"{'s_memrealtime' if O.rt else 's_memtime'} {sr(ST0)}"); e("s_memrealtime s[100:101]")
    if O.spin or O.probe: e("s_memrealtime s[72:73]")
    e("s_load_dwordx16 s[32:47], s[0:1], 0"); e("s_load_dwordx2 s[24:25], s[0:1], 64")
    if O.ctouch:
        e(f"s_getpc_b64 {sr(sVM)}")
        e(f"s_lshr_b32 s{sT0}, s2, 3"); e(f"s_mul_i32 s{sT0}, s{sT0}, 5"); e(f"v_add_u32 v{vT0}, s{sT0}, v0"); e(f"v_lshlrev_b32 v{vT0}, 7, v{vT0}")
        e(f"v_cmp_gt_u32 vcc, 5, v0"); e(f"s_and_saveexec_b64 {sr(sEX)}, vcc"); e("s_cbranch_execz L_noct")
        e(f"global_load_dword v254, v{vT0}, {sr(sVM)}")
        e.label("L_noct"); e("s_mov_b64 exec, -1")
    e(f"v_lshrrev_b32 v{vT0}, 6, v0"); e(f"v_and_b32 v{vL}, 63, v0")
    e(f"v_readfirstlane_b32 s{sW}, v{vT0}")
    e(f"s_and_b32 s{sXCD}, s2, 7"); e(f"s_lshr_b32 s{sJ}, s2, 3")
    if O.remap: e(f"s_bfe_u32 s{sT0}, s2, 0x10002"); e(f"s_lshl_b32 s{sT0}, s{sT0}, 1"); e(f"s_xor_b32 s{sXCD}, s{sXCD}, s{sT0}")
    e(f"s_lshr_b32 s{sT0}, s{sXCD}, 1"); e(f"s_lshl_b32 s{sT0}, s{sT0}, 2"); e(f"s_bfe_u32 s{sT1}, s{sJ}, 0x20002")
    e(f"s_add_u32 s{sRB}, s{sT0}, s{sT1}")
    e(f"s_and_b32 s{sT0}, s{sXCD}, 1"); e(f"s_lshl_b32 s{sT0}, s{sT0}, 2"); e(f"s_and_b32 s{sT2}, s{sJ}, 3")
    e(f"s_add_u32 s{sG}, s{sT0}, s{sT2}")
    e(f"s_add_u32 s{sT3}, s{sT1}, s{sT2}"); e(f"s_lshl_b32 s{sT3}, s{sT3}, 1")
    e(f"s_lshl_b32 s{sM0}, s{sW}, 10")
    e(f"v_lshrrev_b32 v{vT0}, 4, v{vL}")
    e(f"s_and_b32 s{sT0}, s{sW}, 1"); e(f"s_lshl_b32 s{sT0}, s{sT0}, 2")
    e(f"v_add_u32 v{vT0}, s{sT0}, v{vT0}")
    e(f"v_and_b32 v{vT1}, 7, v{vL}"); e(f"v_xor_b32 v{vT0}, v{vT0}, v{vT1}"); e(f"v_lshlrev_b32 v{vT0}, 4, v{vT0}")
    e(f"v_lshrrev_b32 v{vT1}, 3, v{vL}"); e(f"v_lshl_add_u32 v{vX0}, v{vT1}, 10, v{vT0}")
    e(f"s_lshl_b32 s{sT0}, s{sW}, 13"); e(f"v_add_u32 v{vX0}, s{sT0}, v{vX0}"); e(f"v_add_u32 v{vX1}, 0x10000, v{vX0}")
    e(f"v_bfe_u32 v{vT0}, v{vL}, 2, 3")
    e(f"s_lshl_b32 s{sT0}, s{sW}, 3"); e(f"v_add_u32 v{vT0}, s{sT0}, v{vT0}")
    e(f"v_lshrrev_b32 v{vT1}, 5, v{vL}"); e(f"v_lshlrev_b32 v{vT1}, 6, v{vT1}")
    e(f"v_and_b32 v{vT2}, 3, v{vL}"); e(f"v_lshl_add_u32 v{vT1}, v{vT2}, 4, v{vT1}")
    e(f"v_mul_u32_u24 v{vW0}, 3072, v{vT0}"); e(f"v_add_u32 v{vW0}, v{vW0}, v{vT1}"); e(f"v_add_u32 v{vW0}, 0x400, v{vW0}")
    def need():
        e(f"s_lshr_b32 s{sFT}, s{sW}, 2"); e(f"s_mul_i32 s{sTT}, s{sFT}, 3"); e(f"s_and_b32 s{sT0}, s{sW}, 3"); e(f"s_xor_b32 s{sTT}, s{sTT}, s{sT0}")
        e(f"v_and_b32 v{vT0}, 31, v{vL}"); e(f"v_lshrrev_b32 v{vT1}, 5, v{vL}")
        e(f"v_bfe_u32 v{vT2}, v{vL}, 1, 3"); e(f"v_xor_b32 v{vT2}, v{vT2}, v{vT1}"); e(f"v_lshlrev_b32 v{vT2}, 4, v{vT2}")
        e(f"v_lshl_add_u32 v{vXR}, v{vT0}, 7, v{vT2}")
        e(f"s_lshl_b32 s{sT0}, s{sTT}, 12"); e(f"v_add_u32 v{vXR}, s{sT0}, v{vXR}")
        for s_ in range(1, 4): e(f"v_xor_b32 v{vXR+s_}, {s_*32}, v{vXR}")
        e(f"v_bfe_u32 v{vT2}, v{vL}, 2, 2"); e(f"v_lshlrev_b32 v{vWR}, 6, v{vT2}")
        e(f"v_bfe_u32 v{vT2}, v{vL}, 4, 1"); e(f"v_lshl_add_u32 v{vWR}, v{vT2}, 5, v{vWR}")
        e(f"v_and_b32 v{vT2}, 3, v{vL}"); e(f"v_lshl_add_u32 v{vWR}, v{vT2}, 3, v{vWR}")
        e(f"v_lshl_add_u32 v{vWR}, v{vT1}, 10, v{vWR}")
        e(f"s_lshl_b32 s{sT0}, s{sFT}, 9"); e(f"v_add_u32 v{vWR}, s{sT0}, v{vWR}")
        e(f"v_add_u32 v{vWR1}, 0x10000, v{vWR}"); e(f"v_add_u32 v{vWR2}, 0x20000, v{vWR}")
    if O.early: need()
    e(f"s_mov_b32 s{SX+2}, {2048*1024}"); e(f"s_mov_b32 s{SX+3}, 0x20000")
    e(f"s_mov_b32 s{SW+2}, {512*3072}"); e(f"s_mov_b32 s{SW+3}, 0x20000")
    e(f"s_mov_b32 s{SOTH+3}, 0x20000")
    e(f"s_lshl_b32 s{sT0}, s{sRB}, 17"); e(f"s_lshl_b32 s{sT1}, s{sG}, 7")
    e(f"s_cmp_lt_u32 s2, 128"); e(f"s_cselect_b32 s{sBR}, 1, 0")
    e(f"s_cselect_b32 s{sT3}, 0, s{sT3}")
    e.stamp(1, 10)
    e("s_waitcnt lgkmcnt(0)")
    e.stamp(2, 10)
    e(f"s_cselect_b64 {sr(SX)}, s[38:39], s[32:33]")
    e(f"s_cselect_b64 {sr(SW)}, s[40:41], s[34:35]")
    e(f"s_cselect_b64 {sr(SWO)}, s[42:43], s[36:37]")
    e(f"s_cselect_b64 {sr(sOW)}, s[36:37], s[42:43]")
    e(f"s_mov_b64 {sr(SDBG)}, s[46:47]")
    e("s_cbranch_scc1 L_notouch")
    sp = O.xspan
    e(f"v_lshrrev_b32 v{vT0}, {sp}, v{vL}"); e(f"v_lshlrev_b32 v{vT0}, 10, v{vT0}")
    e(f"v_and_b32 v{vT1}, {(1 << sp) - 1}, v{vL}"); e(f"v_lshl_add_u32 v{vT0}, v{vT1}, 7, v{vT0}")
    e(f"v_lshrrev_b32 v{vT1}, 4, v{vL}"); e(f"v_bfe_u32 v{vT2}, v{vL}, 2, 2"); e(f"v_lshl_add_u32 v{vT1}, v{vT1}, 6, v{vT2}")
    e(f"v_mul_u32_u24 v{vT1}, 3072, v{vT1}"); e(f"v_and_b32 v{vT2}, 3, v{vL}"); e(f"v_lshl_add_u32 v{vT1}, v{vT2}, 7, v{vT1}")
    sXB, sWB = sIG, sIF
    e(f"s_and_b32 s{sXB}, s{sG}, 3"); e(f"s_lshl_b32 s{sXB}, s{sXB}, 15"); e(f"s_add_u32 s{sXB}, s{sXB}, s{sT0}")
    e(f"s_and_b32 s{sWB}, s{sJ}, 15"); e(f"s_mul_i32 s{sWB}, s{sWB}, {4*3072}"); e(f"s_and_b32 s{sT2}, s{sT1}, 512"); e(f"s_add_u32 s{sWB}, s{sWB}, s{sT2}")
    code = {0: [8, 2, 9, 10, 3, 11, 4, 5, 0, 1], 1: [8, 9, 10, 11, 2, 3, 4, 5, 0, 1]}[O.torder]
    items = [(1, c) for c in code] + [(0, c) for c in code]
    if O.tseq == 1:
        items = [(1, c) for c in code[:8]] + [(0, c) for c in code[:6]] + [(1, c) for c in code[8:]] + [(0, c) for c in code[6:]]
    if O.tseq == 2: items = [(1, c) for c in code] + [(0, c) for c in code[6:]]
    if O.tseq == 3: items = [(1, c) for c in code] + [(0, c) for c in (2, 3, 4, 5, 0, 1)]
    if O.tseq == 4: items = [(1, c) for c in code[:8]] + [(0, c) for c in (2, 3, 4, 5)] + [(1, c) for c in code[8:]] + [(0, c) for c in (0, 1)]
    items = items[:O.tn]
    for r in range((len(items) + 7) // 8):
        rnd = items[8*r:8*r+8]
        pk = sum(c << (4*i) for i, (b_, c) in enumerate(rnd)); bm = sum(b_ << i for i, (b_, c) in enumerate(rnd))
        if len(rnd) < 8: e(f"s_cmp_ge_u32 s{sW}, {len(rnd)}"); e(f"s_cbranch_scc1 L_t{r}d")
        e(f"s_lshl_b32 s{sT2}, s{sW}, 2"); e(f"s_lshr_b32 s{sT2}, {pk:#x}, s{sT2}")
        e(f"s_bitcmp1_b32 s{sT2}, 3"); e(f"s_cbranch_scc1 L_t{r}x")
        e(f"s_bitcmp1_b32 {bm:#x}, s{sW}"); e(f"s_cselect_b64 {sr(SOTH)}, s[40:41], s[34:35]"); e(f"s_mov_b32 s{SOTH+2}, {512*3072}")
        e(f"s_and_b32 s{sCNT}, s{sT2}, 1"); e(f"s_mul_i32 s{sCNT}, s{sCNT}, {256*3072}"); e(f"s_add_u32 s{sCNT}, s{sCNT}, s{sWB}")
        e(f"s_and_b32 s{sT2}, s{sT2}, 6"); e(f"s_lshl_b32 s{sT2}, s{sT2}, 9"); e(f"s_add_u32 s{sCNT}, s{sCNT}, s{sT2}")
        e(f"buffer_load_dword v{250+r}, v{vT1}, {srd(SOTH)}, s{sCNT} offen{' nt' if O.tnt else ''}")
        e(f"s_branch L_t{r}d")
        e.label(f"L_t{r}x")
        e(f"s_bitcmp1_b32 {bm:#x}, s{sW}"); e(f"s_cselect_b64 {sr(SOTH)}, s[38:39], s[32:33]"); e(f"s_mov_b32 s{SOTH+2}, {2048*1024}")
        e(f"s_and_b32 s{sT2}, s{sT2}, 3")
        if sp == 2:
            e(f"s_and_b32 s{sCNT}, s{sT2}, 1"); e(f"s_lshl_b32 s{sCNT}, s{sCNT}, 14"); e(f"s_lshr_b32 s{sT2}, s{sT2}, 1"); e(f"s_lshl_b32 s{sT2}, s{sT2}, 9"); e(f"s_add_u32 s{sT2}, s{sT2}, s{sCNT}")
        else: e(f"s_lshl_b32 s{sT2}, s{sT2}, {8 if sp == 1 else 13}")
        e(f"s_add_u32 s{sCNT}, s{sT2}, s{sXB}")
        e(f"buffer_load_dword v{250+r}, v{vT0}, {srd(SOTH)}, s{sCNT} offen{' nt' if O.tnt else ''}")
        e.label(f"L_t{r}d")
        e.stamp(7+r, 10)
        e("s_barrier")
    if O.tlb:
        e(f"s_cmp_lg_u32 s{sW}, 7"); e("s_cbranch_scc1 L_notlb")
        if O.tlb >= 20: e(f"v_lshlrev_b32 v{vT0}, {O.tlb}, v{vL}")
        else:
            e(f"s_and_b32 s{sT2}, s{sJ}, 15"); e(f"v_lshlrev_b32 v{vT0}, 4, v{vL}"); e(f"v_add_u32 v{vT0}, s{sT2}, v{vT0}"); e(f"v_lshlrev_b32 v{vT0}, {O.tlb}, v{vT0}")
        for k_, (p_, n_) in enumerate((("s[24:25]", 13 << 20), ("s[44:45]", 4 << 20), ("s[36:37]", 512 << 10), ("s[42:43]", 512 << 10))):
            e(f"s_mov_b64 {sr(SOTH)}, {p_}"); e(f"s_mov_b32 s{SOTH+2}, {n_}")
            e(f"buffer_load_dword v{244+k_}, v{vT0}, {srd(SOTH)}, 0 offen")
        e.label("L_notlb")
    if not O.rotA: e(f"s_mov_b32 s{sT3}, 0")
    e.label("L_notouch")
    e(f"s_mov_b64 {sr(SOUT)}, s[44:45]")
    def chunk(t):
        e(f"s_add_u32 s{sT2}, s{sT3}, {t}"); e(f"s_and_b32 s{sT2}, s{sT2}, 7")
        e(f"s_lshl_b32 s{sCX+t}, s{sT2}, 7"); e(f"s_add_u32 s{sCX+t}, s{sCX+t}, s{sT0}")
        e(f"s_mul_i32 s{sCW+t}, s{sT2}, {64*3072}"); e(f"s_add_u32 s{sCW+t}, s{sCW+t}, s{sT1}")
    e.stamp(3, 10)
    chunk(0)
    for p in st_pieces(0): p()
    e.stamp(4, 10)
    chunk(1)
    for p in st_pieces(1): p()
    e.stamp(5, 10)
    chunk(2)
    e(f"s_mov_b32 s{sXB0}, s{sT0}"); e(f"s_mov_b32 s{sWB0}, s{sT1}")
    if not O.early: need()
    e(f"s_mov_b32 s{SDBG+2}, 256"); e(f"s_mov_b32 s{SDBG+3}, 0x20000")
    e(f"s_xor_b32 s{sT2}, s{sW}, 7"); e(f"s_or_b32 s{sT2}, s2, s{sT2}")
    def tag():
        e(f"s_memrealtime {sr(sNON)}"); e("s_waitcnt lgkmcnt(0)")
        e(f"s_or_b32 s{sNON+1}, s{sNON+1}, 0x80000000")
        e(f"v_mov_b32 v{vCV}, s{sNON}"); e(f"v_mov_b32 v{vCV+1}, s{sNON+1}")
        e("s_mov_b64 exec, 1")
        e(f"buffer_store_dwordx2 {vr(vCV,2)}, off, {srd(SDBG)}, 0 sc1")
        e("s_mov_b64 exec, -1")
    e.cond(f"s_cmp_eq_u32 s{sT2}, 0", tag)
    e.stamp(6, 10)
    def chunk2(t):
        e(f"s_add_u32 s{sCNT}, s{sT3}, {t}"); e(f"s_and_b32 s{sCNT}, s{sCNT}, 7")
        e(f"s_lshl_b32 s{sCX+t}, s{sCNT}, 7"); e(f"s_add_u32 s{sCX+t}, s{sCX+t}, s{sXB0}")
        e(f"s_mul_i32 s{sCW+t}, s{sCNT}, {64*3072}"); e(f"s_add_u32 s{sCW+t}, s{sCW+t}, s{sWB0}")
    for t in range(3, 8): DEFER[f"c{t}"] = capture(lambda: chunk2(t))
    def rest():
        e(f"s_mov_b32 s{SWO+2}, {512*1024}"); e(f"s_mov_b32 s{SWO+3}, 0x20000")
        e(f"s_mov_b32 s{SOUT+2}, {2048*2048}")
        e(f"s_mov_b32 s{SWS+2}, {WS_BYTES}"); e(f"s_mov_b32 s{SWS+3}, 0x20000")
        e(f"s_lshl_b32 s{sT}, s{sRB}, 2"); e(f"s_add_u32 s{sT}, s{sT}, s{sTT}")
        e(f"v_lshlrev_b32 v{vL16}, 4, v{vL}")
        e(f"s_lshl_b32 s{sT0}, s{sTT}, 13"); e(f"s_lshl_b32 s{sT1}, s{sFT}, 11"); e(f"s_add_u32 s{sT0}, s{sT0}, s{sT1}")
        e(f"s_add_u32 s{sT0}, s{sT0}, {L_KV + 8*8192}"); e(f"v_add_u32 v{vEXP}, s{sT0}, v{vL16}")
        e(f"s_lshl_b32 s{sT0}, s{sBR}, 3"); e(f"s_add_u32 s{sT0}, s{sT0}, s{sG}"); e(f"s_lshl_b32 s{sT0}, s{sT0}, 6"); e(f"s_add_u32 s{sT0}, s{sT0}, s{sT}")
        e(f"s_lshl_b32 s{sKV}, s{sT0}, 13"); e(f"s_add_u32 s{sKV}, s{sKV}, s{sT1}")
        e(f"s_lshl_b32 s{sF1}, s{sT0}, 8"); e(f"s_lshl_b32 s{sT1}, s{sFT}, 7"); e(f"s_add_u32 s{sF1}, s{sF1}, s{sT1}"); e(f"s_add_u32 s{sF1}, s{sF1}, {WS_F1}")
        e(f"s_sub_u32 s{sT0}, s{sT0}, s{sTT}"); e(f"s_add_u32 s{sT0}, s{sT0}, s{sW}"); e(f"s_sub_u32 s{sT0}, s{sT0}, 8")
        e(f"s_lshl_b32 s{sT1}, s{sRB}, 2"); e(f"s_add_u32 s{sT1}, s{sT1}, s{sW}"); e(f"s_cmp_lt_u32 s{sT1}, 8"); e(f"s_cselect_b32 s{sIMP}, 1, 0")
        e(f"s_cselect_b32 s{sT0}, 0, s{sT0}")
        e(f"s_lshl_b32 s{sIG}, s{sT0}, 13"); e(f"s_lshl_b32 s{sIF}, s{sT0}, 8"); e(f"s_add_u32 s{sIF}, s{sIF}, {WS_F1 + 120}")
        e(f"s_cmp_eq_u32 s{sBR}, 0"); e(f"s_cselect_b32 s{sIMP}, 2, s{sIMP}")
        e(f"s_lshl_b32 s{sT0}, s{sBR}, 6"); e(f"s_add_u32 s{sT0}, s{sT0}, s{sT}")
        e(f"s_lshl_b32 s{sT1}, s{sT0}, 4"); e(f"s_lshl_b32 s{sT2}, s{sG}, 1"); e(f"s_add_u32 s{sT1}, s{sT1}, s{sT2}"); e(f"s_add_u32 s{sT1}, s{sT1}, s{sFT}")
        e(f"s_lshl_b32 s{sOA}, s{sT1}, 11"); e(f"s_add_u32 s{sOA}, s{sOA}, {WS_O}")
        e(f"s_lshl_b32 s{sF2}, s{sT1}, 8"); e(f"s_add_u32 s{sF2}, s{sF2}, {WS_F2}")
        e(f"s_mov_b32 s{sEX}, 0xffff"); e(f"s_mov_b32 s{sEX+1}, 0xffff")
        e(f"s_lshl_b32 s{sT0}, s{sXCD}, 1"); e(f"s_bfe_u32 s{sT1}, s{sJ}, 0x10003"); e(f"s_add_u32 s{sT0}, s{sT0}, s{sT1}")
        e(f"s_lshl_b32 s{sT0}, s{sT0}, 2"); e(f"s_and_b32 s{sT1}, s{sW}, 3"); e(f"s_add_u32 s{sT3P}, s{sT0}, s{sT1}")

    DEFER["rest"] = capture(rest)
    DEFER["mA"] = capture(lambda: masks("A")); DEFER["mB"] = capture(lambda: masks("B"))
    if O.st2 == 1:
        for p in st_pieces(2): p()
    if not O.defer:
        for t in range(3, 8): e.L.extend(DEFER[f"c{t}"])
        e.L.extend(DEFER["rest"])
        e.cond(f"s_cmp_eq_u32 s{sBR}, 0", lambda: (e.L.extend(DEFER["mA"]), e("s_branch L_mdone")))
        e.L.extend(DEFER["mB"]); e.label("L_mdone")
    if O.st2 == 2:
        for p in st_pieces(2): p()
    e.stamp(11, 10)

def flag_store(soff, s_=SWS, off=0):
    e("s_mov_b64 exec, 0xffff")
    e.vm(f"buffer_store_dwordx2 {vr(vNON,2)}, v{vL8}, {srd(s_)}, s{soff} offen{f' offset:{off}' if off else ''} sc1", "flag")
    e("s_mov_b64 exec, -1")
def flag_ld(tag):
    e.vm(f"buffer_load_dwordx4 {vr(vFL,4)}, off, {srd(SWS)}, s{sIF} sc1", tag)
def flag_cmp():
    e(f"v_cmp_ne_u64 vcc, {sr(sNON)}, {vr(vFL,2)}"); e(f"v_cmp_ne_u64 {sr(sVM)}, {sr(sNON)}, {vr(vFL+2,2)}")
    e(f"s_or_b64 {sr(sVM)}, {sr(sVM)}, vcc")
def flag_poll():
    L = e.newlab("L_fp"); D = L + "d"
    e(f"s_mov_b32 s{sCNT}, 0")
    e.label(L)
    e(f"buffer_load_dwordx4 {vr(vFL,4)}, off, {srd(SWS)}, s{sIF} sc1")
    e(f"s_add_u32 s{sCNT}, s{sCNT}, 1"); e(f"s_cmp_gt_u32 s{sCNT}, {O.pollmax}"); e(f"s_cbranch_scc1 {D}")
    e("s_waitcnt vmcnt(0)")
    flag_cmp(); e(f"s_cbranch_scc1 {L}")
    e.label(D)
def spoll(soff, offs):
    L = e.newlab("L_sp"); D = L + "d"
    e(f"s_add_u32 s{sVM}, s{SWS}, s{soff}"); e(f"s_addc_u32 s{sVM+1}, s{SWS+1}, 0"); e(f"s_mov_b32 s{sCNT}, 0")
    e.label(L)
    w32 = O.sp32 and len(offs) > 4
    for i, o in enumerate(offs): e(f"s_load_dword s{sVMK+i}, {sr(sVM)}, {o} glc" if w32 else f"s_load_dwordx2 {sr(sVMK+2*i)}, {sr(sVM)}, {o} glc")
    e(f"s_add_u32 s{sCNT}, s{sCNT}, 1"); e(f"s_cmp_gt_u32 s{sCNT}, {O.pollmax}")
    e("s_waitcnt lgkmcnt(0)")
    e(f"s_cbranch_scc1 {D}")
    n2 = len(offs)//2 if w32 else len(offs)
    for i in range(n2): e(f"s_xor_b64 {sr(sVMK+2*i)}, {sr(sVMK+2*i)}, {sr(sT2) if w32 else sr(sNON)}")
    for i in range(1, n2): e(f"s_or_b64 {sr(sVMK)}, {sr(sVMK)}, {sr(sVMK+2*i)}")
    e(f"s_cbranch_scc1 {L}")
    e.label(D)
def imp_dma(v, track=None):
    e(f"s_lshl_b32 s{sT1}, s{sW}, 13"); e(f"s_add_u32 m0, s{sT1}, {L_KV + v*4096}")
    e(f"s_add_u32 s{sT0}, s{sIG}, {v*4096}")
    for k in range(4):
        t = f"buffer_load_dwordx4 v{vL16}, {srd(SIMP)}, s{sT0} offen offset:{k*1024} sc1 lds"
        if track: e.vm(t, track)
        else: e(t)

def touch_wo(s_, tmp):
    e(f"s_and_b32 s{sT0}, s{sJ}, 15"); e(f"s_lshl_b32 s{sT0}, s{sT0}, 3"); e(f"s_add_u32 s{sT0}, s{sT0}, s{sW}")
    e(f"s_lshl_b32 s{sT0}, s{sT0}, 12"); e(f"v_lshlrev_b32 v{tmp}, 7, v{vL}")
    e("s_mov_b32 exec_hi, 0")
    e(f"buffer_load_dword v{tmp+1}, v{tmp}, {srd(s_)}, s{sT0} offen")
    e("s_mov_b32 exec_hi, -1")

def p1():
    e.stamp(12)
    def rd(ks):
        G, s_ = divmod(ks, 4)
        w = WF[ks % 8]
        if G < 8:
            e.ds(f"ds_read_b128 {vr(vXF+4*ks,4)}, v{vXR+s_} offset:{(G%4)*16384}", f"w{ks}")
            b, off = vWR2, (G % 4)*8192 + s_*2048
        elif G < 16: b, off = vWR1, (G-8)*8192 + s_*2048
        else: b, off = vWR, (G-16)*8192 + s_*2048
        e.ds(f"ds_read_b64_tr_b16 {vr(w,2)}, v{b} offset:{off}", f"w{ks}")
        e.ds(f"ds_read_b64_tr_b16 {vr(w+2,2)}, v{b} offset:{off+256}", f"w{ks}")
    syncs = {G: (f"st{G}", not O.spread) for G in range(8)}
    syncs.update({8: ("wv1", not O.spread), 10: ("wv3", False), 12: ("wv7", False), 16: ("wq3", False), 20: ("wq7", "exp")})
    def sync(G):
        if G not in syncs: return
        tag, lg = syncs[G]
        e.wait_vm(tag)
        if lg is True: e.ds_all()
        elif lg: e.wait_ds(lg)
        if not (O.x & 8 and G > 8): e("s_barrier")
    gap = {k: [] for k in range(-1, 96)}
    def I(t): return lambda: e(t)
    def wv(t): return lambda: dma(vW0, SW, sCW+t, L_WV + t*8192, f"wv{t}")
    def wq(t): return lambda: dma(vW0, SW, sCW+t, t*8192, f"wq{t}")
    if O.npre == 2:
        if not O.st2: gap[-1] += st_pieces(2)
        for t in range(3, 8):
            for i, p in enumerate(st_pieces(t)): gap[(4*(t-3) + i) if not (O.st2 and t == 3) else -1].append(p)
    else:
        if O.npre == 3: gap[-1] += st_pieces(3)
        for t in range(4, 8):
            for i, p in enumerate(st_pieces(t)): gap[4*(t-4) + i].append(p)
    def raw(ls): return lambda: e.L.extend(ls)
    if O.defer:
        for t in range(3, 8): gap[4*(t-3) - 1].insert(0, raw(DEFER[f"c{t}"]))
    groups = []; cur = []
    R = DEFER["rest"]
    for i, l in enumerate(R):
        cur.append(l)
        nxt = R[i+1] if i+1 < len(R) else ""
        if len(cur) >= 5 and "s_cselect" not in nxt: groups.append(cur); cur = []
    if cur: groups.append(cur)
    slots = [k for k in range(0, 19) if k % 4 != 3]
    assert len(groups) <= len(slots), len(groups)
    if O.defer:
        for k, gr in zip(slots, groups): gap[k].append(raw(gr))
    mg = [3, 7, 11, 15, 21, 24]
    def mpart(i):
        def cut(M): return M[len(M)*i//len(mg):len(M)*(i+1)//len(mg)]
        def f():
            L = e.newlab("L_mk")
            e.cond(f"s_cmp_eq_u32 s{sBR}, 0", lambda: (e.L.extend(cut(DEFER["mA"])), e(f"s_branch {L}")))
            e.L.extend(cut(DEFER["mB"])); e.label(L)
        return f
    if O.defer:
        for i, k in enumerate(mg): gap[k].append(mpart(i))
    gap[26].append(I(f"v_lshlrev_b32 v{vL8}, 3, v{vL}"))
    gap[19].append(I(f"v_add_u32 v{vW0}, 0x400, v{vW0}"))
    for t, k in enumerate([[20, 22, 24, 26, 28, 30, 32, 33], [20, 21, 22, 24, 26, 28, 30, 32], [19, 20, 22, 23, 25, 27, 29, 31]][O.wvs]): gap[k].append(wv(t))
    gap[29].append(lambda: e.vm(f"buffer_load_dwordx2 {vr(vNON,2)}, off, {srd(SDBG)}, 0 sc1", "non"))
    gap[21] += [I(f"s_mov_b64 {sr(SEXP)}, {sr(SWS)}"), I(f"s_lshl_b32 s{sT0}, s{sBR}, 2"), I(f"s_or_b32 s{sT0}, s{sT0}, s{sTT}")]
    gap[23] += [I(f"s_cmp_ge_u32 s{sT0}, 3"), I(f"s_cselect_b32 s{SEXP+2}, s{SWS+2}, 0")]
    def export(k0, acc, tmp, off, tag):
        for i in range(4): gap[k0].append(lambda i=i: cvt(tmp, acc, i))
        if off: gap[k0].append(I(f"s_add_u32 s{sKV}, s{sKV}, {off}"))
        if not O.x & 1: gap[k0+1].append(lambda: e.vm(f"buffer_store_dwordx4 {vr(tmp,4)}, v{vL16}, {srd(SEXP)}, s{sKV} offen sc1", tag))
        for i in range(4, 8): gap[k0+1].append(lambda i=i: cvt(tmp, acc, i))
        if not O.x & 1: gap[k0+2].append(lambda: e.vm(f"buffer_store_dwordx4 {vr(tmp+4,4)}, v{vL16}, {srd(SEXP)}, s{sKV} offen offset:1024 sc1", tag))
        if not O.x & 2: gap[k0+3].append(lambda: e.ds(f"ds_write_b128 v{vEXP}, {vr(tmp,4)} offset:{off}", "exp"))
        if not O.x & 2: gap[k0+4].append(lambda: e.ds(f"ds_write_b128 v{vEXP}, {vr(tmp+4,4)} offset:{off+1024}", "exp"))
    export(34, accA, vCV, 0, "kst")
    gap[39].append(I(f"v_subrev_u32 v{vW0}, 0x800, v{vW0}"))
    wqg = [[40, 43, 46, 49, 54, 57, 60, 63], [39, 40, 41, 42, 53, 55, 57, 59], [39, 41, 43, 45, 53, 55, 57, 59]][O.wqs]
    for t, k in enumerate(wqg):
        if not O.x & 4: gap[k].append(wq(t))
    def kflag():
        e.wait_vm("kst"); e.wait_vm("non")
        e(f"v_readfirstlane_b32 s{sNON}, v{vNON}"); e(f"v_readfirstlane_b32 s{sNON+1}, v{vNON+1}")
        def late():
            L = e.newlab("L_tag"); D = L + "d"
            e(f"s_mov_b32 s{sCNT}, 0")
            e.label(L)
            e(f"buffer_load_dwordx2 {vr(vNON,2)}, off, {srd(SDBG)}, 0 sc1"); e("s_waitcnt vmcnt(0)")
            e(f"v_readfirstlane_b32 s{sNON}, v{vNON}"); e(f"v_readfirstlane_b32 s{sNON+1}, v{vNON+1}")
            e(f"s_add_u32 s{sCNT}, s{sCNT}, 1"); e(f"s_cmp_gt_u32 s{sCNT}, {O.pollmax}"); e(f"s_cbranch_scc1 {D}")
            e(f"s_cmp_eq_u32 s{sNON+1}, 0"); e(f"s_cbranch_scc1 {L}")
            e.label(D)
        e("s_nop 0")
        e.cond(f"s_cmp_eq_u32 s{sNON+1}, 0", late)
        flag_store(sF1, SEXP)
    gap[O.kflag].append(kflag)
    def prew():
        e("s_mov_b32 exec_hi, 0")
        e.vm(f"buffer_store_dwordx2 {vr(vL16,2)}, v{vL8}, {srd(SWS)}, s{sF2} offen sc1", "prew")
        e("s_mov_b32 exec_hi, -1")
    if O.prew: gap[O.prew].append(prew)
    export(66, accB, vCV+8, 4096, "vst")
    gap[O.kchk].append(lambda: flag_ld("kchk"))
    gap[72] += [I(f"v_add_u32 v{vKA8}, {-8*8192 & 0xffffffff:#x}, v{vEXP}"), I(f"v_add_u32 v{vKA}, 0x2000, v{vKA8}"), I(f"v_and_b32 v{vVA8}, 0xfffffeff, v{vKA8}")]
    gap[73] += [I(f"v_add_u32 v{vVA8}, 0x1000, v{vVA8}"), I(f"v_add_u32 v{vVA}, 0x2000, v{vVA8}")]
    for i in range(1, 9):
        gap[73+i] += [I(f"s_cmp_le_u32 {i}, s{sT}"), I(f"s_cselect_b64 {sr(sVMK+2*(i-1))}, {sr(sEX)}, -1")]
    gap[61] += [I(f"v_bfe_u32 v{vWO}, v{vL}, 2, 3"), I(f"s_lshl_b32 s{sT0}, s{sW}, 3"), I(f"v_add_u32 v{vWO}, s{sT0}, v{vWO}"), I(f"v_lshlrev_b32 v{vWO}, 10, v{vWO}")]
    gap[62] += [I(f"v_lshrrev_b32 v{vWR1}, 5, v{vL}"), I(f"v_lshl_add_u32 v{vWO}, v{vWR1}, 6, v{vWO}"), I(f"v_and_b32 v{vWR1}, 3, v{vL}"), I(f"v_lshl_add_u32 v{vWO}, v{vWR1}, 4, v{vWO}")]
    gap[63] += [I(f"s_and_b32 s{sT0}, s{sJ}, 7"), I(f"s_lshl_b32 s{sT0}, s{sT0}, 7"), I(f"v_add_u32 v{vWO}, s{sT0}, v{vWO}")]
    gap[64] += [I(f"s_mov_b64 {sr(SIMP)}, {sr(SWS)}")]
    def imp_k1():
        e.wait_vm("kchk")
        flag_cmp()
        e(f"s_cselect_b32 s{sPEND}, 1, 0")
        e(f"s_cmp_lg_u32 s{sIMP}, 0"); e(f"s_cselect_b32 s{sPEND}, 0, s{sPEND}")
        flag_ld("kchk2")
        e(f"s_or_b32 s{sT0}, s{sPEND}, s{sIMP}"); e(f"s_cselect_b32 s{SIMP+2}, 0, s{SWS+2}")
        e.cond(f"s_cmp_eq_u32 s{sBR}, 0", lambda: ([e(f"buffer_load_dword v{vCV}, off, {srd(SIMP)}, 0") for i in range(4)], e("s_branch L_k1d")))
        imp_dma(0, "kimp")
        e.label("L_k1d")
    gap[O.imp1].append(imp_k1)
    def imp_k2():
        e.wait_vm("vst")
        e(f"s_add_u32 s{sF1}, s{sF1}, {F1V}")
        flag_store(sF1, SEXP); e.stamp(5)
        e(f"s_cmp_lg_u32 s{sIMP}, 0"); e(f"s_cselect_b32 s{SIMP+2}, 0, s{SWS+2}")
        def again():
            L = e.newlab("L_k2")
            e("s_waitcnt vmcnt(1)")
            flag_cmp(); e(f"s_cbranch_scc1 {L}")
            imp_dma(0); e(f"s_mov_b32 s{sPEND}, 2")
            e.label(L)
        e.cond(f"s_cmp_eq_u32 s{sPEND}, 1", again)
    gap[O.imp].append(imp_k2)
    if O.aflag:
        def aflag():
            e("s_waitcnt vmcnt(5)")
            e(f"s_add_u32 s{sT0}, s{sF1}, {F1V}")
            e("s_mov_b64 exec, 0xffff")
            e(f"buffer_store_dwordx2 {vr(vNON,2)}, v{vL8}, {srd(SEXP)}, s{sT0} offen sc1")
            e("s_mov_b64 exec, -1")
            e(f"s_mov_b32 s{SEXP+2}, 0")
        gap[O.aflag].append(lambda: e.cond(f"s_cmp_eq_u32 s{sBR}, 0", aflag))
        def hs():
            e(f"s_sub_u32 s{sIF}, s{sF1}, 256")
            e(f"s_add_u32 s{sVM}, s{SWS}, s{sIF}"); e(f"s_addc_u32 s{sVM+1}, s{SWS+1}, 0")
            e(f"s_load_dwordx2 {sr(sVMK)}, {sr(sVM)}, 0 glc")
        gap[O.hsmp].append(lambda: (e(f"s_or_b32 s{sT0}, s{sBR}, s{sTT}"), e.cond(f"s_cmp_eq_u32 s{sT0}, 0", hs)))
    def late_vm():
        if not O.awo: e.cond(f"s_cmp_eq_u32 s{sBR}, 0", lambda: ([wo_piece(i, L_KV) for i in range(4, 8)], e("s_branch L_tBd")))
        if O.tchB: touch_wo(SWO, vCV)
        e.label("L_tBd")
    gap[O.tchB or 90].append(late_vm)
    gap[85] += [I(f"v_mov_b32 v{vONE}, 0"), I("s_mov_b32 exec_lo, 0x110000" if O.zrow else "s_nop 0"), I("s_mov_b32 exec_hi, 0x110000" if O.zrow else "s_nop 0"), I(f"v_mov_b32 v{vONE}, 0x3f803f80"), I("s_mov_b64 exec, -1")]
    for i in range(32): gap[88 + i//4].append(I(f"v_mov_b32 v{vV+i}, v{vONE}"))
    gap[92].append(lambda: e.ds(f"ds_read_b128 {vr(vK,4)}, v{vKA} offset:{7*8192 + 1024}", "k0"))
    gap[92].append(lambda: e.ds(f"ds_read_b128 {vr(vK+4,4)}, v{vKA} offset:{7*8192}", "k0"))
    gap[95] += [I(f"s_mov_b32 s{sT2}, 0x3eb8aa3b"), I(f"s_mov_b32 s{sT3}, 0x3eb8aa3b")]

    if O.hold:
        e(f"s_cmp_lg_u32 s{sBR}, 0"); e("s_cbranch_scc1 L_nohold")
        e.label("L_hold"); e("s_sleep 2"); e(f"s_memrealtime {sr(sVM)}"); e("s_waitcnt lgkmcnt(0)"); e(f"s_sub_u32 s{sVM}, s{sVM}, s100")
        e(f"s_cmp_lt_u32 s{sVM}, {O.hold}"); e("s_cbranch_scc1 L_hold")
        e.label("L_nohold")
    if O.stamps == 10: e.wait_vm("st0"); e.stamp(9, 10)
    sync(0); e.stamp(1); e.stamp(10, 10)
    for s_ in range(4): rd(s_)
    for f in gap[-1]: f()
    for ks in range(96):
        it, s_ = divmod(ks, 4)
        if s_ == 0:
            e.c(f"---- P1 group {it}")
            if it in (10, 20): e.stub()
            sync(it+1)
            if it in (8, 16): e.stamp({8: 2, 16: 3}[it])
            if it < 13: e.stamp(it+1, 2)
            if it >= 11: e.stamp(it-10, 3)
        if O.p1prio and ks >= O.pp1:
            spans = [0, 4, 8, 12, 16, 20, 24, 28, 36, 44, 60, 76, 96]
            a = max(x for x in spans if x <= ks); b_ = min(x for x in spans if x > ks)
            step = (b_ - a) // 4
            if (ks - a) % step == 0 and (ks - a) // step < 4: e(f"s_setprio {3 - (ks - a)//step}")
        e.wait_ds(f"w{ks}")
        acc = accB if 8 <= it < 16 else accA
        c = "0" if ks % 32 == 0 else acc
        if 8 <= it < 16: mfma(acc, vXF+4*(ks % 32), WF[ks % 8], c)
        else: mfma(acc, WF[ks % 8], vXF+4*(ks % 32), c)
        if it < 7 and not O.spread:
            if s_ == 0:
                for q in range(4): rd(ks+4+q)
        elif ks + 4 < 96: rd(ks+4)
        for f in gap[ks]: f()

def wo_piece(i, base=0):
    e(f"s_add_u32 m0, s{sM0}, {base + i*8192}"); e(f"s_mov_b32 s{sT0}, {i*65536}")
    e(f"buffer_load_dwordx4 v{vWO}, {srd(SWO)}, s{sT0} offen lds")

def norm(o, dst):
    e(f"v_rcp_f32 v{o+10}, v{o+8}")
    e(f"v_pk_add_f32 {vr(o+12,2)}, {vr(o,2)}, {vr(o+2,2)}"); e(f"v_pk_add_f32 {vr(o+14,2)}, {vr(o+4,2)}, {vr(o+6,2)}")
    for i in range(4): e(f"v_pk_mul_f32 {vr(o+2*i,2)}, {vr(o+2*i,2)}, {vr(o+10,2)} op_sel_hi:[1,0]")
    e(f"v_pk_add_f32 {vr(o+12,2)}, {vr(o+12,2)}, {vr(o+14,2)}")
    cvt8(dst, o)
    e(f"v_add_f32 v{o+12}, v{o+12}, v{o+13}"); e(f"v_fma_f32 v{o+8}, v{o+12}, 0, v{o+8}")
def check(os_, slowlab):
    for n, o in enumerate(os_):
        e(f"v_subrev_u32 v{o+8}, 0x2b800000, v{o+8}")
        if n: e(f"v_max_u32 v{os_[0]+8}, v{os_[0]+8}, v{o+8}")
    e(f"v_cmp_lt_u32 vcc, 0x28000000, v{os_[0]+8}")
    if slowlab is None:
        e(f"s_or_b32 s{sBAD}, vcc_lo, vcc_hi")
        if O.y: e(f"s_mov_b32 s{sBAD}, 0")
        if O.force_slow: e(f"s_mov_b32 s{sBAD}, 1")
    elif O.force_slow: e(f"s_branch {slowlab}")
    elif not O.y: e(f"s_cbranch_vccnz {slowlab}")
def prefill(regs):
    e(f"s_mov_b32 s{sT0}, 0x3f803f80")
    for i in regs: e(f"v_mov_b32 v{i}, s{sT0}")
def rdK(i, u, dst):
    if i < 8: e(f"ds_read_b128 {vr(dst,4)}, v{vKA} offset:{(7-i)*8192 + u*1024}")
    else: e(f"ds_read_b128 {vr(dst,4)}, v{vKA8} offset:{u*1024}")
def rdV(i, u, dst, dyn=True, restore=True):
    if O.y & 2 and dyn: e("s_nop 0") if False else None
    if not (O.y & 1 and dyn): e(f"s_mov_b64 exec, {sr(sVMK+2*(i-1)) if dyn and i > 0 else sr(sEX)}")
    b, off = (vVA, (7-i)*8192) if i < 8 else (vVA8, 0)
    e(f"ds_read_b128 {vr(dst,4)}, v{b} offset:{off + u*256}")
    e(f"ds_read_b128 {vr(dst+4,4)}, v{b} offset:{off + u*256 + 1024}")
    if restore and not (O.y & 1 and dyn): e("s_mov_b64 exec, -1")

def attention():
    e.c("---- Q epilogue")
    e.stamp(4)
    def qscale(h):
        for i in range(4*h, 4*h+4): e(f"v_pk_mul_f32 {vr(accA+2*i,2)}, {vr(accA+2*i,2)}, {sr(sT2)}")
        for i in range(4*h, 4*h+4): cvt(vQ2, accA, i)
    e(f"s_cmp_eq_u32 s{sBR}, 0"); e("s_cbranch_scc1 L_attnA")
    e.c("---- attention B")
    e.cond(f"s_cmp_eq_u32 s{sPEND}, 1", lambda: (flag_poll(), imp_dma(0)))
    e(f"s_add_u32 s{sIF}, s{sIF}, {F1V}")
    e("s_nop 0")
    qscale(1); qscale(0)
    def kbar():
        e(f"s_waitcnt vmcnt({3 if O.tchB else 2})")
        e.cond(f"s_cmp_lg_u32 s{sPEND}, 0", lambda: e("s_waitcnt vmcnt(1)"))
        if O.stamps == 1: e(f"s_mul_i32 s{sT0}, s{sPEND}, 1000"); e(f"s_add_u32 s{ST0+24}, s{ST0}, s{sT0}")
        e("s_barrier"); e.stamp(6)
    def vimp():
        e("s_waitcnt vmcnt(0)")
        flag_cmp()
        e(f"s_cselect_b32 s{sT0}, s{SIMP+2}, 0")
        e.cond(f"s_cmp_lg_u32 s{sT0}, 0", flag_poll)
        imp_dma(1)
    def vbar():
        e(f"s_waitcnt vmcnt({1 if O.tchA < O.lag else 0})"); e("s_barrier"); e.stamp(13)
    def tchA():
        if not O.tchB: touch_wo(SWO, vU0+2)
        e(f"s_mov_b64 {sr(SOWO)}, {sr(sOW)}"); e(f"s_mov_b32 s{SOWO+2}, {512*1024}")
        touch_wo(SOWO, vU0)
    def sample02():
        f3_addr()
        e("s_mov_b64 exec, 0x55555555")
        e(f"buffer_load_dwordx2 {vr(vFL,2)}, v{vF}, {srd(SWS)}, s{sF3} offen sc1")
        e("s_mov_b64 exec, -1")
    L = O.lag
    seq = [(1, 0), (0, 0)] + [(0, i) for i in range(1, 9)] + [(1, i) for i in range(1, 9)]
    pv = {n: [] for n in range(19)}
    pv[1].append(0); pv[2].append(1); m = 2
    for n in range(L+1, 19):
        for _ in range(2):
            if m < n and m < 18: pv[n].append(m); m += 1
    assert m == 18
    def P(m): return PB + 8*(m % 8)
    def V(m): return vV + 8*(m % 4)
    def ex(n, r): e(f"v_exp_f32 v{vS+16*(n%2)+r}, v{vS+16*(n%2)+r}")
    def pvm(m, kb):
        o = vO + 16*seq[m][0]
        mfma(o, V(m)+4*kb, P(m)+4*kb, "0" if (m < 2 and kb == 0) else o)
    def qk(n):
        u1, i1 = seq[n]
        mfma(vS+16*(n % 2), vK+4*(n % 2), vQ2 + 4*u1, vML if i1 == 0 else (vMF if i1 == 8 else "0"))
    assert max(n for n in pv if 9 in pv[n]) < O.epi
    q4 = (18 - L) // 4
    prio = {0: 1, 1: 0, 2: 1, (L+2)//2: 0, L: 3, L+q4: 2, L+2*q4: 1, L+3*q4: 0}
    e("s_waitcnt lgkmcnt(0)")
    qk(0)
    e("s_nop 6")
    for n in range(19):
        s_ = vS + 16*(n % 2)
        e.c(f"task {n}")
        if n < 11: e.stamp(n+1, 4)
        if n >= 8: e.stamp(n-7, 5)
        if O.fair and n in prio: e(f"s_setprio {prio[n]}")
        if n == O.vsmp: flag_ld("x")
        if n == O.vpos: vimp()
        if n == L: vbar()
        if n == O.oflag:
            younger = sum(8*(t-O.wo_at+1)//O.wo_n - 8*(t-O.wo_at)//O.wo_n for t in range(O.epi+1, n) if O.wo_at <= t < O.wo_at + O.wo_n)
            e(f"s_waitcnt vmcnt({younger})")
            e(f"s_cmp_lg_u32 s{sBAD}, 0"); e("s_cbranch_scc1 L_noflag0"); flag_store(sF2); e.label("L_noflag0")
        if O.wo_at <= n < O.wo_at + O.wo_n:
            for p_ in range(8*(n-O.wo_at)//O.wo_n, 8*(n-O.wo_at+1)//O.wo_n): wo_piece(p_)
        if n == O.poi_at and O.hint:
            for i_ in range(4): e(f"v_mov_b32 v{vP+4+i_}, -1")
            e(f"buffer_store_dwordx4 {vr(vP+4,4)}, v{vL16}, {srd(SWS)}, s{sOA} offen offset:1024 sc1")
        if n == O.tchA: tchA()
        if n == O.tE: e.cond(f"s_cmp_lt_u32 s{sW}, 4", lambda: (f3_addr(), o_touch(0x00ff00ff, 0)))
        if n == O.smp_at: e.cond(f"s_cmp_lt_u32 s{sW}, 4", sample02)
        nxt = pv[n+1] if n < 18 else []
        fresh = [m for m in nxt if 10 <= m < 14]
        if fresh: e.cond(f"s_cmp_lt_u32 s{sT}, 8", lambda fresh=fresh: [e(f"v_mov_b32 v{V(m)+k}, v{vONE}") for m in fresh for k in range(8)])
        cnt = 0
        if 1 < n < 17: rdK(seq[n+1][1], seq[n+1][0], vK+4*((n+1) % 2)); cnt += 1
        for k, m in enumerate(nxt): rdV(seq[m][1], seq[m][0], V(m), restore=(k == len(nxt)-1)); cnt += 2
        mf = [(m, kb) for m in pv[n] for kb in range(2)]
        if n == 18:
            e("s_waitcnt lgkmcnt(0)"); e("s_nop 0")
            for x in mf: pvm(*x)
            break
        first = [True]
        def slot():
            if mf:
                if first[0]: e(f"s_waitcnt lgkmcnt({cnt})"); first[0] = False
                pvm(*mf.pop(0))
        two = len(mf) > 2
        for r in range(4): ex(n, r)
        slot()
        for r in range(4, 8): ex(n, r)
        if n == 1: slot(); kbar(); rdK(1, 0, vK)
        elif n < 17:
            if n: e(f"s_waitcnt lgkmcnt({cnt-1})")
            qk(n+1)
        cvt8(P(n), s_)
        for r in range(8, 10): ex(n, r)
        if two: slot()
        for r in range(10, 12): ex(n, r)
        if not two: slot()
        if n == 1: e("s_waitcnt lgkmcnt(0)"); qk(2)
        for r in range(12, 14): ex(n, r)
        slot()
        for r in range(14, 16): ex(n, r)
        cvt8(P(n)+4, s_+8)
        slot()
        if n == 1: e("s_nop 3")
        if n == O.epi:
            norm(vO, vP); check([vO], None)
            e(f"buffer_store_dwordx4 {vr(vP,4)}, v{vL16}, {srd(SWS)}, s{sOA} offen sc1")
    e("s_nop 11")
    norm(vO+16, vP+4); check([vO+16], "L_B_slow1")
    e.label("L_B_ok1")
    if O.hint:
        for i_ in range(4): e(f"v_min_u32 v{vP+4+i_}, -2, v{vP+4+i_}")
    if O.sprio: e("s_setprio 2")
    e(f"buffer_store_dwordx4 {vr(vP+4,4)}, v{vL16}, {srd(SWS)}, s{sOA} offen offset:1024 sc1")
    if O.sprio: e("s_setprio 0")
    e(f"s_cmp_lg_u32 s{sBAD}, 0"); e("s_cbranch_scc1 L_B_slow0")
    e.label("L_B_ok0")
    e.stamp(7); e.stamp(12, 7)
    e(f"s_cmp_lt_u32 s{sW}, 4"); e("s_cbranch_scc0 L_young")
    e(f"s_mov_b32 s{sHM}, 0")
    f3_groups()
    if O.swp:
        e(f"s_and_b32 s{sT0}, s{sJ}, 1"); e(f"s_lshl_b32 s{sT0}, s{sT0}, 11")
        for q in range(4): e(f"s_xor_b32 s{sG0+q}, s{sG0+q}, s{sT0}")
    e("s_waitcnt vmcnt(1)")
    e("s_mov_b64 exec, 0x55555555")
    e(f"v_cmp_ne_u64 vcc, {sr(sNON)}, {vr(vFL,2)}")
    e("s_mov_b64 exec, -1")
    e(f"s_mov_b32 s{sT3}, 0"); e(f"s_mov_b32 s{sNR}, vcc_lo")
    e("s_cbranch_vccnz L_p3again")
    e.label("L_p3even")
    if O.bpre > 8:
        pass
    for k in range(O.ad): o_ld(k, sG0 + k//8)
    p3_setup()
    e(f"s_mov_b32 s{SLD+2}, 0")
    if not O.hint: e(f"s_waitcnt vmcnt({O.ad})")
    e.stamp(8); e("s_barrier")
    e("s_branch L_p3go")
    e.label("L_p3again")
    e(f"s_mov_b32 exec_lo, s{sNR}"); e("s_mov_b32 exec_hi, 0")
    e(f"buffer_load_dwordx2 {vr(vFL,2)}, v{vF}, {srd(SWS)}, s{sF3} offen sc1")
    e("s_mov_b64 exec, -1")
    p3_setup()
    e(f"s_mov_b32 s{SLD+2}, 0")
    if not O.hint: e("s_waitcnt vmcnt(1)")
    e.stamp(8); e("s_barrier")
    e("s_waitcnt vmcnt(0)")
    e(f"v_cmp_eq_u64 vcc, {sr(sNON)}, {vr(vFL,2)}")
    e(f"s_andn2_b32 s{sNR}, s{sNR}, vcc_lo")
    poll3(0x55555555, 0x55555555)
    for k in range(O.ad): o_ld(k, sG0 + k//8)
    e("s_branch L_p3go")
    e.label("L_young"); e.stub()
    e(f"s_waitcnt vmcnt({1 if O.hint else 0})")
    e.label("L_youngA")
    e("s_mov_b64 exec, 0xffff")
    e(f"s_cmp_eq_u32 s{sW}, 4"); e(f"s_cselect_b32 s{SEXP+2}, s{SWS+2}, 0")
    if O.fprio: e("s_setprio 3")
    e("s_waitcnt vmcnt(8)"); e.stamp(8); e("s_barrier")
    e.stamp(1, 8)
    e(f"buffer_store_dwordx2 {vr(vNON,2)}, v{vL8}, {srd(SEXP)}, s{sF2} offen offset:128 sc1")
    e("s_mov_b64 exec, -1")
    e.stamp(2, 8)
    if O.stamps == 8: e("s_waitcnt vmcnt(0)"); e.stamp(3, 8); e(f"s_memrealtime {sr(ST0+12)}")
    e(f"s_cmp_lg_u32 s{sW}, 4"); e("s_cbranch_scc1 L_rest")
    f3_addr()
    e(f"s_add_u32 s{sF3}, s{sF3}, {3*4096}")
    e(f"s_mov_b32 s{sT2}, s{sNON}"); e(f"s_mov_b32 s{sT3}, s{sNON}")
    if O.pdelay: e(f"s_sleep {O.pdelay}")
    spoll(sF3, [384 + 512*g_ for g_ in range(8)])
    e.stamp(10); e.stamp(4, 8)
    if O.stamps == 8:
        e(f"s_memrealtime {sr(ST0+14)}"); e("s_waitcnt lgkmcnt(0)"); e(f"s_add_u32 s{ST0+10}, s{ST0}, s{sCNT}")
        for q_ in (12, 14): e(f"s_and_b32 s{ST0+q_}, s{ST0+q_}, 0xffff"); e(f"s_add_u32 s{ST0+q_}, s{ST0+q_}, s{ST0}")
    e("s_waitcnt vmcnt(1)")
    e("s_barrier")
    e.label("L_rest")
    if O.burn:
        e(f"s_cmp_lg_u32 s{sBR}, 0"); e("s_cbranch_scc1 L_noburn"); e(f"s_cmp_eq_u32 s{sW}, 4"); e("s_cbranch_scc1 L_noburn")
        e("s_setprio 0"); e(f"s_mov_b32 s{sCNT}, {O.burn}")
        e.label("L_burn")
        for i in range(8): mfma(40, 192+8*i, 196+8*i, 40)
        e(f"s_sub_u32 s{sCNT}, s{sCNT}, 1"); e(f"s_cmp_lg_u32 s{sCNT}, 0"); e("s_cbranch_scc1 L_burn")
        e.label("L_noburn")
    e("s_waitcnt vmcnt(0)")
    e("s_branch L_stamps" if O.stamps else "s_endpgm")
    e.flush()

    e.c("---- attention A")
    e.label("L_attnA")
    KP, VP = 176, 160
    if not O.spoll:
        e(f"s_and_b32 s{sIF}, s{sF1}, 0xffffff00"); e(f"s_sub_u32 s{sIF}, s{sIF}, 136")
        flag_ld("x")
    else: e(f"s_waitcnt vmcnt({2 if O.aflag else 1})"); e("s_nop 1")
    e.stamp(6)
    def halo():
        L = e.newlab("L_h")
        e(f"s_cmp_eq_u32 s{sT}, 0"); e(f"s_cbranch_scc1 L_A_nh")
        if O.aflag:
            e("s_waitcnt lgkmcnt(0)")
            e(f"s_cmp_eq_u64 {sr(sVMK)}, {sr(sNON)}"); e(f"s_cbranch_scc1 {L}")
        if O.spoll:
            e(f"s_sub_u32 s{sIF}, s{sF1}, 256"); spoll(sIF, [0])
        else:
            e("s_waitcnt vmcnt(0)")
            flag_cmp(); e(f"s_cbranch_scc0 {L}")
            flag_poll()
        e.label(L)
        e(f"s_sub_u32 s{sT0}, s{sKV}, {8192 + 4096}"); e(f"s_sub_u32 s{sT1}, s{sKV}, {8192 - 1024}")
        e(f"v_and_b32 v{vFL}, 0x2ff, v{vL16}")
        for h in range(2): e(f"buffer_load_dwordx4 {vr(KP+4*h,4)}, v{vL16}, {srd(SWS)}, s{sT0} offen offset:{h*1024} sc1")
        e(f"s_mov_b64 exec, {sr(sEX)}")
        for h in range(2): e(f"buffer_load_dwordx4 {vr(VP+4*h,4)}, v{vFL}, {srd(SWS)}, s{sT1} offen offset:{h*256} sc1")
        e("s_mov_b64 exec, -1")
        e("s_branch L_A_nh")
    e.cond(f"s_cmp_eq_u32 s{sTT}, 0", halo)
    for h in range(2): e(f"ds_read_b128 {vr(KP+4*h,4)}, v{vKA} offset:{6*8192 + h*1024}")
    e(f"s_mov_b64 exec, {sr(sEX)}")
    for h in range(2): e(f"ds_read_b128 {vr(VP+4*h,4)}, v{vVA} offset:{6*8192 + 1024 + h*256}")
    e("s_mov_b64 exec, -1")
    e.label("L_A_nh")
    e(f"s_mov_b64 exec, {sr(sEX)}")
    for h in range(2):
        for kb in range(2): e(f"ds_read_b128 {vr(vV+8*h+4*kb,4)}, v{vVA} offset:{7*8192 + kb*1024 + h*256}")
    e("s_mov_b64 exec, -1"); e("s_nop 0")
    qscale(0); qscale(1)
    e("s_waitcnt lgkmcnt(0)")
    def a_body(slow):
        def exs(s_, rs, h):
            for r in rs:
                if slow: e(f"v_sub_f32 v{s_+r}, v{s_+r}, v{vFL+h}")
                e(f"v_exp_f32 v{s_+r}, v{s_+r}")
        lab = "L_A_s2" if slow else "L_A_f2"
        for h in range(2): mfma(vS+16*h, vK+4-4*h, vQ2+4*h, vML)
        e("s_nop 10")
        for h in range(2):
            exs(vS+16*h, range(16), h); cvt8(vP+8*h, vS+16*h, 8); e("s_nop 1")
            mfma(vO+16*h, vV+8*h, vP+8*h, "0"); mfma(vO+16*h, vV+8*h+4, vP+8*h+4, vO+16*h)
        e("s_waitcnt vmcnt(0)")
        e(f"s_cmp_eq_u32 s{sT}, 0"); e(f"s_cbranch_scc1 {lab}")
        e.stamp(13)
        for h in range(2): mfma(vS+16*h, KP+4*h, vQ2+4*h, vMF)
        e("s_nop 10")
        for h in range(2):
            exs(vS+16*h, range(8, 16), h); cvt8(vP+8*h+4, vS+16*h+8); e("s_nop 1")
            mfma(vO+16*h, VP+4*h, vP+8*h+4, vO+16*h)
        e.label(lab)
        e("s_nop 11")
        for h in range(2): norm(vO+16*h, vP+4*h)
    a_body(False)
    check([vO, vO+16], "L_A_slow")
    e.label("L_A_ok"); e.stub()
    e("s_setprio 2")
    e(f"buffer_store_dwordx4 {vr(vP,4)}, v{vL16}, {srd(SWS)}, s{sOA} offen sc1")
    e(f"buffer_store_dwordx4 {vr(vP+4,4)}, v{vL16}, {srd(SWS)}, s{sOA} offen offset:1024 sc1")
    e.stamp(7)
    e("s_setprio 0")
    for i in range(8): wo_piece(i, L_KV)
    e(f"s_cmp_lt_u32 s{sW}, 4"); e("s_cbranch_scc0 L_youngA")
    e(f"s_and_b32 s{sHM}, s{sJ}, 3")
    f3_groups()
    e(f"s_mov_b32 s{sT3}, {L_KV}")
    e.label("L_p3all")
    e("s_waitcnt vmcnt(8)"); e.stamp(8); e("s_barrier")
    p3_setup(); p3_setup2()
    e(f"s_mov_b32 s{SLD+2}, s{SWS+2}")
    e("s_waitcnt vmcnt(0)")
    e("s_barrier"); e.stamp(10)
    if O.ltouch: o_touch(0xffffffff, 0)
    for k in range(O.ad): o_ld(k, sG0 + k//8)
    return a_body, KP

vA, vB, vO0, vO1, vF = 2, 3, 7, 5, 10
sO3, sF3, sOUT3, sHM = sIG, sIF, sOA, sPEND
A0, A1 = 40, 56
vTW, vTR = 18, 17
WB = 72
def OFR(k): return 136 + 4*k if k < 30 else 24 + 4*(k-30)
sG0 = sVMK; sHB = sVMK+4
vW = ((0, 4), (6, 16))
def f3_addr():
    e(f"s_lshl_b32 s{sT0}, s{sBR}, 6"); e(f"s_add_u32 s{sT0}, s{sT0}, s{sT3P}")
    e(f"s_lshl_b32 s{sO3}, s{sT0}, 15"); e(f"s_add_u32 s{sO3}, s{sO3}, {WS_O}")
    e(f"s_lshl_b32 s{sF3}, s{sT0}, 12"); e(f"s_add_u32 s{sF3}, s{sF3}, {WS_F2}")
    e(f"v_lshlrev_b32 v{vF}, 7, v{vL}")
def group(dst):
    e(f"s_brev_b32 s{sHB}, s{sHM}"); e(f"s_lshr_b32 s{sHB}, s{sHB}, 20")
    e(f"s_add_u32 s{dst}, s{sHB}, s{sO3}")
    e(f"s_add_u32 s{sHM}, s{sHM}, 1"); e(f"s_and_b32 s{sHM}, s{sHM}, 3")
def wbase(buf, src):
    e(f"s_and_b32 s{sT0}, s{src}, 0xc00"); e(f"s_lshl_b32 s{sT0}, s{sT0}, 1")
    e(f"v_add_u32 v{vW[buf][0]}, s{sT0}, v{vA}"); e(f"v_add_u32 v{vW[buf][1]}, s{sT0}, v{vB}")
def o_ld(k, base, s_=None):
    if k % 8: e(f"s_add_u32 s{sT0}, s{base}, {(k % 8)*4096}")
    e(f"buffer_load_dwordx4 {vr(OFR(k),4)}, v{vL16}, {srd(s_ or SWS)}, s{sT0 if k % 8 else base} offen sc1")
sNR = sVMK + 7
def poll3(need, look):
    L = e.newlab("L_poll"); D = L + "d"
    e(f"s_mov_b32 s{sCNT}, 0"); e("s_mov_b32 exec_hi, 0")
    e.label(L)
    e(f"s_and_b32 s{sT0}, s{sNR}, {need:#x}"); e(f"s_cbranch_scc0 {D}")
    e(f"s_and_b32 exec_lo, s{sNR}, {look:#x}")
    e(f"buffer_load_dwordx2 {vr(vFL,2)}, v{vF}, {srd(SWS)}, s{sF3} offen sc1")
    e(f"s_add_u32 s{sCNT}, s{sCNT}, 1")
    e("s_waitcnt vmcnt(0)")
    e(f"v_cmp_eq_u64 vcc, {sr(sNON)}, {vr(vFL,2)}")
    e(f"s_andn2_b32 s{sNR}, s{sNR}, vcc_lo")
    if O.sleep: e(f"s_sleep {O.sleep}")
    e(f"s_cmp_gt_u32 s{sCNT}, {O.pollmax}"); e(f"s_cbranch_scc0 {L}")
    e.label(D)
    e("s_mov_b64 exec, -1")
SLD = SDUM
def f3_groups():
    f3_addr()
    for q in range(4): group(sG0+q)
def o_touch(mask, dst):
    e(f"s_and_b32 s{sT0}, s{sJ}, 7"); e(f"s_lshl_b32 s{sT0}, s{sT0}, 12"); e(f"s_add_u32 s{sT0}, s{sT0}, s{sO3}")
    e(f"s_mov_b32 exec_lo, {mask:#x}"); e("s_mov_b32 exec_hi, 0")
    e(f"buffer_load_dword v{vFL+3}, v{vF}, {srd(SWS)}, s{sT0} offen sc1")
    e("s_mov_b64 exec, -1")
def p3_setup():
    e(f"s_mov_b64 {sr(SLD)}, {sr(SWS)}")
    e(f"v_bfe_u32 v{vU0}, v{vL}, 2, 2"); e(f"v_lshlrev_b32 v{vA}, 6, v{vU0}")
    e(f"v_and_b32 v{vU0}, 1, v{vL}"); e(f"v_mul_u32_u24 v{vU0}, 544, v{vU0}"); e(f"v_add_u32 v{vA}, v{vA}, v{vU0}")
    e(f"v_bfe_u32 v{vU0}, v{vL}, 4, 1"); e(f"v_lshl_add_u32 v{vA}, v{vU0}, 4, v{vA}")
    e(f"v_bfe_u32 v{vU0}, v{vL}, 1, 1"); e(f"v_lshl_add_u32 v{vA}, v{vU0}, 3, v{vA}")
    e(f"v_lshrrev_b32 v{vU0}, 5, v{vL}"); e(f"v_lshl_add_u32 v{vA}, v{vU0}, 8, v{vA}")
    e(f"v_add_u32 v{vA}, s{sT3}, v{vA}")
    e(f"v_xor_b32 v{vB}, 32, v{vA}")
    wbase(0, sG0); wbase(1, sG0+1)
def p3_setup2():
    e(f"v_lshrrev_b32 v{vU0}, 5, v{vL}")
    if O.tpose:
        e(f"s_lshl_b32 s{sT0}, s{sW}, 12"); e(f"s_add_u32 s{sT0}, s{sT0}, {L_WK}")
        e(f"v_mul_u32_u24 v{vU0}, 6, v{vU0}"); e(f"v_and_b32 v{vU1}, 7, v{vL}"); e(f"v_xor_b32 v{vU0}, v{vU0}, v{vU1}")
        e(f"v_and_b32 v{vTW}, 31, v{vL}"); e(f"v_lshlrev_b32 v{vTW}, 7, v{vTW}"); e(f"v_lshl_add_u32 v{vTW}, v{vU0}, 4, v{vTW}"); e(f"v_add_u32 v{vTW}, s{sT0}, v{vTW}")
        for i in range(1, 4): e(f"v_xor_b32 v{vTW+i}, {16*i}, v{vTW}")
        e(f"v_lshrrev_b32 v{vU0}, 3, v{vL}"); e(f"v_xor_b32 v{vTR}, v{vU0}, v{vU1}"); e(f"v_lshlrev_b32 v{vTR}, 4, v{vTR}")
        e(f"v_lshl_add_u32 v{vTR}, v{vU0}, 7, v{vTR}"); e(f"v_add_u32 v{vTR}, s{sT0}, v{vTR}")
        e(f"v_lshlrev_b32 v{vO0}, 11, v{vU0}"); e(f"v_lshl_add_u32 v{vO0}, v{vU1}, 4, v{vO0}")
    else:
        e(f"v_and_b32 v{vO0}, 31, v{vL}"); e(f"v_lshlrev_b32 v{vO0}, 11, v{vO0}"); e(f"v_mul_u32_u24 v{vU0}, 96, v{vU0}"); e(f"v_add_u32 v{vO0}, v{vO0}, v{vU0}")
        e(f"v_xor_b32 v{vO1}, 32, v{vO0}")
    e(f"s_lshl_b32 s{sOUT3}, s{sT3P}, 16"); e(f"s_lshl_b32 s{sT1}, s{sBR}, 10"); e(f"s_add_u32 s{sOUT3}, s{sOUT3}, s{sT1}")
    e(f"s_and_b32 s{sT1}, s{sJ}, 7"); e(f"s_lshl_b32 s{sT1}, s{sT1}, 7"); e(f"s_add_u32 s{sOUT3}, s{sOUT3}, s{sT1}")

def lds_wait(off, val):
    L = e.newlab("L_lw"); D = L + "d"
    e(f"s_mov_b32 s{sCNT}, 0")
    e.label(L)
    e(f"ds_read_b32 v{vFL}, v{vFL+3} offset:{off}")
    e(f"s_add_u32 s{sCNT}, s{sCNT}, 1"); e(f"s_cmp_gt_u32 s{sCNT}, {O.pollmax*8}")
    e("s_waitcnt lgkmcnt(0)")
    e(f"v_cmp_ne_u32 vcc, {val}, v{vFL}")
    e(f"s_cbranch_scc1 {D}")
    e(f"s_cbranch_vccz {D}"); e("s_sleep 1"); e(f"s_branch {L}")
    e.label(D)

def p3():
    e.c("---- P3 (waves 0..3)")
    def wrd(buf, k):
        for ct in range(2):
            d = WB + 8*k + 4*ct
            e(f"ds_read_b64_tr_b16 {vr(d,2)}, v{vW[buf][ct]} offset:{k*8192}")
            e(f"ds_read_b64_tr_b16 {vr(d+2,2)}, v{vW[buf][ct]} offset:{k*8192 + 1024}")
    e.label("L_p3go")
    for k in range(4): wrd(0, k)
    e.stamp(9); e.stamp(13, 7)
    A2, A3 = OFR(0), OFR(4); vMX = vFL
    e(f"s_mov_b32 s{sCNT}, 0")
    for k in range(32):
        q, kk = divmod(k, 8)
        if k == O.b2:
            e(f"s_cmp_eq_u32 s{sBR}, 0"); e("s_cbranch_scc1 L_p3b")
            p3_setup2()
            e.stamp(5, 7)
            e("s_barrier"); e.stamp(10); e.stamp(7, 7)
            for k2 in range(16, O.b2+O.ad): o_ld(k2, sG0 + k2//8)
            e.label("L_p3b")
            e.stamp(8, 7)
        if k == 16: e.label("L_p3late"); e(f"v_mov_b32 v{vMX}, 0")
        e(f"s_waitcnt vmcnt({min(O.ad-1, 31-k)}) lgkmcnt({min(12, 4*(31-k))})")
        o = OFR(k)
        mfma(A0 if k < 16 else A2, WB + 8*kk, o, "0" if k == 0 else (A0 if k <= 16 else A2))
        if k + O.ad < 32: o_ld(k+O.ad, sG0+(k+O.ad)//8, SLD if (k < O.b2 and k+O.ad >= 16) else SWS)
        if k >= 16 and O.hint: e(f"v_max3_u32 v{vMX}, v{vMX}, v{o}, v{o+1}")
        mfma(A1 if k < 16 else A3, WB + 8*kk + 4, o, "0" if k == 0 else (A1 if k <= 16 else A3))
        if k >= 16 and O.hint: e(f"v_max3_u32 v{vMX}, v{vMX}, v{o+2}, v{o+3}")
        if k + 4 < 32: wrd(((k+4)//8) % 2, (k+4) % 8)
        if kk == 3 and q < 2: wbase(q, sG0+q+2)
    e.stamp(9, 7)
    if O.hint:
        e(f"v_cmp_eq_u32 vcc, -1, v{vMX}")
        if O.fredo: e(f"s_cmp_lt_u32 s{sCNT}, 2"); e("s_cselect_b64 vcc, -1, vcc")
        def redo():
            e(f"s_cmp_eq_u32 s{sBR}, 0"); e("s_cbranch_scc1 L_p3fin")
            e(f"s_add_u32 s{sCNT}, s{sCNT}, 1"); e(f"s_cmp_gt_u32 s{sCNT}, {O.pollmax}"); e("s_cbranch_scc1 L_p3fin")
            for k2 in range(16, 16+O.ad): o_ld(k2, sG0 + k2//8)
            for k2 in range(4): wrd(0, k2)
            e("s_branch L_p3late")
        e.cond("s_cmp_lg_u64 vcc, 0", redo)
        e.label("L_p3fin")
        if O.stamps == 1: e(f"s_mul_i32 s{ST0+6}, s{sCNT}, 1000"); e(f"s_add_u32 s{ST0+6}, s{ST0+6}, s{ST0}")
        e("s_nop 7")
    else: e("s_nop 10")
    cvt8(72, A2, 8); cvt8(80, A3, 8)
    fl = ["", " sc1", " nt", " sc1 nt", " sc0 sc1", " sc0 sc1 nt", " sc0 nt"][O.outsc]
    if O.tpose:
        for i in range(4): e(f"ds_write_b128 v{vTW+i}, {vr(72+4*i,4)}")
        for i in range(4): e(f"ds_read_b128 {vr(88+4*i,4)}, v{vTR} offset:{i*1024}")
        for i in range(4):
            e(f"s_waitcnt lgkmcnt({3-i})")
            e(f"buffer_store_dwordx4 {vr(88+4*i,4)}, v{vO0}, {srd(SOUT)}, s{sOUT3} offen{fl}")
            if i < 3: e(f"s_add_u32 s{sOUT3}, s{sOUT3}, 0x4000")
    else:
        for i in range(4): e(f"buffer_store_dwordx4 {vr(72+4*i,4)}, v{(vO0, vO1)[i//2]}, {srd(SOUT)}, s{sOUT3} offen offset:{16*(i%2)}{fl}")
    if O.stamps:
        e.stamp(10, 7); e("s_waitcnt vmcnt(0)"); e.stamp(11); e.stamp(11, 7)
        e.label("L_stamps")
        e(f"s_memrealtime {sr(sVM)}"); e("s_waitcnt lgkmcnt(0)")
        e(f"s_lshl_b32 s{sT0}, s2, 3"); e(f"s_add_u32 s{sT0}, s{sT0}, s{sW}"); e(f"s_lshl_b32 s{sT0}, s{sT0}, 6"); e(f"s_add_u32 s{sT0}, s{sT0}, {WS_ST}")
        e("s_mov_b64 exec, 1")
        for i in range(1, 14):
            e(f"s_sub_u32 s{sT1}, s{ST0+2*i}, s{ST0}"); e(f"v_mov_b32 v{vU1}, s{sT1}")
            e(f"buffer_store_dword v{vU1}, off, {srd(SWS)}, s{sT0} offset:{4*i}")
        e(f"v_mov_b32 v{vU1}, s100"); e(f"buffer_store_dword v{vU1}, off, {srd(SWS)}, s{sT0} offset:56")
        e(f"v_mov_b32 v{vU1}, s{sVM}"); e(f"buffer_store_dword v{vU1}, off, {srd(SWS)}, s{sT0} offset:60")
    if O.probe:
        if O.probe == 11: e("s_waitcnt vmcnt(0)"); e("s_memrealtime s[76:77]")
        e("s_waitcnt lgkmcnt(0)")
        e(f"s_cmp_lg_u32 s{sBR}, {O.pbr}"); e("s_cbranch_scc1 L_end")
        e("s_sub_u32 s76, s76, s72"); e("s_lshl_b32 s76, s76, 1"); e("s_add_u32 s76, s76, 3000")
        e.label("L_spin"); e("s_memrealtime s[74:75]"); e("s_waitcnt lgkmcnt(0)"); e("s_sub_u32 s74, s74, s72")
        e(f"s_cmp_lt_u32 s74, s76"); e("s_cbranch_scc1 L_spin")
    if O.spin:
        e.label("L_spin"); e("s_memrealtime s[74:75]"); e("s_waitcnt lgkmcnt(0)"); e("s_sub_u32 s74, s74, s72")
        e(f"s_cmp_lt_u32 s74, {O.spin}"); e("s_cbranch_scc1 L_spin")
    e.label("L_end")
    e("s_endpgm")
    e.flush()

def xmax(reg):
    e(f"v_mov_b32 v{vFL+2}, v{reg}"); e("s_nop 1")
    e(f"v_permlane32_swap_b32 v{vFL+2}, v{reg}"); e("s_nop 1")
    e(f"v_max_f32 v{reg}, v{reg}, v{vFL+2}")

def slow_paths(a_body, KP):
    e.c("---- rare path: the stand-in max was unsafe, redo the unit with the true row max")
    def shift(op):
        for r_, d_ in ((vKA, 0x400), (vKA8, 0x400), (vVA, 0x100), (vVA8, 0x100)): e(f"{op} v{r_}, {d_:#x}, v{r_}")
    for u in range(2):
        e.label(f"L_B_slow{u}")
        e(f"s_mov_b32 s{sU}, {u}")
        for i in range(4): e(f"v_mov_b32 v{vQ+i}, v{vQ2+4*u+i}")
        if u == 0: e("s_branch L_B_slow")
        else: shift("v_add_u32")
    e.label("L_B_slow")
    e("s_waitcnt vmcnt(0)")
    prefill(range(vV, vV+8))
    e(f"v_mov_b32 v{vFL}, {NEG}")
    for ps in range(2):
        for i in range(9):
            if i > 0: e(f"s_cmp_gt_u32 {i}, s{sT}"); e(f"s_cbranch_scc1 L_B_s{ps}")
            rdK(i, 0, vK)
            if ps: rdV(i, 0, vV, dyn=False)
            e("s_waitcnt lgkmcnt(0)")
            mfma(vS, vK, vQ, vML if i == 0 else (vMF if i == 8 else "0"))
            e("s_nop 11")
            if ps == 0:
                for r in range(0, 16, 2): e(f"v_max3_f32 v{vFL}, v{vFL}, v{vS+r}, v{vS+r+1}")
            else:
                for r in range(16): e(f"v_sub_f32 v{vS+r}, v{vS+r}, v{vFL}")
                for r in range(16): e(f"v_exp_f32 v{vS+r}, v{vS+r}")
                cvt8(PB, vS, 8); e("s_nop 1")
                mfma(vO, vV, PB, vO if i > 0 else "0"); mfma(vO, vV+4, PB+4, vO)
                e("s_nop 7")
        e.label(f"L_B_s{ps}")
        if ps == 0: xmax(vFL)
    e("s_nop 11")
    norm(vO, vP+4)
    e(f"s_cmp_eq_u32 s{sU}, 0"); e("s_cbranch_scc1 L_B_fin0")
    shift("v_subrev_u32")
    e("s_branch L_B_ok1")
    e.label("L_B_fin0")
    e(f"buffer_store_dwordx4 {vr(vP+4,4)}, v{vL16}, {srd(SWS)}, s{sOA} offen sc1")
    e("s_waitcnt vmcnt(0)"); flag_store(sF2)
    e("s_branch L_B_ok0")
    e.label("L_A_slow")
    for h in range(2):
        e(f"v_mov_b32 v{vFL+h}, {NEG}")
        mfma(vS, vK+4-4*h, vQ2+4*h, vML); e("s_nop 11")
        for r in range(0, 16, 2): e(f"v_max3_f32 v{vFL+h}, v{vFL+h}, v{vS+r}, v{vS+r+1}")
        e(f"s_cmp_eq_u32 s{sT}, 0"); e(f"s_cbranch_scc1 L_A_m{h}")
        mfma(vS, KP+4*h, vQ2+4*h, vMF); e("s_nop 11")
        for r in range(8, 16, 2): e(f"v_max3_f32 v{vFL+h}, v{vFL+h}, v{vS+r}, v{vS+r+1}")
        e.label(f"L_A_m{h}")
        xmax(vFL+h)
    a_body(True)
    e("s_branch L_A_ok")

prologue(); p1(); ab = attention(); p3(); slow_paths(*ab)
e("s_endpgm")

hdr = open("cdna_kernels/" + NAME + ".s.ref").read().split("; Override launch geometry")[0]
out = hdr + f"; @launch grid=(256,1,1) block=(512,1,1) lds={LDS_BYTES}\n"
out += f""".amdgcn_target "amdgcn-amd-amdhsa--gfx950"
.text
.globl {NAME}_kernel
{'.p2align 12' if O.al12 else ''}
.p2align 8
.type {NAME}_kernel,@function
{NAME}_kernel:
""" + "\n".join(e.L) + f"""
.section .rodata,"a"
.p2align 6
.amdhsa_kernel {NAME}_kernel
  .amdhsa_next_free_vgpr 256
  .amdhsa_next_free_sgpr {102 if O.stamps else (80 if (O.spin or O.probe) else 72)}
  .amdhsa_accum_offset 256
  .amdhsa_group_segment_fixed_size 0
  .amdhsa_kernarg_size 72
  .amdhsa_user_sgpr_count 2
  .amdhsa_user_sgpr_kernarg_segment_ptr 1
  .amdhsa_system_sgpr_workgroup_id_x 1
.end_amdhsa_kernel
"""
open(sys.argv[1], "w").write(out)
```

```python
import sys
NAME = "concat_heads__sliding_local_dilated__sliding_block__prompt"

class Opt:
    stamps = 0
    force_slow = 0
    pollmax = 400000
    only = 0
    delayA = 7
    lag = 4
    kflag = 77
    kchk = 65
    imp = 87
    oflag = 13
    vpos = 2
    uni = 0
    xspan = 1
    torder = 2
    tseq = 3
    tn = 16
    tnt = 0
    rotA = 1
    yprio = 0
    prew = 62
    imp1 = 77
    fair = 1
    tpose = 1
    pdelay = 0
    spin = 0
    x = 0
    wqs = 2
    p1prio = 1
    epi = 11
    tchB = 0
    wo_n = 4
    tchA = 5
    ctouch = 1
    warm = 0
    al12 = 1
    tE = 99
    ltouch = 0
    awo = 1
    pre = 8
    ad = 8
    spoll = 1
    stlb = 0
    sp32 = 1
    fprio = 1
    swp = 1
    probe = 0
    pbr = 0
    rt = 0
    hold = 0
    tlb = 0
    tlbB = 0
    bpre = 8
    aflag = 0
    hsmp = 90
    sprio = 1
    vflag = 81
    stg = 0
    impfirst = 1
    vex = 66
    ev = 0
    prew0 = 0
    vlate = 1
    prew2 = 0
    hint = 0
    poi_at = 7
    b2 = 8
    late1 = 4
    zrow = 1
    fredo = 0
    remap = 1
    m16 = 1
    smp_at = 17
    wo_at = 13
    tch_at = 4
    quiet = 1
    prio = 0
    outsc = 1
    stag = 0
    sleep = 0
O = Opt()
for a in sys.argv[2:]:
    k, v = a.split("="); assert hasattr(O, k), k
    setattr(O, k, int(v))

WS_O = 8 << 20
WS_F1 = 12 << 20
F1V = 262144
WS_F2 = WS_F1 + 524288
WS_ST = 13 << 20
WS_BYTES = 14 << 20
LDS_BYTES = 163840
L_WV = 65536; L_WK = 131072; L_KV = 65536

class E:
    def __init__(s): s.L = []; s.vq = []; s.lq = []; s.lab = 0; s.ool = []
    def __call__(s, t): s.L.append("    " + t)
    def label(s, n): s.L.append(n + ":")
    def c(s, t): s.L.append("    ; " + t)
    def vm(s, t, tag): s(t); s.vq.append(tag)
    def ds(s, t, tag): s(t); s.lq.append(tag)
    def _n(s, q, tag): return len(q) - 1 - max(i for i, x in enumerate(q) if x == tag)
    def wait_vm(s, tag):
        if tag not in s.vq: return
        n = s._n(s.vq, tag); assert n <= 63
        s(f"s_waitcnt vmcnt({n})"); s.vq = s.vq[len(s.vq)-n:]
    def wait_ds(s, tag):
        if tag not in s.lq: return
        n = s._n(s.lq, tag); assert n <= 15
        s(f"s_waitcnt lgkmcnt({n})"); s.lq = s.lq[len(s.lq)-n:]
    def wait_all(s): s("s_waitcnt vmcnt(0)"); s.vq = []
    def ds_all(s): s("s_waitcnt lgkmcnt(0)"); s.lq = []
    def stamp(s, i, mode=1):
        if O.probe == i and mode == 1: s("s_memrealtime s[76:77]")
        if O.stamps == mode: s(f"{'s_memrealtime' if O.rt else 's_memtime'} s[{ST0+2*i}:{ST0+1+2*i}]")
    def stub(s):
        if O.warm:
            s.nstub = getattr(s, "nstub", 0); s.label(f"L_stub{s.nstub}"); s("s_cbranch_execz L_warmed"); s.nstub += 1
    def newlab(s, p): s.lab += 1; return f"{p}_{s.lab}"
    def cond(s, cmp_, body):
        L = s.newlab("L_c"); s(cmp_); s(f"s_cbranch_scc1 {L}"); s.label(L + "r")
        s.ool.append((L, body))
    def flush(s):
        while s.ool:
            L, body = s.ool.pop(0)
            s.label(L); body(); s(f"s_branch {L}r")
e = E()
def vr(a, n): return f"v[{a}:{a+n-1}]"
def sr(a): return f"s[{a}:{a+1}]"
def srd(a): return f"s[{a}:{a+3}]"

SX, SW, SWO, SOUT, SWS, SDBG = 8, 12, 16, 20, 24, 28
SEXP = 8
SOWO = 28
sF1, sKV = 0, 1
sBR, sRB, sG, sW, sM0 = 3, 4, 5, 6, 7
sCX = 32; sCW = 40; sVMK = 32
sNON = 48
sT0, sT1, sT2, sT3 = 50, 51, 52, 53
sJ, sXCD, sTT, sFT, sCNT, sT = 54, 55, 56, 57, 58, 59
sEX = 60; sVM = 62
sIG, sIF, sIMP, sPEND = 64, 65, 66, 67
sOA, sF2 = 68, 69
sOW = 70
sU = 53
sT3P = 55
ST0 = 72
SOTH = 20
SIMP = 12
SDUM = 12
vL, vX0, vX1, vW0, vWR, vWR1, vWR2, vXR, vL16 = 1, 2, 3, 4, 5, 6, 7, 8, 12
vT0, vT1, vT2 = 13, 14, 15
vNON = 14
vEXP = 0
vKA, vVA, vKA8, vVA8 = 2, 3, 0, 7
vWO = 4
vFL = 8
vQ2 = 16; vCV = 24; vP = 24; vQ = 32
vML, vMF = 40, 56
accA, accB, accQ = 72, 88, 24
vS = 72
WF = [104, 108, 112, 116, 120, 124, 16, 20]
vXF = 128
vO = 104; vK = 136; vV = 144; PB = 176
sBAD = 67
vU0, vU1, vU2 = 36, 37, 38
vONE = 11
vL8 = 13
NEG = "0xff800000"

def mfma(d, a, b, c): e(f"v_mfma_f32_32x32x16_bf16 {vr(d,16)}, {vr(a,4)}, {vr(b,4)}, {c if isinstance(c,str) else vr(c,16)}")
def dma(v, s_, soff, ldsdst, tag):
    e(f"s_add_u32 m0, s{sM0}, {ldsdst}"); e("s_nop 0")
    e.vm(f"buffer_load_dwordx4 v{v}, {srd(s_)}, s{soff} offen lds", tag)
def st_pieces(t):
    sl = t % 4
    def wv():
        e(f"s_add_u32 m0, s{sM0}, {L_WV + sl*16384 + 8192 - 1024}"); e("s_nop 0")
        e.vm(f"buffer_load_dwordx4 v{vW0}, {srd(SW)}, s{sCW+t} offen offset:1024 lds", f"st{t}")
    return [lambda: dma(vX0, SX, sCX+t, sl*16384, f"st{t}"),
            lambda: dma(vW0, SW, sCW+t, L_WV + sl*16384, f"st{t}"),
            lambda: dma(vX1, SX, sCX+t, sl*16384 + 8192, f"st{t}"), wv]
def cvt(dst, src, i): e(f"v_cvt_pk_bf16_f32 v{dst+i}, v{src+2*i}, v{src+2*i+1}")
def cvt8(dst, src, n=4):
    for i in range(n): cvt(dst, src, i)

def masks(kind):
    e(f"v_and_b32 v{vT0}, 31, v{vL}"); e(f"v_lshrrev_b32 v{vT1}, 5, v{vL}")
    e(f"v_lshlrev_b32 v{vT1}, 2, v{vT1}"); e(f"v_sub_u32 v{vT0}, v{vT0}, v{vT1}")
    if kind == "B":
        e(f"s_mov_b32 s{sT0}, {NEG}")
        for r in range(16):
            c = 8*(r >> 2) + (r & 3)
            e(f"v_subrev_u32 v{vT1}, {c}, v{vT0}"); e(f"v_and_b32 v{vML+r}, s{sT0}, v{vT1}"); e(f"v_xor_b32 v{vMF+r}, s{sT0}, v{vML+r}")
    else:
        e(f"s_mov_b32 s{sT0}, 0xf149f2ca")
        for r in range(16):
            c = 8*(r >> 2) + (r & 3)
            e(f"v_subrev_u32 v{vT1}, {c}, v{vT0}"); e(f"v_and_b32 v{vT1}, -15, v{vT1}"); e(f"v_cvt_f32_u32 v{vT1}, v{vT1}"); e(f"v_mul_f32 v{vML+r}, s{sT0}, v{vT1}")
            if r >= 8:
                e(f"v_add_u32 v{vT1}, {32-c}, v{vT0}"); e(f"v_and_b32 v{vT1}, -15, v{vT1}"); e(f"v_cvt_f32_u32 v{vT1}, v{vT1}"); e(f"v_mul_f32 v{vMF+r}, s{sT0}, v{vT1}")
            else:
                e(f"v_mov_b32 v{vMF+r}, s{sT0}")

def prologue():
    e("s_cmp_ge_u32 s2, 256"); e("s_cbranch_scc1 L_end")
    if O.only == 1: e("s_cmp_ge_u32 s2, 128"); e("s_cbranch_scc1 L_end")
    if O.stamps: e(f"{'s_memrealtime' if O.rt else 's_memtime'} {sr(ST0)}"); e("s_memrealtime s[100:101]")
    if O.spin or O.probe: e("s_memrealtime s[72:73]")
    e("s_load_dwordx16 s[32:47], s[0:1], 0"); e("s_load_dwordx2 s[24:25], s[0:1], 64")
    if O.ctouch:
        e(f"s_getpc_b64 {sr(sVM)}")
        e(f"s_lshr_b32 s{sT0}, s2, 3"); e(f"s_mul_i32 s{sT0}, s{sT0}, 5"); e(f"v_add_u32 v{vT0}, s{sT0}, v0"); e(f"v_lshlrev_b32 v{vT0}, 7, v{vT0}")
        e(f"v_cmp_gt_u32 vcc, 5, v0"); e(f"s_and_saveexec_b64 {sr(sEX)}, vcc"); e("s_cbranch_execz L_noct")
        e(f"global_load_dword v254, v{vT0}, {sr(sVM)}")
        e.label("L_noct"); e("s_mov_b64 exec, -1")
    e(f"v_lshrrev_b32 v{vT0}, 6, v0"); e(f"v_and_b32 v{vL}, 63, v0")
    e(f"v_readfirstlane_b32 s{sW}, v{vT0}")
    e(f"s_and_b32 s{sXCD}, s2, 7"); e(f"s_lshr_b32 s{sJ}, s2, 3")
    if O.remap: e(f"s_bfe_u32 s{sT0}, s2, 0x10002"); e(f"s_lshl_b32 s{sT0}, s{sT0}, 1"); e(f"s_xor_b32 s{sXCD}, s{sXCD}, s{sT0}")
    e(f"s_lshr_b32 s{sT0}, s{sXCD}, 1"); e(f"s_lshl_b32 s{sT0}, s{sT0}, 2"); e(f"s_bfe_u32 s{sT1}, s{sJ}, 0x20002")
    e(f"s_add_u32 s{sRB}, s{sT0}, s{sT1}")
    e(f"s_and_b32 s{sT0}, s{sXCD}, 1"); e(f"s_lshl_b32 s{sT0}, s{sT0}, 2"); e(f"s_and_b32 s{sT2}, s{sJ}, 3")
    e(f"s_add_u32 s{sG}, s{sT0}, s{sT2}")
    e(f"s_add_u32 s{sT3}, s{sT1}, s{sT2}"); e(f"s_lshl_b32 s{sT3}, s{sT3}, 1")
    e(f"s_lshl_b32 s{sM0}, s{sW}, 10")
    e(f"v_lshrrev_b32 v{vT0}, 4, v{vL}")
    e(f"s_and_b32 s{sT0}, s{sW}, 1"); e(f"s_lshl_b32 s{sT0}, s{sT0}, 2")
    e(f"v_add_u32 v{vT0}, s{sT0}, v{vT0}")
    e(f"v_and_b32 v{vT1}, 7, v{vL}"); e(f"v_xor_b32 v{vT0}, v{vT0}, v{vT1}"); e(f"v_lshlrev_b32 v{vT0}, 4, v{vT0}")
    e(f"v_lshrrev_b32 v{vT1}, 3, v{vL}"); e(f"v_lshl_add_u32 v{vX0}, v{vT1}, 10, v{vT0}")
    e(f"s_lshl_b32 s{sT0}, s{sW}, 13"); e(f"v_add_u32 v{vX0}, s{sT0}, v{vX0}"); e(f"v_add_u32 v{vX1}, 0x10000, v{vX0}")
    e(f"v_bfe_u32 v{vT0}, v{vL}, 2, 3")
    e(f"s_lshl_b32 s{sT0}, s{sW}, 3"); e(f"v_add_u32 v{vT0}, s{sT0}, v{vT0}")
    e(f"v_lshrrev_b32 v{vT1}, 5, v{vL}"); e(f"v_lshlrev_b32 v{vT1}, 6, v{vT1}")
    e(f"v_and_b32 v{vT2}, 3, v{vL}"); e(f"v_lshl_add_u32 v{vT1}, v{vT2}, 4, v{vT1}")
    e(f"s_and_b32 s{sT0}, s{sW}, 1"); e(f"s_lshl_b32 s{sT0}, s{sT0}, 5"); e(f"v_xor_b32 v{vT1}, s{sT0}, v{vT1}")
    e(f"v_mul_u32_u24 v{vW0}, 3072, v{vT0}"); e(f"v_add_u32 v{vW0}, v{vW0}, v{vT1}"); e(f"v_add_u32 v{vW0}, 0x400, v{vW0}")
    e(f"s_mov_b32 s{SX+2}, {2048*1024}"); e(f"s_mov_b32 s{SX+3}, 0x20000")
    e(f"s_mov_b32 s{SW+2}, {512*3072}"); e(f"s_mov_b32 s{SW+3}, 0x20000")
    e(f"s_mov_b32 s{SOTH+3}, 0x20000")
    e(f"s_lshl_b32 s{sT0}, s{sRB}, 17"); e(f"s_lshl_b32 s{sT1}, s{sG}, 7")
    e(f"s_cmp_lt_u32 s2, 128"); e(f"s_cselect_b32 s{sBR}, 1, 0")
    e(f"s_cselect_b32 s{sT3}, 0, s{sT3}")
    e("s_waitcnt lgkmcnt(0)")
    e(f"s_cselect_b64 {sr(SX)}, s[38:39], s[32:33]")
    e(f"s_cselect_b64 {sr(SW)}, s[40:41], s[34:35]")
    e(f"s_cselect_b64 {sr(SWO)}, s[42:43], s[36:37]")
    e(f"s_cselect_b64 {sr(sOW)}, s[36:37], s[42:43]")
    e(f"s_mov_b64 {sr(SDBG)}, s[46:47]")
    e("s_cbranch_scc1 L_notouch")
    sp = O.xspan
    e(f"v_lshrrev_b32 v{vT0}, {sp}, v{vL}"); e(f"v_lshlrev_b32 v{vT0}, 10, v{vT0}")
    e(f"v_and_b32 v{vT1}, {(1 << sp) - 1}, v{vL}"); e(f"v_lshl_add_u32 v{vT0}, v{vT1}, 7, v{vT0}")
    e(f"v_lshrrev_b32 v{vT1}, 4, v{vL}"); e(f"v_bfe_u32 v{vT2}, v{vL}, 2, 2"); e(f"v_lshl_add_u32 v{vT1}, v{vT1}, 6, v{vT2}")
    e(f"v_mul_u32_u24 v{vT1}, 3072, v{vT1}"); e(f"v_and_b32 v{vT2}, 3, v{vL}"); e(f"v_lshl_add_u32 v{vT1}, v{vT2}, 7, v{vT1}")
    sXB, sWB = sIG, sIF
    e(f"s_and_b32 s{sXB}, s{sG}, 3"); e(f"s_lshl_b32 s{sXB}, s{sXB}, 15"); e(f"s_add_u32 s{sXB}, s{sXB}, s{sT0}")
    e(f"s_and_b32 s{sWB}, s{sJ}, 15"); e(f"s_mul_i32 s{sWB}, s{sWB}, {4*3072}"); e(f"s_and_b32 s{sT2}, s{sT1}, 512"); e(f"s_add_u32 s{sWB}, s{sWB}, s{sT2}")
    code = {0: [8, 2, 9, 10, 3, 11, 4, 5, 0, 1], 1: [8, 9, 10, 11, 2, 3, 4, 5, 0, 1], 2: [8, 2, 4, 9, 10, 3, 5, 11, 0, 1]}[O.torder]
    items = [(1, c) for c in code] + [(0, c) for c in code]
    if O.tseq == 1:
        items = [(1, c) for c in code[:8]] + [(0, c) for c in code[:6]] + [(1, c) for c in code[8:]] + [(0, c) for c in code[6:]]
    if O.tseq == 2: items = [(1, c) for c in code] + [(0, c) for c in (0, 1)]
    if O.tseq == 3: items = [(1, c) for c in code] + [(0, c) for c in (2, 3, 4, 5, 0, 1)]
    if O.tseq == 4: items = [(1, c) for c in code[:8]] + [(0, c) for c in (2, 3, 4, 5)] + [(1, c) for c in code[8:]] + [(0, c) for c in (0, 1)]
    items = items[:O.tn]
    for r in range((len(items) + 7) // 8):
        rnd = items[8*r:8*r+8]
        pk = sum(c << (4*i) for i, (b_, c) in enumerate(rnd)); bm = sum(b_ << i for i, (b_, c) in enumerate(rnd))
        if len(rnd) < 8: e(f"s_cmp_ge_u32 s{sW}, {len(rnd)}"); e(f"s_cbranch_scc1 L_t{r}d")
        e(f"s_lshl_b32 s{sT2}, s{sW}, 2"); e(f"s_lshr_b32 s{sT2}, {pk:#x}, s{sT2}")
        e(f"s_bitcmp1_b32 s{sT2}, 3"); e(f"s_cbranch_scc1 L_t{r}x")
        e(f"s_bitcmp1_b32 {bm:#x}, s{sW}"); e(f"s_cselect_b64 {sr(SOTH)}, s[40:41], s[34:35]"); e(f"s_mov_b32 s{SOTH+2}, {512*3072}")
        e(f"s_and_b32 s{sCNT}, s{sT2}, 1"); e(f"s_mul_i32 s{sCNT}, s{sCNT}, {256*3072}"); e(f"s_add_u32 s{sCNT}, s{sCNT}, s{sWB}")
        e(f"s_and_b32 s{sT2}, s{sT2}, 6"); e(f"s_lshl_b32 s{sT2}, s{sT2}, 9"); e(f"s_add_u32 s{sCNT}, s{sCNT}, s{sT2}")
        e(f"buffer_load_dword v{250+r}, v{vT1}, {srd(SOTH)}, s{sCNT} offen{' nt' if O.tnt else ''}")
        e(f"s_branch L_t{r}d")
        e.label(f"L_t{r}x")
        e(f"s_bitcmp1_b32 {bm:#x}, s{sW}"); e(f"s_cselect_b64 {sr(SOTH)}, s[38:39], s[32:33]"); e(f"s_mov_b32 s{SOTH+2}, {2048*1024}")
        e(f"s_and_b32 s{sT2}, s{sT2}, 3")
        if sp == 2:
            e(f"s_and_b32 s{sCNT}, s{sT2}, 1"); e(f"s_lshl_b32 s{sCNT}, s{sCNT}, 14"); e(f"s_lshr_b32 s{sT2}, s{sT2}, 1"); e(f"s_lshl_b32 s{sT2}, s{sT2}, 9"); e(f"s_add_u32 s{sT2}, s{sT2}, s{sCNT}")
        else: e(f"s_lshl_b32 s{sT2}, s{sT2}, {8 if sp == 1 else 13}")
        e(f"s_add_u32 s{sCNT}, s{sT2}, s{sXB}")
        e(f"buffer_load_dword v{250+r}, v{vT0}, {srd(SOTH)}, s{sCNT} offen{' nt' if O.tnt else ''}")
        e.label(f"L_t{r}d")
        e("s_barrier")
    if O.tlb:
        e(f"s_cmp_lg_u32 s{sW}, 7"); e("s_cbranch_scc1 L_notlb")
        if O.tlb >= 20: e(f"v_lshlrev_b32 v{vT0}, {O.tlb}, v{vL}")
        else:
            e(f"s_and_b32 s{sT2}, s{sJ}, 15"); e(f"v_lshlrev_b32 v{vT0}, 4, v{vL}"); e(f"v_add_u32 v{vT0}, s{sT2}, v{vT0}"); e(f"v_lshlrev_b32 v{vT0}, {O.tlb}, v{vT0}")
        for k_, (p_, n_) in enumerate((("s[24:25]", 13 << 20), ("s[44:45]", 4 << 20), ("s[36:37]", 512 << 10), ("s[42:43]", 512 << 10))):
            e(f"s_mov_b64 {sr(SOTH)}, {p_}"); e(f"s_mov_b32 s{SOTH+2}, {n_}")
            e(f"buffer_load_dword v{244+k_}, v{vT0}, {srd(SOTH)}, 0 offen")
        e.label("L_notlb")
    if not O.rotA: e(f"s_mov_b32 s{sT3}, 0")
    e.label("L_notouch")
    e(f"s_mov_b64 {sr(SOUT)}, s[44:45]")
    def chunk(t):
        e(f"s_add_u32 s{sT2}, s{sT3}, {t}"); e(f"s_and_b32 s{sT2}, s{sT2}, 7")
        e(f"s_lshl_b32 s{sCX+t}, s{sT2}, 7"); e(f"s_add_u32 s{sCX+t}, s{sCX+t}, s{sT0}")
        e(f"s_mul_i32 s{sCW+t}, s{sT2}, {64*3072}"); e(f"s_add_u32 s{sCW+t}, s{sCW+t}, s{sT1}")
    chunk(0)
    for p in st_pieces(0): p()
    e(f"s_mov_b32 s{SDBG+2}, 256"); e(f"s_mov_b32 s{SDBG+3}, 0x20000")
    e(f"s_xor_b32 s{sT2}, s{sW}, 7"); e(f"s_or_b32 s{sT2}, s2, s{sT2}")
    def tag():
        e(f"s_memrealtime {sr(sNON)}"); e("s_waitcnt lgkmcnt(0)")
        e(f"s_or_b32 s{sNON+1}, s{sNON+1}, 0x80000000")
        e(f"v_mov_b32 v{vCV}, s{sNON}"); e(f"v_mov_b32 v{vCV+1}, s{sNON+1}")
        e("s_mov_b64 exec, 1")
        e(f"buffer_store_dwordx2 {vr(vCV,2)}, off, {srd(SDBG)}, 0 sc1")
        e("s_mov_b64 exec, -1")
    e.cond(f"s_cmp_eq_u32 s{sT2}, 0", tag)
    chunk(1)
    for p in st_pieces(1)[:4-O.late1]: p()
    for t in range(2, 8): chunk(t)
    e(f"s_mov_b32 s{SWO+2}, {512*1024}"); e(f"s_mov_b32 s{SWO+3}, 0x20000")
    e(f"s_mov_b32 s{SOUT+2}, {2048*2048}")
    e(f"s_mov_b32 s{SWS+2}, {WS_BYTES}"); e(f"s_mov_b32 s{SWS+3}, 0x20000")
    e(f"s_lshr_b32 s{sFT}, s{sW}, 2"); e(f"s_mul_i32 s{sTT}, s{sFT}, 3"); e(f"s_and_b32 s{sT0}, s{sW}, 3"); e(f"s_xor_b32 s{sTT}, s{sTT}, s{sT0}")
    e(f"s_lshl_b32 s{sT}, s{sRB}, 2"); e(f"s_add_u32 s{sT}, s{sT}, s{sTT}")
    e(f"v_and_b32 v{vT0}, 15, v{vL}"); e(f"v_lshrrev_b32 v{vT1}, 4, v{vL}")
    e(f"v_bfe_u32 v{vT2}, v{vL}, 1, 3"); e(f"v_xor_b32 v{vT2}, v{vT2}, v{vT1}"); e(f"v_lshlrev_b32 v{vT2}, 4, v{vT2}")
    e(f"v_lshl_add_u32 v{vXR}, v{vT0}, 7, v{vT2}")
    e(f"s_lshl_b32 s{sT0}, s{sTT}, 12"); e(f"v_add_u32 v{vXR}, s{sT0}, v{vXR}")
    e(f"v_xor_b32 v{vXR+1}, 64, v{vXR}")
    e(f"v_bfe_u32 v{vT2}, v{vL}, 2, 2"); e(f"v_lshlrev_b32 v{vWR}, 6, v{vT2}")
    e(f"v_bfe_u32 v{vT2}, v{vL}, 4, 1"); e(f"v_lshl_add_u32 v{vWR}, v{vT2}, 5, v{vWR}")
    e(f"v_and_b32 v{vT2}, 3, v{vL}"); e(f"v_lshl_add_u32 v{vWR}, v{vT2}, 3, v{vWR}")
    e(f"v_lshl_add_u32 v{vWR}, v{vT1}, 10, v{vWR}")
    e(f"s_lshl_b32 s{sT0}, s{sFT}, 9"); e(f"v_add_u32 v{vWR}, s{sT0}, v{vWR}")
    e(f"v_add_u32 v{vWR1}, 0x10000, v{vWR}"); e(f"v_xor_b32 v{vWR2}, 32, v{vWR1}")
    e(f"v_lshlrev_b32 v{vL16}, 4, v{vL}")
    e(f"s_lshl_b32 s{sT0}, s{sTT}, 13"); e(f"s_lshl_b32 s{sT1}, s{sFT}, 11"); e(f"s_add_u32 s{sT0}, s{sT0}, s{sT1}")
    e(f"s_add_u32 s{sT0}, s{sT0}, {L_KV + 8*8192}"); e(f"v_add_u32 v{vEXP}, s{sT0}, v{vL16}")
    e(f"s_lshl_b32 s{sT0}, s{sBR}, 3"); e(f"s_add_u32 s{sT0}, s{sT0}, s{sG}"); e(f"s_lshl_b32 s{sT0}, s{sT0}, 6"); e(f"s_add_u32 s{sT0}, s{sT0}, s{sT}")
    e(f"s_lshl_b32 s{sKV}, s{sT0}, 13"); e(f"s_add_u32 s{sKV}, s{sKV}, s{sT1}")
    e(f"s_lshl_b32 s{sF1}, s{sT0}, 8"); e(f"s_lshl_b32 s{sT1}, s{sFT}, 7"); e(f"s_add_u32 s{sF1}, s{sF1}, s{sT1}"); e(f"s_add_u32 s{sF1}, s{sF1}, {WS_F1}")
    e(f"s_sub_u32 s{sT0}, s{sT0}, s{sTT}"); e(f"s_add_u32 s{sT0}, s{sT0}, s{sW}"); e(f"s_sub_u32 s{sT0}, s{sT0}, 8")
    e(f"s_lshl_b32 s{sT1}, s{sRB}, 2"); e(f"s_add_u32 s{sT1}, s{sT1}, s{sW}"); e(f"s_cmp_lt_u32 s{sT1}, 8"); e(f"s_cselect_b32 s{sIMP}, 1, 0")
    e(f"s_cselect_b32 s{sT0}, 0, s{sT0}")
    e(f"s_lshl_b32 s{sIG}, s{sT0}, 13"); e(f"s_lshl_b32 s{sIF}, s{sT0}, 8"); e(f"s_add_u32 s{sIF}, s{sIF}, {WS_F1}")
    e(f"s_and_b32 s{sT0}, s{sF1}, 0xffffff00"); e(f"s_sub_u32 s{sT0}, s{sT0}, 256")
    e(f"s_cmp_eq_u32 s{sBR}, 0"); e(f"s_cselect_b32 s{sIMP}, s{sTT}, s{sIMP}"); e(f"s_cselect_b32 s{sIF}, s{sT0}, s{sIF}")
    e(f"s_lshl_b32 s{sT0}, s{sBR}, 6"); e(f"s_add_u32 s{sT0}, s{sT0}, s{sT}")
    e(f"s_lshl_b32 s{sT1}, s{sT0}, 4"); e(f"s_lshl_b32 s{sT2}, s{sG}, 1"); e(f"s_add_u32 s{sT1}, s{sT1}, s{sT2}"); e(f"s_add_u32 s{sT1}, s{sT1}, s{sFT}")
    e(f"s_lshl_b32 s{sOA}, s{sT1}, 11"); e(f"s_add_u32 s{sOA}, s{sOA}, {WS_O}")
    e(f"s_lshl_b32 s{sF2}, s{sT1}, 8"); e(f"s_add_u32 s{sF2}, s{sF2}, {WS_F2}")
    e(f"s_mov_b32 s{sEX}, 0xffff"); e(f"s_mov_b32 s{sEX+1}, 0xffff")
    e(f"s_lshl_b32 s{sT0}, s{sXCD}, 1"); e(f"s_bfe_u32 s{sT1}, s{sJ}, 0x10003"); e(f"s_add_u32 s{sT0}, s{sT0}, s{sT1}")
    e(f"s_lshl_b32 s{sT0}, s{sT0}, 2"); e(f"s_and_b32 s{sT1}, s{sW}, 3"); e(f"s_add_u32 s{sT3P}, s{sT0}, s{sT1}")
    e(f"s_cmp_eq_u32 s{sBR}, 0"); e("s_cbranch_scc1 L_maskA")
    masks("B"); e("s_branch L_maskdone")
    e.flush()
    e.label("L_maskA"); masks("A")
    e.label("L_maskdone")
    if O.warm:
        e("s_mov_b64 exec, 0")
        for i in range(7): e(f"s_cmp_eq_u32 s{sW}, {i}"); e(f"s_cbranch_scc1 L_stub{i}")
        e("s_branch L_stub7")
        e.label("L_warmed"); e("s_mov_b64 exec, -1")
    e(f"v_lshlrev_b32 v{vL8}, 3, v{vL}")
    for p in st_pieces(1)[4-O.late1:]: p()
    if O.prew0:
        e("s_mov_b32 exec_hi, 0")
        e.vm(f"buffer_store_dwordx2 {vr(vL16,2)}, v{vL8}, {srd(SWS)}, s{sF2} offen sc1", "prew")
        e("s_mov_b32 exec_lo, 0xffff"); e(f"s_add_u32 s{sT0}, s{sF1}, {F1V}")
        e.vm(f"buffer_store_dwordx2 {vr(vL16,2)}, v{vL8}, {srd(SWS)}, s{sF1} offen sc1", "prew")
        e.vm(f"buffer_store_dwordx2 {vr(vL16,2)}, v{vL8}, {srd(SWS)}, s{sT0} offen sc1", "prew")
        e("s_mov_b64 exec, -1")
    if O.stlb:
        e(f"s_add_u32 s{sVM}, s{SWS}, {WS_F1 + 0xff000}"); e(f"s_addc_u32 s{sVM+1}, s{SWS+1}, 0")
        e.cond(f"s_cmp_eq_u32 s{sW}, 0", lambda: e(f"s_load_dword s{sPEND}, {sr(sVM)}, 0"))

def flag_store(soff, s_=SWS, off=0):
    e("s_mov_b64 exec, 0xffff")
    e.vm(f"buffer_store_dwordx2 {vr(vNON,2)}, v{vL8}, {srd(s_)}, s{soff} offen{f' offset:{off}' if off else ''} sc1", "flag")
    e("s_mov_b64 exec, -1")
def flag_ld(tag):
    e.vm(f"buffer_load_dwordx4 {vr(vFL,4)}, off, {srd(SWS)}, s{sIF} sc1", tag)
def flag_cmp():
    e(f"v_cmp_ne_u64 vcc, {sr(sNON)}, {vr(vFL,2)}"); e(f"v_cmp_ne_u64 {sr(sVM)}, {sr(sNON)}, {vr(vFL+2,2)}")
    e(f"s_or_b64 {sr(sVM)}, {sr(sVM)}, vcc")
def flag_poll():
    L = e.newlab("L_fp"); D = L + "d"
    e(f"s_mov_b32 s{sCNT}, 0")
    e.label(L)
    e(f"buffer_load_dwordx4 {vr(vFL,4)}, off, {srd(SWS)}, s{sIF} sc1")
    e(f"s_add_u32 s{sCNT}, s{sCNT}, 1"); e(f"s_cmp_gt_u32 s{sCNT}, {O.pollmax}"); e(f"s_cbranch_scc1 {D}")
    e("s_waitcnt vmcnt(0)")
    flag_cmp(); e(f"s_cbranch_scc1 {L}")
    e.label(D)
def spoll(soff, offs):
    L = e.newlab("L_sp"); D = L + "d"
    e(f"s_add_u32 s{sVM}, s{SWS}, s{soff}"); e(f"s_addc_u32 s{sVM+1}, s{SWS+1}, 0"); e(f"s_mov_b32 s{sCNT}, 0")
    e.label(L)
    w32 = O.sp32 and len(offs) > 4
    for i, o in enumerate(offs): e(f"s_load_dword s{sVMK+i}, {sr(sVM)}, {o} glc" if w32 else f"s_load_dwordx2 {sr(sVMK+2*i)}, {sr(sVM)}, {o} glc")
    e(f"s_add_u32 s{sCNT}, s{sCNT}, 1"); e(f"s_cmp_gt_u32 s{sCNT}, {O.pollmax}")
    e("s_waitcnt lgkmcnt(0)")
    e(f"s_cbranch_scc1 {D}")
    n2 = len(offs)//2 if w32 else len(offs)
    for i in range(n2): e(f"s_xor_b64 {sr(sVMK+2*i)}, {sr(sVMK+2*i)}, {sr(sT2) if w32 else sr(sNON)}")
    for i in range(1, n2): e(f"s_or_b64 {sr(sVMK)}, {sr(sVMK)}, {sr(sVMK+2*i)}")
    e(f"s_cbranch_scc1 {L}")
    e.label(D)
def vpoll(mask):
    L = e.newlab("L_vp"); D = L + "d"
    e(f"s_mov_b32 s{sCNT}, 0"); e(f"s_mov_b64 exec, {mask}")
    e.label(L)
    e(f"buffer_load_dwordx2 {vr(vFL,2)}, v{vFL+2}, {srd(SWS)}, s{sIF} offen sc1")
    e(f"s_add_u32 s{sCNT}, s{sCNT}, 1"); e(f"s_cmp_gt_u32 s{sCNT}, {O.pollmax}")
    e("s_waitcnt vmcnt(0)")
    e(f"v_cmp_ne_u64 vcc, {sr(sNON)}, {vr(vFL,2)}")
    e(f"s_cbranch_scc1 {D}"); e(f"s_cbranch_vccnz {L}")
    e.label(D)
    e("s_mov_b64 exec, -1")
def imp_dma(v, track=None):
    e(f"s_lshl_b32 s{sT1}, s{sW}, 13"); e(f"s_add_u32 m0, s{sT1}, {L_KV + v*4096}")
    e(f"s_add_u32 s{sT0}, s{sIG}, {v*4096}")
    for k in range(4):
        t = f"buffer_load_dwordx4 v{vL16}, {srd(SIMP)}, s{sT0} offen offset:{k*1024} sc1 lds"
        if track: e.vm(t, track)
        else: e(t)

def touch_wo(s_, tmp):
    e(f"s_and_b32 s{sT0}, s{sJ}, 15"); e(f"s_lshl_b32 s{sT0}, s{sT0}, 3"); e(f"s_add_u32 s{sT0}, s{sT0}, s{sW}")
    e(f"s_lshl_b32 s{sT0}, s{sT0}, 12"); e(f"v_lshlrev_b32 v{tmp}, 7, v{vL}")
    e("s_mov_b32 exec_hi, 0")
    e(f"buffer_load_dword v{tmp+1}, v{tmp}, {srd(s_)}, s{sT0} offen")
    e("s_mov_b32 exec_hi, -1")

def imports():
    e("s_waitcnt vmcnt(0)")
    e(f"v_cmp_ne_u64 vcc, {sr(sNON)}, {vr(vFL,2)}")
    e(f"s_and_b32 s{sPEND}, vcc_lo, 12"); e(f"s_cselect_b32 s{sPEND}, s{SIMP+2}, 0")
    e(f"s_and_b32 s{sT0}, vcc_lo, 3"); e(f"s_cselect_b32 s{sT0}, s{SIMP+2}, 0")
    if O.stamps == 1:
        e(f"s_min_u32 s{ST0+24}, s{sT0}, 1000"); e(f"s_min_u32 s{ST0+6}, s{sPEND}, 1000")
        e(f"s_add_u32 s{ST0+24}, s{ST0+24}, s{ST0}"); e(f"s_add_u32 s{ST0+6}, s{ST0+6}, s{ST0}")
    e.cond(f"s_cmp_lg_u32 s{sT0}, 0", lambda: vpoll(3))
    imp_dma(0)
    if not O.vlate:
        e(f"s_cmp_lg_u32 s{sPEND}, 0"); e("s_cbranch_scc1 L_nov")
        imp_dma(1)
    e.label("L_nov")

def p1():
    e.stamp(12)
    def rd(q):
        w = WF[q % 8]; p = q & 1
        if q < 64:
            t, r_ = divmod(q, 8); st, ty = r_ >> 2, (r_ >> 1) & 1
            if ty == 0: e.ds(f"ds_read_b128 {vr(vXF+8*(q>>2)+4*p,4)}, v{vXR+st} offset:{(t%4)*16384 + p*2048}", f"w{q}")
            b, off = (vWR1, vWR2)[p], (t % 4)*16384 + ty*8192 + st*4096
        elif q < 80: b, off = (vWR1, vWR2)[p], ((q-64) >> 1)*4096
        else: b, off = (vWR, vWR1)[p], ((q-80) >> 1)*4096
        e.ds(f"ds_read_b64_tr_b16 {vr(w,2)}, v{b} offset:{off}", f"w{q}")
        e.ds(f"ds_read_b64_tr_b16 {vr(w+2,2)}, v{b} offset:{off+256}", f"w{q}")
    syncs = {8*t - 4: (f"st{t}", None) for t in range(1, 8)}
    syncs.update({60: ("wq1", None), 68: ("wq7", None), 80: ("none", "exp")})
    gap = {k: [] for k in range(-1, 96)}
    def I(t): return lambda: e(t)
    def wq(t): return lambda: dma(vW0, SW, sCW+t, (L_WV + t*8192) if t < 4 else (t-4)*8192, f"wq{t}")
    for i, p in enumerate(st_pieces(2)): gap[[-1, 0, 1, 2][i]].append(p)
    for t in range(3, 8):
        for i, p in enumerate(st_pieces(t)): gap[8*(t-2) - 4 + [[0, 2, 4, 6], [0, 1, 2, 3], [0, 1, 3, 5]][O.stg][i]].append(p)
    gap[43].append(I(f"v_subrev_u32 v{vW0}, 0x400, v{vW0}"))
    for t, k in enumerate([44, 46, 52, 54, 48, 50, 56, 58]): gap[k].append(wq(t))
    gap[60].append(lambda: e.vm(f"buffer_load_dwordx2 {vr(vNON,2)}, off, {srd(SDBG)}, 0 sc1", "non"))
    gap[47] += [I(f"s_mov_b64 {sr(SEXP)}, {sr(SWS)}"), I(f"s_lshl_b32 s{sT0}, s{sBR}, 2"), I(f"s_or_b32 s{sT0}, s{sT0}, s{sTT}")]
    gap[49] += [I(f"s_cmp_ge_u32 s{sT0}, 3"), I(f"s_cselect_b32 s{SEXP+2}, s{SWS+2}, 0")]
    def export(k0, kd, acc, off, tag):
        for h in range(2):
            for i in range(4*h, 4*h+4): gap[k0+h].append(lambda i=i: cvt(acc, acc, i))
            t_ = acc + 4*h
            gap[k0+h] += [I("s_nop 0"), I(f"v_permlane16_swap_b32 v{t_}, v{t_+2}"), I(f"v_permlane16_swap_b32 v{t_+1}, v{t_+3}")]
            if off: gap[k0+h] += [I("s_nop 0"), I(f"v_permlane32_swap_b32 v{t_}, v{t_+2}"), I(f"v_permlane32_swap_b32 v{t_+1}, v{t_+3}")]
            if off and not h: gap[k0].append(I(f"s_add_u32 s{sKV}, s{sKV}, {off}"))
            gap[k0+h].append(lambda h=h: e.vm(f"buffer_store_dwordx4 {vr(acc+4*h,4)}, v{vL16}, {srd(SEXP)}, s{sKV} offen offset:{1024*h} sc1", tag))
            gap[kd+2*h].append(lambda h=h: e.ds(f"ds_write_b128 v{vEXP}, {vr(acc+4*h,4)} offset:{off+1024*h}", "exp"))
    gap[64].append(I("s_nop 1"))
    export(64, 71, accA, 0, "kst"); export(O.vex, 75, accB, 4096, "vst")
    def tagrd():
        e.wait_vm("non")
        e(f"v_readfirstlane_b32 s{sNON}, v{vNON}"); e(f"v_readfirstlane_b32 s{sNON+1}, v{vNON+1}")
        def late():
            L = e.newlab("L_tag"); D = L + "d"
            e(f"s_mov_b32 s{sCNT}, 0")
            e.label(L)
            e(f"buffer_load_dwordx2 {vr(vNON,2)}, off, {srd(SDBG)}, 0 sc1"); e("s_waitcnt vmcnt(0)")
            e(f"v_readfirstlane_b32 s{sNON}, v{vNON}"); e(f"v_readfirstlane_b32 s{sNON+1}, v{vNON+1}")
            e(f"s_add_u32 s{sCNT}, s{sCNT}, 1"); e(f"s_cmp_gt_u32 s{sCNT}, {O.pollmax}"); e(f"s_cbranch_scc1 {D}")
            e(f"s_cmp_eq_u32 s{sNON+1}, 0"); e(f"s_cbranch_scc1 {L}")
            e.label(D)
        e("s_nop 0")
        e.cond(f"s_cmp_eq_u32 s{sNON+1}, 0", late)
    gap[72].append(tagrd)
    gap[O.kflag].append(lambda: (e.wait_vm("kst"), flag_store(sF1, SEXP)))
    gap[O.vflag].append(lambda: (e(f"s_add_u32 s{sF1}, s{sF1}, {F1V}"), e.wait_vm("vst"), flag_store(sF1, SEXP), e.stamp(5)))
    def prew():
        e("s_mov_b32 exec_hi, 0")
        e.vm(f"buffer_store_dwordx2 {vr(vL16,2)}, v{vL8}, {srd(SWS)}, s{sF2} offen sc1", "prew")
        e("s_mov_b32 exec_hi, -1")
    if O.prew and not O.prew0: gap[O.prew].append(prew)
    def prew2():
        e("s_mov_b64 exec, 0xffff"); e(f"s_add_u32 s{sT1}, s{sF1}, {F1V}")
        e.vm(f"buffer_store_dwordx2 {vr(vL16,2)}, v{vL8}, {srd(SEXP)}, s{sF1} offen sc1", "prew")
        e.vm(f"buffer_store_dwordx2 {vr(vL16,2)}, v{vL8}, {srd(SEXP)}, s{sT1} offen sc1", "prew")
        e("s_mov_b64 exec, -1")
    if O.prew2: gap[O.prew2].append(prew2)
    gap[78] += [I(f"v_add_u32 v{vKA8}, {-8*8192 & 0xffffffff:#x}, v{vEXP}"), I(f"v_add_u32 v{vKA}, 0x2000, v{vKA8}"), I(f"v_and_b32 v{vVA8}, 0xfffffeff, v{vKA8}")]
    gap[79] += [I(f"v_add_u32 v{vVA8}, 0x1000, v{vVA8}"), I(f"v_add_u32 v{vVA}, 0x2000, v{vVA8}")]
    for i, k in zip(range(1, 9), [59, 59, 61, 61, 63, 63, 74, 74]):
        gap[k] += [I(f"s_cmp_le_u32 {i}, s{sT}"), I(f"s_cselect_b64 {sr(sVMK+2*(i-1))}, {sr(sEX)}, -1")]
    gap[82] += [I(f"v_bfe_u32 v{vWO}, v{vL}, 2, 3"), I(f"s_lshl_b32 s{sT0}, s{sW}, 3"), I(f"v_add_u32 v{vWO}, s{sT0}, v{vWO}"), I(f"v_lshlrev_b32 v{vWO}, 10, v{vWO}")]
    gap[75].append(I(f"v_xor_b32 v{vWR1}, 32, v{vWR}"))
    gap[83] += [I(f"v_lshrrev_b32 v{vONE}, 5, v{vL}"), I(f"v_lshl_add_u32 v{vWO}, v{vONE}, 6, v{vWO}"), I(f"v_and_b32 v{vONE}, 3, v{vL}"), I(f"v_lshl_add_u32 v{vWO}, v{vONE}, 4, v{vWO}")]
    gap[84] += [I(f"s_and_b32 s{sT0}, s{sJ}, 7"), I(f"s_lshl_b32 s{sT0}, s{sT0}, 7"), I(f"v_add_u32 v{vWO}, s{sT0}, v{vWO}")]
    gap[76] += [I(f"s_mov_b64 {sr(SIMP)}, {sr(SWS)}"), I(f"s_cmp_lg_u32 s{sIMP}, 0"), I(f"s_cselect_b32 s{SIMP+2}, 0, s{SWS+2}"), I(f"v_and_b32 v{vFL+2}, 1, v{vL}"), I(f"v_lshlrev_b32 v{vFL+2}, 7, v{vFL+2}")]
    gap[79] += [I(f"v_and_b32 v{vFL+3}, 2, v{vL}"), I(f"v_lshl_add_u32 v{vFL+2}, v{vFL+3}, 17, v{vFL+2}")]
    gap[86] += [I(f"v_mov_b32 v{vONE}, 0"), I("s_mov_b32 exec_lo, 0x110000" if O.zrow else "s_nop 0"), I("s_mov_b32 exec_hi, 0x110000" if O.zrow else "s_nop 0"), I(f"v_mov_b32 v{vONE}, 0x3f803f80"), I("s_mov_b64 exec, -1")]
    for i in range(32): gap[88 + i//4].append(I(f"v_mov_b32 v{vV+i}, v{vONE}"))
    gap[91].append(lambda: e.ds(f"ds_read_b128 {vr(vK,4)}, v{vKA} offset:{7*8192 + 1024}", "k0"))
    gap[91].append(lambda: e.ds(f"ds_read_b128 {vr(vK+4,4)}, v{vKA} offset:{7*8192}", "k0"))
    def looks():
        e("s_mov_b64 exec, 15")
        e.vm(f"buffer_load_dwordx2 {vr(vFL,2)}, v{vFL+2}, {srd(SIMP)}, s{sIF} offen sc1", "look")
        e("s_mov_b64 exec, -1")
    gap[O.hsmp].insert(0, looks)
    def ev():
        e(f"s_cmp_eq_u32 s{sBR}, 0"); e("s_cbranch_scc1 L_nov"); imports()
    if O.ev: gap[O.ev].append(ev)
    gap[95] += [I(f"s_mov_b32 s{sT2}, 0x3eb8aa3b"), I(f"s_mov_b32 s{sT3}, 0x3eb8aa3b")]

    if O.hold:
        e(f"s_cmp_lg_u32 s{sBR}, 0"); e("s_cbranch_scc1 L_nohold")
        e.label("L_hold"); e("s_sleep 2"); e(f"s_memrealtime {sr(sVM)}"); e("s_waitcnt lgkmcnt(0)"); e(f"s_sub_u32 s{sVM}, s{sVM}, s100")
        e(f"s_cmp_lt_u32 s{sVM}, {O.hold}"); e("s_cbranch_scc1 L_hold")
        e.label("L_nohold")
    e.wait_vm("st0"); e("s_barrier"); e.stamp(1)
    for q in range(4): rd(q)
    for f in gap[-1]: f()
    bars = sorted(syncs) + [96]
    for q in range(96):
        if q % 8 == 0: e.c(f"---- P1 mfma {q}")
        if q in syncs:
            tag, lg = syncs[q]
            e.wait_vm(tag)
            if lg is True: e.ds_all()
            elif lg: e.wait_ds(lg)
            e("s_barrier")
        if q == 64: e.stamp(2)
        if q % 8 == 4: e.stamp(q//8 + 1, 2)
        if O.p1prio and q >= 4:
            a = max(x for x in bars if x <= q); b_ = min(x for x in bars if x > q)
            step = (b_ - a) // 4
            if (q - a) % step == 0 and (q - a) // step < 4: e(f"s_setprio {3 - (q - a)//step}")
        p = q & 1; isv = q < 64 and (q >> 1) & 1
        e.wait_ds(f"w{q | 1}" if (q < 64 and not isv) else f"w{q}")
        acc = accQ if q >= 64 else (accB if isv else accA)
        for a in range(2):
            x = vXF + (8*(q >> 2) if q < 64 else 8*((q-64) >> 1)) + 4*a; w = WF[q % 8]
            d = acc + (8*a + 4*p if isv else 8*p + 4*a)
            c = "0" if (q < 4 or 64 <= q < 66) else vr(d, 4)
            ops = (x, w) if isv else (w, x)
            e(f"v_mfma_f32_16x16x32_bf16 {vr(d,4)}, {vr(ops[0],4)}, {vr(ops[1],4)}, {c}")
            if a == 0 and q + 4 < 96: rd(q+4)
        for f in gap[q]: f()

def wo_piece(i, base=0):
    e(f"s_add_u32 m0, s{sM0}, {base + i*8192}"); e(f"s_mov_b32 s{sT0}, {i*65536}")
    e(f"buffer_load_dwordx4 v{vWO}, {srd(SWO)}, s{sT0} offen lds")

def norm(o, dst):
    e(f"v_rcp_f32 v{o+10}, v{o+8}")
    e(f"v_pk_add_f32 {vr(o+12,2)}, {vr(o,2)}, {vr(o+2,2)}"); e(f"v_pk_add_f32 {vr(o+14,2)}, {vr(o+4,2)}, {vr(o+6,2)}")
    for i in range(4): e(f"v_pk_mul_f32 {vr(o+2*i,2)}, {vr(o+2*i,2)}, {vr(o+10,2)} op_sel_hi:[1,0]")
    e(f"v_pk_add_f32 {vr(o+12,2)}, {vr(o+12,2)}, {vr(o+14,2)}")
    cvt8(dst, o)
    e(f"v_add_f32 v{o+12}, v{o+12}, v{o+13}"); e(f"v_fma_f32 v{o+8}, v{o+12}, 0, v{o+8}")
def check(os_, slowlab):
    for n, o in enumerate(os_):
        e(f"v_subrev_u32 v{o+8}, 0x2b800000, v{o+8}")
        if n: e(f"v_max_u32 v{os_[0]+8}, v{os_[0]+8}, v{o+8}")
    e(f"v_cmp_lt_u32 vcc, 0x28000000, v{os_[0]+8}")
    if slowlab is None:
        e(f"s_or_b32 s{sBAD}, vcc_lo, vcc_hi")
        if O.force_slow: e(f"s_mov_b32 s{sBAD}, 1")
    elif O.force_slow: e(f"s_branch {slowlab}")
    else: e(f"s_cbranch_vccnz {slowlab}")
def prefill(regs):
    e(f"s_mov_b32 s{sT0}, 0x3f803f80")
    for i in regs: e(f"v_mov_b32 v{i}, s{sT0}")
def rdK(i, u, dst):
    if i < 8: e(f"ds_read_b128 {vr(dst,4)}, v{vKA} offset:{(7-i)*8192 + u*1024}")
    else: e(f"ds_read_b128 {vr(dst,4)}, v{vKA8} offset:{u*1024}")
def rdV(i, u, dst, dyn=True, restore=True):
    e(f"s_mov_b64 exec, {sr(sVMK+2*(i-1)) if dyn and i > 0 else sr(sEX)}")
    b, off = (vVA, (7-i)*8192) if i < 8 else (vVA8, 0)
    e(f"ds_read_b128 {vr(dst,4)}, v{b} offset:{off + u*256}")
    e(f"ds_read_b128 {vr(dst+4,4)}, v{b} offset:{off + u*256 + 1024}")
    if restore: e("s_mov_b64 exec, -1")

def attention():
    e.c("---- Q epilogue")
    e.stamp(4)
    def qscale(h):
        for i in range(4*h, 4*h+4): e(f"v_pk_mul_f32 {vr(accQ+2*i,2)}, {vr(accQ+2*i,2)}, {sr(sT2)}")
        for i in (0, 2, 1, 3): cvt(vQ2, accQ, 4*h + i)
        e("s_nop 0"); e(f"v_permlane16_swap_b32 v{vQ2+4*h}, v{vQ2+4*h+2}"); e(f"v_permlane16_swap_b32 v{vQ2+4*h+1}, v{vQ2+4*h+3}")
    e(f"s_cmp_eq_u32 s{sBR}, 0"); e("s_cbranch_scc1 L_attnA")
    e.c("---- attention B")
    if O.impfirst and not O.ev: imports()
    else: e("s_nop 3")
    qscale(1); qscale(0)
    def kbar():
        e(f"s_waitcnt vmcnt({0 if O.vlate == 2 else 4})"); e("s_barrier"); e.stamp(6)
    def vbar():
        e(f"s_waitcnt vmcnt({2 if O.tchA < O.lag else 0})"); e("s_barrier"); e.stamp(13)
    def tchA():
        if not O.tchB: touch_wo(SWO, vU0+2)
        e(f"s_mov_b64 {sr(SOWO)}, {sr(sOW)}"); e(f"s_mov_b32 s{SOWO+2}, {512*1024}")
        touch_wo(SOWO, vU0)
    def sample02():
        f3_addr()
        e("s_mov_b64 exec, 0x55555555")
        e(f"buffer_load_dwordx2 {vr(vFL,2)}, v{vF}, {srd(SWS)}, s{sF3} offen sc1")
        e("s_mov_b64 exec, -1")
    L = O.lag
    seq = [(1, 0), (0, 0)] + [(0, i) for i in range(1, 9)] + [(1, i) for i in range(1, 9)]
    pv = {n: [] for n in range(19)}
    pv[1].append(0); pv[2].append(1); m = 2
    for n in range(L+1, 19):
        for _ in range(2):
            if m < n and m < 18: pv[n].append(m); m += 1
    assert m == 18
    def P(m): return PB + 8*(m % 8)
    def V(m): return vV + 8*(m % 4)
    def ex(n, r): e(f"v_exp_f32 v{vS+16*(n%2)+r}, v{vS+16*(n%2)+r}")
    def pvm(m, kb):
        o = vO + 16*seq[m][0]
        mfma(o, V(m)+4*kb, P(m)+4*kb, "0" if (m < 2 and kb == 0) else o)
    def qk(n):
        u1, i1 = seq[n]
        mfma(vS+16*(n % 2), vK+4*(n % 2), vQ2 + 4*u1, vML if i1 == 0 else (vMF if i1 == 8 else "0"))
    assert max(n for n in pv if 9 in pv[n]) < O.epi
    q4 = (18 - L) // 4
    prio = {0: 1, 1: 0, 2: 1, 3: 0, L: 3, L+q4+1: 2, L+2*q4+1: 1, L+3*q4+2: 0}
    qk(0)
    e("s_nop 0")
    if not O.impfirst and not O.ev: imports()
    else: e("s_nop 6")
    for n in range(19):
        s_ = vS + 16*(n % 2)
        e.c(f"task {n}")
        if n < 11: e.stamp(n+1, 4)
        if n >= 8: e.stamp(n-7, 5)
        if O.fair and n in prio: e(f"s_setprio {prio[n]}")
        if n == 1 and not O.vlate: e.cond(f"s_cmp_lg_u32 s{sPEND}, 0", lambda: (vpoll(12), imp_dma(1)))
        if n == 1 and O.vlate == 1: e.cond(f"s_cmp_lg_u32 s{sPEND}, 0", lambda: vpoll(12)); imp_dma(1)
        if n == 2 and O.vlate == 2: e.cond(f"s_cmp_lg_u32 s{sPEND}, 0", lambda: vpoll(12)); imp_dma(1)
        if n == L: vbar()
        if n == O.oflag:
            younger = sum(8*(t-O.wo_at+1)//O.wo_n - 8*(t-O.wo_at)//O.wo_n for t in range(O.epi+1, n) if O.wo_at <= t < O.wo_at + O.wo_n)
            e(f"s_waitcnt vmcnt({younger})")
            e(f"s_cmp_lg_u32 s{sBAD}, 0"); e("s_cbranch_scc1 L_noflag0"); flag_store(sF2); e.label("L_noflag0")
        if O.wo_at <= n < O.wo_at + O.wo_n:
            for p_ in range(8*(n-O.wo_at)//O.wo_n, 8*(n-O.wo_at+1)//O.wo_n): wo_piece(p_)
        if n == O.poi_at and O.hint:
            for i_ in range(4): e(f"v_mov_b32 v{vP+4+i_}, -1")
            e(f"buffer_store_dwordx4 {vr(vP+4,4)}, v{vL16}, {srd(SWS)}, s{sOA} offen offset:1024 sc1")
        if n == O.tchA: tchA()
        if n == O.tE: e.cond(f"s_cmp_lt_u32 s{sW}, 4", lambda: (f3_addr(), o_touch(0x00ff00ff, 0)))
        if n == O.smp_at: e.cond(f"s_cmp_lt_u32 s{sW}, 4", sample02)
        nxt = pv[n+1] if n < 18 else []
        fresh = [m for m in nxt if 10 <= m < 14]
        if fresh: e.cond(f"s_cmp_lt_u32 s{sT}, 8", lambda fresh=fresh: [e(f"v_mov_b32 v{V(m)+k}, v{vONE}") for m in fresh for k in range(8)])
        cnt = 0
        if 1 < n < 17: rdK(seq[n+1][1], seq[n+1][0], vK+4*((n+1) % 2)); cnt += 1
        for k, m in enumerate(nxt): rdV(seq[m][1], seq[m][0], V(m), restore=(k == len(nxt)-1)); cnt += 2
        mf = [(m, kb) for m in pv[n] for kb in range(2)]
        if n == 18:
            e("s_waitcnt lgkmcnt(0)"); e("s_nop 0")
            for x in mf: pvm(*x)
            break
        first = [True]
        def slot():
            if mf:
                if first[0]: e(f"s_waitcnt lgkmcnt({cnt})"); first[0] = False
                pvm(*mf.pop(0))
        two = len(mf) > 2
        for r in range(4): ex(n, r)
        slot()
        for r in range(4, 8): ex(n, r)
        if n == 1: slot(); kbar(); rdK(1, 0, vK)
        elif n < 17:
            if n: e(f"s_waitcnt lgkmcnt({cnt-1})")
            qk(n+1)
        cvt8(P(n), s_)
        for r in range(8, 10): ex(n, r)
        if two: slot()
        for r in range(10, 12): ex(n, r)
        if not two: slot()
        if n == 1: e("s_waitcnt lgkmcnt(0)"); qk(2)
        for r in range(12, 14): ex(n, r)
        slot()
        for r in range(14, 16): ex(n, r)
        cvt8(P(n)+4, s_+8)
        slot()
        if n == 1: e("s_nop 3")
        if n == O.epi:
            norm(vO, vP); check([vO], None)
            e(f"buffer_store_dwordx4 {vr(vP,4)}, v{vL16}, {srd(SWS)}, s{sOA} offen sc1")
    e("s_nop 11")
    norm(vO+16, vP+4); check([vO+16], "L_B_slow1")
    e.label("L_B_ok1")
    if O.hint:
        for i_ in range(4): e(f"v_min_u32 v{vP+4+i_}, -2, v{vP+4+i_}")
    if O.sprio: e("s_setprio 2")
    e(f"buffer_store_dwordx4 {vr(vP+4,4)}, v{vL16}, {srd(SWS)}, s{sOA} offen offset:1024 sc1")
    if O.sprio: e("s_setprio 0")
    e(f"s_cmp_lg_u32 s{sBAD}, 0"); e("s_cbranch_scc1 L_B_slow0")
    e.label("L_B_ok0")
    e.stamp(7); e.stamp(12, 7)
    e(f"s_cmp_lt_u32 s{sW}, 4"); e("s_cbranch_scc0 L_young")
    e(f"s_mov_b32 s{sHM}, 0")
    f3_groups()
    if O.swp:
        e(f"s_and_b32 s{sT0}, s{sJ}, 1"); e(f"s_lshl_b32 s{sT0}, s{sT0}, 11")
        for q in range(4): e(f"s_xor_b32 s{sG0+q}, s{sG0+q}, s{sT0}")
    e("s_waitcnt vmcnt(1)")
    e("s_mov_b64 exec, 0x55555555")
    e(f"v_cmp_ne_u64 vcc, {sr(sNON)}, {vr(vFL,2)}")
    e("s_mov_b64 exec, -1")
    e(f"s_mov_b32 s{sT3}, 0"); e(f"s_mov_b32 s{sNR}, vcc_lo")
    e("s_cbranch_vccnz L_p3again")
    e.label("L_p3even")
    if O.bpre > 8:
        pass
    for k in range(O.ad): o_ld(k, sG0 + k//8)
    p3_setup()
    e(f"s_mov_b32 s{SLD+2}, 0")
    if not O.hint: e(f"s_waitcnt vmcnt({O.ad})")
    e.stamp(8); e("s_barrier")
    e("s_branch L_p3go")
    e.label("L_p3again")
    e(f"s_mov_b32 exec_lo, s{sNR}"); e("s_mov_b32 exec_hi, 0")
    e(f"buffer_load_dwordx2 {vr(vFL,2)}, v{vF}, {srd(SWS)}, s{sF3} offen sc1")
    e("s_mov_b64 exec, -1")
    p3_setup()
    e(f"s_mov_b32 s{SLD+2}, 0")
    if not O.hint: e("s_waitcnt vmcnt(1)")
    e.stamp(8); e("s_barrier")
    e("s_waitcnt vmcnt(0)")
    e(f"v_cmp_eq_u64 vcc, {sr(sNON)}, {vr(vFL,2)}")
    e(f"s_andn2_b32 s{sNR}, s{sNR}, vcc_lo")
    poll3(0x55555555, 0x55555555)
    for k in range(O.ad): o_ld(k, sG0 + k//8)
    e("s_branch L_p3go")
    e.label("L_young"); e.stub()
    e(f"s_waitcnt vmcnt({1 if O.hint else 0})")
    e.label("L_youngA")
    e("s_mov_b64 exec, 0xffff")
    e(f"s_cmp_eq_u32 s{sW}, 4"); e(f"s_cselect_b32 s{SEXP+2}, s{SWS+2}, 0")
    if O.fprio: e("s_setprio 3")
    e("s_waitcnt vmcnt(8)"); e.stamp(8); e("s_barrier")
    e.stamp(1, 8)
    e(f"buffer_store_dwordx2 {vr(vNON,2)}, v{vL8}, {srd(SEXP)}, s{sF2} offen offset:128 sc1")
    e("s_mov_b64 exec, -1")
    e.stamp(2, 8)
    if O.stamps == 8: e("s_waitcnt vmcnt(0)"); e.stamp(3, 8); e(f"s_memrealtime {sr(ST0+12)}")
    e(f"s_cmp_lg_u32 s{sW}, 4"); e("s_cbranch_scc1 L_rest")
    f3_addr()
    e(f"s_add_u32 s{sF3}, s{sF3}, {3*4096}")
    e(f"s_mov_b32 s{sT2}, s{sNON}"); e(f"s_mov_b32 s{sT3}, s{sNON}")
    if O.pdelay: e(f"s_sleep {O.pdelay}")
    spoll(sF3, [384 + 512*g_ for g_ in range(8)])
    e.stamp(10); e.stamp(4, 8)
    if O.stamps == 8:
        e(f"s_memrealtime {sr(ST0+14)}"); e("s_waitcnt lgkmcnt(0)"); e(f"s_add_u32 s{ST0+10}, s{ST0}, s{sCNT}")
        for q_ in (12, 14): e(f"s_and_b32 s{ST0+q_}, s{ST0+q_}, 0xffff"); e(f"s_add_u32 s{ST0+q_}, s{ST0+q_}, s{ST0}")
    e("s_waitcnt vmcnt(1)")
    e("s_barrier")
    e.label("L_rest")
    e("s_waitcnt vmcnt(0)")
    e("s_branch L_stamps" if O.stamps else "s_endpgm")
    e.flush()

    e.c("---- attention A")
    e.label("L_attnA")
    KP, VP = 176, 160
    if not O.spoll:
        e(f"s_and_b32 s{sIF}, s{sF1}, 0xffffff00"); e(f"s_sub_u32 s{sIF}, s{sIF}, 136")
        flag_ld("x")
    e.stamp(6)
    def halo():
        L = e.newlab("L_h")
        e(f"s_cmp_eq_u32 s{sT}, 0"); e(f"s_cbranch_scc1 L_A_nh")
        e("s_waitcnt vmcnt(0)")
        e(f"v_cmp_ne_u64 vcc, {sr(sNON)}, {vr(vFL,2)}")
        e(f"s_and_b32 s{sT0}, vcc_lo, 12"); e(f"s_cbranch_scc0 {L}")
        vpoll(12)
        e.label(L)
        e(f"s_sub_u32 s{sT0}, s{sKV}, {8192 + 4096}"); e(f"s_sub_u32 s{sT1}, s{sKV}, {8192 - 1024}")
        e(f"v_and_b32 v{vFL}, 0x2ff, v{vL16}")
        for h in range(2): e(f"buffer_load_dwordx4 {vr(KP+4*h,4)}, v{vL16}, {srd(SWS)}, s{sT0} offen offset:{h*1024} sc1")
        e(f"s_mov_b64 exec, {sr(sEX)}")
        for h in range(2): e(f"buffer_load_dwordx4 {vr(VP+4*h,4)}, v{vFL}, {srd(SWS)}, s{sT1} offen offset:{h*256} sc1")
        e("s_mov_b64 exec, -1")
        e("s_branch L_A_nh")
    e.cond(f"s_cmp_eq_u32 s{sTT}, 0", halo)
    for h in range(2): e(f"ds_read_b128 {vr(KP+4*h,4)}, v{vKA} offset:{6*8192 + h*1024}")
    e(f"s_mov_b64 exec, {sr(sEX)}")
    for h in range(2): e(f"ds_read_b128 {vr(VP+4*h,4)}, v{vVA} offset:{6*8192 + 1024 + h*256}")
    e("s_mov_b64 exec, -1")
    e.label("L_A_nh")
    e(f"s_mov_b64 exec, {sr(sEX)}")
    for h in range(2):
        for kb in range(2): e(f"ds_read_b128 {vr(vV+8*h+4*kb,4)}, v{vVA} offset:{7*8192 + kb*1024 + h*256}")
    e("s_mov_b64 exec, -1"); e("s_nop 0")
    qscale(0); qscale(1)
    e("s_waitcnt lgkmcnt(0)")
    def a_body(slow):
        def exs(s_, rs, h):
            for r in rs:
                if slow: e(f"v_sub_f32 v{s_+r}, v{s_+r}, v{vFL+h}")
                e(f"v_exp_f32 v{s_+r}, v{s_+r}")
        lab = "L_A_s2" if slow else "L_A_f2"
        for h in range(2): mfma(vS+16*h, vK+4-4*h, vQ2+4*h, vML)
        e("s_nop 10")
        for h in range(2):
            exs(vS+16*h, range(16), h); cvt8(vP+8*h, vS+16*h, 8); e("s_nop 1")
            mfma(vO+16*h, vV+8*h, vP+8*h, "0"); mfma(vO+16*h, vV+8*h+4, vP+8*h+4, vO+16*h)
        e("s_waitcnt vmcnt(0)")
        e(f"s_cmp_eq_u32 s{sT}, 0"); e(f"s_cbranch_scc1 {lab}")
        e.stamp(13)
        for h in range(2): mfma(vS+16*h, KP+4*h, vQ2+4*h, vMF)
        e("s_nop 10")
        for h in range(2):
            exs(vS+16*h, range(8, 16), h); cvt8(vP+8*h+4, vS+16*h+8); e("s_nop 1")
            mfma(vO+16*h, VP+4*h, vP+8*h+4, vO+16*h)
        e.label(lab)
        e("s_nop 11")
        for h in range(2): norm(vO+16*h, vP+4*h)
    a_body(False)
    check([vO, vO+16], "L_A_slow")
    e.label("L_A_ok"); e.stub()
    e("s_setprio 2")
    e(f"buffer_store_dwordx4 {vr(vP,4)}, v{vL16}, {srd(SWS)}, s{sOA} offen sc1")
    e(f"buffer_store_dwordx4 {vr(vP+4,4)}, v{vL16}, {srd(SWS)}, s{sOA} offen offset:1024 sc1")
    e.stamp(7)
    e("s_setprio 0")
    for i in range(8): wo_piece(i, L_KV)
    e(f"s_cmp_lt_u32 s{sW}, 4"); e("s_cbranch_scc0 L_youngA")
    e(f"s_and_b32 s{sHM}, s{sJ}, 3")
    f3_groups()
    e(f"s_mov_b32 s{sT3}, {L_KV}")
    e.label("L_p3all")
    e("s_waitcnt vmcnt(8)"); e.stamp(8); e("s_barrier")
    p3_setup(); p3_setup2()
    e(f"s_mov_b32 s{SLD+2}, s{SWS+2}")
    e("s_waitcnt vmcnt(0)")
    e("s_barrier"); e.stamp(10)
    if O.ltouch: o_touch(0xffffffff, 0)
    for k in range(O.ad): o_ld(k, sG0 + k//8)
    return a_body, KP

vA, vB, vO0, vO1, vF = 2, 3, 7, 5, 10
sO3, sF3, sOUT3, sHM = sIG, sIF, sOA, sPEND
A0, A1 = 40, 56
vTW, vTR = 18, 17
WB = 72
def OFR(k): return 136 + 4*k if k < 30 else 24 + 4*(k-30)
sG0 = sVMK; sHB = sVMK+4
vW = ((0, 4), (6, 16))
def f3_addr():
    e(f"s_lshl_b32 s{sT0}, s{sBR}, 6"); e(f"s_add_u32 s{sT0}, s{sT0}, s{sT3P}")
    e(f"s_lshl_b32 s{sO3}, s{sT0}, 15"); e(f"s_add_u32 s{sO3}, s{sO3}, {WS_O}")
    e(f"s_lshl_b32 s{sF3}, s{sT0}, 12"); e(f"s_add_u32 s{sF3}, s{sF3}, {WS_F2}")
    e(f"v_lshlrev_b32 v{vF}, 7, v{vL}")
def group(dst):
    e(f"s_brev_b32 s{sHB}, s{sHM}"); e(f"s_lshr_b32 s{sHB}, s{sHB}, 20")
    e(f"s_add_u32 s{dst}, s{sHB}, s{sO3}")
    e(f"s_add_u32 s{sHM}, s{sHM}, 1"); e(f"s_and_b32 s{sHM}, s{sHM}, 3")
def wbase(buf, src):
    e(f"s_and_b32 s{sT0}, s{src}, 0xc00"); e(f"s_lshl_b32 s{sT0}, s{sT0}, 1")
    e(f"v_add_u32 v{vW[buf][0]}, s{sT0}, v{vA}"); e(f"v_add_u32 v{vW[buf][1]}, s{sT0}, v{vB}")
def o_ld(k, base, s_=None):
    if k % 8: e(f"s_add_u32 s{sT0}, s{base}, {(k % 8)*4096}")
    e(f"buffer_load_dwordx4 {vr(OFR(k),4)}, v{vL16}, {srd(s_ or SWS)}, s{sT0 if k % 8 else base} offen sc1")
sNR = sVMK + 7
def poll3(need, look):
    L = e.newlab("L_poll"); D = L + "d"
    e(f"s_mov_b32 s{sCNT}, 0"); e("s_mov_b32 exec_hi, 0")
    e.label(L)
    e(f"s_and_b32 s{sT0}, s{sNR}, {need:#x}"); e(f"s_cbranch_scc0 {D}")
    e(f"s_and_b32 exec_lo, s{sNR}, {look:#x}")
    e(f"buffer_load_dwordx2 {vr(vFL,2)}, v{vF}, {srd(SWS)}, s{sF3} offen sc1")
    e(f"s_add_u32 s{sCNT}, s{sCNT}, 1")
    e("s_waitcnt vmcnt(0)")
    e(f"v_cmp_eq_u64 vcc, {sr(sNON)}, {vr(vFL,2)}")
    e(f"s_andn2_b32 s{sNR}, s{sNR}, vcc_lo")
    if O.sleep: e(f"s_sleep {O.sleep}")
    e(f"s_cmp_gt_u32 s{sCNT}, {O.pollmax}"); e(f"s_cbranch_scc0 {L}")
    e.label(D)
    e("s_mov_b64 exec, -1")
SLD = SDUM
def f3_groups():
    f3_addr()
    for q in range(4): group(sG0+q)
def o_touch(mask, dst):
    e(f"s_and_b32 s{sT0}, s{sJ}, 7"); e(f"s_lshl_b32 s{sT0}, s{sT0}, 12"); e(f"s_add_u32 s{sT0}, s{sT0}, s{sO3}")
    e(f"s_mov_b32 exec_lo, {mask:#x}"); e("s_mov_b32 exec_hi, 0")
    e(f"buffer_load_dword v{vFL+3}, v{vF}, {srd(SWS)}, s{sT0} offen sc1")
    e("s_mov_b64 exec, -1")
def p3_setup():
    e(f"s_mov_b64 {sr(SLD)}, {sr(SWS)}")
    e(f"v_bfe_u32 v{vU0}, v{vL}, 2, 2"); e(f"v_lshlrev_b32 v{vA}, 6, v{vU0}")
    e(f"v_and_b32 v{vU0}, 1, v{vL}"); e(f"v_mul_u32_u24 v{vU0}, 544, v{vU0}"); e(f"v_add_u32 v{vA}, v{vA}, v{vU0}")
    e(f"v_bfe_u32 v{vU0}, v{vL}, 4, 1"); e(f"v_lshl_add_u32 v{vA}, v{vU0}, 4, v{vA}")
    e(f"v_bfe_u32 v{vU0}, v{vL}, 1, 1"); e(f"v_lshl_add_u32 v{vA}, v{vU0}, 3, v{vA}")
    e(f"v_lshrrev_b32 v{vU0}, 5, v{vL}"); e(f"v_lshl_add_u32 v{vA}, v{vU0}, 8, v{vA}")
    e(f"v_add_u32 v{vA}, s{sT3}, v{vA}")
    e(f"v_xor_b32 v{vB}, 32, v{vA}")
    wbase(0, sG0); wbase(1, sG0+1)
def p3_setup2():
    e(f"v_lshrrev_b32 v{vU0}, 5, v{vL}")
    if O.tpose:
        e(f"s_lshl_b32 s{sT0}, s{sW}, 12"); e(f"s_add_u32 s{sT0}, s{sT0}, {L_WK}")
        e(f"v_mul_u32_u24 v{vU0}, 6, v{vU0}"); e(f"v_and_b32 v{vU1}, 7, v{vL}"); e(f"v_xor_b32 v{vU0}, v{vU0}, v{vU1}")
        e(f"v_and_b32 v{vTW}, 31, v{vL}"); e(f"v_lshlrev_b32 v{vTW}, 7, v{vTW}"); e(f"v_lshl_add_u32 v{vTW}, v{vU0}, 4, v{vTW}"); e(f"v_add_u32 v{vTW}, s{sT0}, v{vTW}")
        for i in range(1, 4): e(f"v_xor_b32 v{vTW+i}, {16*i}, v{vTW}")
        e(f"v_lshrrev_b32 v{vU0}, 3, v{vL}"); e(f"v_xor_b32 v{vTR}, v{vU0}, v{vU1}"); e(f"v_lshlrev_b32 v{vTR}, 4, v{vTR}")
        e(f"v_lshl_add_u32 v{vTR}, v{vU0}, 7, v{vTR}"); e(f"v_add_u32 v{vTR}, s{sT0}, v{vTR}")
        e(f"v_lshlrev_b32 v{vO0}, 11, v{vU0}"); e(f"v_lshl_add_u32 v{vO0}, v{vU1}, 4, v{vO0}")
    else:
        e(f"v_and_b32 v{vO0}, 31, v{vL}"); e(f"v_lshlrev_b32 v{vO0}, 11, v{vO0}"); e(f"v_mul_u32_u24 v{vU0}, 96, v{vU0}"); e(f"v_add_u32 v{vO0}, v{vO0}, v{vU0}")
        e(f"v_xor_b32 v{vO1}, 32, v{vO0}")
    e(f"s_lshl_b32 s{sOUT3}, s{sT3P}, 16"); e(f"s_lshl_b32 s{sT1}, s{sBR}, 10"); e(f"s_add_u32 s{sOUT3}, s{sOUT3}, s{sT1}")
    e(f"s_and_b32 s{sT1}, s{sJ}, 7"); e(f"s_lshl_b32 s{sT1}, s{sT1}, 7"); e(f"s_add_u32 s{sOUT3}, s{sOUT3}, s{sT1}")

def lds_wait(off, val):
    L = e.newlab("L_lw"); D = L + "d"
    e(f"s_mov_b32 s{sCNT}, 0")
    e.label(L)
    e(f"ds_read_b32 v{vFL}, v{vFL+3} offset:{off}")
    e(f"s_add_u32 s{sCNT}, s{sCNT}, 1"); e(f"s_cmp_gt_u32 s{sCNT}, {O.pollmax*8}")
    e("s_waitcnt lgkmcnt(0)")
    e(f"v_cmp_ne_u32 vcc, {val}, v{vFL}")
    e(f"s_cbranch_scc1 {D}")
    e(f"s_cbranch_vccz {D}"); e("s_sleep 1"); e(f"s_branch {L}")
    e.label(D)

def p3():
    e.c("---- P3 (waves 0..3)")
    def wrd(buf, k):
        for ct in range(2):
            d = WB + 8*k + 4*ct
            e(f"ds_read_b64_tr_b16 {vr(d,2)}, v{vW[buf][ct]} offset:{k*8192}")
            e(f"ds_read_b64_tr_b16 {vr(d+2,2)}, v{vW[buf][ct]} offset:{k*8192 + 1024}")
    e.label("L_p3go")
    for k in range(4): wrd(0, k)
    e.stamp(9); e.stamp(13, 7)
    A2, A3 = OFR(0), OFR(4); vMX = vFL
    e(f"s_mov_b32 s{sCNT}, 0")
    for k in range(32):
        q, kk = divmod(k, 8)
        if k == O.b2:
            e(f"s_cmp_eq_u32 s{sBR}, 0"); e("s_cbranch_scc1 L_p3b")
            p3_setup2()
            e.stamp(5, 7)
            e("s_barrier"); e.stamp(10); e.stamp(7, 7)
            for k2 in range(16, O.b2+O.ad): o_ld(k2, sG0 + k2//8)
            e.label("L_p3b")
            e.stamp(8, 7)
        if k == 16: e.label("L_p3late"); e(f"v_mov_b32 v{vMX}, 0")
        e(f"s_waitcnt vmcnt({min(O.ad-1, 31-k)}) lgkmcnt({min(12, 4*(31-k))})")
        o = OFR(k)
        mfma(A0 if k < 16 else A2, WB + 8*kk, o, "0" if k == 0 else (A0 if k <= 16 else A2))
        if k + O.ad < 32: o_ld(k+O.ad, sG0+(k+O.ad)//8, SLD if (k < O.b2 and k+O.ad >= 16) else SWS)
        if k >= 16 and O.hint: e(f"v_max3_u32 v{vMX}, v{vMX}, v{o}, v{o+1}")
        mfma(A1 if k < 16 else A3, WB + 8*kk + 4, o, "0" if k == 0 else (A1 if k <= 16 else A3))
        if k >= 16 and O.hint: e(f"v_max3_u32 v{vMX}, v{vMX}, v{o+2}, v{o+3}")
        if k + 4 < 32: wrd(((k+4)//8) % 2, (k+4) % 8)
        if kk == 3 and q < 2: wbase(q, sG0+q+2)
    e.stamp(9, 7)
    if O.hint:
        e(f"v_cmp_eq_u32 vcc, -1, v{vMX}")
        if O.fredo: e(f"s_cmp_lt_u32 s{sCNT}, 2"); e("s_cselect_b64 vcc, -1, vcc")
        def redo():
            e(f"s_cmp_eq_u32 s{sBR}, 0"); e("s_cbranch_scc1 L_p3fin")
            e(f"s_add_u32 s{sCNT}, s{sCNT}, 1"); e(f"s_cmp_gt_u32 s{sCNT}, {O.pollmax}"); e("s_cbranch_scc1 L_p3fin")
            for k2 in range(16, 16+O.ad): o_ld(k2, sG0 + k2//8)
            for k2 in range(4): wrd(0, k2)
            e("s_branch L_p3late")
        e.cond("s_cmp_lg_u64 vcc, 0", redo)
        e.label("L_p3fin")
        if O.stamps == 1: e(f"s_mul_i32 s{ST0+6}, s{sCNT}, 1000"); e(f"s_add_u32 s{ST0+6}, s{ST0+6}, s{ST0}")
        e("s_nop 7")
    else: e("s_nop 10")
    cvt8(72, A2, 8); cvt8(80, A3, 8)
    fl = ["", " sc1", " nt", " sc1 nt", " sc0 sc1", " sc0 sc1 nt", " sc0 nt"][O.outsc]
    if O.tpose:
        for i in range(4): e(f"ds_write_b128 v{vTW+i}, {vr(72+4*i,4)}")
        for i in range(4): e(f"ds_read_b128 {vr(88+4*i,4)}, v{vTR} offset:{i*1024}")
        for i in range(4):
            e(f"s_waitcnt lgkmcnt({3-i})")
            e(f"buffer_store_dwordx4 {vr(88+4*i,4)}, v{vO0}, {srd(SOUT)}, s{sOUT3} offen{fl}")
            if i < 3: e(f"s_add_u32 s{sOUT3}, s{sOUT3}, 0x4000")
    else:
        for i in range(4): e(f"buffer_store_dwordx4 {vr(72+4*i,4)}, v{(vO0, vO1)[i//2]}, {srd(SOUT)}, s{sOUT3} offen offset:{16*(i%2)}{fl}")
    if O.stamps:
        e.stamp(10, 7); e("s_waitcnt vmcnt(0)"); e.stamp(11); e.stamp(11, 7)
        e.label("L_stamps")
        e(f"s_memrealtime {sr(sVM)}"); e("s_waitcnt lgkmcnt(0)")
        e(f"s_lshl_b32 s{sT0}, s2, 3"); e(f"s_add_u32 s{sT0}, s{sT0}, s{sW}"); e(f"s_lshl_b32 s{sT0}, s{sT0}, 6"); e(f"s_add_u32 s{sT0}, s{sT0}, {WS_ST}")
        e("s_mov_b64 exec, 1")
        for i in range(1, 14):
            e(f"s_sub_u32 s{sT1}, s{ST0+2*i}, s{ST0}"); e(f"v_mov_b32 v{vU1}, s{sT1}")
            e(f"buffer_store_dword v{vU1}, off, {srd(SWS)}, s{sT0} offset:{4*i}")
        e(f"v_mov_b32 v{vU1}, s100"); e(f"buffer_store_dword v{vU1}, off, {srd(SWS)}, s{sT0} offset:56")
        e(f"v_mov_b32 v{vU1}, s{sVM}"); e(f"buffer_store_dword v{vU1}, off, {srd(SWS)}, s{sT0} offset:60")
    if O.probe:
        if O.probe == 11: e("s_waitcnt vmcnt(0)"); e("s_memrealtime s[76:77]")
        e("s_waitcnt lgkmcnt(0)")
        e(f"s_cmp_lg_u32 s{sBR}, {O.pbr}"); e("s_cbranch_scc1 L_end")
        e("s_sub_u32 s76, s76, s72"); e("s_lshl_b32 s76, s76, 1"); e("s_add_u32 s76, s76, 3000")
        e.label("L_spin"); e("s_memrealtime s[74:75]"); e("s_waitcnt lgkmcnt(0)"); e("s_sub_u32 s74, s74, s72")
        e(f"s_cmp_lt_u32 s74, s76"); e("s_cbranch_scc1 L_spin")
    if O.spin:
        e.label("L_spin"); e("s_memrealtime s[74:75]"); e("s_waitcnt lgkmcnt(0)"); e("s_sub_u32 s74, s74, s72")
        e(f"s_cmp_lt_u32 s74, {O.spin}"); e("s_cbranch_scc1 L_spin")
    e.label("L_end")
    e("s_endpgm")
    e.flush()

def xmax(reg):
    e(f"v_mov_b32 v{vFL+2}, v{reg}"); e("s_nop 1")
    e(f"v_permlane32_swap_b32 v{vFL+2}, v{reg}"); e("s_nop 1")
    e(f"v_max_f32 v{reg}, v{reg}, v{vFL+2}")

def slow_paths(a_body, KP):
    e.c("---- rare path: the stand-in max was unsafe, redo the unit with the true row max")
    def shift(op):
        for r_, d_ in ((vKA, 0x400), (vKA8, 0x400), (vVA, 0x100), (vVA8, 0x100)): e(f"{op} v{r_}, {d_:#x}, v{r_}")
    for u in range(2):
        e.label(f"L_B_slow{u}")
        e(f"s_mov_b32 s{sU}, {u}")
        for i in range(4): e(f"v_mov_b32 v{vQ+i}, v{vQ2+4*u+i}")
        if u == 0: e("s_branch L_B_slow")
        else: shift("v_add_u32")
    e.label("L_B_slow")
    e("s_waitcnt vmcnt(0)")
    prefill(range(vV, vV+8))
    e(f"v_mov_b32 v{vFL}, {NEG}")
    for ps in range(2):
        for i in range(9):
            if i > 0: e(f"s_cmp_gt_u32 {i}, s{sT}"); e(f"s_cbranch_scc1 L_B_s{ps}")
            rdK(i, 0, vK)
            if ps: rdV(i, 0, vV, dyn=False)
            e("s_waitcnt lgkmcnt(0)")
            mfma(vS, vK, vQ, vML if i == 0 else (vMF if i == 8 else "0"))
            e("s_nop 11")
            if ps == 0:
                for r in range(0, 16, 2): e(f"v_max3_f32 v{vFL}, v{vFL}, v{vS+r}, v{vS+r+1}")
            else:
                for r in range(16): e(f"v_sub_f32 v{vS+r}, v{vS+r}, v{vFL}")
                for r in range(16): e(f"v_exp_f32 v{vS+r}, v{vS+r}")
                cvt8(PB, vS, 8); e("s_nop 1")
                mfma(vO, vV, PB, vO if i > 0 else "0"); mfma(vO, vV+4, PB+4, vO)
                e("s_nop 7")
        e.label(f"L_B_s{ps}")
        if ps == 0: xmax(vFL)
    e("s_nop 11")
    norm(vO, vP+4)
    e(f"s_cmp_eq_u32 s{sU}, 0"); e("s_cbranch_scc1 L_B_fin0")
    shift("v_subrev_u32")
    e("s_branch L_B_ok1")
    e.label("L_B_fin0")
    e(f"buffer_store_dwordx4 {vr(vP+4,4)}, v{vL16}, {srd(SWS)}, s{sOA} offen sc1")
    e("s_waitcnt vmcnt(0)"); flag_store(sF2)
    e("s_branch L_B_ok0")
    e.label("L_A_slow")
    for h in range(2):
        e(f"v_mov_b32 v{vFL+h}, {NEG}")
        mfma(vS, vK+4-4*h, vQ2+4*h, vML); e("s_nop 11")
        for r in range(0, 16, 2): e(f"v_max3_f32 v{vFL+h}, v{vFL+h}, v{vS+r}, v{vS+r+1}")
        e(f"s_cmp_eq_u32 s{sT}, 0"); e(f"s_cbranch_scc1 L_A_m{h}")
        mfma(vS, KP+4*h, vQ2+4*h, vMF); e("s_nop 11")
        for r in range(8, 16, 2): e(f"v_max3_f32 v{vFL+h}, v{vFL+h}, v{vS+r}, v{vS+r+1}")
        e.label(f"L_A_m{h}")
        xmax(vFL+h)
    a_body(True)
    e("s_branch L_A_ok")

prologue(); p1(); ab = attention(); p3(); slow_paths(*ab)
e("s_endpgm")

hdr = open("cdna_kernels/" + NAME + ".s.ref").read().split("; Override launch geometry")[0]
out = hdr + f"; @launch grid=(256,1,1) block=(512,1,1) lds={LDS_BYTES}\n"
out += f""".amdgcn_target "amdgcn-amd-amdhsa--gfx950"
.text
.globl {NAME}_kernel
{'.p2align 12' if O.al12 else ''}
.p2align 8
.type {NAME}_kernel,@function
{NAME}_kernel:
""" + "\n".join(e.L) + f"""
.section .rodata,"a"
.p2align 6
.amdhsa_kernel {NAME}_kernel
  .amdhsa_next_free_vgpr 256
  .amdhsa_next_free_sgpr {102 if O.stamps else (80 if (O.spin or O.probe) else 72)}
  .amdhsa_accum_offset 256
  .amdhsa_group_segment_fixed_size 0
  .amdhsa_kernarg_size 72
  .amdhsa_user_sgpr_count 2
  .amdhsa_user_sgpr_kernarg_segment_ptr 1
  .amdhsa_system_sgpr_workgroup_id_x 1
.end_amdhsa_kernel
"""
open(sys.argv[1], "w").write(out)
```

```python
import sys
NAME = "concat_heads__sliding_local_dilated__sliding_block__prompt"

class Opt:
    stamps = 0
    force_slow = 0
    pollmax = 400000
    only = 0
    delayA = 7
    lag = 5
    kflag = 74
    kchk = 65
    imp = 87
    oflag = 13
    vpos = 2
    uni = 0
    xspan = 1
    torder = 2
    tseq = 3
    tn = 16
    tnt = 0
    rotA = 1
    yprio = 0
    prew = 61
    imp1 = 77
    fair = 1
    tpose = 1
    pdelay = 0
    spin = 0
    x = 0
    wqs = 2
    p1prio = 1
    epi = 11
    tchB = 0
    wo_n = 4
    tchA = 5
    ctouch = 1
    warm = 0
    al12 = 1
    tE = 99
    ltouch = 0
    awo = 1
    pre = 8
    ad = 8
    spoll = 1
    stlb = 0
    sp32 = 1
    fprio = 1
    swp = 1
    probe = 0
    pbr = 0
    rt = 0
    hold = 0
    tlb = 0
    tlbB = 0
    bpre = 8
    aflag = 0
    hsmp = 82
    vsmp = 94
    sprio = 1
    vflag = 83
    stg = 0
    impfirst = 1
    vex = 65
    ev = 91
    prew0 = 0
    vlate = 1
    prew2 = 0
    hint = 0
    poi_at = 1
    b2 = 8
    late1 = 4
    zrow = 1
    fredo = 0
    remap = 1
    m16 = 1
    w2 = 1
    pq = 60
    kex = 63
    la = 4
    il = 1
    afast = 1
    epi2 = 1
    sep = 1
    smp_at = 17
    wo_at = 13
    tch_at = 4
    quiet = 1
    prio = 0
    outsc = 1
    stag = 0
    sleep = 0
O = Opt()
for a in sys.argv[2:]:
    k, v = a.split("="); assert hasattr(O, k), k
    setattr(O, k, int(v))

WS_O = 8 << 20
WS_F1 = 12 << 20
F1V = 262144
WS_F2 = WS_F1 + 524288
WS_ST = 13 << 20
WS_BYTES = 14 << 20
LDS_BYTES = 163840
L_WV = 65536; L_WK = 131072; L_KV = 65536

class E:
    def __init__(s): s.L = []; s.vq = []; s.lq = []; s.lab = 0; s.ool = []
    def __call__(s, t): s.L.append("    " + t)
    def label(s, n): s.L.append(n + ":")
    def c(s, t): s.L.append("    ; " + t)
    def vm(s, t, tag): s(t); s.vq.append(tag)
    def ds(s, t, tag): s(t); s.lq.append(tag)
    def _n(s, q, tag): return len(q) - 1 - max(i for i, x in enumerate(q) if x == tag)
    def wait_vm(s, tag):
        if tag not in s.vq: return
        n = s._n(s.vq, tag); assert n <= 63
        s(f"s_waitcnt vmcnt({n})"); s.vq = s.vq[len(s.vq)-n:]
    def wait_ds(s, tag):
        if tag not in s.lq: return
        n = min(15, s._n(s.lq, tag))
        s(f"s_waitcnt lgkmcnt({n})"); s.lq = s.lq[len(s.lq)-n:]
    def wait_all(s): s("s_waitcnt vmcnt(0)"); s.vq = []
    def ds_all(s): s("s_waitcnt lgkmcnt(0)"); s.lq = []
    def stamp(s, i, mode=1):
        if O.probe == i and mode == 1: s("s_memrealtime s[76:77]")
        if O.stamps == mode: s(f"{'s_memrealtime' if O.rt else 's_memtime'} s[{ST0+2*i}:{ST0+1+2*i}]")
    def stub(s):
        if O.warm:
            s.nstub = getattr(s, "nstub", 0); s.label(f"L_stub{s.nstub}"); s("s_cbranch_execz L_warmed"); s.nstub += 1
    def newlab(s, p): s.lab += 1; return f"{p}_{s.lab}"
    def cond(s, cmp_, body):
        L = s.newlab("L_c"); s(cmp_); s(f"s_cbranch_scc1 {L}"); s.label(L + "r")
        s.ool.append((L, body))
    def flush(s):
        while s.ool:
            L, body = s.ool.pop(0)
            s.label(L); body(); s(f"s_branch {L}r")
e = E()
def vr(a, n): return f"v[{a}:{a+n-1}]"
def sr(a): return f"s[{a}:{a+1}]"
def srd(a): return f"s[{a}:{a+3}]"

SX, SW, SWO, SOUT, SWS, SDBG = 8, 12, 16, 20, 24, 28
SEXP = 8
SOWO = 28
sF1, sKV = 0, 1
sBR, sRB, sG, sW, sM0 = 3, 4, 5, 6, 7
sCX = 32; sCW = 40; sVMK = 32
sNON = 48
sT0, sT1, sT2, sT3 = 50, 51, 52, 53
sJ, sXCD, sTT, sFT, sCNT, sT = 54, 55, 56, 57, 58, 59
sEX = 60; sVM = 62
sIG, sIF, sIMP, sPEND = 64, 65, 66, 67
sOA, sF2 = 68, 69
sOW = 70
sU = 53
sT3P = 55
ST0 = 72
SOTH = 20
SIMP = 12
SDUM = 12
vL, vX0, vX1, vW0, vWR, vWR1, vWR2, vXR, vL16 = 1, 2, 3, 4, 5, 6, 7, 8, 12
vT0, vT1, vT2 = 13, 14, 15
vNON = 14
vEXP = 0
vKA, vVA, vKA8, vVA8 = 2, 3, 0, 7
vWO = 4
vFL = 8
vQ2 = 16; vCV = 24; vP = 24; vQ = 32
vML, vMF = 40, 56
accA, accB, accQ = 72, 88, 24
vS = 72
WF = [104, 108, 112, 116, 120, 124, 16, 20]
vXF = 128
vO = 104; vK = 136; vV = 144; PB = 176
sBAD = 67
vU0, vU1, vU2 = 36, 37, 38
vONE = 11
vL8 = 13
NEG = "0xff800000"

def mfma(d, a, b, c): e(f"v_mfma_f32_32x32x16_bf16 {vr(d,16)}, {vr(a,4)}, {vr(b,4)}, {c if isinstance(c,str) else vr(c,16)}")
HOIST = [False]
def set_m0(ldsdst):
    t = f"    s_add_u32 m0, s{sM0}, {ldsdst}"
    if HOIST[0] and ("v_mfma" in e.L[-1] or "ds_read" in e.L[-1]): e.L.insert(len(e.L)-1, t)
    else: e.L.append(t); e("s_nop 0")
def dma(v, s_, soff, ldsdst, tag):
    set_m0(ldsdst)
    e.vm(f"buffer_load_dwordx4 v{v}, {srd(s_)}, s{soff} offen lds", tag)
def st_pieces(t):
    sl = t % 4
    def wv():
        set_m0(L_WV + sl*16384 + 8192 - 1024)
        e.vm(f"buffer_load_dwordx4 v{vW0}, {srd(SW)}, s{sCW+t} offen offset:1024 lds", f"st{t}")
    return [lambda: dma(vX0, SX, sCX+t, sl*16384, f"st{t}"),
            lambda: dma(vW0, SW, sCW+t, L_WV + sl*16384, f"st{t}"),
            lambda: dma(vX1, SX, sCX+t, sl*16384 + 8192, f"st{t}"), wv]
def cvt(dst, src, i): e(f"v_cvt_pk_bf16_f32 v{dst+i}, v{src+2*i}, v{src+2*i+1}")
def cvt8(dst, src, n=4):
    for i in range(n): cvt(dst, src, i)

def masks(kind):
    e(f"v_and_b32 v{vT0}, 31, v{vL}"); e(f"v_lshrrev_b32 v{vT1}, 5, v{vL}")
    e(f"v_lshlrev_b32 v{vT1}, 2, v{vT1}"); e(f"v_sub_u32 v{vT0}, v{vT0}, v{vT1}")
    if kind == "B":
        e(f"s_mov_b32 s{sT0}, {NEG}")
        for r in range(16):
            c = 8*(r >> 2) + (r & 3)
            e(f"v_subrev_u32 v{vT1}, {c}, v{vT0}"); e(f"v_and_b32 v{vML+r}, s{sT0}, v{vT1}"); e(f"v_xor_b32 v{vMF+r}, s{sT0}, v{vML+r}")
    else:
        e(f"s_mov_b32 s{sT0}, 0xf149f2ca")
        for r in range(16):
            c = 8*(r >> 2) + (r & 3)
            e(f"v_subrev_u32 v{vT1}, {c}, v{vT0}"); e(f"v_and_b32 v{vT1}, -15, v{vT1}"); e(f"v_cvt_f32_u32 v{vT1}, v{vT1}"); e(f"v_mul_f32 v{vML+r}, s{sT0}, v{vT1}")
            if r >= 8:
                e(f"v_add_u32 v{vT1}, {32-c}, v{vT0}"); e(f"v_and_b32 v{vT1}, -15, v{vT1}"); e(f"v_cvt_f32_u32 v{vT1}, v{vT1}"); e(f"v_mul_f32 v{vMF+r}, s{sT0}, v{vT1}")
            else:
                e(f"v_mov_b32 v{vMF+r}, s{sT0}")

def prologue():
    e("s_cmp_ge_u32 s2, 256"); e("s_cbranch_scc1 L_end")
    if O.only == 1: e("s_cmp_ge_u32 s2, 128"); e("s_cbranch_scc1 L_end")
    if O.stamps: e(f"{'s_memrealtime' if O.rt else 's_memtime'} {sr(ST0)}"); e("s_memrealtime s[100:101]")
    if O.spin or O.probe: e("s_memrealtime s[72:73]")
    e("s_load_dwordx16 s[32:47], s[0:1], 0"); e("s_load_dwordx2 s[24:25], s[0:1], 64")
    if O.ctouch:
        e(f"s_getpc_b64 {sr(sVM)}")
        e(f"s_lshr_b32 s{sT0}, s2, 3"); e(f"s_mul_i32 s{sT0}, s{sT0}, 5"); e(f"v_add_u32 v{vT0}, s{sT0}, v0"); e(f"v_lshlrev_b32 v{vT0}, 7, v{vT0}")
        e(f"v_cmp_gt_u32 vcc, 5, v0"); e(f"s_and_saveexec_b64 {sr(sEX)}, vcc"); e("s_cbranch_execz L_noct")
        e(f"global_load_dword v254, v{vT0}, {sr(sVM)}")
        e.label("L_noct"); e("s_mov_b64 exec, -1")
    e(f"v_lshrrev_b32 v{vT0}, 6, v0"); e(f"v_and_b32 v{vL}, 63, v0")
    e(f"v_readfirstlane_b32 s{sW}, v{vT0}")
    e(f"s_and_b32 s{sXCD}, s2, 7"); e(f"s_lshr_b32 s{sJ}, s2, 3")
    if O.remap: e(f"s_bfe_u32 s{sT0}, s2, 0x10002"); e(f"s_lshl_b32 s{sT0}, s{sT0}, 1"); e(f"s_xor_b32 s{sXCD}, s{sXCD}, s{sT0}")
    e(f"s_lshr_b32 s{sT0}, s{sXCD}, 1"); e(f"s_lshl_b32 s{sT0}, s{sT0}, 2"); e(f"s_bfe_u32 s{sT1}, s{sJ}, 0x20002")
    e(f"s_add_u32 s{sRB}, s{sT0}, s{sT1}")
    e(f"s_and_b32 s{sT0}, s{sXCD}, 1"); e(f"s_lshl_b32 s{sT0}, s{sT0}, 2"); e(f"s_and_b32 s{sT2}, s{sJ}, 3")
    e(f"s_add_u32 s{sG}, s{sT0}, s{sT2}")
    e(f"s_add_u32 s{sT3}, s{sT1}, s{sT2}"); e(f"s_lshl_b32 s{sT3}, s{sT3}, 1")
    e(f"s_lshl_b32 s{sM0}, s{sW}, 10")
    e(f"v_lshrrev_b32 v{vT0}, 4, v{vL}")
    e(f"s_and_b32 s{sT0}, s{sW}, 1"); e(f"s_lshl_b32 s{sT0}, s{sT0}, 2")
    e(f"v_add_u32 v{vT0}, s{sT0}, v{vT0}")
    e(f"v_and_b32 v{vT1}, 7, v{vL}"); e(f"v_xor_b32 v{vT0}, v{vT0}, v{vT1}"); e(f"v_lshlrev_b32 v{vT0}, 4, v{vT0}")
    e(f"v_lshrrev_b32 v{vT1}, 3, v{vL}"); e(f"v_lshl_add_u32 v{vX0}, v{vT1}, 10, v{vT0}")
    e(f"s_lshl_b32 s{sT0}, s{sW}, 13"); e(f"v_add_u32 v{vX0}, s{sT0}, v{vX0}"); e(f"v_add_u32 v{vX1}, 0x10000, v{vX0}")
    e(f"v_bfe_u32 v{vT0}, v{vL}, 2, 3")
    e(f"s_lshl_b32 s{sT0}, s{sW}, 3"); e(f"v_add_u32 v{vT0}, s{sT0}, v{vT0}")
    e(f"v_lshrrev_b32 v{vT1}, 5, v{vL}"); e(f"v_lshlrev_b32 v{vT1}, 6, v{vT1}")
    e(f"v_and_b32 v{vT2}, 3, v{vL}"); e(f"v_lshl_add_u32 v{vT1}, v{vT2}, 4, v{vT1}")
    e(f"s_and_b32 s{sT0}, s{sW}, 1"); e(f"s_lshl_b32 s{sT0}, s{sT0}, 5"); e(f"v_xor_b32 v{vT1}, s{sT0}, v{vT1}")
    e(f"v_mul_u32_u24 v{vW0}, 3072, v{vT0}"); e(f"v_add_u32 v{vW0}, v{vW0}, v{vT1}"); e(f"v_add_u32 v{vW0}, 0x400, v{vW0}")
    e(f"s_mov_b32 s{SX+2}, {2048*1024}"); e(f"s_mov_b32 s{SX+3}, 0x20000")
    e(f"s_mov_b32 s{SW+2}, {512*3072}"); e(f"s_mov_b32 s{SW+3}, 0x20000")
    e(f"s_mov_b32 s{SOTH+3}, 0x20000")
    e(f"s_lshl_b32 s{sT0}, s{sRB}, 17"); e(f"s_lshl_b32 s{sT1}, s{sG}, 7")
    e(f"s_cmp_lt_u32 s2, 128"); e(f"s_cselect_b32 s{sBR}, 1, 0")
    e(f"s_cselect_b32 s{sT3}, 0, s{sT3}")
    e("s_waitcnt lgkmcnt(0)")
    e(f"s_cselect_b64 {sr(SX)}, s[38:39], s[32:33]")
    e(f"s_cselect_b64 {sr(SW)}, s[40:41], s[34:35]")
    e(f"s_cselect_b64 {sr(SWO)}, s[42:43], s[36:37]")
    e(f"s_cselect_b64 {sr(sOW)}, s[36:37], s[42:43]")
    e(f"s_mov_b64 {sr(SDBG)}, s[46:47]")
    e("s_cbranch_scc1 L_notouch")
    sp = O.xspan
    e(f"v_lshrrev_b32 v{vT0}, {sp}, v{vL}"); e(f"v_lshlrev_b32 v{vT0}, 10, v{vT0}")
    e(f"v_and_b32 v{vT1}, {(1 << sp) - 1}, v{vL}"); e(f"v_lshl_add_u32 v{vT0}, v{vT1}, 7, v{vT0}")
    e(f"v_lshrrev_b32 v{vT1}, 4, v{vL}"); e(f"v_bfe_u32 v{vT2}, v{vL}, 2, 2"); e(f"v_lshl_add_u32 v{vT1}, v{vT1}, 6, v{vT2}")
    e(f"v_mul_u32_u24 v{vT1}, 3072, v{vT1}"); e(f"v_and_b32 v{vT2}, 3, v{vL}"); e(f"v_lshl_add_u32 v{vT1}, v{vT2}, 7, v{vT1}")
    sXB, sWB = sIG, sIF
    e(f"s_and_b32 s{sXB}, s{sG}, 3"); e(f"s_lshl_b32 s{sXB}, s{sXB}, 15"); e(f"s_add_u32 s{sXB}, s{sXB}, s{sT0}")
    e(f"s_and_b32 s{sWB}, s{sJ}, 15"); e(f"s_mul_i32 s{sWB}, s{sWB}, {4*3072}"); e(f"s_and_b32 s{sT2}, s{sT1}, 512"); e(f"s_add_u32 s{sWB}, s{sWB}, s{sT2}")
    code = {0: [8, 2, 9, 10, 3, 11, 4, 5, 0, 1], 1: [8, 9, 10, 11, 2, 3, 4, 5, 0, 1], 2: [8, 2, 4, 9, 10, 3, 5, 11, 0, 1]}[O.torder]
    items = [(1, c) for c in code] + [(0, c) for c in code]
    if O.tseq == 1:
        items = [(1, c) for c in code[:8]] + [(0, c) for c in code[:6]] + [(1, c) for c in code[8:]] + [(0, c) for c in code[6:]]
    if O.tseq == 2: items = [(1, c) for c in code] + [(0, c) for c in (0, 1)]
    if O.tseq == 3: items = [(1, c) for c in code] + [(0, c) for c in (2, 3, 4, 5, 0, 1)]
    if O.tseq == 4: items = [(1, c) for c in code[:8]] + [(0, c) for c in (2, 3, 4, 5)] + [(1, c) for c in code[8:]] + [(0, c) for c in (0, 1)]
    items = items[:O.tn]
    for r in range((len(items) + 7) // 8):
        rnd = items[8*r:8*r+8]
        pk = sum(c << (4*i) for i, (b_, c) in enumerate(rnd)); bm = sum(b_ << i for i, (b_, c) in enumerate(rnd))
        if len(rnd) < 8: e(f"s_cmp_ge_u32 s{sW}, {len(rnd)}"); e(f"s_cbranch_scc1 L_t{r}d")
        e(f"s_lshl_b32 s{sT2}, s{sW}, 2"); e(f"s_lshr_b32 s{sT2}, {pk:#x}, s{sT2}")
        e(f"s_bitcmp1_b32 s{sT2}, 3"); e(f"s_cbranch_scc1 L_t{r}x")
        e(f"s_bitcmp1_b32 {bm:#x}, s{sW}"); e(f"s_cselect_b64 {sr(SOTH)}, s[40:41], s[34:35]"); e(f"s_mov_b32 s{SOTH+2}, {512*3072}")
        e(f"s_and_b32 s{sCNT}, s{sT2}, 1"); e(f"s_mul_i32 s{sCNT}, s{sCNT}, {256*3072}"); e(f"s_add_u32 s{sCNT}, s{sCNT}, s{sWB}")
        e(f"s_and_b32 s{sT2}, s{sT2}, 6"); e(f"s_lshl_b32 s{sT2}, s{sT2}, 9"); e(f"s_add_u32 s{sCNT}, s{sCNT}, s{sT2}")
        e(f"buffer_load_dword v{250+r}, v{vT1}, {srd(SOTH)}, s{sCNT} offen{' nt' if O.tnt else ''}")
        e(f"s_branch L_t{r}d")
        e.label(f"L_t{r}x")
        e(f"s_bitcmp1_b32 {bm:#x}, s{sW}"); e(f"s_cselect_b64 {sr(SOTH)}, s[38:39], s[32:33]"); e(f"s_mov_b32 s{SOTH+2}, {2048*1024}")
        e(f"s_and_b32 s{sT2}, s{sT2}, 3")
        if sp == 2:
            e(f"s_and_b32 s{sCNT}, s{sT2}, 1"); e(f"s_lshl_b32 s{sCNT}, s{sCNT}, 14"); e(f"s_lshr_b32 s{sT2}, s{sT2}, 1"); e(f"s_lshl_b32 s{sT2}, s{sT2}, 9"); e(f"s_add_u32 s{sT2}, s{sT2}, s{sCNT}")
        else: e(f"s_lshl_b32 s{sT2}, s{sT2}, {8 if sp == 1 else 13}")
        e(f"s_add_u32 s{sCNT}, s{sT2}, s{sXB}")
        e(f"buffer_load_dword v{250+r}, v{vT0}, {srd(SOTH)}, s{sCNT} offen{' nt' if O.tnt else ''}")
        e.label(f"L_t{r}d")
        e("s_barrier")
    if O.tlb:
        e(f"s_cmp_lg_u32 s{sW}, 7"); e("s_cbranch_scc1 L_notlb")
        if O.tlb >= 20: e(f"v_lshlrev_b32 v{vT0}, {O.tlb}, v{vL}")
        else:
            e(f"s_and_b32 s{sT2}, s{sJ}, 15"); e(f"v_lshlrev_b32 v{vT0}, 4, v{vL}"); e(f"v_add_u32 v{vT0}, s{sT2}, v{vT0}"); e(f"v_lshlrev_b32 v{vT0}, {O.tlb}, v{vT0}")
        for k_, (p_, n_) in enumerate((("s[24:25]", 13 << 20), ("s[44:45]", 4 << 20), ("s[36:37]", 512 << 10), ("s[42:43]", 512 << 10))):
            e(f"s_mov_b64 {sr(SOTH)}, {p_}"); e(f"s_mov_b32 s{SOTH+2}, {n_}")
            e(f"buffer_load_dword v{244+k_}, v{vT0}, {srd(SOTH)}, 0 offen")
        e.label("L_notlb")
    if not O.rotA: e(f"s_mov_b32 s{sT3}, 0")
    e.label("L_notouch")
    e(f"s_mov_b64 {sr(SOUT)}, s[44:45]")
    def chunk(t):
        e(f"s_add_u32 s{sT2}, s{sT3}, {t}"); e(f"s_and_b32 s{sT2}, s{sT2}, 7")
        e(f"s_lshl_b32 s{sCX+t}, s{sT2}, 7"); e(f"s_add_u32 s{sCX+t}, s{sCX+t}, s{sT0}")
        e(f"s_mul_i32 s{sCW+t}, s{sT2}, {64*3072}"); e(f"s_add_u32 s{sCW+t}, s{sCW+t}, s{sT1}")
    chunk(0)
    for p in st_pieces(0): p()
    e(f"s_mov_b32 s{SDBG+2}, 256"); e(f"s_mov_b32 s{SDBG+3}, 0x20000")
    e(f"s_xor_b32 s{sT2}, s{sW}, 7"); e(f"s_or_b32 s{sT2}, s2, s{sT2}")
    def tag():
        e(f"s_memrealtime {sr(sNON)}"); e("s_waitcnt lgkmcnt(0)")
        e(f"s_or_b32 s{sNON+1}, s{sNON+1}, 0x80000000")
        e(f"v_mov_b32 v{vCV}, s{sNON}"); e(f"v_mov_b32 v{vCV+1}, s{sNON+1}")
        e("s_mov_b64 exec, 1")
        e(f"buffer_store_dwordx2 {vr(vCV,2)}, off, {srd(SDBG)}, 0 sc1")
        e("s_mov_b64 exec, -1")
    e.cond(f"s_cmp_eq_u32 s{sT2}, 0", tag)
    chunk(1)
    for p in st_pieces(1)[:4-O.late1]: p()
    for t in range(2, 8): chunk(t)
    e(f"s_mov_b32 s{SWO+2}, {512*1024}"); e(f"s_mov_b32 s{SWO+3}, 0x20000")
    e(f"s_mov_b32 s{SOUT+2}, {2048*2048}")
    e(f"s_mov_b32 s{SWS+2}, {WS_BYTES}"); e(f"s_mov_b32 s{SWS+3}, 0x20000")
    e(f"s_lshr_b32 s{sFT}, s{sW}, 2"); e(f"s_mul_i32 s{sTT}, s{sFT}, 3"); e(f"s_and_b32 s{sT0}, s{sW}, 3"); e(f"s_xor_b32 s{sTT}, s{sTT}, s{sT0}")
    e(f"s_lshl_b32 s{sT}, s{sRB}, 2"); e(f"s_add_u32 s{sT}, s{sT}, s{sTT}")
    e(f"v_and_b32 v{vT0}, 15, v{vL}"); e(f"v_lshrrev_b32 v{vT1}, 4, v{vL}")
    e(f"v_bfe_u32 v{vT2}, v{vL}, 1, 3"); e(f"v_xor_b32 v{vT2}, v{vT2}, v{vT1}"); e(f"v_lshlrev_b32 v{vT2}, 4, v{vT2}")
    e(f"v_lshl_add_u32 v{vXR}, v{vT0}, 7, v{vT2}")
    e(f"s_lshl_b32 s{sT0}, s{sTT}, 12"); e(f"v_add_u32 v{vXR}, s{sT0}, v{vXR}")
    e(f"v_xor_b32 v{vXR+1}, 64, v{vXR}")
    e(f"v_bfe_u32 v{vT2}, v{vL}, 2, 2"); e(f"v_lshlrev_b32 v{vWR}, 6, v{vT2}")
    e(f"v_bfe_u32 v{vT2}, v{vL}, 4, 1"); e(f"v_lshl_add_u32 v{vWR}, v{vT2}, 5, v{vWR}")
    e(f"v_and_b32 v{vT2}, 3, v{vL}"); e(f"v_lshl_add_u32 v{vWR}, v{vT2}, 3, v{vWR}")
    e(f"v_lshl_add_u32 v{vWR}, v{vT1}, 10, v{vWR}")
    e(f"s_lshl_b32 s{sT0}, s{sFT}, 9"); e(f"v_add_u32 v{vWR}, s{sT0}, v{vWR}")
    e(f"v_add_u32 v{vWR1}, 0x10000, v{vWR}"); e(f"v_xor_b32 v{vWR2}, 32, v{vWR1}")
    e(f"v_lshlrev_b32 v{vL16}, 4, v{vL}")
    e(f"s_lshl_b32 s{sT0}, s{sTT}, 13"); e(f"s_lshl_b32 s{sT1}, s{sFT}, 11"); e(f"s_add_u32 s{sT0}, s{sT0}, s{sT1}")
    e(f"s_add_u32 s{sT0}, s{sT0}, {L_KV + 8*8192}"); e(f"v_add_u32 v{vEXP}, s{sT0}, v{vL16}")
    e(f"s_lshl_b32 s{sT0}, s{sBR}, 3"); e(f"s_add_u32 s{sT0}, s{sT0}, s{sG}"); e(f"s_lshl_b32 s{sT0}, s{sT0}, 6"); e(f"s_add_u32 s{sT0}, s{sT0}, s{sT}")
    e(f"s_lshl_b32 s{sKV}, s{sT0}, 13"); e(f"s_add_u32 s{sKV}, s{sKV}, s{sT1}")
    e(f"s_lshl_b32 s{sF1}, s{sT0}, 8"); e(f"s_lshl_b32 s{sT1}, s{sFT}, 7"); e(f"s_add_u32 s{sF1}, s{sF1}, s{sT1}"); e(f"s_add_u32 s{sF1}, s{sF1}, {WS_F1}")
    e(f"s_sub_u32 s{sT0}, s{sT0}, s{sTT}"); e(f"s_add_u32 s{sT0}, s{sT0}, s{sW}"); e(f"s_sub_u32 s{sT0}, s{sT0}, 8")
    e(f"s_lshl_b32 s{sT1}, s{sRB}, 2"); e(f"s_add_u32 s{sT1}, s{sT1}, s{sW}"); e(f"s_cmp_lt_u32 s{sT1}, 8"); e(f"s_cselect_b32 s{sIMP}, 1, 0")
    e(f"s_cselect_b32 s{sT0}, 0, s{sT0}")
    e(f"s_lshl_b32 s{sIG}, s{sT0}, 13"); e(f"s_lshl_b32 s{sIF}, s{sT0}, 8"); e(f"s_add_u32 s{sIF}, s{sIF}, {WS_F1}")
    e(f"s_and_b32 s{sT0}, s{sF1}, 0xffffff00"); e(f"s_sub_u32 s{sT0}, s{sT0}, 256")
    e(f"s_cmp_eq_u32 s{sBR}, 0"); e(f"s_cselect_b32 s{sIMP}, s{sTT}, s{sIMP}"); e(f"s_cselect_b32 s{sIF}, s{sT0}, s{sIF}")
    e(f"s_lshl_b32 s{sT0}, s{sBR}, 6"); e(f"s_add_u32 s{sT0}, s{sT0}, s{sT}")
    e(f"s_lshl_b32 s{sT1}, s{sT0}, 4"); e(f"s_lshl_b32 s{sT2}, s{sG}, 1"); e(f"s_add_u32 s{sT1}, s{sT1}, s{sT2}"); e(f"s_add_u32 s{sT1}, s{sT1}, s{sFT}")
    e(f"s_lshl_b32 s{sOA}, s{sT1}, 11"); e(f"s_add_u32 s{sOA}, s{sOA}, {WS_O}")
    e(f"s_lshl_b32 s{sF2}, s{sT1}, 8"); e(f"s_add_u32 s{sF2}, s{sF2}, {WS_F2}")
    e(f"s_mov_b32 s{sEX}, 0xffff"); e(f"s_mov_b32 s{sEX+1}, 0xffff")
    e(f"s_lshl_b32 s{sT0}, s{sXCD}, 1"); e(f"s_bfe_u32 s{sT1}, s{sJ}, 0x10003"); e(f"s_add_u32 s{sT0}, s{sT0}, s{sT1}")
    e(f"s_lshl_b32 s{sT0}, s{sT0}, 2"); e(f"s_and_b32 s{sT1}, s{sW}, 3"); e(f"s_add_u32 s{sT3P}, s{sT0}, s{sT1}")
    e(f"s_cmp_eq_u32 s{sBR}, 0"); e("s_cbranch_scc1 L_maskA")
    masks("B"); e("s_branch L_maskdone")
    e.flush()
    e.label("L_maskA"); masks("A")
    e.label("L_maskdone")
    if O.warm:
        e(f"s_cmp_eq_u32 s{sBR}, 0"); e("s_cbranch_scc1 L_warm"); e.label("L_warmA")
    e(f"v_lshlrev_b32 v{vL8}, 3, v{vL}")
    e(f"v_and_b32 v{vFL+2}, 1, v{vL}"); e(f"v_lshlrev_b32 v{vFL+2}, 7, v{vFL+2}"); e(f"v_and_b32 v{vFL+3}, 2, v{vL}"); e(f"v_lshl_add_u32 v{vFL+2}, v{vFL+3}, 17, v{vFL+2}")
    e(f"v_mov_b32 v{vONE}, 0"); e("s_mov_b32 exec_lo, 0x110000"); e("s_mov_b32 exec_hi, 0x110000"); e(f"v_mov_b32 v{vONE}, 0x3f803f80"); e("s_mov_b64 exec, -1")
    for p in st_pieces(1)[4-O.late1:]: p()
    if O.prew0:
        e("s_mov_b32 exec_hi, 0")
        e.vm(f"buffer_store_dwordx2 {vr(vL16,2)}, v{vL8}, {srd(SWS)}, s{sF2} offen sc1", "prew")
        e("s_mov_b32 exec_lo, 0xffff"); e(f"s_add_u32 s{sT0}, s{sF1}, {F1V}")
        e.vm(f"buffer_store_dwordx2 {vr(vL16,2)}, v{vL8}, {srd(SWS)}, s{sF1} offen sc1", "prew")
        e.vm(f"buffer_store_dwordx2 {vr(vL16,2)}, v{vL8}, {srd(SWS)}, s{sT0} offen sc1", "prew")
        e("s_mov_b64 exec, -1")
    if O.stlb:
        e(f"s_add_u32 s{sVM}, s{SWS}, {WS_F1 + 0xff000}"); e(f"s_addc_u32 s{sVM+1}, s{SWS+1}, 0")
        e.cond(f"s_cmp_eq_u32 s{sW}, 0", lambda: e(f"s_load_dword s{sPEND}, {sr(sVM)}, 0"))

def flag_store(soff, s_=SWS, off=0):
    e("s_mov_b64 exec, 0xffff")
    e.vm(f"buffer_store_dwordx2 {vr(vNON,2)}, v{vL8}, {srd(s_)}, s{soff} offen{f' offset:{off}' if off else ''} sc1", "flag")
    e("s_mov_b64 exec, -1")
def flag_ld(tag):
    e.vm(f"buffer_load_dwordx4 {vr(vFL,4)}, off, {srd(SWS)}, s{sIF} sc1", tag)
def flag_cmp():
    e(f"v_cmp_ne_u64 vcc, {sr(sNON)}, {vr(vFL,2)}"); e(f"v_cmp_ne_u64 {sr(sVM)}, {sr(sNON)}, {vr(vFL+2,2)}")
    e(f"s_or_b64 {sr(sVM)}, {sr(sVM)}, vcc")
def flag_poll():
    L = e.newlab("L_fp"); D = L + "d"
    e(f"s_mov_b32 s{sCNT}, 0")
    e.label(L)
    e(f"buffer_load_dwordx4 {vr(vFL,4)}, off, {srd(SWS)}, s{sIF} sc1")
    e(f"s_add_u32 s{sCNT}, s{sCNT}, 1"); e(f"s_cmp_gt_u32 s{sCNT}, {O.pollmax}"); e(f"s_cbranch_scc1 {D}")
    e("s_waitcnt vmcnt(0)")
    flag_cmp(); e(f"s_cbranch_scc1 {L}")
    e.label(D)
def spoll(soff, offs):
    L = e.newlab("L_sp"); D = L + "d"
    e(f"s_add_u32 s{sVM}, s{SWS}, s{soff}"); e(f"s_addc_u32 s{sVM+1}, s{SWS+1}, 0"); e(f"s_mov_b32 s{sCNT}, 0")
    e.label(L)
    w32 = O.sp32 and len(offs) > 4
    for i, o in enumerate(offs): e(f"s_load_dword s{sVMK+i}, {sr(sVM)}, {o} glc" if w32 else f"s_load_dwordx2 {sr(sVMK+2*i)}, {sr(sVM)}, {o} glc")
    e(f"s_add_u32 s{sCNT}, s{sCNT}, 1"); e(f"s_cmp_gt_u32 s{sCNT}, {O.pollmax}")
    e("s_waitcnt lgkmcnt(0)")
    e(f"s_cbranch_scc1 {D}")
    n2 = len(offs)//2 if w32 else len(offs)
    for i in range(n2): e(f"s_xor_b64 {sr(sVMK+2*i)}, {sr(sVMK+2*i)}, {sr(sT2) if w32 else sr(sNON)}")
    for i in range(1, n2): e(f"s_or_b64 {sr(sVMK)}, {sr(sVMK)}, {sr(sVMK+2*i)}")
    e(f"s_cbranch_scc1 {L}")
    e.label(D)
def vpoll(mask):
    L = e.newlab("L_vp"); D = L + "d"
    e(f"s_mov_b32 s{sCNT}, 0"); e(f"s_mov_b64 exec, {mask}")
    e.label(L)
    e(f"buffer_load_dwordx2 {vr(vFL,2)}, v{vFL+2}, {srd(SWS)}, s{sIF} offen sc1")
    e(f"s_add_u32 s{sCNT}, s{sCNT}, 1"); e(f"s_cmp_gt_u32 s{sCNT}, {O.pollmax}")
    e("s_waitcnt vmcnt(0)")
    e(f"v_cmp_ne_u64 vcc, {sr(sNON)}, {vr(vFL,2)}")
    e(f"s_cbranch_scc1 {D}"); e(f"s_cbranch_vccnz {L}")
    e.label(D)
    e("s_mov_b64 exec, -1")
def imp_dma(v, track=None):
    e(f"s_lshl_b32 s{sT1}, s{sW}, 13"); e(f"s_add_u32 m0, s{sT1}, {L_KV + v*4096}")
    e(f"s_add_u32 s{sT0}, s{sIG}, {v*4096}")
    for k in range(4):
        t = f"buffer_load_dwordx4 v{vL16}, {srd(SIMP)}, s{sT0} offen offset:{k*1024} sc1 lds"
        if track: e.vm(t, track)
        else: e(t)

def touch_wo(s_, tmp):
    e(f"s_and_b32 s{sT0}, s{sJ}, 15"); e(f"s_lshl_b32 s{sT0}, s{sT0}, 3"); e(f"s_add_u32 s{sT0}, s{sT0}, s{sW}")
    e(f"s_lshl_b32 s{sT0}, s{sT0}, 12"); e(f"v_lshlrev_b32 v{tmp}, 7, v{vL}")
    e("s_mov_b32 exec_hi, 0")
    e(f"buffer_load_dword v{tmp+1}, v{tmp}, {srd(s_)}, s{sT0} offen")
    e("s_mov_b32 exec_hi, -1")

def imports():
    e.wait_vm("look")
    e(f"v_cmp_ne_u64 vcc, {sr(sNON)}, {vr(vFL,2)}")
    e(f"s_and_b32 s{sT0}, vcc_lo, 3"); e(f"s_cselect_b32 s{sPEND}, s{SIMP+2}, 0")
    if O.stamps == 1: e(f"s_min_u32 s{ST0+24}, s{sPEND}, 1000"); e(f"s_add_u32 s{ST0+24}, s{ST0+24}, s{ST0}")
    e(f"s_cmp_lg_u32 s{sPEND}, 0"); e("s_cbranch_scc1 L_nov")
    imp_dma(0)
    e.label("L_nov")
def look(mask):
    e(f"s_mov_b64 exec, {mask}")
    e.vm(f"buffer_load_dwordx2 {vr(vFL,2)}, v{vFL+2}, {srd(SIMP)}, s{sIF} offen sc1", "look")
    e("s_mov_b64 exec, -1")

def p1():
    e.stamp(12)
    def rd(q, part=None):
        w = WF[q % 8]; p = q & 1
        if q < 64:
            t, r_ = divmod(q, 8); st, ty = r_ >> 2, (r_ >> 1) & 1
            if ty == 0 and part != 1: e.ds(f"ds_read_b128 {vr(vXF+8*(q>>2)+4*p,4)}, v{vXR+st} offset:{(t%4)*16384 + p*2048}", f"w{q}")
            b, off = (vWR1, vWR2)[p], (t % 4)*16384 + ty*8192 + st*4096
        elif q < 80: b, off = (vWR1, vWR2)[p], ((q-64) >> 1)*4096
        else: b, off = (vWR, vWR1)[p], ((q-80) >> 1)*4096
        if part != 1: e.ds(f"ds_read_b64_tr_b16 {vr(w,2)}, v{b} offset:{off}", f"w{q}")
        if part != 0: e.ds(f"ds_read_b64_tr_b16 {vr(w+2,2)}, v{b} offset:{off+256}", f"w{q}")
    LA = O.la
    syncs = {8*t - LA: (f"st{t}", None) for t in range(1, 8)}
    syncs.update({64-LA: ("wq1", None), 72-LA: ("wq7", None), 80: ("none", "exp")})
    gap = {k: [] for k in range(-1, 96)}
    def I(t): return lambda: e(t)
    def wq(t): return lambda: dma(vW0, SW, sCW+t, (L_WV + t*8192) if t < 4 else (t-4)*8192, f"wq{t}")
    for i, p in enumerate(st_pieces(2)): gap[[-1, 0, 1, 2][i] if LA == 4 else [-1, -1, 0, 1][i]].append(p)
    for t in range(3, 8):
        for i, p in enumerate(st_pieces(t)): gap[8*(t-2) - LA + [[0, 2, 4, 6], [0, 1, 2, 3], [0, 1, 3, 5]][O.stg][i]].append(p)
    gap[47-LA].append(I(f"v_subrev_u32 v{vW0}, 0x400, v{vW0}"))
    for t, k in enumerate([44, 46, 52, 54, 48, 50, 56, 58]): gap[k+4-LA].append(wq(t))
    gap[60].append(lambda: e.vm(f"buffer_load_dwordx2 {vr(vNON,2)}, off, {srd(SDBG)}, 0 sc1", "non"))
    gap[47] += [I(f"s_mov_b64 {sr(SEXP)}, {sr(SWS)}"), I(f"s_lshl_b32 s{sT0}, s{sBR}, 2"), I(f"s_or_b32 s{sT0}, s{sT0}, s{sTT}")]
    gap[49] += [I(f"s_cmp_ge_u32 s{sT0}, 3"), I(f"s_cselect_b32 s{SEXP+2}, s{SWS+2}, 0")]
    def export(k0, kd, acc, off, tag):
        for h in range(2):
            for i in range(4*h, 4*h+4): gap[k0+h].append(lambda i=i: cvt(acc, acc, i))
            t_ = acc + 4*h
            gap[k0+h] += [I("s_nop 0"), I(f"v_permlane16_swap_b32 v{t_}, v{t_+2}"), I(f"v_permlane16_swap_b32 v{t_+1}, v{t_+3}")]
            if off: gap[k0+h] += [I("s_nop 0"), I(f"v_permlane32_swap_b32 v{t_}, v{t_+2}"), I(f"v_permlane32_swap_b32 v{t_+1}, v{t_+3}")]
            if off and not h: gap[k0].append(I(f"s_add_u32 s{sKV}, s{sKV}, {off}"))
            gap[k0+h].append(lambda h=h: e.vm(f"buffer_store_dwordx4 {vr(acc+4*h,4)}, v{vL16}, {srd(SEXP)}, s{sKV} offen offset:{1024*h} sc1", tag))
            gap[kd+2*h].append(lambda h=h: e.ds(f"ds_write_b128 v{vEXP}, {vr(acc+4*h,4)} offset:{off+1024*h}", "exp"))
    export(O.kex, 71, accA, 0, "kst"); export(O.vex, 75, accB, 4096, "vst")
    def tagrd():
        e.wait_vm("non")
        e(f"v_readfirstlane_b32 s{sNON}, v{vNON}"); e(f"v_readfirstlane_b32 s{sNON+1}, v{vNON+1}")
        def late():
            L = e.newlab("L_tag"); D = L + "d"
            e(f"s_mov_b32 s{sCNT}, 0")
            e.label(L)
            e(f"buffer_load_dwordx2 {vr(vNON,2)}, off, {srd(SDBG)}, 0 sc1"); e("s_waitcnt vmcnt(0)")
            e(f"v_readfirstlane_b32 s{sNON}, v{vNON}"); e(f"v_readfirstlane_b32 s{sNON+1}, v{vNON+1}")
            e(f"s_add_u32 s{sCNT}, s{sCNT}, 1"); e(f"s_cmp_gt_u32 s{sCNT}, {O.pollmax}"); e(f"s_cbranch_scc1 {D}")
            e(f"s_cmp_eq_u32 s{sNON+1}, 0"); e(f"s_cbranch_scc1 {L}")
            e.label(D)
        e("s_nop 0")
        e.cond(f"s_cmp_eq_u32 s{sNON+1}, 0", late)
    gap[72].append(tagrd)
    gap[O.kflag].append(lambda: (e.wait_vm("kst"), flag_store(sF1, SEXP)))
    gap[O.vflag].append(lambda: (e(f"s_add_u32 s{sF1}, s{sF1}, {F1V}"), e.wait_vm("vst"), flag_store(sF1, SEXP), e.stamp(5)))
    def prew():
        e("s_mov_b32 exec_hi, 0")
        e.vm(f"buffer_store_dwordx2 {vr(vL16,2)}, v{vL8}, {srd(SWS)}, s{sF2} offen sc1", "prew")
        e("s_mov_b32 exec_hi, -1")
    if O.prew and not O.prew0: gap[O.prew].append(prew)
    def prew2():
        e("s_mov_b64 exec, 0xffff"); e(f"s_add_u32 s{sT1}, s{sF1}, {F1V}")
        e.vm(f"buffer_store_dwordx2 {vr(vL16,2)}, v{vL8}, {srd(SEXP)}, s{sF1} offen sc1", "prew")
        e.vm(f"buffer_store_dwordx2 {vr(vL16,2)}, v{vL8}, {srd(SEXP)}, s{sT1} offen sc1", "prew")
        e("s_mov_b64 exec, -1")
    if O.prew2: gap[O.prew2].append(prew2)
    gap[78] += [I(f"v_add_u32 v{vKA8}, {-8*8192 & 0xffffffff:#x}, v{vEXP}"), I(f"v_add_u32 v{vKA}, 0x2000, v{vKA8}"), I(f"v_and_b32 v{vVA8}, 0xfffffeff, v{vKA8}")]
    gap[79] += [I(f"v_add_u32 v{vVA8}, 0x1000, v{vVA8}"), I(f"v_add_u32 v{vVA}, 0x2000, v{vVA8}")]
    gap[79-LA].append(I(f"v_xor_b32 v{vWR1}, 32, v{vWR}"))
    gap[76] += [I(f"s_mov_b64 {sr(SIMP)}, {sr(SWS)}"), I(f"s_cmp_lg_u32 s{sIMP}, 0"), I(f"s_cselect_b32 s{SIMP+2}, 0, s{SWS+2}")]
    for i in range(24): gap[82 + i//2].append(I(f"v_mov_b32 v{vV+i}, v{vONE}"))
    gap[88].append(lambda: e.ds(f"ds_read_b128 {vr(vK,4)}, v{vKA} offset:{7*8192 + 1024}", "k0"))
    gap[88].append(lambda: e.ds(f"ds_read_b128 {vr(vK+4,4)}, v{vKA} offset:{7*8192}", "k0"))
    gap[O.hsmp].insert(0, lambda: look(3))
    gap[O.vsmp].append(lambda: look(12))
    def ev():
        e(f"s_cmp_eq_u32 s{sBR}, 0"); e("s_cbranch_scc1 L_nov"); imports()
    if O.ev: gap[O.ev].append(ev)
    gap[95] += [I(f"s_mov_b32 s{sT2}, 0x3eb8aa3b"), I(f"s_mov_b32 s{sT3}, 0x3eb8aa3b")]

    if O.hold:
        e(f"s_cmp_lg_u32 s{sBR}, 0"); e("s_cbranch_scc1 L_nohold")
        e.label("L_hold"); e("s_sleep 2"); e(f"s_memrealtime {sr(sVM)}"); e("s_waitcnt lgkmcnt(0)"); e(f"s_sub_u32 s{sVM}, s{sVM}, s100")
        e(f"s_cmp_lt_u32 s{sVM}, {O.hold}"); e("s_cbranch_scc1 L_hold")
        e.label("L_nohold")
    e.wait_vm("st0"); e("s_barrier"); e.stamp(1)
    for q in range(LA): rd(q)
    for f in gap[-1]: f()
    bars = sorted(syncs) + [96]
    HOIST[0] = True
    for q in range(96):
        if q % 8 == 0: e.c(f"---- P1 mfma {q}")
        if q in syncs:
            tag, lg = syncs[q]
            e.wait_vm(tag)
            if lg is True: e.ds_all()
            elif lg: e.wait_ds(lg)
            e("s_barrier")
        if q == 64: e.stamp(2)
        if q % 8 == 4: e.stamp(q//8 + 1, 2)
        if O.p1prio and q >= O.pq:
            a = max(x for x in bars if x <= q); b_ = min(x for x in bars if x > q)
            step = (b_ - a) // 4
            if (q - a) % step == 0 and (q - a) // step < 4: e(f"s_setprio {3 - (q - a)//step}")
        p = q & 1; isv = q < 64 and (q >> 1) & 1
        e.wait_ds(f"w{q | 1}" if (O.w2 or (q < 64 and not isv)) else f"w{q}")
        acc = accQ if q >= 64 else (accB if isv else accA)
        for a in range(2):
            x = vXF + (8*(q >> 2) if q < 64 else 8*((q-64) >> 1)) + 4*a; w = WF[q % 8]
            d = acc + (8*a + 4*p if isv else 8*p + 4*a)
            c = "0" if (q < 4 or 64 <= q < 66) else vr(d, 4)
            ops = (x, w) if isv else (w, x)
            e(f"v_mfma_f32_16x16x32_bf16 {vr(d,4)}, {vr(ops[0],4)}, {vr(ops[1],4)}, {c}")
            if q + LA < 96:
                if O.il: rd(q+LA, a)
                elif a == 0: rd(q+LA)
        for f in gap[q]: f()

def p1_done():
    assert not e.lq, e.lq
def wo_addr():
    e(f"v_bfe_u32 v{vWO}, v{vL}, 2, 3"); e(f"s_lshl_b32 s{sT0}, s{sW}, 3"); e(f"v_add_u32 v{vWO}, s{sT0}, v{vWO}"); e(f"v_lshlrev_b32 v{vWO}, 10, v{vWO}")
    e(f"v_lshrrev_b32 v{vWR}, 5, v{vL}"); e(f"v_lshl_add_u32 v{vWO}, v{vWR}, 6, v{vWO}"); e(f"v_and_b32 v{vWR}, 3, v{vL}"); e(f"v_lshl_add_u32 v{vWO}, v{vWR}, 4, v{vWO}")
    e(f"s_and_b32 s{sT0}, s{sJ}, 7"); e(f"s_lshl_b32 s{sT0}, s{sT0}, 7"); e(f"v_add_u32 v{vWO}, s{sT0}, v{vWO}")
def wo_piece(i, base=0):
    e(f"s_add_u32 m0, s{sM0}, {base + i*8192}"); e(f"s_mov_b32 s{sT0}, {i*65536}")
    e(f"buffer_load_dwordx4 v{vWO}, {srd(SWO)}, s{sT0} offen lds")

def norm(o, dst):
    e(f"v_rcp_f32 v{o+10}, v{o+8}")
    e(f"v_pk_add_f32 {vr(o+12,2)}, {vr(o,2)}, {vr(o+2,2)}"); e(f"v_pk_add_f32 {vr(o+14,2)}, {vr(o+4,2)}, {vr(o+6,2)}")
    for i in range(4): e(f"v_pk_mul_f32 {vr(o+2*i,2)}, {vr(o+2*i,2)}, {vr(o+10,2)} op_sel_hi:[1,0]")
    e(f"v_pk_add_f32 {vr(o+12,2)}, {vr(o+12,2)}, {vr(o+14,2)}")
    cvt8(dst, o)
    e(f"v_add_f32 v{o+12}, v{o+12}, v{o+13}"); e(f"v_fma_f32 v{o+8}, v{o+12}, 0, v{o+8}")
def check(os_, slowlab):
    for n, o in enumerate(os_):
        e(f"v_subrev_u32 v{o+8}, 0x2b800000, v{o+8}")
        if n: e(f"v_max_u32 v{os_[0]+8}, v{os_[0]+8}, v{o+8}")
    e(f"v_cmp_lt_u32 vcc, 0x28000000, v{os_[0]+8}")
    if slowlab is None:
        e(f"s_or_b32 s{sBAD}, vcc_lo, vcc_hi")
        if O.force_slow: e(f"s_mov_b32 s{sBAD}, 1")
    elif O.force_slow: e(f"s_branch {slowlab}")
    else: e(f"s_cbranch_vccnz {slowlab}")
def prefill(regs):
    e(f"s_mov_b32 s{sT0}, 0x3f803f80")
    for i in regs: e(f"v_mov_b32 v{i}, s{sT0}")
def rdK(i, u, dst):
    if i < 8: e(f"ds_read_b128 {vr(dst,4)}, v{vKA} offset:{(7-i)*8192 + u*1024}")
    else: e(f"ds_read_b128 {vr(dst,4)}, v{vKA8} offset:{u*1024}")
def rdV(i, u, dst, dyn=True, restore=True):
    e(f"s_mov_b64 exec, {sr(sVMK+2*(i-1)) if dyn and i > 0 else sr(sEX)}")
    b, off = (vVA, (7-i)*8192) if i < 8 else (vVA8, 0)
    e(f"ds_read_b128 {vr(dst,4)}, v{b} offset:{off + u*256}")
    e(f"ds_read_b128 {vr(dst+4,4)}, v{b} offset:{off + u*256 + 1024}")
    if restore: e("s_mov_b64 exec, -1")

def attention():
    e.c("---- Q epilogue")
    e.stamp(4)
    def qscale(h):
        for i in range(4*h, 4*h+4): e(f"v_pk_mul_f32 {vr(accQ+2*i,2)}, {vr(accQ+2*i,2)}, {sr(sT2)}")
        for i in (0, 2, 1, 3): cvt(vQ2, accQ, 4*h + i)
        e("s_nop 0"); e(f"v_permlane16_swap_b32 v{vQ2+4*h}, v{vQ2+4*h+2}"); e(f"v_permlane16_swap_b32 v{vQ2+4*h+1}, v{vQ2+4*h+3}")
    e(f"s_cmp_eq_u32 s{sBR}, 0"); e("s_cbranch_scc1 L_attnA")
    e.c("---- attention B")
    e.cond(f"s_cmp_lg_u32 s{sPEND}, 0", lambda: (vpoll(3), imp_dma(0), look(12)))
    e("s_nop 3")
    qscale(1); qscale(0)
    def kbar():
        if O.warm: e("s_branch L_warm"); e.label("L_warmB")
        wo_addr()
        for i in range(1, 9): e(f"s_cmp_le_u32 {i}, s{sT}"); e(f"s_cselect_b64 {sr(sVMK+2*(i-1))}, {sr(sEX)}, -1")
        for i in range(12, 16): e(f"v_pk_mov_b32 {vr(vV+2*i,2)}, {vr(vONE-1,2)}, {vr(vONE-1,2)} op_sel:[1,1]")
        e(f"s_waitcnt vmcnt({4 if O.vpos == 1 else 1})"); e("s_barrier"); e.stamp(6)
    def vbar():
        e(f"s_waitcnt vmcnt({(2 if O.tchA < O.lag else 0) + (1 if O.hint and O.poi_at < O.lag else 0)})"); e("s_barrier"); e.stamp(13)
    def tchA():
        if not O.tchB: touch_wo(SWO, vU0+2)
        e(f"s_mov_b64 {sr(SOWO)}, {sr(sOW)}"); e(f"s_mov_b32 s{SOWO+2}, {512*1024}")
        touch_wo(SOWO, vU0)
    def sample02():
        f3_addr()
        e("s_mov_b64 exec, 0x55555555")
        e(f"buffer_load_dwordx2 {vr(vFL,2)}, v{vF}, {srd(SWS)}, s{sF3} offen sc1")
        e("s_mov_b64 exec, -1")
    L = O.lag
    seq = [(1, 0), (0, 0)] + [(0, i) for i in range(1, 9)] + [(1, i) for i in range(1, 9)]
    pv = {n: [] for n in range(19)}
    pv[1].append(0); pv[2].append(1); m = 2
    for n in range(L+1, 19):
        for _ in range(2):
            if m < n and m < 18: pv[n].append(m); m += 1
    assert m == 18
    def P(m): return PB + 8*(m % 8)
    def V(m): return vV + 8*(m % 4)
    def ex(n, r): e(f"v_exp_f32 v{vS+16*(n%2)+r}, v{vS+16*(n%2)+r}")
    def pvm(m, kb):
        o = vO + 16*seq[m][0]
        mfma(o, V(m)+4*kb, P(m)+4*kb, "0" if (m < 2 and kb == 0) else o)
    def qk(n):
        u1, i1 = seq[n]
        mfma(vS+16*(n % 2), vK+4*(n % 2), vQ2 + 4*u1, vML if i1 == 0 else (vMF if i1 == 8 else "0"))
    assert max(n for n in pv if 9 in pv[n]) < O.epi
    q4 = (18 - L) // 4
    prio = {0: 1, 1: 0, 2: 1, 3: 0, L: 3, L+q4+1: 2, L+2*q4+1: 1, L+3*q4+2: 0}
    qk(0)
    e("s_nop 0")
    e("s_nop 6")
    for n in range(19):
        s_ = vS + 16*(n % 2)
        e.c(f"task {n}")
        if n < 11: e.stamp(n+1, 4)
        if n >= 8: e.stamp(n-7, 5)
        if O.fair and n in prio: e(f"s_setprio {prio[n]}")
        if n == O.vpos:
            e("s_waitcnt vmcnt(0)")
            e(f"v_cmp_ne_u64 vcc, {sr(sNON)}, {vr(vFL,2)}")
            e(f"s_and_b32 s{sT0}, vcc_lo, 12"); e(f"s_cselect_b32 s{sT0}, s{SIMP+2}, 0")
            e.cond(f"s_cmp_lg_u32 s{sT0}, 0", lambda: vpoll(12))
            imp_dma(1)
        if n == L: vbar()
        if n == O.oflag:
            younger = sum(8*(t-O.wo_at+1)//O.wo_n - 8*(t-O.wo_at)//O.wo_n for t in range(O.epi+1, n) if O.wo_at <= t < O.wo_at + O.wo_n)
            e(f"s_waitcnt vmcnt({younger})")
            e(f"s_cmp_lg_u32 s{sBAD}, 0"); e("s_cbranch_scc1 L_noflag0"); flag_store(sF2); e.label("L_noflag0")
        if O.wo_at <= n < O.wo_at + O.wo_n:
            for p_ in range(8*(n-O.wo_at)//O.wo_n, 8*(n-O.wo_at+1)//O.wo_n): wo_piece(p_)
        if n == O.poi_at and O.hint:
            for i_ in range(4): e(f"v_mov_b32 v{vP+4+i_}, -1")
            e(f"buffer_store_dwordx4 {vr(vP+4,4)}, v{vL16}, {srd(SWS)}, s{sOA} offen offset:1024 sc1")
        if n == O.tchA: tchA()
        if n == O.tE: e.cond(f"s_cmp_lt_u32 s{sW}, 4", lambda: (f3_addr(), o_touch(0x00ff00ff, 0)))
        if n == O.smp_at: e.cond(f"s_cmp_lt_u32 s{sW}, 4", sample02)
        nxt = pv[n+1] if n < 18 else []
        fresh = [m for m in nxt if 10 <= m < 14]
        if fresh: e.cond(f"s_cmp_lt_u32 s{sT}, 8", lambda fresh=fresh: [e(f"v_mov_b32 v{V(m)+k}, v{vONE}") for m in fresh for k in range(8)])
        cnt = 0
        if 1 < n < 17: rdK(seq[n+1][1], seq[n+1][0], vK+4*((n+1) % 2)); cnt += 1
        for k, m in enumerate(nxt): rdV(seq[m][1], seq[m][0], V(m), restore=(k == len(nxt)-1)); cnt += 2
        mf = [(m, kb) for m in pv[n] for kb in range(2)]
        if n == 18:
            e("s_waitcnt lgkmcnt(0)"); e("s_nop 0")
            for x in mf: pvm(*x)
            break
        first = [True]
        def slot():
            if mf:
                if first[0]: e(f"s_waitcnt lgkmcnt({cnt})"); first[0] = False
                pvm(*mf.pop(0))
        two = len(mf) > 2
        for r in range(4): ex(n, r)
        slot()
        for r in range(4, 8): ex(n, r)
        if n == 1: slot(); kbar(); rdK(1, 0, vK)
        elif n < 17:
            if n: e(f"s_waitcnt lgkmcnt({cnt-1})")
            qk(n+1)
        cvt8(P(n), s_)
        for r in range(8, 10): ex(n, r)
        if two: slot()
        for r in range(10, 12): ex(n, r)
        if not two: slot()
        if n == 1: e("s_waitcnt lgkmcnt(0)"); qk(2)
        for r in range(12, 14): ex(n, r)
        slot()
        for r in range(14, 16): ex(n, r)
        cvt8(P(n)+4, s_+8)
        slot()
        if n == 1: e("s_nop 3")
        if n == O.epi:
            norm(vO, vP); check([vO], None)
            e(f"buffer_store_dwordx4 {vr(vP,4)}, v{vL16}, {srd(SWS)}, s{sOA} offen sc1")
    e("s_nop 11")
    norm(vO+16, vP+4); check([vO+16], "L_B_slow1")
    e.label("L_B_ok1")
    if O.hint:
        for i_ in range(4): e(f"v_min_u32 v{vP+4+i_}, -2, v{vP+4+i_}")
    if O.sprio: e("s_setprio 2")
    e(f"buffer_store_dwordx4 {vr(vP+4,4)}, v{vL16}, {srd(SWS)}, s{sOA} offen offset:1024 sc1")
    if O.sprio: e("s_setprio 0")
    e(f"s_cmp_lg_u32 s{sBAD}, 0"); e("s_cbranch_scc1 L_B_slow0")
    e.label("L_B_ok0")
    e.stamp(7); e.stamp(12, 7)
    e(f"s_cmp_lt_u32 s{sW}, 4"); e("s_cbranch_scc0 L_young")
    if O.hint: e("s_waitcnt vmcnt(2)"); e.stamp(8); e("s_barrier")
    e(f"s_mov_b32 s{sHM}, 0")
    f3_groups()
    if O.swp:
        e(f"s_and_b32 s{sT0}, s{sJ}, 1"); e(f"s_lshl_b32 s{sT0}, s{sT0}, 11")
        for q in range(4): e(f"s_xor_b32 s{sG0+q}, s{sG0+q}, s{sT0}")
    e("s_waitcnt vmcnt(1)")
    e("s_mov_b64 exec, 0x55555555")
    e(f"v_cmp_ne_u64 vcc, {sr(sNON)}, {vr(vFL,2)}")
    e("s_mov_b64 exec, -1")
    e(f"s_mov_b32 s{sT3}, 0"); e(f"s_mov_b32 s{sNR}, vcc_lo")
    e("s_cbranch_vccnz L_p3again")
    e.label("L_p3even"); e.stub()
    if O.bpre > 8:
        pass
    for k in range(O.ad): o_ld(k, sG0 + k//8)
    p3_setup()
    e(f"s_mov_b32 s{SLD+2}, 0")
    if not O.hint: e(f"s_waitcnt vmcnt({O.ad})"); e.stamp(8); e("s_barrier")
    e("s_branch L_p3go")
    e.label("L_p3again")
    e(f"s_mov_b32 exec_lo, s{sNR}"); e("s_mov_b32 exec_hi, 0")
    e(f"buffer_load_dwordx2 {vr(vFL,2)}, v{vF}, {srd(SWS)}, s{sF3} offen sc1")
    e("s_mov_b64 exec, -1")
    p3_setup()
    e(f"s_mov_b32 s{SLD+2}, 0")
    if not O.hint: e("s_waitcnt vmcnt(1)"); e.stamp(8); e("s_barrier")
    e("s_waitcnt vmcnt(0)")
    e(f"v_cmp_eq_u64 vcc, {sr(sNON)}, {vr(vFL,2)}")
    e(f"s_andn2_b32 s{sNR}, s{sNR}, vcc_lo")
    poll3(0x55555555, 0x55555555)
    for k in range(O.ad): o_ld(k, sG0 + k//8)
    e("s_branch L_p3go")
    e.label("L_young"); e.stub()
    e(f"s_waitcnt vmcnt({1 if O.hint else 0})")
    e.label("L_youngA")
    e("s_mov_b64 exec, 0xffff")
    e(f"s_cmp_eq_u32 s{sW}, 4"); e(f"s_cselect_b32 s{SEXP+2}, s{SWS+2}, 0")
    if O.fprio: e("s_setprio 3")
    e("s_waitcnt vmcnt(8)"); e.stamp(8); e("s_barrier")
    e.stamp(1, 8)
    e(f"buffer_store_dwordx2 {vr(vNON,2)}, v{vL8}, {srd(SEXP)}, s{sF2} offen offset:128 sc1")
    e("s_mov_b64 exec, -1")
    e.stamp(2, 8)
    if O.stamps == 8: e("s_waitcnt vmcnt(0)"); e.stamp(3, 8); e(f"s_memrealtime {sr(ST0+12)}")
    e(f"s_cmp_lg_u32 s{sW}, 4"); e("s_cbranch_scc1 L_rest")
    f3_addr()
    e(f"s_add_u32 s{sF3}, s{sF3}, {3*4096}")
    e(f"s_mov_b32 s{sT2}, s{sNON}"); e(f"s_mov_b32 s{sT3}, s{sNON}")
    if O.pdelay: e(f"s_sleep {O.pdelay}")
    spoll(sF3, [384 + 512*g_ for g_ in range(8)])
    e.stamp(10); e.stamp(4, 8)
    if O.stamps == 8:
        e(f"s_memrealtime {sr(ST0+14)}"); e("s_waitcnt lgkmcnt(0)"); e(f"s_add_u32 s{ST0+10}, s{ST0}, s{sCNT}")
        for q_ in (12, 14): e(f"s_and_b32 s{ST0+q_}, s{ST0+q_}, 0xffff"); e(f"s_add_u32 s{ST0+q_}, s{ST0+q_}, s{ST0}")
    e("s_waitcnt vmcnt(1)")
    e("s_barrier")
    e.label("L_rest")
    e("s_waitcnt vmcnt(0)")
    e("s_branch L_stamps" if O.stamps else "s_endpgm")
    e.flush()

    e.c("---- attention A")
    if O.warm:
        e.label("L_warm")
        e("s_mov_b64 exec, 0")
        for i in range(7): e(f"s_cmp_eq_u32 s{sW}, {i}"); e(f"s_cbranch_scc1 L_stub{i}")
        e("s_branch L_stub7")
        e.label("L_warmed"); e("s_mov_b64 exec, -1")
        e(f"s_cmp_eq_u32 s{sBR}, 0"); e("s_cbranch_scc1 L_warmA"); e("s_branch L_warmB")
    e.label("L_attnA")
    KP, VP = 176, 160
    if not O.spoll:
        e(f"s_and_b32 s{sIF}, s{sF1}, 0xffffff00"); e(f"s_sub_u32 s{sIF}, s{sIF}, 136")
        flag_ld("x")
    e.stamp(6)
    def halo():
        L = e.newlab("L_h")
        e(f"s_cmp_eq_u32 s{sT}, 0"); e(f"s_cbranch_scc1 L_A_nh")
        e("s_waitcnt vmcnt(0)")
        e(f"v_cmp_ne_u64 vcc, {sr(sNON)}, {vr(vFL,2)}")
        e(f"s_and_b32 s{sT0}, vcc_lo, 12"); e(f"s_cbranch_scc0 {L}")
        vpoll(12)
        e.label(L)
        e(f"s_sub_u32 s{sT0}, s{sKV}, {8192 + 4096}"); e(f"s_sub_u32 s{sT1}, s{sKV}, {8192 - 1024}")
        e(f"v_and_b32 v{vFL}, 0x2ff, v{vL16}")
        for h in range(2): e(f"buffer_load_dwordx4 {vr(KP+4*h,4)}, v{vL16}, {srd(SWS)}, s{sT0} offen offset:{h*1024} sc1")
        e(f"s_mov_b64 exec, {sr(sEX)}")
        for h in range(2): e(f"buffer_load_dwordx4 {vr(VP+4*h,4)}, v{vFL}, {srd(SWS)}, s{sT1} offen offset:{h*256} sc1")
        e("s_mov_b64 exec, -1")
        e("s_branch L_A_nh")
    e.cond(f"s_cmp_eq_u32 s{sTT}, 0", halo)
    for h in range(2): e(f"ds_read_b128 {vr(KP+4*h,4)}, v{vKA} offset:{6*8192 + h*1024}")
    e(f"s_mov_b64 exec, {sr(sEX)}")
    for h in range(2): e(f"ds_read_b128 {vr(VP+4*h,4)}, v{vVA} offset:{6*8192 + 1024 + h*256}")
    e("s_mov_b64 exec, -1")
    e.label("L_A_nh")
    e(f"s_mov_b64 exec, {sr(sEX)}")
    for h in range(2):
        for kb in range(2): e(f"ds_read_b128 {vr(vV+8*h+4*kb,4)}, v{vVA} offset:{7*8192 + kb*1024 + h*256}")
    e("s_mov_b64 exec, -1"); e("s_nop 0")
    if O.afast:
        qscale(0); e("s_nop 1"); mfma(vS, vK+4, vQ2, vML)
        qscale(1); e("s_waitcnt lgkmcnt(0)"); e("s_nop 0"); mfma(vS+16, vK, vQ2+4, vML)
    else:
        qscale(0); qscale(1)
        e("s_waitcnt lgkmcnt(0)")
    def a_body(slow):
        def exs(s_, rs, h):
            for r in rs:
                if slow: e(f"v_sub_f32 v{s_+r}, v{s_+r}, v{vFL+h}")
                e(f"v_exp_f32 v{s_+r}, v{s_+r}")
        lab = "L_A_s2" if slow else "L_A_f2"
        for h in range(2): mfma(vS+16*h, vK+4-4*h, vQ2+4*h, vML)
        e("s_nop 10")
        for h in range(2):
            exs(vS+16*h, range(16), h); cvt8(vP+8*h, vS+16*h, 8); e("s_nop 1")
            mfma(vO+16*h, vV+8*h, vP+8*h, "0"); mfma(vO+16*h, vV+8*h+4, vP+8*h+4, vO+16*h)
        e("s_waitcnt vmcnt(0)")
        e(f"s_cmp_eq_u32 s{sT}, 0"); e(f"s_cbranch_scc1 {lab}")
        e.stamp(13)
        for h in range(2): mfma(vS+16*h, KP+4*h, vQ2+4*h, vMF)
        e("s_nop 10")
        for h in range(2):
            exs(vS+16*h, range(8, 16), h); cvt8(vP+8*h+4, vS+16*h+8); e("s_nop 1")
            mfma(vO+16*h, VP+4*h, vP+8*h+4, vO+16*h)
        e.label(lab)
        e("s_nop 11")
        for h in range(2): norm(vO+16*h, vP+4*h)
    if not O.afast: a_body(False)
    else:
        S2 = 184
        def exr(s_, rs):
            for r in rs: e(f"v_exp_f32 v{s_+r}, v{s_+r}")
        exr(vS, range(16)); cvt8(vP, vS, 8)
        e.cond(f"s_cmp_eq_u32 s{sTT}, 0", lambda: e("s_waitcnt vmcnt(0)"))
        e.stamp(13)
        for h in range(2): mfma(S2+16*h, KP+4*h, vQ2+4*h, vMF)
        exr(vS+16, range(4)); mfma(vO, vV, vP, "0")
        exr(vS+16, range(4, 8)); mfma(vO, vV+4, vP+4, vO)
        exr(vS+16, range(8, 16)); cvt8(vP+8, vS+16, 8)
        e(f"s_cmp_eq_u32 s{sT}, 0"); e("s_cbranch_scc1 L_A_first")
        exr(S2, range(8, 12)); mfma(vO+16, vV+8, vP+8, "0")
        exr(S2, range(12, 16)); mfma(vO+16, vV+12, vP+12, vO+16)
        cvt8(S2, S2+8)
        exr(S2+16, range(8, 12)); mfma(vO, VP, S2, vO)
        exr(S2+16, range(12, 16)); cvt8(S2+16, S2+24); e("s_nop 1")
        mfma(vO+16, VP+4, S2+16, vO+16)
        e("s_nop 0")
        e.label("L_A_norm"); e.stub()
        norm(vO, vP); norm(vO+16, vP+4)
        e.ool.append(("L_A_first", lambda: (mfma(vO+16, vV+8, vP+8, "0"), mfma(vO+16, vV+12, vP+12, vO+16), e("s_branch L_A_norm"), e.label("L_A_firstr"))))
    check([vO, vO+16], "L_A_slow")
    e.label("L_A_ok")
    e("s_setprio 2")
    e(f"buffer_store_dwordx4 {vr(vP,4)}, v{vL16}, {srd(SWS)}, s{sOA} offen sc1")
    e(f"buffer_store_dwordx4 {vr(vP+4,4)}, v{vL16}, {srd(SWS)}, s{sOA} offen offset:1024 sc1")
    e.stamp(7)
    e("s_setprio 0")
    wo_addr()
    for i in range(8): wo_piece(i, L_KV)
    e(f"s_cmp_lt_u32 s{sW}, 4"); e("s_cbranch_scc0 L_youngA")
    e(f"s_and_b32 s{sHM}, s{sJ}, 3")
    f3_groups()
    e(f"s_mov_b32 s{sT3}, {L_KV}")
    e.label("L_p3all")
    e("s_waitcnt vmcnt(8)"); e.stamp(8); e("s_barrier")
    p3_setup(); p3_setup2()
    e(f"s_mov_b32 s{SLD+2}, s{SWS+2}")
    e("s_waitcnt vmcnt(0)")
    e("s_barrier"); e.stamp(10)
    if O.ltouch: o_touch(0xffffffff, 0)
    for k in range(O.ad): o_ld(k, sG0 + k//8)
    return a_body, KP

vA, vB, vO0, vO1, vF = 2, 3, 7, 5, 10
sO3, sF3, sOUT3, sHM = sIG, sIF, sOA, sPEND
A0, A1 = 40, 56
vTW, vTR = 18, 17
WB = 72
def OFR(k): return 136 + 4*k if k < 30 else 24 + 4*(k-30)
sG0 = sVMK; sHB = sVMK+4
vW = ((0, 4), (6, 16))
def f3_addr():
    e(f"s_lshl_b32 s{sT0}, s{sBR}, 6"); e(f"s_add_u32 s{sT0}, s{sT0}, s{sT3P}")
    e(f"s_lshl_b32 s{sO3}, s{sT0}, 15"); e(f"s_add_u32 s{sO3}, s{sO3}, {WS_O}")
    e(f"s_lshl_b32 s{sF3}, s{sT0}, 12"); e(f"s_add_u32 s{sF3}, s{sF3}, {WS_F2}")
    e(f"v_lshlrev_b32 v{vF}, 7, v{vL}")
def group(dst):
    e(f"s_brev_b32 s{sHB}, s{sHM}"); e(f"s_lshr_b32 s{sHB}, s{sHB}, 20")
    e(f"s_add_u32 s{dst}, s{sHB}, s{sO3}")
    e(f"s_add_u32 s{sHM}, s{sHM}, 1"); e(f"s_and_b32 s{sHM}, s{sHM}, 3")
def wbase(buf, src):
    e(f"s_and_b32 s{sT0}, s{src}, 0xc00"); e(f"s_lshl_b32 s{sT0}, s{sT0}, 1")
    e(f"v_add_u32 v{vW[buf][0]}, s{sT0}, v{vA}"); e(f"v_add_u32 v{vW[buf][1]}, s{sT0}, v{vB}")
def o_ld(k, base, s_=None):
    if k % 8: e(f"s_add_u32 s{sT0}, s{base}, {(k % 8)*4096}")
    e(f"buffer_load_dwordx4 {vr(OFR(k),4)}, v{vL16}, {srd(s_ or SWS)}, s{sT0 if k % 8 else base} offen sc1")
sNR = sVMK + 7
def poll3(need, look):
    L = e.newlab("L_poll"); D = L + "d"
    e(f"s_mov_b32 s{sCNT}, 0"); e("s_mov_b32 exec_hi, 0")
    e.label(L)
    e(f"s_and_b32 s{sT0}, s{sNR}, {need:#x}"); e(f"s_cbranch_scc0 {D}")
    e(f"s_and_b32 exec_lo, s{sNR}, {look:#x}")
    e(f"buffer_load_dwordx2 {vr(vFL,2)}, v{vF}, {srd(SWS)}, s{sF3} offen sc1")
    e(f"s_add_u32 s{sCNT}, s{sCNT}, 1")
    e("s_waitcnt vmcnt(0)")
    e(f"v_cmp_eq_u64 vcc, {sr(sNON)}, {vr(vFL,2)}")
    e(f"s_andn2_b32 s{sNR}, s{sNR}, vcc_lo")
    if O.sleep: e(f"s_sleep {O.sleep}")
    e(f"s_cmp_gt_u32 s{sCNT}, {O.pollmax}"); e(f"s_cbranch_scc0 {L}")
    e.label(D)
    e("s_mov_b64 exec, -1")
SLD = SDUM
def f3_groups():
    f3_addr()
    for q in range(4): group(sG0+q)
def o_touch(mask, dst):
    e(f"s_and_b32 s{sT0}, s{sJ}, 7"); e(f"s_lshl_b32 s{sT0}, s{sT0}, 12"); e(f"s_add_u32 s{sT0}, s{sT0}, s{sO3}")
    e(f"s_mov_b32 exec_lo, {mask:#x}"); e("s_mov_b32 exec_hi, 0")
    e(f"buffer_load_dword v{vFL+3}, v{vF}, {srd(SWS)}, s{sT0} offen sc1")
    e("s_mov_b64 exec, -1")
def p3_setup():
    e(f"s_mov_b64 {sr(SLD)}, {sr(SWS)}")
    e(f"v_bfe_u32 v{vU0}, v{vL}, 2, 2"); e(f"v_lshlrev_b32 v{vA}, 6, v{vU0}")
    e(f"v_and_b32 v{vU0}, 1, v{vL}"); e(f"v_mul_u32_u24 v{vU0}, 544, v{vU0}"); e(f"v_add_u32 v{vA}, v{vA}, v{vU0}")
    e(f"v_bfe_u32 v{vU0}, v{vL}, 4, 1"); e(f"v_lshl_add_u32 v{vA}, v{vU0}, 4, v{vA}")
    e(f"v_bfe_u32 v{vU0}, v{vL}, 1, 1"); e(f"v_lshl_add_u32 v{vA}, v{vU0}, 3, v{vA}")
    e(f"v_lshrrev_b32 v{vU0}, 5, v{vL}"); e(f"v_lshl_add_u32 v{vA}, v{vU0}, 8, v{vA}")
    e(f"v_add_u32 v{vA}, s{sT3}, v{vA}")
    e(f"v_xor_b32 v{vB}, 32, v{vA}")
    wbase(0, sG0); wbase(1, sG0+1)
def p3_setup2():
    e(f"v_lshrrev_b32 v{vU0}, 5, v{vL}")
    if O.tpose:
        e(f"s_lshl_b32 s{sT0}, s{sW}, 12"); e(f"s_add_u32 s{sT0}, s{sT0}, {L_WK}")
        e(f"v_mul_u32_u24 v{vU0}, 6, v{vU0}"); e(f"v_and_b32 v{vU1}, 7, v{vL}"); e(f"v_xor_b32 v{vU0}, v{vU0}, v{vU1}")
        e(f"v_and_b32 v{vTW}, 31, v{vL}"); e(f"v_lshlrev_b32 v{vTW}, 7, v{vTW}"); e(f"v_lshl_add_u32 v{vTW}, v{vU0}, 4, v{vTW}"); e(f"v_add_u32 v{vTW}, s{sT0}, v{vTW}")
        for i in range(1, 4): e(f"v_xor_b32 v{vTW+i}, {16*i}, v{vTW}")
        e(f"v_lshrrev_b32 v{vU0}, 3, v{vL}"); e(f"v_xor_b32 v{vTR}, v{vU0}, v{vU1}"); e(f"v_lshlrev_b32 v{vTR}, 4, v{vTR}")
        e(f"v_lshl_add_u32 v{vTR}, v{vU0}, 7, v{vTR}"); e(f"v_add_u32 v{vTR}, s{sT0}, v{vTR}")
        e(f"v_lshlrev_b32 v{vO0}, 11, v{vU0}"); e(f"v_lshl_add_u32 v{vO0}, v{vU1}, 4, v{vO0}")
    else:
        e(f"v_and_b32 v{vO0}, 31, v{vL}"); e(f"v_lshlrev_b32 v{vO0}, 11, v{vO0}"); e(f"v_mul_u32_u24 v{vU0}, 96, v{vU0}"); e(f"v_add_u32 v{vO0}, v{vO0}, v{vU0}")
        e(f"v_xor_b32 v{vO1}, 32, v{vO0}")
    e(f"s_lshl_b32 s{sOUT3}, s{sT3P}, 16"); e(f"s_lshl_b32 s{sT1}, s{sBR}, 10"); e(f"s_add_u32 s{sOUT3}, s{sOUT3}, s{sT1}")
    e(f"s_and_b32 s{sT1}, s{sJ}, 7"); e(f"s_lshl_b32 s{sT1}, s{sT1}, 7"); e(f"s_add_u32 s{sOUT3}, s{sOUT3}, s{sT1}")

def lds_wait(off, val):
    L = e.newlab("L_lw"); D = L + "d"
    e(f"s_mov_b32 s{sCNT}, 0")
    e.label(L)
    e(f"ds_read_b32 v{vFL}, v{vFL+3} offset:{off}")
    e(f"s_add_u32 s{sCNT}, s{sCNT}, 1"); e(f"s_cmp_gt_u32 s{sCNT}, {O.pollmax*8}")
    e("s_waitcnt lgkmcnt(0)")
    e(f"v_cmp_ne_u32 vcc, {val}, v{vFL}")
    e(f"s_cbranch_scc1 {D}")
    e(f"s_cbranch_vccz {D}"); e("s_sleep 1"); e(f"s_branch {L}")
    e.label(D)

def p3():
    e.c("---- P3 (waves 0..3)")
    def wrd(buf, k):
        for ct in range(2):
            d = WB + 8*k + 4*ct
            e(f"ds_read_b64_tr_b16 {vr(d,2)}, v{vW[buf][ct]} offset:{k*8192}")
            e(f"ds_read_b64_tr_b16 {vr(d+2,2)}, v{vW[buf][ct]} offset:{k*8192 + 1024}")
    e.label("L_p3go"); e.stub()
    for k in range(4): wrd(0, k)
    e.stamp(9); e.stamp(13, 7)
    A2, A3 = OFR(0), OFR(4); vMX = vFL
    e(f"s_mov_b32 s{sCNT}, 0")
    for k in range(32):
        q, kk = divmod(k, 8)
        if k == O.b2:
            e(f"s_cmp_eq_u32 s{sBR}, 0"); e("s_cbranch_scc1 L_p3b")
            p3_setup2()
            e.stamp(5, 7)
            e("s_barrier"); e.stamp(10); e.stamp(7, 7)
            for k2 in range(16, O.b2+O.ad): o_ld(k2, sG0 + k2//8)
            e.label("L_p3b")
            e.stamp(8, 7)
        if k == 16: e.label("L_p3late"); e(f"v_mov_b32 v{vMX}, 0")
        if k in (9, 18, 27): e.stub()
        e(f"s_waitcnt vmcnt({min(O.ad-1, 31-k)}) lgkmcnt({min(12, 4*(31-k))})")
        o = OFR(k)
        mfma(A0 if k < 16 else A2, WB + 8*kk, o, "0" if k == 0 else (A0 if k <= 16 else A2))
        if k + O.ad < 32: o_ld(k+O.ad, sG0+(k+O.ad)//8, SLD if (k < O.b2 and k+O.ad >= 16) else SWS)
        if k >= 16 and O.hint: e(f"v_max3_u32 v{vMX}, v{vMX}, v{o}, v{o+1}")
        mfma(A1 if k < 16 else A3, WB + 8*kk + 4, o, "0" if k == 0 else (A1 if k <= 16 else A3))
        if k >= 16 and O.hint: e(f"v_max3_u32 v{vMX}, v{vMX}, v{o+2}, v{o+3}")
        if k + 4 < 32: wrd(((k+4)//8) % 2, (k+4) % 8)
        if kk == 3 and q < 2: wbase(q, sG0+q+2)
    e.stamp(9, 7)
    if O.hint:
        e(f"v_cmp_eq_u32 vcc, -1, v{vMX}")
        if O.fredo: e(f"s_cmp_lt_u32 s{sCNT}, 2"); e("s_cselect_b64 vcc, -1, vcc")
        def redo():
            e(f"s_cmp_eq_u32 s{sBR}, 0"); e("s_cbranch_scc1 L_p3fin")
            e(f"s_add_u32 s{sCNT}, s{sCNT}, 1"); e(f"s_cmp_gt_u32 s{sCNT}, {O.pollmax}"); e("s_cbranch_scc1 L_p3fin")
            for k2 in range(16, 16+O.ad): o_ld(k2, sG0 + k2//8)
            for k2 in range(4): wrd(0, k2)
            e("s_branch L_p3late")
        e.cond("s_cmp_lg_u64 vcc, 0", redo)
        e.label("L_p3fin")
        if O.stamps == 1: e(f"s_mul_i32 s{ST0+6}, s{sCNT}, 1000"); e(f"s_add_u32 s{ST0+6}, s{ST0+6}, s{ST0}")
        e("s_nop 7")
    else: e("s_nop 10")
    if not O.epi2: cvt8(72, A2, 8); cvt8(80, A3, 8)
    fl = ["", " sc1", " nt", " sc1 nt", " sc0 sc1", " sc0 sc1 nt", " sc0 nt"][O.outsc]
    if O.tpose:
        for i in range(4):
            if O.epi2: cvt8(72+4*i, A2+8*i)
            e(f"ds_write_b128 v{vTW+i}, {vr(72+4*i,4)}")
        for i in range(4): e(f"ds_read_b128 {vr(88+4*i,4)}, v{vTR} offset:{i*1024}")
        for i in range(4):
            e(f"s_waitcnt lgkmcnt({3-i})")
            e(f"buffer_store_dwordx4 {vr(88+4*i,4)}, v{vO0}, {srd(SOUT)}, s{sOUT3} offen{fl}")
            if i < 3: e(f"s_add_u32 s{sOUT3}, s{sOUT3}, 0x4000")
    else:
        for i in range(4): e(f"buffer_store_dwordx4 {vr(72+4*i,4)}, v{(vO0, vO1)[i//2]}, {srd(SOUT)}, s{sOUT3} offen offset:{16*(i%2)}{fl}")
    if O.stamps:
        e.stamp(10, 7); e("s_waitcnt vmcnt(0)"); e.stamp(11); e.stamp(11, 7)
        e.label("L_stamps")
        e(f"s_memrealtime {sr(sVM)}"); e("s_waitcnt lgkmcnt(0)")
        e(f"s_lshl_b32 s{sT0}, s2, 3"); e(f"s_add_u32 s{sT0}, s{sT0}, s{sW}"); e(f"s_lshl_b32 s{sT0}, s{sT0}, 6"); e(f"s_add_u32 s{sT0}, s{sT0}, {WS_ST}")
        e("s_mov_b64 exec, 1")
        for i in range(1, 14):
            e(f"s_sub_u32 s{sT1}, s{ST0+2*i}, s{ST0}"); e(f"v_mov_b32 v{vU1}, s{sT1}")
            e(f"buffer_store_dword v{vU1}, off, {srd(SWS)}, s{sT0} offset:{4*i}")
        e(f"v_mov_b32 v{vU1}, s100"); e(f"buffer_store_dword v{vU1}, off, {srd(SWS)}, s{sT0} offset:56")
        e(f"v_mov_b32 v{vU1}, s{sVM}"); e(f"buffer_store_dword v{vU1}, off, {srd(SWS)}, s{sT0} offset:60")
    if O.probe:
        if O.probe == 11: e("s_waitcnt vmcnt(0)"); e("s_memrealtime s[76:77]")
        e("s_waitcnt lgkmcnt(0)")
        e(f"s_cmp_lg_u32 s{sBR}, {O.pbr}"); e("s_cbranch_scc1 L_end")
        e("s_sub_u32 s76, s76, s72"); e("s_lshl_b32 s76, s76, 1"); e("s_add_u32 s76, s76, 3000")
        e.label("L_spin"); e("s_memrealtime s[74:75]"); e("s_waitcnt lgkmcnt(0)"); e("s_sub_u32 s74, s74, s72")
        e(f"s_cmp_lt_u32 s74, s76"); e("s_cbranch_scc1 L_spin")
    if O.spin:
        e.label("L_spin"); e("s_memrealtime s[74:75]"); e("s_waitcnt lgkmcnt(0)"); e("s_sub_u32 s74, s74, s72")
        e(f"s_cmp_lt_u32 s74, {O.spin}"); e("s_cbranch_scc1 L_spin")
    e.label("L_end")
    e("s_endpgm")
    e.stub(); e("s_endpgm")
    e.flush()

def xmax(reg):
    e(f"v_mov_b32 v{vFL+2}, v{reg}"); e("s_nop 1")
    e(f"v_permlane32_swap_b32 v{vFL+2}, v{reg}"); e("s_nop 1")
    e(f"v_max_f32 v{reg}, v{reg}, v{vFL+2}")

def slow_paths(a_body, KP):
    e.c("---- rare path: the stand-in max was unsafe, redo the unit with the true row max")
    def shift(op):
        for r_, d_ in ((vKA, 0x400), (vKA8, 0x400), (vVA, 0x100), (vVA8, 0x100)): e(f"{op} v{r_}, {d_:#x}, v{r_}")
    for u in range(2):
        e.label(f"L_B_slow{u}")
        e(f"s_mov_b32 s{sU}, {u}")
        for i in range(4): e(f"v_mov_b32 v{vQ+i}, v{vQ2+4*u+i}")
        if u == 0: e("s_branch L_B_slow")
        else: shift("v_add_u32")
    e.label("L_B_slow")
    e("s_waitcnt vmcnt(0)")
    prefill(range(vV, vV+8))
    e(f"v_mov_b32 v{vFL}, {NEG}")
    for ps in range(2):
        for i in range(9):
            if i > 0: e(f"s_cmp_gt_u32 {i}, s{sT}"); e(f"s_cbranch_scc1 L_B_s{ps}")
            rdK(i, 0, vK)
            if ps: rdV(i, 0, vV, dyn=False)
            e("s_waitcnt lgkmcnt(0)")
            mfma(vS, vK, vQ, vML if i == 0 else (vMF if i == 8 else "0"))
            e("s_nop 11")
            if ps == 0:
                for r in range(0, 16, 2): e(f"v_max3_f32 v{vFL}, v{vFL}, v{vS+r}, v{vS+r+1}")
            else:
                for r in range(16): e(f"v_sub_f32 v{vS+r}, v{vS+r}, v{vFL}")
                for r in range(16): e(f"v_exp_f32 v{vS+r}, v{vS+r}")
                cvt8(PB, vS, 8); e("s_nop 1")
                mfma(vO, vV, PB, vO if i > 0 else "0"); mfma(vO, vV+4, PB+4, vO)
                e("s_nop 7")
        e.label(f"L_B_s{ps}")
        if ps == 0: xmax(vFL)
    e("s_nop 11")
    norm(vO, vP+4)
    e(f"s_cmp_eq_u32 s{sU}, 0"); e("s_cbranch_scc1 L_B_fin0")
    shift("v_subrev_u32")
    e("s_branch L_B_ok1")
    e.label("L_B_fin0")
    e(f"buffer_store_dwordx4 {vr(vP+4,4)}, v{vL16}, {srd(SWS)}, s{sOA} offen sc1")
    e("s_waitcnt vmcnt(0)"); flag_store(sF2)
    e("s_branch L_B_ok0")
    e.label("L_A_slow")
    e("s_waitcnt vmcnt(0)")
    for h in range(2):
        e(f"v_mov_b32 v{vFL+h}, {NEG}")
        mfma(vS, vK+4-4*h, vQ2+4*h, vML); e("s_nop 11")
        for r in range(0, 16, 2): e(f"v_max3_f32 v{vFL+h}, v{vFL+h}, v{vS+r}, v{vS+r+1}")
        e(f"s_cmp_eq_u32 s{sT}, 0"); e(f"s_cbranch_scc1 L_A_m{h}")
        mfma(vS, KP+4*h, vQ2+4*h, vMF); e("s_nop 11")
        for r in range(8, 16, 2): e(f"v_max3_f32 v{vFL+h}, v{vFL+h}, v{vS+r}, v{vS+r+1}")
        e.label(f"L_A_m{h}")
        xmax(vFL+h)
    a_body(True)
    e("s_branch L_A_ok")

prologue(); p1(); p1_done(); ab = attention(); p3(); slow_paths(*ab)
e("s_endpgm")

hdr = open("cdna_kernels/" + NAME + ".s.ref").read().split("; Override launch geometry")[0]
out = hdr + f"; @launch grid=(256,1,1) block=(512,1,1) lds={LDS_BYTES}\n"
out += f""".amdgcn_target "amdgcn-amd-amdhsa--gfx950"
.text
.globl {NAME}_kernel
{'.p2align 12' if O.al12 else ''}
.p2align 8
.type {NAME}_kernel,@function
{NAME}_kernel:
""" + "\n".join(e.L) + f"""
.section .rodata,"a"
.p2align 6
.amdhsa_kernel {NAME}_kernel
  .amdhsa_next_free_vgpr 256
  .amdhsa_next_free_sgpr {102 if O.stamps else (80 if (O.spin or O.probe) else 72)}
  .amdhsa_accum_offset 256
  .amdhsa_group_segment_fixed_size 0
  .amdhsa_kernarg_size 72
  .amdhsa_user_sgpr_count 2
  .amdhsa_user_sgpr_kernarg_segment_ptr 1
  .amdhsa_system_sgpr_workgroup_id_x 1
.end_amdhsa_kernel
"""
open(sys.argv[1], "w").write(out)
```

```python
import sys
NAME = "concat_heads__sliding_local_dilated__sliding_block__prompt"

class Opt:
    stamps = 0
    force_slow = 0
    pollmax = 400000
    only = 0
    delayA = 7
    lag = 5
    kflag = 74
    kchk = 65
    imp = 87
    oflag = 13
    vpos = 2
    uni = 0
    xspan = 1
    torder = 2
    tseq = 3
    tn = 16
    tnt = 0
    rotA = 1
    yprio = 0
    prew = 61
    imp1 = 77
    fair = 1
    tpose = 1
    pdelay = 0
    spin = 0
    x = 0
    wqs = 2
    p1prio = 1
    epi = 11
    tchB = 0
    wo_n = 4
    tchA = 5
    ctouch = 1
    warm = 0
    al12 = 1
    tE = 99
    ltouch = 0
    awo = 1
    pre = 8
    ad = 8
    spoll = 1
    stlb = 0
    sp32 = 1
    fprio = 1
    swp = 1
    probe = 0
    pbr = 0
    rt = 0
    hold = 0
    tlb = 0
    tlbB = 0
    bpre = 8
    aflag = 0
    hsmp = 82
    vsmp = 94
    sprio = 1
    vflag = 83
    stg = 0
    impfirst = 1
    vex = 65
    ev = 91
    prew0 = 0
    vlate = 1
    prew2 = 0
    hint = 0
    poi_at = 1
    b2 = 8
    late1 = 4
    zrow = 1
    fredo = 0
    remap = 1
    m16 = 1
    w2 = 1
    pq = 60
    kex = 63
    la = 4
    il = 1
    afast = 1
    epi2 = 1
    sep = 1
    outB = -1
    mv = 1
    smp_at = 17
    wo_at = 13
    tch_at = 4
    quiet = 1
    prio = 0
    outsc = 1
    stag = 0
    sleep = 0
O = Opt()
for a in sys.argv[2:]:
    k, v = a.split("="); assert hasattr(O, k), k
    setattr(O, k, int(v))

WS_O = 8 << 20
WS_F1 = 12 << 20
F1V = 262144
WS_F2 = WS_F1 + 524288
WS_ST = 13 << 20
WS_BYTES = 14 << 20
LDS_BYTES = 163840
L_WV = 65536; L_WK = 131072; L_KV = 65536

class E:
    def __init__(s): s.L = []; s.vq = []; s.lq = []; s.lab = 0; s.ool = []
    def __call__(s, t): s.L.append("    " + t)
    def label(s, n): s.L.append(n + ":")
    def c(s, t): s.L.append("    ; " + t)
    def vm(s, t, tag): s(t); s.vq.append(tag)
    def ds(s, t, tag): s(t); s.lq.append(tag)
    def _n(s, q, tag): return len(q) - 1 - max(i for i, x in enumerate(q) if x == tag)
    def wait_vm(s, tag):
        if tag not in s.vq: return
        n = s._n(s.vq, tag); assert n <= 63
        s(f"s_waitcnt vmcnt({n})"); s.vq = s.vq[len(s.vq)-n:]
    def wait_ds(s, tag):
        if tag not in s.lq: return
        n = min(15, s._n(s.lq, tag))
        s(f"s_waitcnt lgkmcnt({n})"); s.lq = s.lq[len(s.lq)-n:]
    def wait_all(s): s("s_waitcnt vmcnt(0)"); s.vq = []
    def ds_all(s): s("s_waitcnt lgkmcnt(0)"); s.lq = []
    def stamp(s, i, mode=1):
        if O.probe == i and mode == 1: s("s_memrealtime s[76:77]")
        if O.stamps == mode: s(f"{'s_memrealtime' if O.rt else 's_memtime'} s[{ST0+2*i}:{ST0+1+2*i}]")
    def stub(s):
        if O.warm:
            s.nstub = getattr(s, "nstub", 0); s.label(f"L_stub{s.nstub}"); s("s_cbranch_execz L_warmed"); s.nstub += 1
    def newlab(s, p): s.lab += 1; return f"{p}_{s.lab}"
    def cond(s, cmp_, body):
        L = s.newlab("L_c"); s(cmp_); s(f"s_cbranch_scc1 {L}"); s.label(L + "r")
        s.ool.append((L, body))
    def flush(s):
        while s.ool:
            L, body = s.ool.pop(0)
            s.label(L); body(); s(f"s_branch {L}r")
e = E()
def vr(a, n): return f"v[{a}:{a+n-1}]"
def sr(a): return f"s[{a}:{a+1}]"
def srd(a): return f"s[{a}:{a+3}]"

SX, SW, SWO, SOUT, SWS, SDBG = 8, 12, 16, 20, 24, 28
SEXP = 8
SOWO = 28
sF1, sKV = 0, 1
sBR, sRB, sG, sW, sM0 = 3, 4, 5, 6, 7
sCX = 32; sCW = 40; sVMK = 32
sNON = 48
sT0, sT1, sT2, sT3 = 50, 51, 52, 53
sJ, sXCD, sTT, sFT, sCNT, sT = 54, 55, 56, 57, 58, 59
sEX = 60; sVM = 62
sIG, sIF, sIMP, sPEND = 64, 65, 66, 67
sOA, sF2 = 68, 69
sOW = 70
sU = 53
sT3P = 55
ST0 = 72
SOTH = 20
SIMP = 12
SDUM = 12
vL, vX0, vX1, vW0, vWR, vWR1, vWR2, vXR, vL16 = 1, 2, 3, 4, 5, 6, 7, 8, 12
vT0, vT1, vT2 = 13, 14, 15
vNON = 14
vEXP = 0
vKA, vVA, vKA8, vVA8 = 2, 3, 0, 7
vWO = 4
vFL = 8
vQ2 = 16; vCV = 24; vP = 24; vQ = 32
vML, vMF = 40, 56
accA, accB, accQ = 72, 88, 24
vS = 72
WF = [104, 108, 112, 116, 120, 124, 16, 20]
vXF = 128
vO = 104; vK = 136; vV = 144; PB = 176
sBAD = 67
vU0, vU1, vU2 = 36, 37, 38
vONE = 11
vL8 = 13
NEG = "0xff800000"

def mfma(d, a, b, c): e(f"v_mfma_f32_32x32x16_bf16 {vr(d,16)}, {vr(a,4)}, {vr(b,4)}, {c if isinstance(c,str) else vr(c,16)}")
HOIST = [False]
def set_m0(ldsdst):
    t = f"    s_add_u32 m0, s{sM0}, {ldsdst}"
    if HOIST[0] and ("v_mfma" in e.L[-1] or "ds_read" in e.L[-1]): e.L.insert(len(e.L)-1, t)
    else: e.L.append(t); e("s_nop 0")
def dma(v, s_, soff, ldsdst, tag):
    set_m0(ldsdst)
    e.vm(f"buffer_load_dwordx4 v{v}, {srd(s_)}, s{soff} offen lds", tag)
def st_pieces(t):
    sl = t % 4
    def wv():
        set_m0(L_WV + sl*16384 + 8192 - 1024)
        e.vm(f"buffer_load_dwordx4 v{vW0}, {srd(SW)}, s{sCW+t} offen offset:1024 lds", f"st{t}")
    return [lambda: dma(vX0, SX, sCX+t, sl*16384, f"st{t}"),
            lambda: dma(vW0, SW, sCW+t, L_WV + sl*16384, f"st{t}"),
            lambda: dma(vX1, SX, sCX+t, sl*16384 + 8192, f"st{t}"), wv]
def cvt(dst, src, i): e(f"v_cvt_pk_bf16_f32 v{dst+i}, v{src+2*i}, v{src+2*i+1}")
def cvt8(dst, src, n=4):
    for i in range(n): cvt(dst, src, i)

def masks(kind):
    e(f"v_and_b32 v{vT0}, 31, v{vL}"); e(f"v_lshrrev_b32 v{vT1}, 5, v{vL}")
    e(f"v_lshlrev_b32 v{vT1}, 2, v{vT1}"); e(f"v_sub_u32 v{vT0}, v{vT0}, v{vT1}")
    if kind == "B":
        e(f"s_mov_b32 s{sT0}, {NEG}")
        for r in range(16):
            c = 8*(r >> 2) + (r & 3)
            e(f"v_subrev_u32 v{vT1}, {c}, v{vT0}"); e(f"v_and_b32 v{vML+r}, s{sT0}, v{vT1}"); e(f"v_xor_b32 v{vMF+r}, s{sT0}, v{vML+r}")
    else:
        e(f"s_mov_b32 s{sT0}, 0xf149f2ca")
        for r in range(16):
            c = 8*(r >> 2) + (r & 3)
            e(f"v_subrev_u32 v{vT1}, {c}, v{vT0}"); e(f"v_and_b32 v{vT1}, -15, v{vT1}"); e(f"v_cvt_f32_u32 v{vT1}, v{vT1}"); e(f"v_mul_f32 v{vML+r}, s{sT0}, v{vT1}")
            if r >= 8:
                e(f"v_add_u32 v{vT1}, {32-c}, v{vT0}"); e(f"v_and_b32 v{vT1}, -15, v{vT1}"); e(f"v_cvt_f32_u32 v{vT1}, v{vT1}"); e(f"v_mul_f32 v{vMF+r}, s{sT0}, v{vT1}")
            else:
                e(f"v_mov_b32 v{vMF+r}, s{sT0}")

def prologue():
    e("s_cmp_ge_u32 s2, 256"); e("s_cbranch_scc1 L_end")
    if O.only == 1: e("s_cmp_ge_u32 s2, 128"); e("s_cbranch_scc1 L_end")
    if O.stamps: e(f"{'s_memrealtime' if O.rt else 's_memtime'} {sr(ST0)}"); e("s_memrealtime s[100:101]")
    if O.spin or O.probe: e("s_memrealtime s[72:73]")
    e("s_load_dwordx16 s[32:47], s[0:1], 0"); e("s_load_dwordx2 s[24:25], s[0:1], 64")
    if O.ctouch:
        e(f"s_getpc_b64 {sr(sVM)}")
        e(f"s_lshr_b32 s{sT0}, s2, 3"); e(f"s_mul_i32 s{sT0}, s{sT0}, 5"); e(f"v_add_u32 v{vT0}, s{sT0}, v0"); e(f"v_lshlrev_b32 v{vT0}, 7, v{vT0}")
        e(f"v_cmp_gt_u32 vcc, 5, v0"); e(f"s_and_saveexec_b64 {sr(sEX)}, vcc"); e("s_cbranch_execz L_noct")
        e(f"global_load_dword v254, v{vT0}, {sr(sVM)}")
        e.label("L_noct"); e("s_mov_b64 exec, -1")
    e(f"v_lshrrev_b32 v{vT0}, 6, v0"); e(f"v_and_b32 v{vL}, 63, v0")
    e(f"v_readfirstlane_b32 s{sW}, v{vT0}")
    e(f"s_and_b32 s{sXCD}, s2, 7"); e(f"s_lshr_b32 s{sJ}, s2, 3")
    if O.remap: e(f"s_bfe_u32 s{sT0}, s2, 0x10002"); e(f"s_lshl_b32 s{sT0}, s{sT0}, 1"); e(f"s_xor_b32 s{sXCD}, s{sXCD}, s{sT0}")
    e(f"s_lshr_b32 s{sT0}, s{sXCD}, 1"); e(f"s_lshl_b32 s{sT0}, s{sT0}, 2"); e(f"s_bfe_u32 s{sT1}, s{sJ}, 0x20002")
    e(f"s_add_u32 s{sRB}, s{sT0}, s{sT1}")
    e(f"s_and_b32 s{sT0}, s{sXCD}, 1"); e(f"s_lshl_b32 s{sT0}, s{sT0}, 2"); e(f"s_and_b32 s{sT2}, s{sJ}, 3")
    e(f"s_add_u32 s{sG}, s{sT0}, s{sT2}")
    e(f"s_add_u32 s{sT3}, s{sT1}, s{sT2}"); e(f"s_lshl_b32 s{sT3}, s{sT3}, 1")
    e(f"s_lshl_b32 s{sM0}, s{sW}, 10")
    e(f"v_lshrrev_b32 v{vT0}, 4, v{vL}")
    e(f"s_and_b32 s{sT0}, s{sW}, 1"); e(f"s_lshl_b32 s{sT0}, s{sT0}, 2")
    e(f"v_add_u32 v{vT0}, s{sT0}, v{vT0}")
    e(f"v_and_b32 v{vT1}, 7, v{vL}"); e(f"v_xor_b32 v{vT0}, v{vT0}, v{vT1}"); e(f"v_lshlrev_b32 v{vT0}, 4, v{vT0}")
    e(f"v_lshrrev_b32 v{vT1}, 3, v{vL}"); e(f"v_lshl_add_u32 v{vX0}, v{vT1}, 10, v{vT0}")
    e(f"s_lshl_b32 s{sT0}, s{sW}, 13"); e(f"v_add_u32 v{vX0}, s{sT0}, v{vX0}"); e(f"v_add_u32 v{vX1}, 0x10000, v{vX0}")
    e(f"v_bfe_u32 v{vT0}, v{vL}, 2, 3")
    e(f"s_lshl_b32 s{sT0}, s{sW}, 3"); e(f"v_add_u32 v{vT0}, s{sT0}, v{vT0}")
    e(f"v_lshrrev_b32 v{vT1}, 5, v{vL}"); e(f"v_lshlrev_b32 v{vT1}, 6, v{vT1}")
    e(f"v_and_b32 v{vT2}, 3, v{vL}"); e(f"v_lshl_add_u32 v{vT1}, v{vT2}, 4, v{vT1}")
    e(f"s_and_b32 s{sT0}, s{sW}, 1"); e(f"s_lshl_b32 s{sT0}, s{sT0}, 5"); e(f"v_xor_b32 v{vT1}, s{sT0}, v{vT1}")
    e(f"v_mul_u32_u24 v{vW0}, 3072, v{vT0}"); e(f"v_add_u32 v{vW0}, v{vW0}, v{vT1}"); e(f"v_add_u32 v{vW0}, 0x400, v{vW0}")
    e(f"s_mov_b32 s{SX+2}, {2048*1024}"); e(f"s_mov_b32 s{SX+3}, 0x20000")
    e(f"s_mov_b32 s{SW+2}, {512*3072}"); e(f"s_mov_b32 s{SW+3}, 0x20000")
    e(f"s_mov_b32 s{SOTH+3}, 0x20000")
    e(f"s_lshl_b32 s{sT0}, s{sRB}, 17"); e(f"s_lshl_b32 s{sT1}, s{sG}, 7")
    e(f"s_cmp_lt_u32 s2, 128"); e(f"s_cselect_b32 s{sBR}, 1, 0")
    e(f"s_cselect_b32 s{sT3}, 0, s{sT3}")
    e("s_waitcnt lgkmcnt(0)")
    e(f"s_cselect_b64 {sr(SX)}, s[38:39], s[32:33]")
    e(f"s_cselect_b64 {sr(SW)}, s[40:41], s[34:35]")
    e(f"s_cselect_b64 {sr(SWO)}, s[42:43], s[36:37]")
    e(f"s_cselect_b64 {sr(sOW)}, s[36:37], s[42:43]")
    e(f"s_mov_b64 {sr(SDBG)}, s[46:47]")
    e("s_cbranch_scc1 L_notouch")
    sp = O.xspan
    e(f"v_lshrrev_b32 v{vT0}, {sp}, v{vL}"); e(f"v_lshlrev_b32 v{vT0}, 10, v{vT0}")
    e(f"v_and_b32 v{vT1}, {(1 << sp) - 1}, v{vL}"); e(f"v_lshl_add_u32 v{vT0}, v{vT1}, 7, v{vT0}")
    e(f"v_lshrrev_b32 v{vT1}, 4, v{vL}"); e(f"v_bfe_u32 v{vT2}, v{vL}, 2, 2"); e(f"v_lshl_add_u32 v{vT1}, v{vT1}, 6, v{vT2}")
    e(f"v_mul_u32_u24 v{vT1}, 3072, v{vT1}"); e(f"v_and_b32 v{vT2}, 3, v{vL}"); e(f"v_lshl_add_u32 v{vT1}, v{vT2}, 7, v{vT1}")
    sXB, sWB = sIG, sIF
    e(f"s_and_b32 s{sXB}, s{sG}, 3"); e(f"s_lshl_b32 s{sXB}, s{sXB}, 15"); e(f"s_add_u32 s{sXB}, s{sXB}, s{sT0}")
    e(f"s_and_b32 s{sWB}, s{sJ}, 15"); e(f"s_mul_i32 s{sWB}, s{sWB}, {4*3072}"); e(f"s_and_b32 s{sT2}, s{sT1}, 512"); e(f"s_add_u32 s{sWB}, s{sWB}, s{sT2}")
    code = {0: [8, 2, 9, 10, 3, 11, 4, 5, 0, 1], 1: [8, 9, 10, 11, 2, 3, 4, 5, 0, 1], 2: [8, 2, 4, 9, 10, 3, 5, 11, 0, 1]}[O.torder]
    items = [(1, c) for c in code] + [(0, c) for c in code]
    if O.tseq == 1:
        items = [(1, c) for c in code[:8]] + [(0, c) for c in code[:6]] + [(1, c) for c in code[8:]] + [(0, c) for c in code[6:]]
    if O.tseq == 2: items = [(1, c) for c in code] + [(0, c) for c in (0, 1)]
    if O.tseq == 3: items = [(1, c) for c in code] + [(0, c) for c in (2, 3, 4, 5, 0, 1)]
    if O.tseq == 4: items = [(1, c) for c in code[:8]] + [(0, c) for c in (2, 3, 4, 5)] + [(1, c) for c in code[8:]] + [(0, c) for c in (0, 1)]
    items = items[:O.tn]
    for r in range((len(items) + 7) // 8):
        rnd = items[8*r:8*r+8]
        pk = sum(c << (4*i) for i, (b_, c) in enumerate(rnd)); bm = sum(b_ << i for i, (b_, c) in enumerate(rnd))
        if len(rnd) < 8: e(f"s_cmp_ge_u32 s{sW}, {len(rnd)}"); e(f"s_cbranch_scc1 L_t{r}d")
        e(f"s_lshl_b32 s{sT2}, s{sW}, 2"); e(f"s_lshr_b32 s{sT2}, {pk:#x}, s{sT2}")
        e(f"s_bitcmp1_b32 s{sT2}, 3"); e(f"s_cbranch_scc1 L_t{r}x")
        e(f"s_bitcmp1_b32 {bm:#x}, s{sW}"); e(f"s_cselect_b64 {sr(SOTH)}, s[40:41], s[34:35]"); e(f"s_mov_b32 s{SOTH+2}, {512*3072}")
        e(f"s_and_b32 s{sCNT}, s{sT2}, 1"); e(f"s_mul_i32 s{sCNT}, s{sCNT}, {256*3072}"); e(f"s_add_u32 s{sCNT}, s{sCNT}, s{sWB}")
        e(f"s_and_b32 s{sT2}, s{sT2}, 6"); e(f"s_lshl_b32 s{sT2}, s{sT2}, 9"); e(f"s_add_u32 s{sCNT}, s{sCNT}, s{sT2}")
        e(f"buffer_load_dword v{250+r}, v{vT1}, {srd(SOTH)}, s{sCNT} offen{' nt' if O.tnt else ''}")
        e(f"s_branch L_t{r}d")
        e.label(f"L_t{r}x")
        e(f"s_bitcmp1_b32 {bm:#x}, s{sW}"); e(f"s_cselect_b64 {sr(SOTH)}, s[38:39], s[32:33]"); e(f"s_mov_b32 s{SOTH+2}, {2048*1024}")
        e(f"s_and_b32 s{sT2}, s{sT2}, 3")
        if sp == 2:
            e(f"s_and_b32 s{sCNT}, s{sT2}, 1"); e(f"s_lshl_b32 s{sCNT}, s{sCNT}, 14"); e(f"s_lshr_b32 s{sT2}, s{sT2}, 1"); e(f"s_lshl_b32 s{sT2}, s{sT2}, 9"); e(f"s_add_u32 s{sT2}, s{sT2}, s{sCNT}")
        else: e(f"s_lshl_b32 s{sT2}, s{sT2}, {8 if sp == 1 else 13}")
        e(f"s_add_u32 s{sCNT}, s{sT2}, s{sXB}")
        e(f"buffer_load_dword v{250+r}, v{vT0}, {srd(SOTH)}, s{sCNT} offen{' nt' if O.tnt else ''}")
        e.label(f"L_t{r}d")
        e("s_barrier")
    if O.tlb:
        e(f"s_cmp_lg_u32 s{sW}, 7"); e("s_cbranch_scc1 L_notlb")
        if O.tlb >= 20: e(f"v_lshlrev_b32 v{vT0}, {O.tlb}, v{vL}")
        else:
            e(f"s_and_b32 s{sT2}, s{sJ}, 15"); e(f"v_lshlrev_b32 v{vT0}, 4, v{vL}"); e(f"v_add_u32 v{vT0}, s{sT2}, v{vT0}"); e(f"v_lshlrev_b32 v{vT0}, {O.tlb}, v{vT0}")
        for k_, (p_, n_) in enumerate((("s[24:25]", 13 << 20), ("s[44:45]", 4 << 20), ("s[36:37]", 512 << 10), ("s[42:43]", 512 << 10))):
            e(f"s_mov_b64 {sr(SOTH)}, {p_}"); e(f"s_mov_b32 s{SOTH+2}, {n_}")
            e(f"buffer_load_dword v{244+k_}, v{vT0}, {srd(SOTH)}, 0 offen")
        e.label("L_notlb")
    if not O.rotA: e(f"s_mov_b32 s{sT3}, 0")
    e.label("L_notouch")
    e(f"s_mov_b64 {sr(SOUT)}, s[44:45]")
    def chunk(t):
        e(f"s_add_u32 s{sT2}, s{sT3}, {t}"); e(f"s_and_b32 s{sT2}, s{sT2}, 7")
        e(f"s_lshl_b32 s{sCX+t}, s{sT2}, 7"); e(f"s_add_u32 s{sCX+t}, s{sCX+t}, s{sT0}")
        e(f"s_mul_i32 s{sCW+t}, s{sT2}, {64*3072}"); e(f"s_add_u32 s{sCW+t}, s{sCW+t}, s{sT1}")
    chunk(0)
    for p in st_pieces(0): p()
    e(f"s_mov_b32 s{SDBG+2}, 256"); e(f"s_mov_b32 s{SDBG+3}, 0x20000")
    e(f"s_xor_b32 s{sT2}, s{sW}, 7"); e(f"s_or_b32 s{sT2}, s2, s{sT2}")
    def tag():
        e(f"s_memrealtime {sr(sNON)}"); e("s_waitcnt lgkmcnt(0)")
        e(f"s_or_b32 s{sNON+1}, s{sNON+1}, 0x80000000")
        e(f"v_mov_b32 v{vCV}, s{sNON}"); e(f"v_mov_b32 v{vCV+1}, s{sNON+1}")
        e("s_mov_b64 exec, 1")
        e(f"buffer_store_dwordx2 {vr(vCV,2)}, off, {srd(SDBG)}, 0 sc1")
        e("s_mov_b64 exec, -1")
    e.cond(f"s_cmp_eq_u32 s{sT2}, 0", tag)
    chunk(1)
    for p in st_pieces(1)[:4-O.late1]: p()
    for t in range(2, 8): chunk(t)
    e(f"s_mov_b32 s{SWO+2}, {512*1024}"); e(f"s_mov_b32 s{SWO+3}, 0x20000")
    e(f"s_mov_b32 s{SOUT+2}, {2048*2048}")
    e(f"s_mov_b32 s{SWS+2}, {WS_BYTES}"); e(f"s_mov_b32 s{SWS+3}, 0x20000")
    e(f"s_lshr_b32 s{sFT}, s{sW}, 2"); e(f"s_mul_i32 s{sTT}, s{sFT}, 3"); e(f"s_and_b32 s{sT0}, s{sW}, 3"); e(f"s_xor_b32 s{sTT}, s{sTT}, s{sT0}")
    e(f"s_lshl_b32 s{sT}, s{sRB}, 2"); e(f"s_add_u32 s{sT}, s{sT}, s{sTT}")
    e(f"v_and_b32 v{vT0}, 15, v{vL}"); e(f"v_lshrrev_b32 v{vT1}, 4, v{vL}")
    e(f"v_bfe_u32 v{vT2}, v{vL}, 1, 3"); e(f"v_xor_b32 v{vT2}, v{vT2}, v{vT1}"); e(f"v_lshlrev_b32 v{vT2}, 4, v{vT2}")
    e(f"v_lshl_add_u32 v{vXR}, v{vT0}, 7, v{vT2}")
    e(f"s_lshl_b32 s{sT0}, s{sTT}, 12"); e(f"v_add_u32 v{vXR}, s{sT0}, v{vXR}")
    e(f"v_xor_b32 v{vXR+1}, 64, v{vXR}")
    e(f"v_bfe_u32 v{vT2}, v{vL}, 2, 2"); e(f"v_lshlrev_b32 v{vWR}, 6, v{vT2}")
    e(f"v_bfe_u32 v{vT2}, v{vL}, 4, 1"); e(f"v_lshl_add_u32 v{vWR}, v{vT2}, 5, v{vWR}")
    e(f"v_and_b32 v{vT2}, 3, v{vL}"); e(f"v_lshl_add_u32 v{vWR}, v{vT2}, 3, v{vWR}")
    e(f"v_lshl_add_u32 v{vWR}, v{vT1}, 10, v{vWR}")
    e(f"s_lshl_b32 s{sT0}, s{sFT}, 9"); e(f"v_add_u32 v{vWR}, s{sT0}, v{vWR}")
    e(f"v_add_u32 v{vWR1}, 0x10000, v{vWR}"); e(f"v_xor_b32 v{vWR2}, 32, v{vWR1}")
    e(f"v_lshlrev_b32 v{vL16}, 4, v{vL}")
    e(f"s_lshl_b32 s{sT0}, s{sTT}, 13"); e(f"s_lshl_b32 s{sT1}, s{sFT}, 11"); e(f"s_add_u32 s{sT0}, s{sT0}, s{sT1}")
    e(f"s_add_u32 s{sT0}, s{sT0}, {L_KV + 8*8192}"); e(f"v_add_u32 v{vEXP}, s{sT0}, v{vL16}")
    e(f"s_lshl_b32 s{sT0}, s{sBR}, 3"); e(f"s_add_u32 s{sT0}, s{sT0}, s{sG}"); e(f"s_lshl_b32 s{sT0}, s{sT0}, 6"); e(f"s_add_u32 s{sT0}, s{sT0}, s{sT}")
    e(f"s_lshl_b32 s{sKV}, s{sT0}, 13"); e(f"s_add_u32 s{sKV}, s{sKV}, s{sT1}")
    e(f"s_lshl_b32 s{sF1}, s{sT0}, 8"); e(f"s_lshl_b32 s{sT1}, s{sFT}, 7"); e(f"s_add_u32 s{sF1}, s{sF1}, s{sT1}"); e(f"s_add_u32 s{sF1}, s{sF1}, {WS_F1}")
    e(f"s_sub_u32 s{sT0}, s{sT0}, s{sTT}"); e(f"s_add_u32 s{sT0}, s{sT0}, s{sW}"); e(f"s_sub_u32 s{sT0}, s{sT0}, 8")
    e(f"s_lshl_b32 s{sT1}, s{sRB}, 2"); e(f"s_add_u32 s{sT1}, s{sT1}, s{sW}"); e(f"s_cmp_lt_u32 s{sT1}, 8"); e(f"s_cselect_b32 s{sIMP}, 1, 0")
    e(f"s_cselect_b32 s{sT0}, 0, s{sT0}")
    e(f"s_lshl_b32 s{sIG}, s{sT0}, 13"); e(f"s_lshl_b32 s{sIF}, s{sT0}, 8"); e(f"s_add_u32 s{sIF}, s{sIF}, {WS_F1}")
    e(f"s_and_b32 s{sT0}, s{sF1}, 0xffffff00"); e(f"s_sub_u32 s{sT0}, s{sT0}, 256")
    e(f"s_cmp_eq_u32 s{sBR}, 0"); e(f"s_cselect_b32 s{sIMP}, s{sTT}, s{sIMP}"); e(f"s_cselect_b32 s{sIF}, s{sT0}, s{sIF}")
    e(f"s_lshl_b32 s{sT0}, s{sBR}, 6"); e(f"s_add_u32 s{sT0}, s{sT0}, s{sT}")
    e(f"s_lshl_b32 s{sT1}, s{sT0}, 4"); e(f"s_lshl_b32 s{sT2}, s{sG}, 1"); e(f"s_add_u32 s{sT1}, s{sT1}, s{sT2}"); e(f"s_add_u32 s{sT1}, s{sT1}, s{sFT}")
    e(f"s_lshl_b32 s{sOA}, s{sT1}, 11"); e(f"s_add_u32 s{sOA}, s{sOA}, {WS_O}")
    e(f"s_lshl_b32 s{sF2}, s{sT1}, 8"); e(f"s_add_u32 s{sF2}, s{sF2}, {WS_F2}")
    e(f"s_mov_b32 s{sEX}, 0xffff"); e(f"s_mov_b32 s{sEX+1}, 0xffff")
    e(f"s_lshl_b32 s{sT0}, s{sXCD}, 1"); e(f"s_bfe_u32 s{sT1}, s{sJ}, 0x10003"); e(f"s_add_u32 s{sT0}, s{sT0}, s{sT1}")
    e(f"s_lshl_b32 s{sT0}, s{sT0}, 2"); e(f"s_and_b32 s{sT1}, s{sW}, 3"); e(f"s_add_u32 s{sT3P}, s{sT0}, s{sT1}")
    e(f"s_cmp_eq_u32 s{sBR}, 0"); e("s_cbranch_scc1 L_maskA")
    masks("B"); e("s_branch L_maskdone")
    e.flush()
    e.label("L_maskA"); masks("A")
    e.label("L_maskdone")
    if O.warm:
        e(f"s_cmp_eq_u32 s{sBR}, 0"); e("s_cbranch_scc1 L_warm"); e.label("L_warmA")
    e(f"v_lshlrev_b32 v{vL8}, 3, v{vL}")
    e(f"v_and_b32 v{vFL+2}, 1, v{vL}"); e(f"v_lshlrev_b32 v{vFL+2}, 7, v{vFL+2}"); e(f"v_and_b32 v{vFL+3}, 2, v{vL}"); e(f"v_lshl_add_u32 v{vFL+2}, v{vFL+3}, 17, v{vFL+2}")
    e(f"v_mov_b32 v{vONE}, 0"); e("s_mov_b32 exec_lo, 0x110000"); e("s_mov_b32 exec_hi, 0x110000"); e(f"v_mov_b32 v{vONE}, 0x3f803f80"); e("s_mov_b64 exec, -1")
    for p in st_pieces(1)[4-O.late1:]: p()
    if O.prew0:
        e("s_mov_b32 exec_hi, 0")
        e.vm(f"buffer_store_dwordx2 {vr(vL16,2)}, v{vL8}, {srd(SWS)}, s{sF2} offen sc1", "prew")
        e("s_mov_b32 exec_lo, 0xffff"); e(f"s_add_u32 s{sT0}, s{sF1}, {F1V}")
        e.vm(f"buffer_store_dwordx2 {vr(vL16,2)}, v{vL8}, {srd(SWS)}, s{sF1} offen sc1", "prew")
        e.vm(f"buffer_store_dwordx2 {vr(vL16,2)}, v{vL8}, {srd(SWS)}, s{sT0} offen sc1", "prew")
        e("s_mov_b64 exec, -1")
    if O.stlb:
        e(f"s_add_u32 s{sVM}, s{SWS}, {WS_F1 + 0xff000}"); e(f"s_addc_u32 s{sVM+1}, s{SWS+1}, 0")
        e.cond(f"s_cmp_eq_u32 s{sW}, 0", lambda: e(f"s_load_dword s{sPEND}, {sr(sVM)}, 0"))

def flag_store(soff, s_=SWS, off=0):
    e("s_mov_b64 exec, 0xffff")
    e.vm(f"buffer_store_dwordx2 {vr(vNON,2)}, v{vL8}, {srd(s_)}, s{soff} offen{f' offset:{off}' if off else ''} sc1", "flag")
    e("s_mov_b64 exec, -1")
def flag_ld(tag):
    e.vm(f"buffer_load_dwordx4 {vr(vFL,4)}, off, {srd(SWS)}, s{sIF} sc1", tag)
def flag_cmp():
    e(f"v_cmp_ne_u64 vcc, {sr(sNON)}, {vr(vFL,2)}"); e(f"v_cmp_ne_u64 {sr(sVM)}, {sr(sNON)}, {vr(vFL+2,2)}")
    e(f"s_or_b64 {sr(sVM)}, {sr(sVM)}, vcc")
def flag_poll():
    L = e.newlab("L_fp"); D = L + "d"
    e(f"s_mov_b32 s{sCNT}, 0")
    e.label(L)
    e(f"buffer_load_dwordx4 {vr(vFL,4)}, off, {srd(SWS)}, s{sIF} sc1")
    e(f"s_add_u32 s{sCNT}, s{sCNT}, 1"); e(f"s_cmp_gt_u32 s{sCNT}, {O.pollmax}"); e(f"s_cbranch_scc1 {D}")
    e("s_waitcnt vmcnt(0)")
    flag_cmp(); e(f"s_cbranch_scc1 {L}")
    e.label(D)
def spoll(soff, offs):
    L = e.newlab("L_sp"); D = L + "d"
    e(f"s_add_u32 s{sVM}, s{SWS}, s{soff}"); e(f"s_addc_u32 s{sVM+1}, s{SWS+1}, 0"); e(f"s_mov_b32 s{sCNT}, 0")
    e.label(L)
    w32 = O.sp32 and len(offs) > 4
    for i, o in enumerate(offs): e(f"s_load_dword s{sVMK+i}, {sr(sVM)}, {o} glc" if w32 else f"s_load_dwordx2 {sr(sVMK+2*i)}, {sr(sVM)}, {o} glc")
    e(f"s_add_u32 s{sCNT}, s{sCNT}, 1"); e(f"s_cmp_gt_u32 s{sCNT}, {O.pollmax}")
    e("s_waitcnt lgkmcnt(0)")
    e(f"s_cbranch_scc1 {D}")
    n2 = len(offs)//2 if w32 else len(offs)
    for i in range(n2): e(f"s_xor_b64 {sr(sVMK+2*i)}, {sr(sVMK+2*i)}, {sr(sT2) if w32 else sr(sNON)}")
    for i in range(1, n2): e(f"s_or_b64 {sr(sVMK)}, {sr(sVMK)}, {sr(sVMK+2*i)}")
    e(f"s_cbranch_scc1 {L}")
    e.label(D)
def vpoll(mask):
    L = e.newlab("L_vp"); D = L + "d"
    e(f"s_mov_b32 s{sCNT}, 0"); e(f"s_mov_b64 exec, {mask}")
    e.label(L)
    e(f"buffer_load_dwordx2 {vr(vFL,2)}, v{vFL+2}, {srd(SWS)}, s{sIF} offen sc1")
    e(f"s_add_u32 s{sCNT}, s{sCNT}, 1"); e(f"s_cmp_gt_u32 s{sCNT}, {O.pollmax}")
    e("s_waitcnt vmcnt(0)")
    e(f"v_cmp_ne_u64 vcc, {sr(sNON)}, {vr(vFL,2)}")
    e(f"s_cbranch_scc1 {D}"); e(f"s_cbranch_vccnz {L}")
    e.label(D)
    e("s_mov_b64 exec, -1")
def imp_dma(v, track=None):
    e(f"s_lshl_b32 s{sT1}, s{sW}, 13"); e(f"s_add_u32 m0, s{sT1}, {L_KV + v*4096}")
    e(f"s_add_u32 s{sT0}, s{sIG}, {v*4096}")
    for k in range(4):
        t = f"buffer_load_dwordx4 v{vL16}, {srd(SIMP)}, s{sT0} offen offset:{k*1024} sc1 lds"
        if track: e.vm(t, track)
        else: e(t)

def touch_wo(s_, tmp):
    e(f"s_and_b32 s{sT0}, s{sJ}, 15"); e(f"s_lshl_b32 s{sT0}, s{sT0}, 3"); e(f"s_add_u32 s{sT0}, s{sT0}, s{sW}")
    e(f"s_lshl_b32 s{sT0}, s{sT0}, 12"); e(f"v_lshlrev_b32 v{tmp}, 7, v{vL}")
    e("s_mov_b32 exec_hi, 0")
    e(f"buffer_load_dword v{tmp+1}, v{tmp}, {srd(s_)}, s{sT0} offen")
    e("s_mov_b32 exec_hi, -1")

def imports():
    e.wait_vm("look")
    e(f"v_cmp_ne_u64 vcc, {sr(sNON)}, {vr(vFL,2)}")
    e(f"s_and_b32 s{sT0}, vcc_lo, 3"); e(f"s_cselect_b32 s{sPEND}, s{SIMP+2}, 0")
    if O.stamps == 1: e(f"s_min_u32 s{ST0+24}, s{sPEND}, 1000"); e(f"s_add_u32 s{ST0+24}, s{ST0+24}, s{ST0}")
    e(f"s_cmp_lg_u32 s{sPEND}, 0"); e("s_cbranch_scc1 L_nov")
    imp_dma(0)
    e.label("L_nov")
def look(mask):
    e(f"s_mov_b64 exec, {mask}")
    e.vm(f"buffer_load_dwordx2 {vr(vFL,2)}, v{vFL+2}, {srd(SIMP)}, s{sIF} offen sc1", "look")
    e("s_mov_b64 exec, -1")

def p1():
    e.stamp(12)
    def rd(q, part=None):
        w = WF[q % 8]; p = q & 1
        if q < 64:
            t, r_ = divmod(q, 8); st, ty = r_ >> 2, (r_ >> 1) & 1
            if ty == 0 and part != 1: e.ds(f"ds_read_b128 {vr(vXF+8*(q>>2)+4*p,4)}, v{vXR+st} offset:{(t%4)*16384 + p*2048}", f"w{q}")
            b, off = (vWR1, vWR2)[p], (t % 4)*16384 + ty*8192 + st*4096
        elif q < 80: b, off = (vWR1, vWR2)[p], ((q-64) >> 1)*4096
        else: b, off = (vWR, vWR1)[p], ((q-80) >> 1)*4096
        if part != 1: e.ds(f"ds_read_b64_tr_b16 {vr(w,2)}, v{b} offset:{off}", f"w{q}")
        if part != 0: e.ds(f"ds_read_b64_tr_b16 {vr(w+2,2)}, v{b} offset:{off+256}", f"w{q}")
    LA = O.la
    syncs = {8*t - LA: (f"st{t}", None) for t in range(1, 8)}
    syncs.update({64-LA: ("wq1", None), 72-LA: ("wq7", None), 80: ("none", "exp")})
    gap = {k: [] for k in range(-1, 96)}
    def I(t): return lambda: e(t)
    def wq(t): return lambda: dma(vW0, SW, sCW+t, (L_WV + t*8192) if t < 4 else (t-4)*8192, f"wq{t}")
    for i, p in enumerate(st_pieces(2)): gap[[-1, 0, 1, 2][i] if LA == 4 else [-1, -1, 0, 1][i]].append(p)
    for t in range(3, 8):
        for i, p in enumerate(st_pieces(t)): gap[8*(t-2) - LA + [[0, 2, 4, 6], [0, 1, 2, 3], [0, 1, 3, 5]][O.stg][i]].append(p)
    gap[47-LA].append(I(f"v_subrev_u32 v{vW0}, 0x400, v{vW0}"))
    for t, k in enumerate([44, 46, 52, 54, 48, 50, 56, 58]): gap[k+4-LA].append(wq(t))
    gap[60].append(lambda: e.vm(f"buffer_load_dwordx2 {vr(vNON,2)}, off, {srd(SDBG)}, 0 sc1", "non"))
    gap[47] += [I(f"s_mov_b64 {sr(SEXP)}, {sr(SWS)}"), I(f"s_lshl_b32 s{sT0}, s{sBR}, 2"), I(f"s_or_b32 s{sT0}, s{sT0}, s{sTT}")]
    gap[49] += [I(f"s_cmp_ge_u32 s{sT0}, 3"), I(f"s_cselect_b32 s{SEXP+2}, s{SWS+2}, 0")]
    def export(k0, kd, acc, off, tag):
        for h in range(2):
            for i in range(4*h, 4*h+4): gap[k0+h].append(lambda i=i: cvt(acc, acc, i))
            t_ = acc + 4*h
            gap[k0+h] += [I("s_nop 0"), I(f"v_permlane16_swap_b32 v{t_}, v{t_+2}"), I(f"v_permlane16_swap_b32 v{t_+1}, v{t_+3}")]
            if off: gap[k0+h] += [I("s_nop 0"), I(f"v_permlane32_swap_b32 v{t_}, v{t_+2}"), I(f"v_permlane32_swap_b32 v{t_+1}, v{t_+3}")]
            if off and not h: gap[k0].append(I(f"s_add_u32 s{sKV}, s{sKV}, {off}"))
            gap[k0+h].append(lambda h=h: e.vm(f"buffer_store_dwordx4 {vr(acc+4*h,4)}, v{vL16}, {srd(SEXP)}, s{sKV} offen offset:{1024*h} sc1", tag))
            gap[kd+2*h].append(lambda h=h: e.ds(f"ds_write_b128 v{vEXP}, {vr(acc+4*h,4)} offset:{off+1024*h}", "exp"))
    export(O.kex, 71, accA, 0, "kst"); export(O.vex, 75, accB, 4096, "vst")
    def tagrd():
        e.wait_vm("non")
        e(f"v_readfirstlane_b32 s{sNON}, v{vNON}"); e(f"v_readfirstlane_b32 s{sNON+1}, v{vNON+1}")
        def late():
            L = e.newlab("L_tag"); D = L + "d"
            e(f"s_mov_b32 s{sCNT}, 0")
            e.label(L)
            e(f"buffer_load_dwordx2 {vr(vNON,2)}, off, {srd(SDBG)}, 0 sc1"); e("s_waitcnt vmcnt(0)")
            e(f"v_readfirstlane_b32 s{sNON}, v{vNON}"); e(f"v_readfirstlane_b32 s{sNON+1}, v{vNON+1}")
            e(f"s_add_u32 s{sCNT}, s{sCNT}, 1"); e(f"s_cmp_gt_u32 s{sCNT}, {O.pollmax}"); e(f"s_cbranch_scc1 {D}")
            e(f"s_cmp_eq_u32 s{sNON+1}, 0"); e(f"s_cbranch_scc1 {L}")
            e.label(D)
        e("s_nop 0")
        e.cond(f"s_cmp_eq_u32 s{sNON+1}, 0", late)
    gap[72].append(tagrd)
    gap[O.kflag].append(lambda: (e.wait_vm("kst"), flag_store(sF1, SEXP)))
    gap[O.vflag].append(lambda: (e(f"s_add_u32 s{sF1}, s{sF1}, {F1V}"), e.wait_vm("vst"), flag_store(sF1, SEXP), e.stamp(5)))
    def prew():
        e("s_mov_b32 exec_hi, 0")
        e.vm(f"buffer_store_dwordx2 {vr(vL16,2)}, v{vL8}, {srd(SWS)}, s{sF2} offen sc1", "prew")
        e("s_mov_b32 exec_hi, -1")
    if O.prew and not O.prew0: gap[O.prew].append(prew)
    def prew2():
        e("s_mov_b64 exec, 0xffff"); e(f"s_add_u32 s{sT1}, s{sF1}, {F1V}")
        e.vm(f"buffer_store_dwordx2 {vr(vL16,2)}, v{vL8}, {srd(SEXP)}, s{sF1} offen sc1", "prew")
        e.vm(f"buffer_store_dwordx2 {vr(vL16,2)}, v{vL8}, {srd(SEXP)}, s{sT1} offen sc1", "prew")
        e("s_mov_b64 exec, -1")
    if O.prew2: gap[O.prew2].append(prew2)
    gap[78] += [I(f"v_add_u32 v{vKA8}, {-8*8192 & 0xffffffff:#x}, v{vEXP}"), I(f"v_add_u32 v{vKA}, 0x2000, v{vKA8}"), I(f"v_and_b32 v{vVA8}, 0xfffffeff, v{vKA8}")]
    gap[79] += [I(f"v_add_u32 v{vVA8}, 0x1000, v{vVA8}"), I(f"v_add_u32 v{vVA}, 0x2000, v{vVA8}")]
    gap[79-LA].append(I(f"v_xor_b32 v{vWR1}, 32, v{vWR}"))
    gap[76] += [I(f"s_mov_b64 {sr(SIMP)}, {sr(SWS)}"), I(f"s_cmp_lg_u32 s{sIMP}, 0"), I(f"s_cselect_b32 s{SIMP+2}, 0, s{SWS+2}")]
    for i in range(24): gap[82 + i//2].append(I(f"v_mov_b32 v{vV+i}, v{vONE}"))
    gap[88].append(lambda: e.ds(f"ds_read_b128 {vr(vK,4)}, v{vKA} offset:{7*8192 + 1024}", "k0"))
    gap[88].append(lambda: e.ds(f"ds_read_b128 {vr(vK+4,4)}, v{vKA} offset:{7*8192}", "k0"))
    gap[O.hsmp].insert(0, lambda: look(3))
    gap[O.vsmp].append(lambda: look(12))
    def ev():
        e(f"s_cmp_eq_u32 s{sBR}, 0"); e("s_cbranch_scc1 L_nov"); imports()
    if O.ev: gap[O.ev].append(ev)
    gap[95] += [I(f"s_mov_b32 s{sT2}, 0x3eb8aa3b"), I(f"s_mov_b32 s{sT3}, 0x3eb8aa3b")]

    if O.hold:
        e(f"s_cmp_lg_u32 s{sBR}, 0"); e("s_cbranch_scc1 L_nohold")
        e.label("L_hold"); e("s_sleep 2"); e(f"s_memrealtime {sr(sVM)}"); e("s_waitcnt lgkmcnt(0)"); e(f"s_sub_u32 s{sVM}, s{sVM}, s100")
        e(f"s_cmp_lt_u32 s{sVM}, {O.hold}"); e("s_cbranch_scc1 L_hold")
        e.label("L_nohold")
    e.wait_vm("st0"); e("s_barrier"); e.stamp(1)
    for q in range(LA): rd(q)
    for f in gap[-1]: f()
    bars = sorted(syncs) + [96]
    HOIST[0] = True
    for q in range(96):
        if q % 8 == 0: e.c(f"---- P1 mfma {q}")
        if q in syncs:
            tag, lg = syncs[q]
            e.wait_vm(tag)
            if lg is True: e.ds_all()
            elif lg: e.wait_ds(lg)
            e("s_barrier")
        if q == 64: e.stamp(2)
        if q % 8 == 4: e.stamp(q//8 + 1, 2)
        if O.p1prio and q >= O.pq:
            a = max(x for x in bars if x <= q); b_ = min(x for x in bars if x > q)
            step = (b_ - a) // 4
            if (q - a) % step == 0 and (q - a) // step < 4: e(f"s_setprio {3 - (q - a)//step}")
        p = q & 1; isv = q < 64 and (q >> 1) & 1
        e.wait_ds(f"w{q | 1}" if (O.w2 or (q < 64 and not isv)) else f"w{q}")
        acc = accQ if q >= 64 else (accB if isv else accA)
        for a in range(2):
            x = vXF + (8*(q >> 2) if q < 64 else 8*((q-64) >> 1)) + 4*a; w = WF[q % 8]
            d = acc + (8*a + 4*p if isv else 8*p + 4*a)
            c = "0" if (q < 4 or 64 <= q < 66) else vr(d, 4)
            ops = (x, w) if isv else (w, x)
            e(f"v_mfma_f32_16x16x32_bf16 {vr(d,4)}, {vr(ops[0],4)}, {vr(ops[1],4)}, {c}")
            if q + LA < 96:
                if O.il: rd(q+LA, a)
                elif a == 0: rd(q+LA)
        for f in gap[q]: f()

def p1_done():
    assert not e.lq, e.lq
def wo_addr():
    e(f"v_bfe_u32 v{vWO}, v{vL}, 2, 3"); e(f"s_lshl_b32 s{sT0}, s{sW}, 3"); e(f"v_add_u32 v{vWO}, s{sT0}, v{vWO}"); e(f"v_lshlrev_b32 v{vWO}, 10, v{vWO}")
    e(f"v_lshrrev_b32 v{vWR}, 5, v{vL}"); e(f"v_lshl_add_u32 v{vWO}, v{vWR}, 6, v{vWO}"); e(f"v_and_b32 v{vWR}, 3, v{vL}"); e(f"v_lshl_add_u32 v{vWO}, v{vWR}, 4, v{vWO}")
    e(f"s_and_b32 s{sT0}, s{sJ}, 7"); e(f"s_lshl_b32 s{sT0}, s{sT0}, 7"); e(f"v_add_u32 v{vWO}, s{sT0}, v{vWO}")
def wo_piece(i, base=0):
    e(f"s_add_u32 m0, s{sM0}, {base + i*8192}"); e(f"s_mov_b32 s{sT0}, {i*65536}")
    e(f"buffer_load_dwordx4 v{vWO}, {srd(SWO)}, s{sT0} offen lds")

def norm(o, dst):
    e(f"v_rcp_f32 v{o+10}, v{o+8}")
    e(f"v_pk_add_f32 {vr(o+12,2)}, {vr(o,2)}, {vr(o+2,2)}"); e(f"v_pk_add_f32 {vr(o+14,2)}, {vr(o+4,2)}, {vr(o+6,2)}")
    for i in range(4): e(f"v_pk_mul_f32 {vr(o+2*i,2)}, {vr(o+2*i,2)}, {vr(o+10,2)} op_sel_hi:[1,0]")
    e(f"v_pk_add_f32 {vr(o+12,2)}, {vr(o+12,2)}, {vr(o+14,2)}")
    cvt8(dst, o)
    e(f"v_add_f32 v{o+12}, v{o+12}, v{o+13}"); e(f"v_fma_f32 v{o+8}, v{o+12}, 0, v{o+8}")
def check(os_, slowlab):
    for n, o in enumerate(os_):
        e(f"v_subrev_u32 v{o+8}, 0x2b800000, v{o+8}")
        if n: e(f"v_max_u32 v{os_[0]+8}, v{os_[0]+8}, v{o+8}")
    e(f"v_cmp_lt_u32 vcc, 0x28000000, v{os_[0]+8}")
    if slowlab is None:
        e(f"s_or_b32 s{sBAD}, vcc_lo, vcc_hi")
        if O.force_slow: e(f"s_mov_b32 s{sBAD}, 1")
    elif O.force_slow: e(f"s_branch {slowlab}")
    else: e(f"s_cbranch_vccnz {slowlab}")
def prefill(regs):
    e(f"s_mov_b32 s{sT0}, 0x3f803f80")
    for i in regs: e(f"v_mov_b32 v{i}, s{sT0}")
def rdK(i, u, dst):
    if i < 8: e(f"ds_read_b128 {vr(dst,4)}, v{vKA} offset:{(7-i)*8192 + u*1024}")
    else: e(f"ds_read_b128 {vr(dst,4)}, v{vKA8} offset:{u*1024}")
def rdV(i, u, dst, dyn=True, restore=True):
    e(f"s_mov_b64 exec, {sr(sVMK+2*(i-1)) if dyn and i > 0 else sr(sEX)}")
    b, off = (vVA, (7-i)*8192) if i < 8 else (vVA8, 0)
    e(f"ds_read_b128 {vr(dst,4)}, v{b} offset:{off + u*256}")
    e(f"ds_read_b128 {vr(dst+4,4)}, v{b} offset:{off + u*256 + 1024}")
    if restore: e("s_mov_b64 exec, -1")

def attention():
    e.c("---- Q epilogue")
    e.stamp(4)
    def qscale(h):
        for i in range(4*h, 4*h+4): e(f"v_pk_mul_f32 {vr(accQ+2*i,2)}, {vr(accQ+2*i,2)}, {sr(sT2)}")
        for i in (0, 2, 1, 3): cvt(vQ2, accQ, 4*h + i)
        e("s_nop 0"); e(f"v_permlane16_swap_b32 v{vQ2+4*h}, v{vQ2+4*h+2}"); e(f"v_permlane16_swap_b32 v{vQ2+4*h+1}, v{vQ2+4*h+3}")
    e(f"s_cmp_eq_u32 s{sBR}, 0"); e("s_cbranch_scc1 L_attnA")
    e.c("---- attention B")
    e.cond(f"s_cmp_lg_u32 s{sPEND}, 0", lambda: (vpoll(3), imp_dma(0), look(12)))
    e("s_nop 3")
    qscale(1); qscale(0)
    def su1():
        for i in range(1, 9): e(f"s_cmp_le_u32 {i}, s{sT}"); e(f"s_cselect_b64 {sr(sVMK+2*(i-1))}, {sr(sEX)}, -1")
    def su2():
        wo_addr()
        for i in range(24, 32): e(f"v_mov_b32 v{vV+i}, v{vONE}")
    def kbar():
        if O.warm: e("s_branch L_warm"); e.label("L_warmB")
        if not O.mv: su1(); su2()
        e(f"s_waitcnt vmcnt({4 if O.vpos == 1 else 1})"); e("s_barrier"); e.stamp(6)
    def vbar():
        e(f"s_waitcnt vmcnt({(2 if O.tchA < O.lag else 0) + (1 if O.hint and O.poi_at < O.lag else 0)})"); e("s_barrier"); e.stamp(13)
    def tchA():
        if not O.tchB: touch_wo(SWO, vU0+2)
        e(f"s_mov_b64 {sr(SOWO)}, {sr(sOW)}"); e(f"s_mov_b32 s{SOWO+2}, {512*1024}")
        touch_wo(SOWO, vU0)
    def sample02():
        f3_addr()
        e("s_mov_b64 exec, 0x55555555")
        e(f"buffer_load_dwordx2 {vr(vFL,2)}, v{vF}, {srd(SWS)}, s{sF3} offen sc1")
        e("s_mov_b64 exec, -1")
    L = O.lag
    seq = [(1, 0), (0, 0)] + [(0, i) for i in range(1, 9)] + [(1, i) for i in range(1, 9)]
    pv = {n: [] for n in range(19)}
    pv[1].append(0); pv[2].append(1); m = 2
    for n in range(L+1, 19):
        for _ in range(2):
            if m < n and m < 18: pv[n].append(m); m += 1
    assert m == 18
    def P(m): return PB + 8*(m % 8)
    def V(m): return vV + 8*(m % 4)
    def ex(n, r): e(f"v_exp_f32 v{vS+16*(n%2)+r}, v{vS+16*(n%2)+r}")
    def pvm(m, kb):
        o = vO + 16*seq[m][0]
        mfma(o, V(m)+4*kb, P(m)+4*kb, "0" if (m < 2 and kb == 0) else o)
    def qk(n):
        u1, i1 = seq[n]
        mfma(vS+16*(n % 2), vK+4*(n % 2), vQ2 + 4*u1, vML if i1 == 0 else (vMF if i1 == 8 else "0"))
    assert max(n for n in pv if 9 in pv[n]) < O.epi
    q4 = (18 - L) // 4
    prio = {0: 1, 1: 0, 2: 1, 3: 0, L: 3, L+q4+1: 2, L+2*q4+1: 1, L+3*q4+2: 0}
    qk(0)
    e("s_nop 0")
    e("s_nop 6")
    for n in range(19):
        s_ = vS + 16*(n % 2)
        e.c(f"task {n}")
        if n < 11: e.stamp(n+1, 4)
        if n >= 8: e.stamp(n-7, 5)
        if O.fair and n in prio: e(f"s_setprio {prio[n]}")
        if n == O.vpos:
            e("s_waitcnt vmcnt(0)")
            e(f"v_cmp_ne_u64 vcc, {sr(sNON)}, {vr(vFL,2)}")
            e(f"s_and_b32 s{sT0}, vcc_lo, 12"); e(f"s_cselect_b32 s{sT0}, s{SIMP+2}, 0")
            e.cond(f"s_cmp_lg_u32 s{sT0}, 0", lambda: vpoll(12))
            imp_dma(1)
        if n == 3 and O.mv: su1()
        if n == 4 and O.mv: su2()
        if n == L: vbar()
        if n == O.oflag:
            younger = sum(8*(t-O.wo_at+1)//O.wo_n - 8*(t-O.wo_at)//O.wo_n for t in range(O.epi+1, n) if O.wo_at <= t < O.wo_at + O.wo_n)
            e(f"s_waitcnt vmcnt({younger})")
            e(f"s_cmp_lg_u32 s{sBAD}, 0"); e("s_cbranch_scc1 L_noflag0"); flag_store(sF2); e.label("L_noflag0")
        if O.wo_at <= n < O.wo_at + O.wo_n:
            for p_ in range(8*(n-O.wo_at)//O.wo_n, 8*(n-O.wo_at+1)//O.wo_n): wo_piece(p_)
        if n == O.poi_at and O.hint:
            for i_ in range(4): e(f"v_mov_b32 v{vP+4+i_}, -1")
            e(f"buffer_store_dwordx4 {vr(vP+4,4)}, v{vL16}, {srd(SWS)}, s{sOA} offen offset:1024 sc1")
        if n == O.tchA: tchA()
        if n == O.tE: e.cond(f"s_cmp_lt_u32 s{sW}, 4", lambda: (f3_addr(), o_touch(0x00ff00ff, 0)))
        if n == O.smp_at: e.cond(f"s_cmp_lt_u32 s{sW}, 4", sample02)
        nxt = pv[n+1] if n < 18 else []
        fresh = [m for m in nxt if 10 <= m < 14]
        if fresh: e.cond(f"s_cmp_lt_u32 s{sT}, 8", lambda fresh=fresh: [e(f"v_mov_b32 v{V(m)+k}, v{vONE}") for m in fresh for k in range(8)])
        cnt = 0
        if 1 < n < 17: rdK(seq[n+1][1], seq[n+1][0], vK+4*((n+1) % 2)); cnt += 1
        for k, m in enumerate(nxt): rdV(seq[m][1], seq[m][0], V(m), restore=(k == len(nxt)-1)); cnt += 2
        mf = [(m, kb) for m in pv[n] for kb in range(2)]
        if n == 18:
            e("s_waitcnt lgkmcnt(0)"); e("s_nop 0")
            for x in mf: pvm(*x)
            break
        first = [True]
        def slot():
            if mf:
                if first[0]: e(f"s_waitcnt lgkmcnt({cnt})"); first[0] = False
                pvm(*mf.pop(0))
        two = len(mf) > 2
        for r in range(4): ex(n, r)
        slot()
        for r in range(4, 8): ex(n, r)
        if n == 1: slot(); kbar(); rdK(1, 0, vK)
        elif n < 17:
            if n: e(f"s_waitcnt lgkmcnt({cnt-1})")
            qk(n+1)
        cvt8(P(n), s_)
        for r in range(8, 10): ex(n, r)
        if two: slot()
        for r in range(10, 12): ex(n, r)
        if not two: slot()
        if n == 1: e("s_waitcnt lgkmcnt(0)"); qk(2)
        for r in range(12, 14): ex(n, r)
        slot()
        for r in range(14, 16): ex(n, r)
        cvt8(P(n)+4, s_+8)
        slot()
        if n == 1: e("s_nop 3")
        if n == O.epi:
            norm(vO, vP); check([vO], None)
            e(f"buffer_store_dwordx4 {vr(vP,4)}, v{vL16}, {srd(SWS)}, s{sOA} offen sc1")
    e("s_nop 11")
    norm(vO+16, vP+4); check([vO+16], "L_B_slow1")
    e.label("L_B_ok1")
    if O.hint:
        for i_ in range(4): e(f"v_min_u32 v{vP+4+i_}, -2, v{vP+4+i_}")
    if O.sprio: e("s_setprio 2")
    e(f"buffer_store_dwordx4 {vr(vP+4,4)}, v{vL16}, {srd(SWS)}, s{sOA} offen offset:1024 sc1")
    if O.sprio: e("s_setprio 0")
    e(f"s_cmp_lg_u32 s{sBAD}, 0"); e("s_cbranch_scc1 L_B_slow0")
    e.label("L_B_ok0")
    e.stamp(7); e.stamp(12, 7)
    e(f"s_cmp_lt_u32 s{sW}, 4"); e("s_cbranch_scc0 L_young")
    if O.hint: e("s_waitcnt vmcnt(2)"); e.stamp(8); e("s_barrier")
    e(f"s_mov_b32 s{sHM}, 0")
    f3_groups()
    if O.swp:
        e(f"s_and_b32 s{sT0}, s{sJ}, 1"); e(f"s_lshl_b32 s{sT0}, s{sT0}, 11")
        for q in range(4): e(f"s_xor_b32 s{sG0+q}, s{sG0+q}, s{sT0}")
    e("s_waitcnt vmcnt(1)")
    e("s_mov_b64 exec, 0x55555555")
    e(f"v_cmp_ne_u64 vcc, {sr(sNON)}, {vr(vFL,2)}")
    e("s_mov_b64 exec, -1")
    e(f"s_mov_b32 s{sT3}, 0"); e(f"s_mov_b32 s{sNR}, vcc_lo")
    e("s_cbranch_vccnz L_p3again")
    e.label("L_p3even"); e.stub()
    if O.bpre > 8:
        pass
    for k in range(O.ad): o_ld(k, sG0 + k//8)
    p3_setup()
    e(f"s_mov_b32 s{SLD+2}, 0")
    if not O.hint: e(f"s_waitcnt vmcnt({O.ad})"); e.stamp(8); e("s_barrier")
    e("s_branch L_p3go")
    e.label("L_p3again")
    e(f"s_mov_b32 exec_lo, s{sNR}"); e("s_mov_b32 exec_hi, 0")
    e(f"buffer_load_dwordx2 {vr(vFL,2)}, v{vF}, {srd(SWS)}, s{sF3} offen sc1")
    e("s_mov_b64 exec, -1")
    p3_setup()
    e(f"s_mov_b32 s{SLD+2}, 0")
    if not O.hint: e("s_waitcnt vmcnt(1)"); e.stamp(8); e("s_barrier")
    e("s_waitcnt vmcnt(0)")
    e(f"v_cmp_eq_u64 vcc, {sr(sNON)}, {vr(vFL,2)}")
    e(f"s_andn2_b32 s{sNR}, s{sNR}, vcc_lo")
    poll3(0x55555555, 0x55555555)
    for k in range(O.ad): o_ld(k, sG0 + k//8)
    e("s_branch L_p3go")
    e.label("L_young"); e.stub()
    e(f"s_waitcnt vmcnt({1 if O.hint else 0})")
    e.label("L_youngA")
    e("s_mov_b64 exec, 0xffff")
    e(f"s_cmp_eq_u32 s{sW}, 4"); e(f"s_cselect_b32 s{SEXP+2}, s{SWS+2}, 0")
    if O.fprio: e("s_setprio 3")
    e("s_waitcnt vmcnt(8)"); e.stamp(8); e("s_barrier")
    e.stamp(1, 8)
    e(f"buffer_store_dwordx2 {vr(vNON,2)}, v{vL8}, {srd(SEXP)}, s{sF2} offen offset:128 sc1")
    e("s_mov_b64 exec, -1")
    e.stamp(2, 8)
    if O.stamps == 8: e("s_waitcnt vmcnt(0)"); e.stamp(3, 8); e(f"s_memrealtime {sr(ST0+12)}")
    e(f"s_cmp_lg_u32 s{sW}, 4"); e("s_cbranch_scc1 L_rest")
    f3_addr()
    e(f"s_add_u32 s{sF3}, s{sF3}, {3*4096}")
    e(f"s_mov_b32 s{sT2}, s{sNON}"); e(f"s_mov_b32 s{sT3}, s{sNON}")
    if O.pdelay: e(f"s_sleep {O.pdelay}")
    spoll(sF3, [384 + 512*g_ for g_ in range(8)])
    e.stamp(10); e.stamp(4, 8)
    if O.stamps == 8:
        e(f"s_memrealtime {sr(ST0+14)}"); e("s_waitcnt lgkmcnt(0)"); e(f"s_add_u32 s{ST0+10}, s{ST0}, s{sCNT}")
        for q_ in (12, 14): e(f"s_and_b32 s{ST0+q_}, s{ST0+q_}, 0xffff"); e(f"s_add_u32 s{ST0+q_}, s{ST0+q_}, s{ST0}")
    e("s_waitcnt vmcnt(1)")
    e("s_barrier")
    e.label("L_rest")
    e("s_waitcnt vmcnt(0)")
    e("s_branch L_stamps" if O.stamps else "s_endpgm")
    e.flush()

    e.c("---- attention A")
    if O.warm:
        e.label("L_warm")
        e("s_mov_b64 exec, 0")
        for i in range(7): e(f"s_cmp_eq_u32 s{sW}, {i}"); e(f"s_cbranch_scc1 L_stub{i}")
        e("s_branch L_stub7")
        e.label("L_warmed"); e("s_mov_b64 exec, -1")
        e(f"s_cmp_eq_u32 s{sBR}, 0"); e("s_cbranch_scc1 L_warmA"); e("s_branch L_warmB")
    e.label("L_attnA")
    KP, VP = 176, 160
    if not O.spoll:
        e(f"s_and_b32 s{sIF}, s{sF1}, 0xffffff00"); e(f"s_sub_u32 s{sIF}, s{sIF}, 136")
        flag_ld("x")
    e.stamp(6)
    def halo():
        L = e.newlab("L_h")
        e(f"s_cmp_eq_u32 s{sT}, 0"); e(f"s_cbranch_scc1 L_A_nh")
        e("s_waitcnt vmcnt(0)")
        e(f"v_cmp_ne_u64 vcc, {sr(sNON)}, {vr(vFL,2)}")
        e(f"s_and_b32 s{sT0}, vcc_lo, 12"); e(f"s_cbranch_scc0 {L}")
        vpoll(12)
        e.label(L)
        e(f"s_sub_u32 s{sT0}, s{sKV}, {8192 + 4096}"); e(f"s_sub_u32 s{sT1}, s{sKV}, {8192 - 1024}")
        e(f"v_and_b32 v{vFL}, 0x2ff, v{vL16}")
        for h in range(2): e(f"buffer_load_dwordx4 {vr(KP+4*h,4)}, v{vL16}, {srd(SWS)}, s{sT0} offen offset:{h*1024} sc1")
        e(f"s_mov_b64 exec, {sr(sEX)}")
        for h in range(2): e(f"buffer_load_dwordx4 {vr(VP+4*h,4)}, v{vFL}, {srd(SWS)}, s{sT1} offen offset:{h*256} sc1")
        e("s_mov_b64 exec, -1")
        e("s_branch L_A_nh")
    e.cond(f"s_cmp_eq_u32 s{sTT}, 0", halo)
    for h in range(2): e(f"ds_read_b128 {vr(KP+4*h,4)}, v{vKA} offset:{6*8192 + h*1024}")
    e(f"s_mov_b64 exec, {sr(sEX)}")
    for h in range(2): e(f"ds_read_b128 {vr(VP+4*h,4)}, v{vVA} offset:{6*8192 + 1024 + h*256}")
    e("s_mov_b64 exec, -1")
    e.label("L_A_nh")
    e(f"s_mov_b64 exec, {sr(sEX)}")
    for h in range(2):
        for kb in range(2): e(f"ds_read_b128 {vr(vV+8*h+4*kb,4)}, v{vVA} offset:{7*8192 + kb*1024 + h*256}")
    e("s_mov_b64 exec, -1"); e("s_nop 0")
    if O.afast:
        qscale(0); e("s_nop 1"); mfma(vS, vK+4, vQ2, vML)
        qscale(1); e("s_waitcnt lgkmcnt(0)"); e("s_nop 0"); mfma(vS+16, vK, vQ2+4, vML)
    else:
        qscale(0); qscale(1)
        e("s_waitcnt lgkmcnt(0)")
    def a_body(slow):
        def exs(s_, rs, h):
            for r in rs:
                if slow: e(f"v_sub_f32 v{s_+r}, v{s_+r}, v{vFL+h}")
                e(f"v_exp_f32 v{s_+r}, v{s_+r}")
        lab = "L_A_s2" if slow else "L_A_f2"
        for h in range(2): mfma(vS+16*h, vK+4-4*h, vQ2+4*h, vML)
        e("s_nop 10")
        for h in range(2):
            exs(vS+16*h, range(16), h); cvt8(vP+8*h, vS+16*h, 8); e("s_nop 1")
            mfma(vO+16*h, vV+8*h, vP+8*h, "0"); mfma(vO+16*h, vV+8*h+4, vP+8*h+4, vO+16*h)
        e("s_waitcnt vmcnt(0)")
        e(f"s_cmp_eq_u32 s{sT}, 0"); e(f"s_cbranch_scc1 {lab}")
        e.stamp(13)
        for h in range(2): mfma(vS+16*h, KP+4*h, vQ2+4*h, vMF)
        e("s_nop 10")
        for h in range(2):
            exs(vS+16*h, range(8, 16), h); cvt8(vP+8*h+4, vS+16*h+8); e("s_nop 1")
            mfma(vO+16*h, VP+4*h, vP+8*h+4, vO+16*h)
        e.label(lab)
        e("s_nop 11")
        for h in range(2): norm(vO+16*h, vP+4*h)
    if not O.afast: a_body(False)
    else:
        S2 = 184
        def exr(s_, rs):
            for r in rs: e(f"v_exp_f32 v{s_+r}, v{s_+r}")
        exr(vS, range(16)); cvt8(vP, vS, 8)
        e.cond(f"s_cmp_eq_u32 s{sTT}, 0", lambda: e("s_waitcnt vmcnt(0)"))
        e.stamp(13)
        for h in range(2): mfma(S2+16*h, KP+4*h, vQ2+4*h, vMF)
        exr(vS+16, range(4)); mfma(vO, vV, vP, "0")
        exr(vS+16, range(4, 8)); mfma(vO, vV+4, vP+4, vO)
        exr(vS+16, range(8, 16)); cvt8(vP+8, vS+16, 8)
        e(f"s_cmp_eq_u32 s{sT}, 0"); e("s_cbranch_scc1 L_A_first")
        exr(S2, range(8, 12)); mfma(vO+16, vV+8, vP+8, "0")
        exr(S2, range(12, 16)); mfma(vO+16, vV+12, vP+12, vO+16)
        cvt8(S2, S2+8)
        exr(S2+16, range(8, 12)); mfma(vO, VP, S2, vO)
        exr(S2+16, range(12, 16)); cvt8(S2+16, S2+24); e("s_nop 1")
        mfma(vO+16, VP+4, S2+16, vO+16)
        e("s_nop 0")
        e.label("L_A_norm"); e.stub()
        norm(vO, vP); norm(vO+16, vP+4)
        e.ool.append(("L_A_first", lambda: (mfma(vO+16, vV+8, vP+8, "0"), mfma(vO+16, vV+12, vP+12, vO+16), e("s_branch L_A_norm"), e.label("L_A_firstr"))))
    check([vO, vO+16], "L_A_slow")
    e.label("L_A_ok")
    e("s_setprio 2")
    e(f"buffer_store_dwordx4 {vr(vP,4)}, v{vL16}, {srd(SWS)}, s{sOA} offen sc1")
    e(f"buffer_store_dwordx4 {vr(vP+4,4)}, v{vL16}, {srd(SWS)}, s{sOA} offen offset:1024 sc1")
    e.stamp(7)
    e("s_setprio 0")
    wo_addr()
    for i in range(8): wo_piece(i, L_KV)
    e(f"s_cmp_lt_u32 s{sW}, 4"); e("s_cbranch_scc0 L_youngA")
    e(f"s_and_b32 s{sHM}, s{sJ}, 3")
    f3_groups()
    e(f"s_mov_b32 s{sT3}, {L_KV}")
    e.label("L_p3all")
    e("s_waitcnt vmcnt(8)"); e.stamp(8); e("s_barrier")
    p3_setup(); p3_setup2()
    e(f"s_mov_b32 s{SLD+2}, s{SWS+2}")
    e("s_waitcnt vmcnt(0)")
    e("s_barrier"); e.stamp(10)
    if O.ltouch: o_touch(0xffffffff, 0)
    for k in range(O.ad): o_ld(k, sG0 + k//8)
    return a_body, KP

vA, vB, vO0, vO1, vF = 2, 3, 7, 5, 10
sO3, sF3, sOUT3, sHM = sIG, sIF, sOA, sPEND
A0, A1 = 40, 56
vTW, vTR = 18, 17
WB = 72
def OFR(k): return 136 + 4*k if k < 30 else 24 + 4*(k-30)
sG0 = sVMK; sHB = sVMK+4
vW = ((0, 4), (6, 16))
def f3_addr():
    e(f"s_lshl_b32 s{sT0}, s{sBR}, 6"); e(f"s_add_u32 s{sT0}, s{sT0}, s{sT3P}")
    e(f"s_lshl_b32 s{sO3}, s{sT0}, 15"); e(f"s_add_u32 s{sO3}, s{sO3}, {WS_O}")
    e(f"s_lshl_b32 s{sF3}, s{sT0}, 12"); e(f"s_add_u32 s{sF3}, s{sF3}, {WS_F2}")
    e(f"v_lshlrev_b32 v{vF}, 7, v{vL}")
def group(dst):
    e(f"s_brev_b32 s{sHB}, s{sHM}"); e(f"s_lshr_b32 s{sHB}, s{sHB}, 20")
    e(f"s_add_u32 s{dst}, s{sHB}, s{sO3}")
    e(f"s_add_u32 s{sHM}, s{sHM}, 1"); e(f"s_and_b32 s{sHM}, s{sHM}, 3")
def wbase(buf, src):
    e(f"s_and_b32 s{sT0}, s{src}, 0xc00"); e(f"s_lshl_b32 s{sT0}, s{sT0}, 1")
    e(f"v_add_u32 v{vW[buf][0]}, s{sT0}, v{vA}"); e(f"v_add_u32 v{vW[buf][1]}, s{sT0}, v{vB}")
def o_ld(k, base, s_=None):
    if k % 8: e(f"s_add_u32 s{sT0}, s{base}, {(k % 8)*4096}")
    e(f"buffer_load_dwordx4 {vr(OFR(k),4)}, v{vL16}, {srd(s_ or SWS)}, s{sT0 if k % 8 else base} offen sc1")
sNR = sVMK + 7
def poll3(need, look):
    L = e.newlab("L_poll"); D = L + "d"
    e(f"s_mov_b32 s{sCNT}, 0"); e("s_mov_b32 exec_hi, 0")
    e.label(L)
    e(f"s_and_b32 s{sT0}, s{sNR}, {need:#x}"); e(f"s_cbranch_scc0 {D}")
    e(f"s_and_b32 exec_lo, s{sNR}, {look:#x}")
    e(f"buffer_load_dwordx2 {vr(vFL,2)}, v{vF}, {srd(SWS)}, s{sF3} offen sc1")
    e(f"s_add_u32 s{sCNT}, s{sCNT}, 1")
    e("s_waitcnt vmcnt(0)")
    e(f"v_cmp_eq_u64 vcc, {sr(sNON)}, {vr(vFL,2)}")
    e(f"s_andn2_b32 s{sNR}, s{sNR}, vcc_lo")
    if O.sleep: e(f"s_sleep {O.sleep}")
    e(f"s_cmp_gt_u32 s{sCNT}, {O.pollmax}"); e(f"s_cbranch_scc0 {L}")
    e.label(D)
    e("s_mov_b64 exec, -1")
SLD = SDUM
def f3_groups():
    f3_addr()
    for q in range(4): group(sG0+q)
def o_touch(mask, dst):
    e(f"s_and_b32 s{sT0}, s{sJ}, 7"); e(f"s_lshl_b32 s{sT0}, s{sT0}, 12"); e(f"s_add_u32 s{sT0}, s{sT0}, s{sO3}")
    e(f"s_mov_b32 exec_lo, {mask:#x}"); e("s_mov_b32 exec_hi, 0")
    e(f"buffer_load_dword v{vFL+3}, v{vF}, {srd(SWS)}, s{sT0} offen sc1")
    e("s_mov_b64 exec, -1")
def p3_setup():
    e(f"s_mov_b64 {sr(SLD)}, {sr(SWS)}")
    e(f"v_bfe_u32 v{vU0}, v{vL}, 2, 2"); e(f"v_lshlrev_b32 v{vA}, 6, v{vU0}")
    e(f"v_and_b32 v{vU0}, 1, v{vL}"); e(f"v_mul_u32_u24 v{vU0}, 544, v{vU0}"); e(f"v_add_u32 v{vA}, v{vA}, v{vU0}")
    e(f"v_bfe_u32 v{vU0}, v{vL}, 4, 1"); e(f"v_lshl_add_u32 v{vA}, v{vU0}, 4, v{vA}")
    e(f"v_bfe_u32 v{vU0}, v{vL}, 1, 1"); e(f"v_lshl_add_u32 v{vA}, v{vU0}, 3, v{vA}")
    e(f"v_lshrrev_b32 v{vU0}, 5, v{vL}"); e(f"v_lshl_add_u32 v{vA}, v{vU0}, 8, v{vA}")
    e(f"v_add_u32 v{vA}, s{sT3}, v{vA}")
    e(f"v_xor_b32 v{vB}, 32, v{vA}")
    wbase(0, sG0); wbase(1, sG0+1)
def p3_setup2():
    e(f"v_lshrrev_b32 v{vU0}, 5, v{vL}")
    if O.tpose:
        e(f"s_lshl_b32 s{sT0}, s{sW}, 12"); e(f"s_add_u32 s{sT0}, s{sT0}, {L_WK}")
        e(f"v_mul_u32_u24 v{vU0}, 6, v{vU0}"); e(f"v_and_b32 v{vU1}, 7, v{vL}"); e(f"v_xor_b32 v{vU0}, v{vU0}, v{vU1}")
        e(f"v_and_b32 v{vTW}, 31, v{vL}"); e(f"v_lshlrev_b32 v{vTW}, 7, v{vTW}"); e(f"v_lshl_add_u32 v{vTW}, v{vU0}, 4, v{vTW}"); e(f"v_add_u32 v{vTW}, s{sT0}, v{vTW}")
        for i in range(1, 4): e(f"v_xor_b32 v{vTW+i}, {16*i}, v{vTW}")
        e(f"v_lshrrev_b32 v{vU0}, 3, v{vL}"); e(f"v_xor_b32 v{vTR}, v{vU0}, v{vU1}"); e(f"v_lshlrev_b32 v{vTR}, 4, v{vTR}")
        e(f"v_lshl_add_u32 v{vTR}, v{vU0}, 7, v{vTR}"); e(f"v_add_u32 v{vTR}, s{sT0}, v{vTR}")
        e(f"v_lshlrev_b32 v{vO0}, 11, v{vU0}"); e(f"v_lshl_add_u32 v{vO0}, v{vU1}, 4, v{vO0}")
    else:
        e(f"v_and_b32 v{vO0}, 31, v{vL}"); e(f"v_lshlrev_b32 v{vO0}, 11, v{vO0}"); e(f"v_mul_u32_u24 v{vU0}, 96, v{vU0}"); e(f"v_add_u32 v{vO0}, v{vO0}, v{vU0}")
        e(f"v_xor_b32 v{vO1}, 32, v{vO0}")
    e(f"s_lshl_b32 s{sOUT3}, s{sT3P}, 16"); e(f"s_lshl_b32 s{sT1}, s{sBR}, 10"); e(f"s_add_u32 s{sOUT3}, s{sOUT3}, s{sT1}")
    e(f"s_and_b32 s{sT1}, s{sJ}, 7"); e(f"s_lshl_b32 s{sT1}, s{sT1}, 7"); e(f"s_add_u32 s{sOUT3}, s{sOUT3}, s{sT1}")

def lds_wait(off, val):
    L = e.newlab("L_lw"); D = L + "d"
    e(f"s_mov_b32 s{sCNT}, 0")
    e.label(L)
    e(f"ds_read_b32 v{vFL}, v{vFL+3} offset:{off}")
    e(f"s_add_u32 s{sCNT}, s{sCNT}, 1"); e(f"s_cmp_gt_u32 s{sCNT}, {O.pollmax*8}")
    e("s_waitcnt lgkmcnt(0)")
    e(f"v_cmp_ne_u32 vcc, {val}, v{vFL}")
    e(f"s_cbranch_scc1 {D}")
    e(f"s_cbranch_vccz {D}"); e("s_sleep 1"); e(f"s_branch {L}")
    e.label(D)

def p3():
    e.c("---- P3 (waves 0..3)")
    def wrd(buf, k):
        for ct in range(2):
            d = WB + 8*k + 4*ct
            e(f"ds_read_b64_tr_b16 {vr(d,2)}, v{vW[buf][ct]} offset:{k*8192}")
            e(f"ds_read_b64_tr_b16 {vr(d+2,2)}, v{vW[buf][ct]} offset:{k*8192 + 1024}")
    e.label("L_p3go"); e.stub()
    for k in range(4): wrd(0, k)
    e.stamp(9); e.stamp(13, 7)
    A2, A3 = OFR(0), OFR(4); vMX = vFL
    e(f"s_mov_b32 s{sCNT}, 0")
    for k in range(32):
        q, kk = divmod(k, 8)
        if k == O.b2:
            e(f"s_cmp_eq_u32 s{sBR}, 0"); e("s_cbranch_scc1 L_p3b")
            p3_setup2()
            e.stamp(5, 7)
            e("s_barrier"); e.stamp(10); e.stamp(7, 7)
            for k2 in range(16, O.b2+O.ad): o_ld(k2, sG0 + k2//8)
            e.label("L_p3b")
            e.stamp(8, 7)
        if k == 16: e.label("L_p3late"); e(f"v_mov_b32 v{vMX}, 0")
        if k in (9, 18, 27): e.stub()
        e(f"s_waitcnt vmcnt({min(O.ad-1, 31-k)}) lgkmcnt({min(12, 4*(31-k))})")
        o = OFR(k)
        mfma(A0 if k < 16 else A2, WB + 8*kk, o, "0" if k == 0 else (A0 if k <= 16 else A2))
        if k + O.ad < 32: o_ld(k+O.ad, sG0+(k+O.ad)//8, SLD if (k < O.b2 and k+O.ad >= 16) else SWS)
        if k >= 16 and O.hint: e(f"v_max3_u32 v{vMX}, v{vMX}, v{o}, v{o+1}")
        mfma(A1 if k < 16 else A3, WB + 8*kk + 4, o, "0" if k == 0 else (A1 if k <= 16 else A3))
        if k >= 16 and O.hint: e(f"v_max3_u32 v{vMX}, v{vMX}, v{o+2}, v{o+3}")
        if k + 4 < 32: wrd(((k+4)//8) % 2, (k+4) % 8)
        if kk == 3 and q < 2: wbase(q, sG0+q+2)
    e.stamp(9, 7)
    if O.hint:
        e(f"v_cmp_eq_u32 vcc, -1, v{vMX}")
        if O.fredo: e(f"s_cmp_lt_u32 s{sCNT}, 2"); e("s_cselect_b64 vcc, -1, vcc")
        def redo():
            e(f"s_cmp_eq_u32 s{sBR}, 0"); e("s_cbranch_scc1 L_p3fin")
            e(f"s_add_u32 s{sCNT}, s{sCNT}, 1"); e(f"s_cmp_gt_u32 s{sCNT}, {O.pollmax}"); e("s_cbranch_scc1 L_p3fin")
            for k2 in range(16, 16+O.ad): o_ld(k2, sG0 + k2//8)
            for k2 in range(4): wrd(0, k2)
            e("s_branch L_p3late")
        e.cond("s_cmp_lg_u64 vcc, 0", redo)
        e.label("L_p3fin")
        if O.stamps == 1: e(f"s_mul_i32 s{ST0+6}, s{sCNT}, 1000"); e(f"s_add_u32 s{ST0+6}, s{ST0+6}, s{ST0}")
        e("s_nop 7")
    else: e("s_nop 10")
    if not O.epi2: cvt8(72, A2, 8); cvt8(80, A3, 8)
    fl = ["", " sc1", " nt", " sc1 nt", " sc0 sc1", " sc0 sc1 nt", " sc0 nt"][O.outsc]
    if O.tpose:
        for i in range(4):
            if O.epi2: cvt8(72+4*i, A2+8*i)
            e(f"ds_write_b128 v{vTW+i}, {vr(72+4*i,4)}")
        for i in range(4): e(f"ds_read_b128 {vr(88+4*i,4)}, v{vTR} offset:{i*1024}")
        def sts(fl_):
            for i in range(4):
                e(f"s_waitcnt lgkmcnt({3-i})")
                e(f"buffer_store_dwordx4 {vr(88+4*i,4)}, v{vO0}, {srd(SOUT)}, s{sOUT3} offen{fl_}")
                if i < 3: e(f"s_add_u32 s{sOUT3}, s{sOUT3}, 0x4000")
        if O.outB >= 0:
            e(f"s_cmp_eq_u32 s{sBR}, 0"); e("s_cbranch_scc1 L_stA")
            sts(["", " sc1", " nt"][O.outB]); e("s_branch L_std")
            e.label("L_stA"); sts(fl); e.label("L_std")
        else: sts(fl)
    else:
        for i in range(4): e(f"buffer_store_dwordx4 {vr(72+4*i,4)}, v{(vO0, vO1)[i//2]}, {srd(SOUT)}, s{sOUT3} offen offset:{16*(i%2)}{fl}")
    if O.stamps:
        e.stamp(10, 7); e("s_waitcnt vmcnt(0)"); e.stamp(11); e.stamp(11, 7)
        e.label("L_stamps")
        e(f"s_memrealtime {sr(sVM)}"); e("s_waitcnt lgkmcnt(0)")
        e(f"s_lshl_b32 s{sT0}, s2, 3"); e(f"s_add_u32 s{sT0}, s{sT0}, s{sW}"); e(f"s_lshl_b32 s{sT0}, s{sT0}, 6"); e(f"s_add_u32 s{sT0}, s{sT0}, {WS_ST}")
        e("s_mov_b64 exec, 1")
        for i in range(1, 14):
            e(f"s_sub_u32 s{sT1}, s{ST0+2*i}, s{ST0}"); e(f"v_mov_b32 v{vU1}, s{sT1}")
            e(f"buffer_store_dword v{vU1}, off, {srd(SWS)}, s{sT0} offset:{4*i}")
        e(f"v_mov_b32 v{vU1}, s100"); e(f"buffer_store_dword v{vU1}, off, {srd(SWS)}, s{sT0} offset:56")
        e(f"v_mov_b32 v{vU1}, s{sVM}"); e(f"buffer_store_dword v{vU1}, off, {srd(SWS)}, s{sT0} offset:60")
    if O.probe:
        if O.probe == 11: e("s_waitcnt vmcnt(0)"); e("s_memrealtime s[76:77]")
        e("s_waitcnt lgkmcnt(0)")
        e(f"s_cmp_lg_u32 s{sBR}, {O.pbr}"); e("s_cbranch_scc1 L_end")
        e("s_sub_u32 s76, s76, s72"); e("s_lshl_b32 s76, s76, 1"); e("s_add_u32 s76, s76, 3000")
        e.label("L_spin"); e("s_memrealtime s[74:75]"); e("s_waitcnt lgkmcnt(0)"); e("s_sub_u32 s74, s74, s72")
        e(f"s_cmp_lt_u32 s74, s76"); e("s_cbranch_scc1 L_spin")
    if O.spin:
        e.label("L_spin"); e("s_memrealtime s[74:75]"); e("s_waitcnt lgkmcnt(0)"); e("s_sub_u32 s74, s74, s72")
        e(f"s_cmp_lt_u32 s74, {O.spin}"); e("s_cbranch_scc1 L_spin")
    e.label("L_end")
    e("s_endpgm")
    e.stub(); e("s_endpgm")
    e.flush()

def xmax(reg):
    e(f"v_mov_b32 v{vFL+2}, v{reg}"); e("s_nop 1")
    e(f"v_permlane32_swap_b32 v{vFL+2}, v{reg}"); e("s_nop 1")
    e(f"v_max_f32 v{reg}, v{reg}, v{vFL+2}")

def slow_paths(a_body, KP):
    e.c("---- rare path: the stand-in max was unsafe, redo the unit with the true row max")
    def shift(op):
        for r_, d_ in ((vKA, 0x400), (vKA8, 0x400), (vVA, 0x100), (vVA8, 0x100)): e(f"{op} v{r_}, {d_:#x}, v{r_}")
    for u in range(2):
        e.label(f"L_B_slow{u}")
        e(f"s_mov_b32 s{sU}, {u}")
        for i in range(4): e(f"v_mov_b32 v{vQ+i}, v{vQ2+4*u+i}")
        if u == 0: e("s_branch L_B_slow")
        else: shift("v_add_u32")
    e.label("L_B_slow")
    e("s_waitcnt vmcnt(0)")
    prefill(range(vV, vV+8))
    e(f"v_mov_b32 v{vFL}, {NEG}")
    for ps in range(2):
        for i in range(9):
            if i > 0: e(f"s_cmp_gt_u32 {i}, s{sT}"); e(f"s_cbranch_scc1 L_B_s{ps}")
            rdK(i, 0, vK)
            if ps: rdV(i, 0, vV, dyn=False)
            e("s_waitcnt lgkmcnt(0)")
            mfma(vS, vK, vQ, vML if i == 0 else (vMF if i == 8 else "0"))
            e("s_nop 11")
            if ps == 0:
                for r in range(0, 16, 2): e(f"v_max3_f32 v{vFL}, v{vFL}, v{vS+r}, v{vS+r+1}")
            else:
                for r in range(16): e(f"v_sub_f32 v{vS+r}, v{vS+r}, v{vFL}")
                for r in range(16): e(f"v_exp_f32 v{vS+r}, v{vS+r}")
                cvt8(PB, vS, 8); e("s_nop 1")
                mfma(vO, vV, PB, vO if i > 0 else "0"); mfma(vO, vV+4, PB+4, vO)
                e("s_nop 7")
        e.label(f"L_B_s{ps}")
        if ps == 0: xmax(vFL)
    e("s_nop 11")
    norm(vO, vP+4)
    e(f"s_cmp_eq_u32 s{sU}, 0"); e("s_cbranch_scc1 L_B_fin0")
    shift("v_subrev_u32")
    e("s_branch L_B_ok1")
    e.label("L_B_fin0")
    e(f"buffer_store_dwordx4 {vr(vP+4,4)}, v{vL16}, {srd(SWS)}, s{sOA} offen sc1")
    e("s_waitcnt vmcnt(0)"); flag_store(sF2)
    e("s_branch L_B_ok0")
    e.label("L_A_slow")
    e("s_waitcnt vmcnt(0)")
    for h in range(2):
        e(f"v_mov_b32 v{vFL+h}, {NEG}")
        mfma(vS, vK+4-4*h, vQ2+4*h, vML); e("s_nop 11")
        for r in range(0, 16, 2): e(f"v_max3_f32 v{vFL+h}, v{vFL+h}, v{vS+r}, v{vS+r+1}")
        e(f"s_cmp_eq_u32 s{sT}, 0"); e(f"s_cbranch_scc1 L_A_m{h}")
        mfma(vS, KP+4*h, vQ2+4*h, vMF); e("s_nop 11")
        for r in range(8, 16, 2): e(f"v_max3_f32 v{vFL+h}, v{vFL+h}, v{vS+r}, v{vS+r+1}")
        e.label(f"L_A_m{h}")
        xmax(vFL+h)
    a_body(True)
    e("s_branch L_A_ok")

prologue(); p1(); p1_done(); ab = attention(); p3(); slow_paths(*ab)
e("s_endpgm")

hdr = open("cdna_kernels/" + NAME + ".s.ref").read().split("; Override launch geometry")[0]
out = hdr + f"; @launch grid=(256,1,1) block=(512,1,1) lds={LDS_BYTES}\n"
out += """; ---------------------------------------------------------------------------------------------------------------
; ---------------------------------------------------------------------------------------------------------------
"""
out += f""".amdgcn_target "amdgcn-amd-amdhsa--gfx950"
.text
.globl {NAME}_kernel
{'.p2align 12' if O.al12 else ''}
.p2align 8
.type {NAME}_kernel,@function
{NAME}_kernel:
""" + "\n".join(e.L) + f"""
.section .rodata,"a"
.p2align 6
.amdhsa_kernel {NAME}_kernel
  .amdhsa_next_free_vgpr 256
  .amdhsa_next_free_sgpr {102 if O.stamps else (80 if (O.spin or O.probe) else 72)}
  .amdhsa_accum_offset 256
  .amdhsa_group_segment_fixed_size 0
  .amdhsa_kernarg_size 72
  .amdhsa_user_sgpr_count 2
  .amdhsa_user_sgpr_kernarg_segment_ptr 1
  .amdhsa_system_sgpr_workgroup_id_x 1
.end_amdhsa_kernel
"""
open(sys.argv[1], "w").write(out)
```

```python
import sys
NAME = "concat_heads__sliding_local_dilated__sliding_block__prompt"

class Opt:
    stamps = 0
    force_slow = 0
    pollmax = 400000
    only = 0
    delayA = 7
    lag = 5
    kflag = 74
    kchk = 65
    imp = 87
    oflag = 13
    vpos = 2
    uni = 0
    xspan = 1
    torder = 2
    tseq = 3
    tn = 16
    tnt = 0
    rotA = 1
    yprio = 0
    prew = 61
    imp1 = 77
    fair = 1
    tpose = 1
    pdelay = 0
    spin = 0
    x = 0
    wqs = 2
    p1prio = 1
    epi = 11
    tchB = 0
    wo_n = 4
    tchA = 5
    ctouch = 1
    warm = 0
    al12 = 1
    tE = 99
    ltouch = 0
    awo = 1
    pre = 8
    ad = 8
    spoll = 1
    stlb = 0
    sp32 = 1
    fprio = 1
    swp = 1
    probe = 0
    pbr = 0
    rt = 0
    hold = 0
    tlb = 0
    tlbB = 0
    bpre = 8
    aflag = 0
    hsmp = 82
    vsmp = 94
    sprio = 1
    vflag = 83
    stg = 0
    impfirst = 1
    vex = 65
    ev = 91
    prew0 = 0
    vlate = 1
    prew2 = 0
    hint = 0
    poi_at = 1
    b2 = 8
    late1 = 4
    zrow = 1
    fredo = 0
    remap = 1
    m16 = 1
    w2 = 1
    pq = 60
    kex = 63
    la = 4
    il = 1
    afast = 1
    epi2 = 1
    sep = 1
    outB = -1
    mv = 1
    dsw = 0
    xs = 1
    epimid = 0
    jit = 0
    far = 0
    nl = 2
    w1 = 1
    farat = 0
    smp_at = 17
    wo_at = 13
    tch_at = 4
    quiet = 1
    prio = 0
    outsc = 1
    stag = 0
    sleep = 0
O = Opt()
for a in sys.argv[2:]:
    k, v = a.split("="); assert hasattr(O, k), k
    setattr(O, k, int(v))

WS_O = 8 << 20
WS_F1 = 12 << 20
F1V = 262144
WS_F2 = WS_F1 + 524288
WS_ST = 13 << 20
WS_BYTES = 14 << 20
LDS_BYTES = 163840
L_WV = 65536; L_WK = 131072; L_KV = 65536

class E:
    def __init__(s): s.L = []; s.vq = []; s.lq = []; s.lab = 0; s.ool = []
    def __call__(s, t): s.L.append("    " + t)
    def label(s, n): s.L.append(n + ":")
    def c(s, t): s.L.append("    ; " + t)
    def vm(s, t, tag): s(t); s.vq.append(tag)
    def ds(s, t, tag): s(t); s.lq.append(tag)
    def _n(s, q, tag): return len(q) - 1 - max(i for i, x in enumerate(q) if x == tag)
    def wait_vm(s, tag):
        if tag not in s.vq: return
        n = s._n(s.vq, tag); assert n <= 63
        s(f"s_waitcnt vmcnt({n})"); s.vq = s.vq[len(s.vq)-n:]
    def wait_ds(s, tag):
        if tag not in s.lq: return
        n = min(15, s._n(s.lq, tag))
        s(f"s_waitcnt lgkmcnt({n})"); s.lq = s.lq[len(s.lq)-n:]
    def wait_all(s): s("s_waitcnt vmcnt(0)"); s.vq = []
    def ds_all(s): s("s_waitcnt lgkmcnt(0)"); s.lq = []
    def stamp(s, i, mode=1):
        if O.probe == i and mode == 1: s("s_memrealtime s[76:77]")
        if O.stamps == mode: s(f"{'s_memrealtime' if O.rt else 's_memtime'} s[{ST0+2*i}:{ST0+1+2*i}]")
    def stub(s):
        if O.warm:
            s.nstub = getattr(s, "nstub", 0); s.label(f"L_stub{s.nstub}"); s("s_cbranch_execz L_warmed"); s.nstub += 1
    def newlab(s, p): s.lab += 1; return f"{p}_{s.lab}"
    def cond(s, cmp_, body):
        L = s.newlab("L_c"); s(cmp_); s(f"s_cbranch_scc1 {L}"); s.label(L + "r")
        s.ool.append((L, body))
    def flush(s):
        while s.ool:
            L, body = s.ool.pop(0)
            s.label(L); body(); s(f"s_branch {L}r")
e = E()
def vr(a, n): return f"v[{a}:{a+n-1}]"
def sr(a): return f"s[{a}:{a+1}]"
def srd(a): return f"s[{a}:{a+3}]"

SX, SW, SWO, SOUT, SWS, SDBG = 8, 12, 16, 20, 24, 28
SEXP = 8
SOWO = 28
sF1, sKV = 0, 1
sBR, sRB, sG, sW, sM0 = 3, 4, 5, 6, 7
sCX = 32; sCW = 40; sVMK = 32
sNON = 48
sT0, sT1, sT2, sT3 = 50, 51, 52, 53
sJ, sXCD, sTT, sFT, sCNT, sT = 54, 55, 56, 57, 58, 59
sEX = 60; sVM = 62
sIG, sIF, sIMP, sPEND = 64, 65, 66, 67
sOA, sF2 = 68, 69
sOW = 70
sU = 53
sT3P = 55
ST0 = 72
SOTH = 20
SIMP = 12
SDUM = 12
vL, vX0, vX1, vW0, vWR, vWR1, vWR2, vXR, vL16 = 1, 2, 3, 4, 5, 6, 7, 8, 12
vT0, vT1, vT2 = 13, 14, 15
vNON = 14
vEXP = 0
vKA, vVA, vKA8, vVA8 = 2, 3, 0, 7
vWO = 4
vFL = 8
vQ2 = 16; vCV = 24; vP = 24; vQ = 32
vML, vMF = 40, 56
accA, accB, accQ = 72, 88, 24
vS = 72
WF = [104, 108, 112, 116, 120, 124, 16, 20]
vXF = 128
vO = 104; vK = 136; vV = 144; PB = 176
sBAD = 67
vU0, vU1, vU2 = 36, 37, 38
vONE = 11
vL8 = 13
NEG = "0xff800000"

def mfma(d, a, b, c): e(f"v_mfma_f32_32x32x16_bf16 {vr(d,16)}, {vr(a,4)}, {vr(b,4)}, {c if isinstance(c,str) else vr(c,16)}")
HOIST = [False]
def set_m0(ldsdst):
    t = f"    s_add_u32 m0, s{sM0}, {ldsdst}"
    if HOIST[0] and ("v_mfma" in e.L[-1] or "ds_read" in e.L[-1]): e.L.insert(len(e.L)-1, t)
    else: e.L.append(t); e("s_nop 0")
def dma(v, s_, soff, ldsdst, tag):
    set_m0(ldsdst)
    e.vm(f"buffer_load_dwordx4 v{v}, {srd(s_)}, s{soff} offen lds", tag)
def st_pieces(t):
    sl = t % 4
    def wv():
        set_m0(L_WV + sl*16384 + 8192 - 1024)
        e.vm(f"buffer_load_dwordx4 v{vW0}, {srd(SW)}, s{sCW+t} offen offset:1024 lds", f"st{t}")
    return [lambda: dma(vX0, SX, sCX+t, sl*16384, f"st{t}"),
            lambda: dma(vW0, SW, sCW+t, L_WV + sl*16384, f"st{t}"),
            lambda: dma(vX1, SX, sCX+t, sl*16384 + 8192, f"st{t}"), wv]
def cvt(dst, src, i): e(f"v_cvt_pk_bf16_f32 v{dst+i}, v{src+2*i}, v{src+2*i+1}")
def cvt8(dst, src, n=4):
    for i in range(n): cvt(dst, src, i)

def masks(kind):
    e(f"v_and_b32 v{vT0}, 31, v{vL}"); e(f"v_lshrrev_b32 v{vT1}, 5, v{vL}")
    e(f"v_lshlrev_b32 v{vT1}, 2, v{vT1}"); e(f"v_sub_u32 v{vT0}, v{vT0}, v{vT1}")
    if kind == "B":
        e(f"s_mov_b32 s{sT0}, {NEG}")
        for r in range(16):
            c = 8*(r >> 2) + (r & 3)
            e(f"v_subrev_u32 v{vT1}, {c}, v{vT0}"); e(f"v_and_b32 v{vML+r}, s{sT0}, v{vT1}"); e(f"v_xor_b32 v{vMF+r}, s{sT0}, v{vML+r}")
    else:
        e(f"s_mov_b32 s{sT0}, 0xf149f2ca")
        for r in range(16):
            c = 8*(r >> 2) + (r & 3)
            e(f"v_subrev_u32 v{vT1}, {c}, v{vT0}"); e(f"v_and_b32 v{vT1}, -15, v{vT1}"); e(f"v_cvt_f32_u32 v{vT1}, v{vT1}"); e(f"v_mul_f32 v{vML+r}, s{sT0}, v{vT1}")
            if r >= 8:
                e(f"v_add_u32 v{vT1}, {32-c}, v{vT0}"); e(f"v_and_b32 v{vT1}, -15, v{vT1}"); e(f"v_cvt_f32_u32 v{vT1}, v{vT1}"); e(f"v_mul_f32 v{vMF+r}, s{sT0}, v{vT1}")
            else:
                e(f"v_mov_b32 v{vMF+r}, s{sT0}")

def prologue():
    e("s_cmp_ge_u32 s2, 256"); e("s_cbranch_scc1 L_end")
    if O.only == 1: e("s_cmp_ge_u32 s2, 128"); e("s_cbranch_scc1 L_end")
    if O.stamps: e(f"{'s_memrealtime' if O.rt else 's_memtime'} {sr(ST0)}"); e("s_memrealtime s[100:101]")
    if O.spin or O.probe: e("s_memrealtime s[72:73]")
    if O.jit:
        e(f"s_mul_i32 s50, s2, {O.jit}"); e("s_lshr_b32 s50, s50, 3"); e("s_and_b32 s50, s50, 7"); e("s_xor_b32 s50, s50, 7"); e("s_mul_i32 s50, s50, 40")
        e.label("L_jit"); e("s_cmp_eq_u32 s50, 0"); e("s_cbranch_scc1 L_jitd"); e("s_sleep 4"); e("s_sub_u32 s50, s50, 1"); e("s_branch L_jit"); e.label("L_jitd")
    e("s_load_dwordx16 s[32:47], s[0:1], 0"); e("s_load_dwordx2 s[24:25], s[0:1], 64")
    if O.ctouch:
        e(f"s_getpc_b64 {sr(sVM)}")
        e(f"s_lshr_b32 s{sT0}, s2, 3"); e(f"s_mul_i32 s{sT0}, s{sT0}, 5"); e(f"v_add_u32 v{vT0}, s{sT0}, v0"); e(f"v_lshlrev_b32 v{vT0}, 7, v{vT0}")
        e(f"v_cmp_gt_u32 vcc, 5, v0"); e(f"s_and_saveexec_b64 {sr(sEX)}, vcc"); e("s_cbranch_execz L_noct")
        e(f"global_load_dword v254, v{vT0}, {sr(sVM)}")
        e.label("L_noct"); e("s_mov_b64 exec, -1")
    e(f"v_lshrrev_b32 v{vT0}, 6, v0"); e(f"v_and_b32 v{vL}, 63, v0")
    e(f"v_readfirstlane_b32 s{sW}, v{vT0}")
    e(f"s_and_b32 s{sXCD}, s2, 7"); e(f"s_lshr_b32 s{sJ}, s2, 3")
    if O.remap: e(f"s_bfe_u32 s{sT0}, s2, 0x10002"); e(f"s_lshl_b32 s{sT0}, s{sT0}, 1"); e(f"s_xor_b32 s{sXCD}, s{sXCD}, s{sT0}")
    e(f"s_lshr_b32 s{sT0}, s{sXCD}, 1"); e(f"s_lshl_b32 s{sT0}, s{sT0}, 2"); e(f"s_bfe_u32 s{sT1}, s{sJ}, 0x20002")
    e(f"s_add_u32 s{sRB}, s{sT0}, s{sT1}")
    e(f"s_and_b32 s{sT0}, s{sXCD}, 1"); e(f"s_lshl_b32 s{sT0}, s{sT0}, 2"); e(f"s_and_b32 s{sT2}, s{sJ}, 3")
    e(f"s_add_u32 s{sG}, s{sT0}, s{sT2}")
    e(f"s_add_u32 s{sT3}, s{sT1}, s{sT2}"); e(f"s_lshl_b32 s{sT3}, s{sT3}, 1")
    e(f"s_lshl_b32 s{sM0}, s{sW}, 10")
    e(f"v_lshrrev_b32 v{vT0}, 4, v{vL}")
    e(f"s_and_b32 s{sT0}, s{sW}, 1"); e(f"s_lshl_b32 s{sT0}, s{sT0}, 2")
    e(f"v_add_u32 v{vT0}, s{sT0}, v{vT0}")
    e(f"v_and_b32 v{vT1}, 7, v{vL}"); e(f"v_xor_b32 v{vT0}, v{vT0}, v{vT1}"); e(f"v_lshlrev_b32 v{vT0}, 4, v{vT0}")
    e(f"v_lshrrev_b32 v{vT1}, 3, v{vL}"); e(f"v_lshl_add_u32 v{vX0}, v{vT1}, 10, v{vT0}")
    e(f"s_lshl_b32 s{sT0}, s{sW}, 13"); e(f"v_add_u32 v{vX0}, s{sT0}, v{vX0}"); e(f"v_add_u32 v{vX1}, 0x10000, v{vX0}")
    e(f"v_bfe_u32 v{vT0}, v{vL}, 2, 3")
    e(f"s_lshl_b32 s{sT0}, s{sW}, 3"); e(f"v_add_u32 v{vT0}, s{sT0}, v{vT0}")
    e(f"v_lshrrev_b32 v{vT1}, 5, v{vL}"); e(f"v_lshlrev_b32 v{vT1}, 6, v{vT1}")
    e(f"v_and_b32 v{vT2}, 3, v{vL}"); e(f"v_lshl_add_u32 v{vT1}, v{vT2}, 4, v{vT1}")
    e(f"s_and_b32 s{sT0}, s{sW}, 1"); e(f"s_lshl_b32 s{sT0}, s{sT0}, 5"); e(f"v_xor_b32 v{vT1}, s{sT0}, v{vT1}")
    e(f"v_mul_u32_u24 v{vW0}, 3072, v{vT0}"); e(f"v_add_u32 v{vW0}, v{vW0}, v{vT1}"); e(f"v_add_u32 v{vW0}, 0x400, v{vW0}")
    e(f"s_mov_b32 s{SX+2}, {2048*1024}"); e(f"s_mov_b32 s{SX+3}, 0x20000")
    e(f"s_mov_b32 s{SW+2}, {512*3072}"); e(f"s_mov_b32 s{SW+3}, 0x20000")
    e(f"s_mov_b32 s{SOTH+3}, 0x20000")
    e(f"s_lshl_b32 s{sT0}, s{sRB}, 17"); e(f"s_lshl_b32 s{sT1}, s{sG}, 7")
    e(f"s_cmp_lt_u32 s2, 128"); e(f"s_cselect_b32 s{sBR}, 1, 0")
    e(f"s_cselect_b32 s{sT3}, 0, s{sT3}")
    e("s_waitcnt lgkmcnt(0)")
    e(f"s_cselect_b64 {sr(SX)}, s[38:39], s[32:33]")
    e(f"s_cselect_b64 {sr(SW)}, s[40:41], s[34:35]")
    e(f"s_cselect_b64 {sr(SWO)}, s[42:43], s[36:37]")
    e(f"s_cselect_b64 {sr(sOW)}, s[36:37], s[42:43]")
    e(f"s_mov_b64 {sr(SDBG)}, s[46:47]")
    e("s_cbranch_scc1 L_notouch")
    sp = O.xspan
    e(f"v_lshrrev_b32 v{vT0}, {sp}, v{vL}"); e(f"v_lshlrev_b32 v{vT0}, 10, v{vT0}")
    e(f"v_and_b32 v{vT1}, {(1 << sp) - 1}, v{vL}"); e(f"v_lshl_add_u32 v{vT0}, v{vT1}, 7, v{vT0}")
    e(f"v_lshrrev_b32 v{vT1}, 4, v{vL}"); e(f"v_bfe_u32 v{vT2}, v{vL}, 2, 2"); e(f"v_lshl_add_u32 v{vT1}, v{vT1}, 6, v{vT2}")
    e(f"v_mul_u32_u24 v{vT1}, 3072, v{vT1}"); e(f"v_and_b32 v{vT2}, 3, v{vL}"); e(f"v_lshl_add_u32 v{vT1}, v{vT2}, 7, v{vT1}")
    sXB, sWB = sIG, sIF
    e(f"s_and_b32 s{sXB}, s{sG}, 3"); e(f"s_lshl_b32 s{sXB}, s{sXB}, 15"); e(f"s_add_u32 s{sXB}, s{sXB}, s{sT0}")
    e(f"s_and_b32 s{sWB}, s{sJ}, 15"); e(f"s_mul_i32 s{sWB}, s{sWB}, {4*3072}"); e(f"s_and_b32 s{sT2}, s{sT1}, 512"); e(f"s_add_u32 s{sWB}, s{sWB}, s{sT2}")
    code = {0: [8, 2, 9, 10, 3, 11, 4, 5, 0, 1], 1: [8, 9, 10, 11, 2, 3, 4, 5, 0, 1], 2: [8, 2, 4, 9, 10, 3, 5, 11, 0, 1]}[O.torder]
    items = [(1, c) for c in code] + [(0, c) for c in code]
    if O.tseq == 1:
        items = [(1, c) for c in code[:8]] + [(0, c) for c in code[:6]] + [(1, c) for c in code[8:]] + [(0, c) for c in code[6:]]
    if O.tseq == 2: items = [(1, c) for c in code] + [(0, c) for c in (0, 1)]
    if O.tseq == 3: items = [(1, c) for c in code] + [(0, c) for c in (2, 3, 4, 5, 0, 1)]
    if O.tseq == 4: items = [(1, c) for c in code[:8]] + [(0, c) for c in (2, 3, 4, 5)] + [(1, c) for c in code[8:]] + [(0, c) for c in (0, 1)]
    items = items[:O.tn]
    for r in range((len(items) + 7) // 8):
        rnd = items[8*r:8*r+8]
        pk = sum(c << (4*i) for i, (b_, c) in enumerate(rnd)); bm = sum(b_ << i for i, (b_, c) in enumerate(rnd))
        if len(rnd) < 8: e(f"s_cmp_ge_u32 s{sW}, {len(rnd)}"); e(f"s_cbranch_scc1 L_t{r}d")
        e(f"s_lshl_b32 s{sT2}, s{sW}, 2"); e(f"s_lshr_b32 s{sT2}, {pk:#x}, s{sT2}")
        e(f"s_bitcmp1_b32 s{sT2}, 3"); e(f"s_cbranch_scc1 L_t{r}x")
        e(f"s_bitcmp1_b32 {bm:#x}, s{sW}"); e(f"s_cselect_b64 {sr(SOTH)}, s[40:41], s[34:35]"); e(f"s_mov_b32 s{SOTH+2}, {512*3072}")
        e(f"s_and_b32 s{sCNT}, s{sT2}, 1"); e(f"s_mul_i32 s{sCNT}, s{sCNT}, {256*3072}"); e(f"s_add_u32 s{sCNT}, s{sCNT}, s{sWB}")
        e(f"s_and_b32 s{sT2}, s{sT2}, 6"); e(f"s_lshl_b32 s{sT2}, s{sT2}, 9"); e(f"s_add_u32 s{sCNT}, s{sCNT}, s{sT2}")
        e(f"buffer_load_dword v{250+r}, v{vT1}, {srd(SOTH)}, s{sCNT} offen{' nt' if O.tnt else ''}")
        e(f"s_branch L_t{r}d")
        e.label(f"L_t{r}x")
        e(f"s_bitcmp1_b32 {bm:#x}, s{sW}"); e(f"s_cselect_b64 {sr(SOTH)}, s[38:39], s[32:33]"); e(f"s_mov_b32 s{SOTH+2}, {2048*1024}")
        e(f"s_and_b32 s{sT2}, s{sT2}, 3")
        if sp == 2:
            e(f"s_and_b32 s{sCNT}, s{sT2}, 1"); e(f"s_lshl_b32 s{sCNT}, s{sCNT}, 14"); e(f"s_lshr_b32 s{sT2}, s{sT2}, 1"); e(f"s_lshl_b32 s{sT2}, s{sT2}, 9"); e(f"s_add_u32 s{sT2}, s{sT2}, s{sCNT}")
        else: e(f"s_lshl_b32 s{sT2}, s{sT2}, {8 if sp == 1 else 13}")
        e(f"s_add_u32 s{sCNT}, s{sT2}, s{sXB}")
        e(f"buffer_load_dword v{250+r}, v{vT0}, {srd(SOTH)}, s{sCNT} offen{' nt' if O.tnt else ''}")
        e.label(f"L_t{r}d")
        def far():
            e(f"s_and_b32 s{sT2}, s2, 4"); e(f"s_lshl_b32 s{sT2}, s{sT2}, 1"); e(f"s_xor_b32 s{sCNT}, s{sW}, 7"); e(f"s_or_b32 s{sT2}, s{sT2}, s{sCNT}")
            e(f"s_cmp_ge_u32 s{sT2}, {O.far}"); e("s_cbranch_scc1 L_nofar")
            e(f"s_mov_b64 {sr(SOTH)}, s[38:39]"); e(f"s_mov_b32 s{SOTH+2}, {2048*1024}")
            e(f"s_and_b32 s{sT2}, s2, 3"); e(f"s_lshl_b32 s{sT2}, s{sT2}, 4"); e(f"s_and_b32 s{sPEND}, s{sJ}, 15"); e(f"s_add_u32 s{sT2}, s{sT2}, s{sPEND}")
            e(f"s_lshl_b32 s{sT2}, s{sT2}, 13"); e(f"s_sub_u32 s{sCNT}, 3, s{sCNT}"); e(f"s_lshl_b32 s{sCNT}, s{sCNT}, 19"); e(f"s_add_u32 s{sT2}, s{sT2}, s{sCNT}")
            e(f"v_lshlrev_b32 v{vT2}, 7, v{vL}")
            e(f"buffer_load_dword v249, v{vT2}, {srd(SOTH)}, s{sT2} offen")
            e.label("L_nofar")
        if O.far and r == 0 and O.farat == 0: far()
        e("s_barrier")
        if O.far and r == 0 and O.farat == 1: far()
    if O.tlb:
        e(f"s_cmp_lg_u32 s{sW}, 7"); e("s_cbranch_scc1 L_notlb")
        if O.tlb >= 20: e(f"v_lshlrev_b32 v{vT0}, {O.tlb}, v{vL}")
        else:
            e(f"s_and_b32 s{sT2}, s{sJ}, 15"); e(f"v_lshlrev_b32 v{vT0}, 4, v{vL}"); e(f"v_add_u32 v{vT0}, s{sT2}, v{vT0}"); e(f"v_lshlrev_b32 v{vT0}, {O.tlb}, v{vT0}")
        for k_, (p_, n_) in enumerate((("s[24:25]", 13 << 20), ("s[44:45]", 4 << 20), ("s[36:37]", 512 << 10), ("s[42:43]", 512 << 10))):
            e(f"s_mov_b64 {sr(SOTH)}, {p_}"); e(f"s_mov_b32 s{SOTH+2}, {n_}")
            e(f"buffer_load_dword v{244+k_}, v{vT0}, {srd(SOTH)}, 0 offen")
        e.label("L_notlb")
    if not O.rotA: e(f"s_mov_b32 s{sT3}, 0")
    e.label("L_notouch")
    e(f"s_mov_b64 {sr(SOUT)}, s[44:45]")
    def chunk(t):
        e(f"s_add_u32 s{sT2}, s{sT3}, {t}"); e(f"s_and_b32 s{sT2}, s{sT2}, 7")
        e(f"s_lshl_b32 s{sCX+t}, s{sT2}, 7"); e(f"s_add_u32 s{sCX+t}, s{sCX+t}, s{sT0}")
        e(f"s_mul_i32 s{sCW+t}, s{sT2}, {64*3072}"); e(f"s_add_u32 s{sCW+t}, s{sCW+t}, s{sT1}")
    chunk(0)
    for p in st_pieces(0): p()
    e(f"s_mov_b32 s{SDBG+2}, 256"); e(f"s_mov_b32 s{SDBG+3}, 0x20000")
    e(f"s_xor_b32 s{sT2}, s{sW}, 7"); e(f"s_or_b32 s{sT2}, s2, s{sT2}")
    def tag():
        e(f"s_memrealtime {sr(sNON)}"); e("s_waitcnt lgkmcnt(0)")
        e(f"s_or_b32 s{sNON+1}, s{sNON+1}, 0x80000000")
        e(f"v_mov_b32 v{vCV}, s{sNON}"); e(f"v_mov_b32 v{vCV+1}, s{sNON+1}")
        e("s_mov_b64 exec, 1")
        e(f"buffer_store_dwordx2 {vr(vCV,2)}, off, {srd(SDBG)}, 0 sc1")
        e("s_mov_b64 exec, -1")
    e.cond(f"s_cmp_eq_u32 s{sT2}, 0", tag)
    chunk(1)
    for p in st_pieces(1)[:4-O.late1]: p()
    for t in range(2, 8): chunk(t)
    e(f"s_mov_b32 s{SWO+2}, {512*1024}"); e(f"s_mov_b32 s{SWO+3}, 0x20000")
    e(f"s_mov_b32 s{SOUT+2}, {2048*2048}")
    e(f"s_mov_b32 s{SWS+2}, {WS_BYTES}"); e(f"s_mov_b32 s{SWS+3}, 0x20000")
    e(f"s_lshr_b32 s{sFT}, s{sW}, 2"); e(f"s_mul_i32 s{sTT}, s{sFT}, 3"); e(f"s_and_b32 s{sT0}, s{sW}, 3"); e(f"s_xor_b32 s{sTT}, s{sTT}, s{sT0}")
    e(f"s_lshl_b32 s{sT}, s{sRB}, 2"); e(f"s_add_u32 s{sT}, s{sT}, s{sTT}")
    e(f"v_and_b32 v{vT0}, 15, v{vL}"); e(f"v_lshrrev_b32 v{vT1}, 4, v{vL}")
    e(f"v_bfe_u32 v{vT2}, v{vL}, 1, 3"); e(f"v_xor_b32 v{vT2}, v{vT2}, v{vT1}"); e(f"v_lshlrev_b32 v{vT2}, 4, v{vT2}")
    e(f"v_lshl_add_u32 v{vXR}, v{vT0}, 7, v{vT2}")
    e(f"s_lshl_b32 s{sT0}, s{sTT}, 12"); e(f"v_add_u32 v{vXR}, s{sT0}, v{vXR}")
    e(f"v_xor_b32 v{vXR+1}, 64, v{vXR}")
    e(f"v_bfe_u32 v{vT2}, v{vL}, 2, 2"); e(f"v_lshlrev_b32 v{vWR}, 6, v{vT2}")
    e(f"v_bfe_u32 v{vT2}, v{vL}, 4, 1"); e(f"v_lshl_add_u32 v{vWR}, v{vT2}, 5, v{vWR}")
    e(f"v_and_b32 v{vT2}, 3, v{vL}"); e(f"v_lshl_add_u32 v{vWR}, v{vT2}, 3, v{vWR}")
    e(f"v_lshl_add_u32 v{vWR}, v{vT1}, 10, v{vWR}")
    e(f"s_lshl_b32 s{sT0}, s{sFT}, 9"); e(f"v_add_u32 v{vWR}, s{sT0}, v{vWR}")
    e(f"v_add_u32 v{vWR1}, 0x10000, v{vWR}"); e(f"v_xor_b32 v{vWR2}, 32, v{vWR1}")
    e(f"v_lshlrev_b32 v{vL16}, 4, v{vL}")
    e(f"s_lshl_b32 s{sT0}, s{sTT}, 13"); e(f"s_lshl_b32 s{sT1}, s{sFT}, 11"); e(f"s_add_u32 s{sT0}, s{sT0}, s{sT1}")
    e(f"s_add_u32 s{sT0}, s{sT0}, {L_KV + 8*8192}"); e(f"v_add_u32 v{vEXP}, s{sT0}, v{vL16}")
    e(f"s_lshl_b32 s{sT0}, s{sBR}, 3"); e(f"s_add_u32 s{sT0}, s{sT0}, s{sG}"); e(f"s_lshl_b32 s{sT0}, s{sT0}, 6"); e(f"s_add_u32 s{sT0}, s{sT0}, s{sT}")
    e(f"s_lshl_b32 s{sKV}, s{sT0}, 13"); e(f"s_add_u32 s{sKV}, s{sKV}, s{sT1}")
    e(f"s_lshl_b32 s{sF1}, s{sT0}, 8"); e(f"s_lshl_b32 s{sT1}, s{sFT}, 7"); e(f"s_add_u32 s{sF1}, s{sF1}, s{sT1}"); e(f"s_add_u32 s{sF1}, s{sF1}, {WS_F1}")
    e(f"s_sub_u32 s{sT0}, s{sT0}, s{sTT}"); e(f"s_add_u32 s{sT0}, s{sT0}, s{sW}"); e(f"s_sub_u32 s{sT0}, s{sT0}, 8")
    e(f"s_lshl_b32 s{sT1}, s{sRB}, 2"); e(f"s_add_u32 s{sT1}, s{sT1}, s{sW}"); e(f"s_cmp_lt_u32 s{sT1}, 8"); e(f"s_cselect_b32 s{sIMP}, 1, 0")
    e(f"s_cselect_b32 s{sT0}, 0, s{sT0}")
    e(f"s_lshl_b32 s{sIG}, s{sT0}, 13"); e(f"s_lshl_b32 s{sIF}, s{sT0}, 8"); e(f"s_add_u32 s{sIF}, s{sIF}, {WS_F1}")
    e(f"s_and_b32 s{sT0}, s{sF1}, 0xffffff00"); e(f"s_sub_u32 s{sT0}, s{sT0}, 256")
    e(f"s_cmp_eq_u32 s{sBR}, 0"); e(f"s_cselect_b32 s{sIMP}, s{sTT}, s{sIMP}"); e(f"s_cselect_b32 s{sIF}, s{sT0}, s{sIF}")
    e(f"s_lshl_b32 s{sT0}, s{sBR}, 6"); e(f"s_add_u32 s{sT0}, s{sT0}, s{sT}")
    e(f"s_lshl_b32 s{sT1}, s{sT0}, 4"); e(f"s_lshl_b32 s{sT2}, s{sG}, 1"); e(f"s_add_u32 s{sT1}, s{sT1}, s{sT2}"); e(f"s_add_u32 s{sT1}, s{sT1}, s{sFT}")
    e(f"s_lshl_b32 s{sOA}, s{sT1}, 11"); e(f"s_add_u32 s{sOA}, s{sOA}, {WS_O}")
    e(f"s_lshl_b32 s{sF2}, s{sT1}, 8"); e(f"s_add_u32 s{sF2}, s{sF2}, {WS_F2}")
    e(f"s_mov_b32 s{sEX}, 0xffff"); e(f"s_mov_b32 s{sEX+1}, 0xffff")
    e(f"s_lshl_b32 s{sT0}, s{sXCD}, 1"); e(f"s_bfe_u32 s{sT1}, s{sJ}, 0x10003"); e(f"s_add_u32 s{sT0}, s{sT0}, s{sT1}")
    e(f"s_lshl_b32 s{sT0}, s{sT0}, 2"); e(f"s_and_b32 s{sT1}, s{sW}, 3"); e(f"s_add_u32 s{sT3P}, s{sT0}, s{sT1}")
    e(f"s_cmp_eq_u32 s{sBR}, 0"); e("s_cbranch_scc1 L_maskA")
    masks("B"); e("s_branch L_maskdone")
    e.flush()
    e.label("L_maskA"); masks("A")
    e.label("L_maskdone")
    if O.warm:
        e(f"s_cmp_eq_u32 s{sBR}, 0"); e("s_cbranch_scc1 L_warm"); e.label("L_warmA")
    e(f"v_lshlrev_b32 v{vL8}, 3, v{vL}")
    e(f"v_and_b32 v{vFL+2}, 1, v{vL}"); e(f"v_lshlrev_b32 v{vFL+2}, 7, v{vFL+2}"); e(f"v_and_b32 v{vFL+3}, 2, v{vL}"); e(f"v_lshl_add_u32 v{vFL+2}, v{vFL+3}, 17, v{vFL+2}")
    e(f"v_mov_b32 v{vONE}, 0"); e("s_mov_b32 exec_lo, 0x110000"); e("s_mov_b32 exec_hi, 0x110000"); e(f"v_mov_b32 v{vONE}, 0x3f803f80"); e("s_mov_b64 exec, -1")
    for p in st_pieces(1)[4-O.late1:]: p()
    if O.prew0:
        e("s_mov_b32 exec_hi, 0")
        e.vm(f"buffer_store_dwordx2 {vr(vL16,2)}, v{vL8}, {srd(SWS)}, s{sF2} offen sc1", "prew")
        e("s_mov_b32 exec_lo, 0xffff"); e(f"s_add_u32 s{sT0}, s{sF1}, {F1V}")
        e.vm(f"buffer_store_dwordx2 {vr(vL16,2)}, v{vL8}, {srd(SWS)}, s{sF1} offen sc1", "prew")
        e.vm(f"buffer_store_dwordx2 {vr(vL16,2)}, v{vL8}, {srd(SWS)}, s{sT0} offen sc1", "prew")
        e("s_mov_b64 exec, -1")
    if O.stlb:
        e(f"s_add_u32 s{sVM}, s{SWS}, {WS_F1 + 0xff000}"); e(f"s_addc_u32 s{sVM+1}, s{SWS+1}, 0")
        e.cond(f"s_cmp_eq_u32 s{sW}, 0", lambda: e(f"s_load_dword s{sPEND}, {sr(sVM)}, 0"))

def flag_store(soff, s_=SWS, off=0):
    e("s_mov_b64 exec, 0xffff")
    e.vm(f"buffer_store_dwordx2 {vr(vNON,2)}, v{vL8}, {srd(s_)}, s{soff} offen{f' offset:{off}' if off else ''} sc1", "flag")
    e("s_mov_b64 exec, -1")
def flag_ld(tag):
    e.vm(f"buffer_load_dwordx4 {vr(vFL,4)}, off, {srd(SWS)}, s{sIF} sc1", tag)
def flag_cmp():
    e(f"v_cmp_ne_u64 vcc, {sr(sNON)}, {vr(vFL,2)}"); e(f"v_cmp_ne_u64 {sr(sVM)}, {sr(sNON)}, {vr(vFL+2,2)}")
    e(f"s_or_b64 {sr(sVM)}, {sr(sVM)}, vcc")
def flag_poll():
    L = e.newlab("L_fp"); D = L + "d"
    e(f"s_mov_b32 s{sCNT}, 0")
    e.label(L)
    e(f"buffer_load_dwordx4 {vr(vFL,4)}, off, {srd(SWS)}, s{sIF} sc1")
    e(f"s_add_u32 s{sCNT}, s{sCNT}, 1"); e(f"s_cmp_gt_u32 s{sCNT}, {O.pollmax}"); e(f"s_cbranch_scc1 {D}")
    e("s_waitcnt vmcnt(0)")
    flag_cmp(); e(f"s_cbranch_scc1 {L}")
    e.label(D)
def spoll(soff, offs):
    L = e.newlab("L_sp"); D = L + "d"
    e(f"s_add_u32 s{sVM}, s{SWS}, s{soff}"); e(f"s_addc_u32 s{sVM+1}, s{SWS+1}, 0"); e(f"s_mov_b32 s{sCNT}, 0")
    e.label(L)
    w32 = O.sp32 and len(offs) > 4
    for i, o in enumerate(offs): e(f"s_load_dword s{sVMK+i}, {sr(sVM)}, {o} glc" if w32 else f"s_load_dwordx2 {sr(sVMK+2*i)}, {sr(sVM)}, {o} glc")
    e(f"s_add_u32 s{sCNT}, s{sCNT}, 1"); e(f"s_cmp_gt_u32 s{sCNT}, {O.pollmax}")
    e("s_waitcnt lgkmcnt(0)")
    e(f"s_cbranch_scc1 {D}")
    n2 = len(offs)//2 if w32 else len(offs)
    for i in range(n2): e(f"s_xor_b64 {sr(sVMK+2*i)}, {sr(sVMK+2*i)}, {sr(sT2) if w32 else sr(sNON)}")
    for i in range(1, n2): e(f"s_or_b64 {sr(sVMK)}, {sr(sVMK)}, {sr(sVMK+2*i)}")
    e(f"s_cbranch_scc1 {L}")
    e.label(D)
def vpoll(mask):
    L = e.newlab("L_vp"); D = L + "d"
    e(f"s_mov_b32 s{sCNT}, 0"); e(f"s_mov_b64 exec, {mask}")
    e.label(L)
    e(f"buffer_load_dwordx2 {vr(vFL,2)}, v{vFL+2}, {srd(SWS)}, s{sIF} offen sc1")
    e(f"s_add_u32 s{sCNT}, s{sCNT}, 1"); e(f"s_cmp_gt_u32 s{sCNT}, {O.pollmax}")
    e("s_waitcnt vmcnt(0)")
    e(f"v_cmp_ne_u64 vcc, {sr(sNON)}, {vr(vFL,2)}")
    e(f"s_cbranch_scc1 {D}"); e(f"s_cbranch_vccnz {L}")
    e.label(D)
    e("s_mov_b64 exec, -1")
def imp_dma(v, track=None):
    e(f"s_lshl_b32 s{sT1}, s{sW}, 13"); e(f"s_add_u32 m0, s{sT1}, {L_KV + v*4096}")
    e(f"s_add_u32 s{sT0}, s{sIG}, {v*4096}")
    for k in range(4):
        t = f"buffer_load_dwordx4 v{vL16}, {srd(SIMP)}, s{sT0} offen offset:{k*1024} sc1 lds"
        if track: e.vm(t, track)
        else: e(t)

def touch_wo(s_, tmp):
    e(f"s_and_b32 s{sT0}, s{sJ}, 15"); e(f"s_lshl_b32 s{sT0}, s{sT0}, 3"); e(f"s_add_u32 s{sT0}, s{sT0}, s{sW}")
    e(f"s_lshl_b32 s{sT0}, s{sT0}, 12"); e(f"v_lshlrev_b32 v{tmp}, 7, v{vL}")
    e("s_mov_b32 exec_hi, 0")
    e(f"buffer_load_dword v{tmp+1}, v{tmp}, {srd(s_)}, s{sT0} offen")
    e("s_mov_b32 exec_hi, -1")

def imports():
    e.wait_vm("look")
    e(f"v_cmp_ne_u64 vcc, {sr(sNON)}, {vr(vFL,2)}")
    e(f"s_and_b32 s{sT0}, vcc_lo, 3"); e(f"s_cselect_b32 s{sPEND}, s{SIMP+2}, 0")
    if O.stamps == 1: e(f"s_min_u32 s{ST0+24}, s{sPEND}, 1000"); e(f"s_add_u32 s{ST0+24}, s{ST0+24}, s{ST0}")
    e(f"s_cmp_lg_u32 s{sPEND}, 0"); e("s_cbranch_scc1 L_nov")
    imp_dma(0)
    e.label("L_nov")
def look(mask):
    e(f"s_mov_b64 exec, {mask}")
    e.vm(f"buffer_load_dwordx2 {vr(vFL,2)}, v{vFL+2}, {srd(SIMP)}, s{sIF} offen sc1", "look")
    e("s_mov_b64 exec, -1")

def p1():
    e.stamp(12)
    def rd(q, part=None):
        w = WF[q % 8]; p = q & 1
        if q < 64:
            t, r_ = divmod(q, 8); st, ty = r_ >> 2, (r_ >> 1) & 1
            if ty == 0 and part != 1: e.ds(f"ds_read_b128 {vr(vXF+8*(q>>2)+4*p,4)}, v{vXR+st} offset:{(t%4)*16384 + p*2048}", f"w{q}")
            b, off = (vWR1, vWR2)[p], (t % 4)*16384 + ty*8192 + st*4096
        elif q < 80: b, off = (vWR1, vWR2)[p], ((q-64) >> 1)*4096
        else: b, off = (vWR, vWR1)[p], ((q-80) >> 1)*4096
        if part != 1: e.ds(f"ds_read_b64_tr_b16 {vr(w,2)}, v{b} offset:{off}", f"w{q}")
        if part != 0: e.ds(f"ds_read_b64_tr_b16 {vr(w+2,2)}, v{b} offset:{off+256}", f"w{q}")
    LA = O.la
    syncs = {8*t - LA: (f"st{t}", None) for t in range(1, 8)}
    syncs.update({64-LA: ("wq1", None), 72-LA: ("wq7", None), (84 if O.dsw else 80): ("none", "exp")})
    gap = {k: [] for k in range(-1, 96)}
    def I(t): return lambda: e(t)
    def wq(t): return lambda: dma(vW0, SW, sCW+t, (L_WV + t*8192) if t < 4 else (t-4)*8192, f"wq{t}")
    for i, p in enumerate(st_pieces(2)): gap[[-1, 0, 1, 2][i] if LA == 4 else [-1, -1, 0, 1][i]].append(p)
    for t in range(3, 8):
        for i, p in enumerate(st_pieces(t)): gap[8*(t-2) - LA + [[0, 2, 4, 6], [0, 1, 2, 3], [0, 1, 3, 5]][O.stg][i]].append(p)
    gap[47-LA].append(I(f"v_subrev_u32 v{vW0}, 0x400, v{vW0}"))
    for t, k in enumerate([44, 46, 52, 54, 48, 50, 56, 58]): gap[k+4-LA].append(wq(t))
    gap[60].append(lambda: e.vm(f"buffer_load_dwordx2 {vr(vNON,2)}, off, {srd(SDBG)}, 0 sc1", "non"))
    gap[47] += [I(f"s_mov_b64 {sr(SEXP)}, {sr(SWS)}"), I(f"s_lshl_b32 s{sT0}, s{sBR}, 2"), I(f"s_or_b32 s{sT0}, s{sT0}, s{sTT}")]
    gap[49] += [I(f"s_cmp_ge_u32 s{sT0}, 3"), I(f"s_cselect_b32 s{SEXP+2}, s{SWS+2}, 0")]
    def export(k0, kd, acc, off, tag):
        for h in range(2):
            for i in range(4*h, 4*h+4): gap[k0+O.xs*h].append(lambda i=i: cvt(acc, acc, i))
            t_ = acc + 4*h
            gap[k0+O.xs*h+(O.xs-1)] += [I("s_nop 0"), I(f"v_permlane16_swap_b32 v{t_}, v{t_+2}"), I(f"v_permlane16_swap_b32 v{t_+1}, v{t_+3}")]
            if off: gap[k0+O.xs*h+(O.xs-1)] += [I("s_nop 0"), I(f"v_permlane32_swap_b32 v{t_}, v{t_+2}"), I(f"v_permlane32_swap_b32 v{t_+1}, v{t_+3}")]
            if off and not h: gap[k0].append(I(f"s_add_u32 s{sKV}, s{sKV}, {off}"))
            gap[k0+O.xs*h+(O.xs-1)].append(lambda h=h: e.vm(f"buffer_store_dwordx4 {vr(acc+4*h,4)}, v{vL16}, {srd(SEXP)}, s{sKV} offen offset:{1024*h} sc1", tag))
            gap[kd+(4 if O.dsw else 2)*h].append(lambda h=h: e.ds(f"ds_write_b128 v{vEXP}, {vr(acc+4*h,4)} offset:{off+1024*h}", "exp"))
    export(O.kex, 69 if O.dsw else 71, accA, 0, "kst"); export(O.vex, 77 if O.dsw else 75, accB, 4096, "vst")
    def tagrd():
        e.wait_vm("non")
        e(f"v_readfirstlane_b32 s{sNON}, v{vNON}"); e(f"v_readfirstlane_b32 s{sNON+1}, v{vNON+1}")
        def late():
            L = e.newlab("L_tag"); D = L + "d"
            e(f"s_mov_b32 s{sCNT}, 0")
            e.label(L)
            e(f"buffer_load_dwordx2 {vr(vNON,2)}, off, {srd(SDBG)}, 0 sc1"); e("s_waitcnt vmcnt(0)")
            e(f"v_readfirstlane_b32 s{sNON}, v{vNON}"); e(f"v_readfirstlane_b32 s{sNON+1}, v{vNON+1}")
            e(f"s_add_u32 s{sCNT}, s{sCNT}, 1"); e(f"s_cmp_gt_u32 s{sCNT}, {O.pollmax}"); e(f"s_cbranch_scc1 {D}")
            e(f"s_cmp_eq_u32 s{sNON+1}, 0"); e(f"s_cbranch_scc1 {L}")
            e.label(D)
        e("s_nop 0")
        e.cond(f"s_cmp_eq_u32 s{sNON+1}, 0", late)
    gap[72].append(tagrd)
    gap[O.kflag].append(lambda: (e.wait_vm("kst"), flag_store(sF1, SEXP)))
    gap[O.vflag].append(lambda: (e(f"s_add_u32 s{sF1}, s{sF1}, {F1V}"), e.wait_vm("vst"), flag_store(sF1, SEXP), e.stamp(5)))
    def prew():
        e("s_mov_b32 exec_hi, 0")
        e.vm(f"buffer_store_dwordx2 {vr(vL16,2)}, v{vL8}, {srd(SWS)}, s{sF2} offen sc1", "prew")
        e("s_mov_b32 exec_hi, -1")
    if O.prew and not O.prew0: gap[O.prew].append(prew)
    def prew2():
        e("s_mov_b64 exec, 0xffff"); e(f"s_add_u32 s{sT1}, s{sF1}, {F1V}")
        e.vm(f"buffer_store_dwordx2 {vr(vL16,2)}, v{vL8}, {srd(SEXP)}, s{sF1} offen sc1", "prew")
        e.vm(f"buffer_store_dwordx2 {vr(vL16,2)}, v{vL8}, {srd(SEXP)}, s{sT1} offen sc1", "prew")
        e("s_mov_b64 exec, -1")
    if O.prew2: gap[O.prew2].append(prew2)
    gap[84 if O.dsw else 78] += [I(f"v_add_u32 v{vKA8}, {-8*8192 & 0xffffffff:#x}, v{vEXP}"), I(f"v_add_u32 v{vKA}, 0x2000, v{vKA8}"), I(f"v_and_b32 v{vVA8}, 0xfffffeff, v{vKA8}")]
    gap[85 if O.dsw else 79] += [I(f"v_add_u32 v{vVA8}, 0x1000, v{vVA8}"), I(f"v_add_u32 v{vVA}, 0x2000, v{vVA8}")]
    gap[79-LA].append(I(f"v_xor_b32 v{vWR1}, 32, v{vWR}"))
    gap[76] += [I(f"s_mov_b64 {sr(SIMP)}, {sr(SWS)}"), I(f"s_cmp_lg_u32 s{sIMP}, 0"), I(f"s_cselect_b32 s{SIMP+2}, 0, s{SWS+2}")]
    for i in range(24): gap[82 + i//2].append(I(f"v_mov_b32 v{vV+i}, v{vONE}"))
    gap[88].append(lambda: e.ds(f"ds_read_b128 {vr(vK,4)}, v{vKA} offset:{7*8192 + 1024}", "k0"))
    gap[88].append(lambda: e.ds(f"ds_read_b128 {vr(vK+4,4)}, v{vKA} offset:{7*8192}", "k0"))
    gap[O.hsmp].insert(0, lambda: look(3))
    gap[O.vsmp].append(lambda: look(12))
    def ev():
        e(f"s_cmp_eq_u32 s{sBR}, 0"); e("s_cbranch_scc1 L_nov"); imports()
    if O.ev: gap[O.ev].append(ev)
    gap[95] += [I(f"s_mov_b32 s{sT2}, 0x3eb8aa3b"), I(f"s_mov_b32 s{sT3}, 0x3eb8aa3b")]

    if O.hold:
        e(f"s_cmp_lg_u32 s{sBR}, 0"); e("s_cbranch_scc1 L_nohold")
        e.label("L_hold"); e("s_sleep 2"); e(f"s_memrealtime {sr(sVM)}"); e("s_waitcnt lgkmcnt(0)"); e(f"s_sub_u32 s{sVM}, s{sVM}, s100")
        e(f"s_cmp_lt_u32 s{sVM}, {O.hold}"); e("s_cbranch_scc1 L_hold")
        e.label("L_nohold")
    e.wait_vm("st0"); e("s_barrier"); e.stamp(1)
    for q in range(LA): rd(q)
    for f in gap[-1]: f()
    bars = sorted(syncs) + [96]
    HOIST[0] = True
    for q in range(96):
        if q % 8 == 0: e.c(f"---- P1 mfma {q}")
        if q in syncs:
            tag, lg = syncs[q]
            e.wait_vm(tag)
            if lg is True: e.ds_all()
            elif lg: e.wait_ds(lg)
            e("s_barrier")
        if q == 64: e.stamp(2)
        if q % 8 == 4: e.stamp(q//8 + 1, 2)
        if O.p1prio and q >= O.pq:
            a = max(x for x in bars if x <= q); b_ = min(x for x in bars if x > q)
            step = (b_ - a) // 4
            if (q - a) % step == 0 and (q - a) // step < 4: e(f"s_setprio {3 - (q - a)//step}")
        p = q & 1; isv = q < 64 and (q >> 1) & 1
        e.wait_ds(f"w{q | 1}" if (O.w2 or (q < 64 and not isv)) else f"w{q}")
        acc = accQ if q >= 64 else (accB if isv else accA)
        for a in range(2):
            x = vXF + (8*(q >> 2) if q < 64 else 8*((q-64) >> 1)) + 4*a; w = WF[q % 8]
            d = acc + (8*a + 4*p if isv else 8*p + 4*a)
            c = "0" if (q < 4 or 64 <= q < 66) else vr(d, 4)
            ops = (x, w) if isv else (w, x)
            e(f"v_mfma_f32_16x16x32_bf16 {vr(d,4)}, {vr(ops[0],4)}, {vr(ops[1],4)}, {c}")
            if q + LA < 96:
                if O.il: rd(q+LA, a)
                elif a == 0: rd(q+LA)
        for f in gap[q]: f()

def p1_done():
    assert not e.lq, e.lq
def wo_addr():
    e(f"v_bfe_u32 v{vWO}, v{vL}, 2, 3"); e(f"s_lshl_b32 s{sT0}, s{sW}, 3"); e(f"v_add_u32 v{vWO}, s{sT0}, v{vWO}"); e(f"v_lshlrev_b32 v{vWO}, 10, v{vWO}")
    e(f"v_lshrrev_b32 v{vWR}, 5, v{vL}"); e(f"v_lshl_add_u32 v{vWO}, v{vWR}, 6, v{vWO}"); e(f"v_and_b32 v{vWR}, 3, v{vL}"); e(f"v_lshl_add_u32 v{vWO}, v{vWR}, 4, v{vWO}")
    e(f"v_and_b32 v{vWR}, 16, v{vL}"); e(f"v_lshlrev_b32 v{vWR}, 1, v{vWR}"); e(f"v_xor_b32 v{vWO}, v{vWR}, v{vWO}")
    e(f"s_and_b32 s{sT0}, s{sJ}, 7"); e(f"s_lshl_b32 s{sT0}, s{sT0}, 7"); e(f"v_add_u32 v{vWO}, s{sT0}, v{vWO}")
def wo_piece(i, base=0):
    e(f"s_add_u32 m0, s{sM0}, {base + i*8192}"); e(f"s_mov_b32 s{sT0}, {i*65536}")
    e(f"buffer_load_dwordx4 v{vWO}, {srd(SWO)}, s{sT0} offen lds")

def norm(o, dst):
    e(f"v_rcp_f32 v{o+10}, v{o+8}")
    e(f"v_pk_add_f32 {vr(o+12,2)}, {vr(o,2)}, {vr(o+2,2)}"); e(f"v_pk_add_f32 {vr(o+14,2)}, {vr(o+4,2)}, {vr(o+6,2)}")
    for i in range(4): e(f"v_pk_mul_f32 {vr(o+2*i,2)}, {vr(o+2*i,2)}, {vr(o+10,2)} op_sel_hi:[1,0]")
    e(f"v_pk_add_f32 {vr(o+12,2)}, {vr(o+12,2)}, {vr(o+14,2)}")
    cvt8(dst, o)
    e(f"v_add_f32 v{o+12}, v{o+12}, v{o+13}"); e(f"v_fma_f32 v{o+8}, v{o+12}, 0, v{o+8}")
def check(os_, slowlab):
    for n, o in enumerate(os_):
        e(f"v_subrev_u32 v{o+8}, 0x2b800000, v{o+8}")
        if n: e(f"v_max_u32 v{os_[0]+8}, v{os_[0]+8}, v{o+8}")
    e(f"v_cmp_lt_u32 vcc, 0x28000000, v{os_[0]+8}")
    if slowlab is None:
        e(f"s_or_b32 s{sBAD}, vcc_lo, vcc_hi")
        if O.force_slow: e(f"s_mov_b32 s{sBAD}, 1")
    elif O.force_slow: e(f"s_branch {slowlab}")
    else: e(f"s_cbranch_vccnz {slowlab}")
def prefill(regs):
    e(f"s_mov_b32 s{sT0}, 0x3f803f80")
    for i in regs: e(f"v_mov_b32 v{i}, s{sT0}")
def rdK(i, u, dst):
    if i < 8: e(f"ds_read_b128 {vr(dst,4)}, v{vKA} offset:{(7-i)*8192 + u*1024}")
    else: e(f"ds_read_b128 {vr(dst,4)}, v{vKA8} offset:{u*1024}")
def rdV(i, u, dst, dyn=True, restore=True):
    e(f"s_mov_b64 exec, {sr(sVMK+2*(i-1)) if dyn and i > 0 else sr(sEX)}")
    b, off = (vVA, (7-i)*8192) if i < 8 else (vVA8, 0)
    e(f"ds_read_b128 {vr(dst,4)}, v{b} offset:{off + u*256}")
    e(f"ds_read_b128 {vr(dst+4,4)}, v{b} offset:{off + u*256 + 1024}")
    if restore: e("s_mov_b64 exec, -1")

def attention():
    e.c("---- Q epilogue")
    e.stamp(4)
    def qscale(h):
        for i in range(4*h, 4*h+4): e(f"v_pk_mul_f32 {vr(accQ+2*i,2)}, {vr(accQ+2*i,2)}, {sr(sT2)}")
        for i in (0, 2, 1, 3): cvt(vQ2, accQ, 4*h + i)
        e("s_nop 0"); e(f"v_permlane16_swap_b32 v{vQ2+4*h}, v{vQ2+4*h+2}"); e(f"v_permlane16_swap_b32 v{vQ2+4*h+1}, v{vQ2+4*h+3}")
    e(f"s_cmp_eq_u32 s{sBR}, 0"); e("s_cbranch_scc1 L_attnA")
    e.c("---- attention B")
    e.cond(f"s_cmp_lg_u32 s{sPEND}, 0", lambda: (vpoll(3), imp_dma(0), look(12)))
    e("s_nop 3")
    qscale(1); qscale(0)
    def su1():
        for i in range(1, 9): e(f"s_cmp_le_u32 {i}, s{sT}"); e(f"s_cselect_b64 {sr(sVMK+2*(i-1))}, {sr(sEX)}, -1")
    def su2():
        wo_addr()
        for i in range(24, 32): e(f"v_mov_b32 v{vV+i}, v{vONE}")
    def kbar():
        if O.warm: e("s_branch L_warm"); e.label("L_warmB")
        if not O.mv: su1(); su2()
        e(f"s_waitcnt vmcnt({4 if O.vpos == 1 else 1})"); e("s_barrier"); e.stamp(6)
    def vbar():
        e(f"s_waitcnt vmcnt({(2 if O.tchA < O.lag else 0) + (1 if O.hint and O.poi_at < O.lag else 0)})"); e("s_barrier"); e.stamp(13)
    def tchA():
        if not O.tchB: touch_wo(SWO, vU0+2)
        e(f"s_mov_b64 {sr(SOWO)}, {sr(sOW)}"); e(f"s_mov_b32 s{SOWO+2}, {512*1024}")
        touch_wo(SOWO, vU0)
    def sample02():
        f3_addr()
        e("s_mov_b64 exec, 0x55555555")
        e(f"buffer_load_dwordx2 {vr(vFL,2)}, v{vF}, {srd(SWS)}, s{sF3} offen sc1")
        e("s_mov_b64 exec, -1")
    L = O.lag
    seq = [(1, 0), (0, 0)] + [(0, i) for i in range(1, 9)] + [(1, i) for i in range(1, 9)]
    pv = {n: [] for n in range(19)}
    pv[1].append(0); pv[2].append(1); m = 2
    for n in range(L+1, 19):
        for _ in range(2):
            if m < n and m < 18: pv[n].append(m); m += 1
    assert m == 18
    def P(m): return PB + 8*(m % 8)
    def V(m): return vV + 8*(m % 4)
    def ex(n, r): e(f"v_exp_f32 v{vS+16*(n%2)+r}, v{vS+16*(n%2)+r}")
    def pvm(m, kb):
        o = vO + 16*seq[m][0]
        mfma(o, V(m)+4*kb, P(m)+4*kb, "0" if (m < 2 and kb == 0) else o)
    def qk(n):
        u1, i1 = seq[n]
        mfma(vS+16*(n % 2), vK+4*(n % 2), vQ2 + 4*u1, vML if i1 == 0 else (vMF if i1 == 8 else "0"))
    assert max(n for n in pv if 9 in pv[n]) < O.epi
    q4 = (18 - L) // 4
    prio = {0: 1, 1: 0, 2: 1, 3: 0, L: 3, L+q4+1: 2, L+2*q4+1: 1, L+3*q4+2: 0}
    qk(0)
    e("s_nop 0")
    e("s_nop 6")
    for n in range(19):
        s_ = vS + 16*(n % 2)
        e.c(f"task {n}")
        if n < 11: e.stamp(n+1, 4)
        if n >= 8: e.stamp(n-7, 5)
        if O.fair and n in prio: e(f"s_setprio {prio[n]}")
        if n == O.vpos:
            e("s_waitcnt vmcnt(0)")
            e(f"v_cmp_ne_u64 vcc, {sr(sNON)}, {vr(vFL,2)}")
            e(f"s_and_b32 s{sT0}, vcc_lo, 12"); e(f"s_cselect_b32 s{sT0}, s{SIMP+2}, 0")
            e.cond(f"s_cmp_lg_u32 s{sT0}, 0", lambda: vpoll(12))
            imp_dma(1)
        if n == 3 and O.mv: su1()
        if n == 4 and O.mv: su2()
        if n == L: vbar()
        if n == O.oflag:
            younger = sum(8*(t-O.wo_at+1)//O.wo_n - 8*(t-O.wo_at)//O.wo_n for t in range(O.epi+1, n) if O.wo_at <= t < O.wo_at + O.wo_n)
            e(f"s_waitcnt vmcnt({younger})")
            e(f"s_cmp_lg_u32 s{sBAD}, 0"); e("s_cbranch_scc1 L_noflag0"); flag_store(sF2); e.label("L_noflag0")
        if O.wo_at <= n < O.wo_at + O.wo_n:
            for p_ in range(8*(n-O.wo_at)//O.wo_n, 8*(n-O.wo_at+1)//O.wo_n): wo_piece(p_)
        if n == O.poi_at and O.hint:
            for i_ in range(4): e(f"v_mov_b32 v{vP+4+i_}, -1")
            e(f"buffer_store_dwordx4 {vr(vP+4,4)}, v{vL16}, {srd(SWS)}, s{sOA} offen offset:1024 sc1")
        if n == O.tchA: tchA()
        if n == O.tE: e.cond(f"s_cmp_lt_u32 s{sW}, 4", lambda: (f3_addr(), o_touch(0x00ff00ff, 0)))
        if n == O.smp_at: e.cond(f"s_cmp_lt_u32 s{sW}, 4", sample02)
        nxt = pv[n+1] if n < 18 else []
        fresh = [m for m in nxt if 10 <= m < 14]
        if fresh: e.cond(f"s_cmp_lt_u32 s{sT}, 8", lambda fresh=fresh: [e(f"v_mov_b32 v{V(m)+k}, v{vONE}") for m in fresh for k in range(8)])
        cnt = 0
        if 1 < n < 17: rdK(seq[n+1][1], seq[n+1][0], vK+4*((n+1) % 2)); cnt += 1
        for k, m in enumerate(nxt): rdV(seq[m][1], seq[m][0], V(m), restore=(k == len(nxt)-1)); cnt += 2
        mf = [(m, kb) for m in pv[n] for kb in range(2)]
        if n == 18:
            e("s_waitcnt lgkmcnt(0)"); e("s_nop 0")
            for x in mf: pvm(*x)
            break
        first = [True]
        def slot():
            if mf:
                if first[0]: e(f"s_waitcnt lgkmcnt({cnt})"); first[0] = False
                pvm(*mf.pop(0))
        two = len(mf) > 2
        def epi0():
            norm(vO, vP); check([vO], None)
            e(f"buffer_store_dwordx4 {vr(vP,4)}, v{vL16}, {srd(SWS)}, s{sOA} offen sc1")
        for r in range(4): ex(n, r)
        slot()
        if n == O.epi and O.epimid: epi0()
        for r in range(4, 8): ex(n, r)
        if n == 1: slot(); kbar(); rdK(1, 0, vK)
        elif n < 17:
            if n: e(f"s_waitcnt lgkmcnt({cnt-1})")
            qk(n+1)
        cvt8(P(n), s_)
        for r in range(8, 10): ex(n, r)
        if two: slot()
        for r in range(10, 12): ex(n, r)
        if not two: slot()
        if n == 1: e("s_waitcnt lgkmcnt(0)"); qk(2)
        for r in range(12, 14): ex(n, r)
        slot()
        for r in range(14, 16): ex(n, r)
        cvt8(P(n)+4, s_+8)
        slot()
        if n == 1: e("s_nop 3")
        if n == O.epi and not O.epimid: epi0()
    e("s_nop 11")
    norm(vO+16, vP+4); check([vO+16], "L_B_slow1")
    e.label("L_B_ok1")
    if O.hint:
        for i_ in range(4): e(f"v_min_u32 v{vP+4+i_}, -2, v{vP+4+i_}")
    if O.sprio: e("s_setprio 2")
    e(f"buffer_store_dwordx4 {vr(vP+4,4)}, v{vL16}, {srd(SWS)}, s{sOA} offen offset:1024 sc1")
    if O.sprio: e("s_setprio 0")
    e(f"s_cmp_lg_u32 s{sBAD}, 0"); e("s_cbranch_scc1 L_B_slow0")
    e.label("L_B_ok0")
    e.stamp(7); e.stamp(12, 7)
    e(f"s_cmp_lt_u32 s{sW}, 4"); e("s_cbranch_scc0 L_young")
    if O.hint: e("s_waitcnt vmcnt(2)"); e.stamp(8); e("s_barrier")
    e(f"s_mov_b32 s{sHM}, 0")
    f3_groups()
    if O.swp:
        e(f"s_and_b32 s{sT0}, s{sJ}, 1"); e(f"s_lshl_b32 s{sT0}, s{sT0}, 11")
        for q in range(4): e(f"s_xor_b32 s{sG0+q}, s{sG0+q}, s{sT0}")
    e("s_waitcnt vmcnt(1)")
    e("s_mov_b64 exec, 0x55555555")
    e(f"v_cmp_ne_u64 vcc, {sr(sNON)}, {vr(vFL,2)}")
    e("s_mov_b64 exec, -1")
    e(f"s_mov_b32 s{sT3}, 0"); e(f"s_mov_b32 s{sNR}, vcc_lo")
    if O.stamps == 1: e(f"s_min_u32 s{ST0+6}, s{sNR}, 1"); e(f"s_mul_i32 s{ST0+6}, s{ST0+6}, 1000"); e(f"s_add_u32 s{ST0+6}, s{ST0+6}, s{ST0}")
    e("s_cbranch_vccnz L_p3again")
    e.label("L_p3even"); e.stub()
    if O.bpre > 8:
        pass
    for k in range(O.ad): o_ld(k, sG0 + k//8)
    p3_setup()
    if not O.hint: e(f"s_waitcnt vmcnt({O.ad})"); e.stamp(8); e("s_barrier")
    e("s_branch L_p3go")
    e.label("L_p3again")
    e(f"s_mov_b32 exec_lo, s{sNR}"); e("s_mov_b32 exec_hi, 0")
    e(f"buffer_load_dwordx2 {vr(vFL,2)}, v{vF}, {srd(SWS)}, s{sF3} offen sc1")
    e("s_mov_b64 exec, -1")
    p3_setup()
    if not O.hint: e("s_waitcnt vmcnt(1)"); e.stamp(8); e("s_barrier")
    e("s_waitcnt vmcnt(0)")
    e(f"v_cmp_eq_u64 vcc, {sr(sNON)}, {vr(vFL,2)}")
    e(f"s_andn2_b32 s{sNR}, s{sNR}, vcc_lo")
    poll3(0x55555555, 0x55555555)
    for k in range(O.ad): o_ld(k, sG0 + k//8)
    e("s_branch L_p3go")
    e.label("L_young"); e.stub()
    e(f"s_waitcnt vmcnt({1 if O.hint else 0})")
    e.label("L_youngA")
    e("s_mov_b64 exec, 0xffff")
    e(f"s_cmp_eq_u32 s{sW}, 4"); e(f"s_cselect_b32 s{SEXP+2}, s{SWS+2}, 0")
    if O.fprio: e("s_setprio 3")
    e("s_waitcnt vmcnt(8)"); e.stamp(8); e("s_barrier")
    e.stamp(1, 8)
    e(f"buffer_store_dwordx2 {vr(vNON,2)}, v{vL8}, {srd(SEXP)}, s{sF2} offen offset:128 sc1")
    e("s_mov_b64 exec, -1")
    e.stamp(2, 8)
    if O.stamps == 8: e("s_waitcnt vmcnt(0)"); e.stamp(3, 8); e(f"s_memrealtime {sr(ST0+12)}")
    e(f"s_cmp_lg_u32 s{sW}, 4"); e("s_cbranch_scc1 L_rest")
    f3_addr()
    e(f"s_add_u32 s{sF3}, s{sF3}, {3*4096}")
    e(f"s_mov_b32 s{sT2}, s{sNON}"); e(f"s_mov_b32 s{sT3}, s{sNON}")
    if O.pdelay: e(f"s_sleep {O.pdelay}")
    spoll(sF3, [384 + 512*g_ for g_ in range(8)])
    e.stamp(10); e.stamp(4, 8)
    if O.stamps == 8:
        e(f"s_memrealtime {sr(ST0+14)}"); e("s_waitcnt lgkmcnt(0)"); e(f"s_add_u32 s{ST0+10}, s{ST0}, s{sCNT}")
        for q_ in (12, 14): e(f"s_and_b32 s{ST0+q_}, s{ST0+q_}, 0xffff"); e(f"s_add_u32 s{ST0+q_}, s{ST0+q_}, s{ST0}")
    e("s_waitcnt vmcnt(1)")
    e("s_barrier")
    e.label("L_rest")
    e("s_waitcnt vmcnt(0)")
    e("s_branch L_stamps" if O.stamps else "s_endpgm")
    e.flush()

    e.c("---- attention A")
    if O.warm:
        e.label("L_warm")
        e("s_mov_b64 exec, 0")
        for i in range(7): e(f"s_cmp_eq_u32 s{sW}, {i}"); e(f"s_cbranch_scc1 L_stub{i}")
        e("s_branch L_stub7")
        e.label("L_warmed"); e("s_mov_b64 exec, -1")
        e(f"s_cmp_eq_u32 s{sBR}, 0"); e("s_cbranch_scc1 L_warmA"); e("s_branch L_warmB")
    e.label("L_attnA")
    KP, VP = 176, 160
    if not O.spoll:
        e(f"s_and_b32 s{sIF}, s{sF1}, 0xffffff00"); e(f"s_sub_u32 s{sIF}, s{sIF}, 136")
        flag_ld("x")
    e.stamp(6)
    def halo():
        L = e.newlab("L_h")
        e(f"s_cmp_eq_u32 s{sT}, 0"); e(f"s_cbranch_scc1 L_A_nh")
        e("s_waitcnt vmcnt(0)")
        e(f"v_cmp_ne_u64 vcc, {sr(sNON)}, {vr(vFL,2)}")
        e(f"s_and_b32 s{sT0}, vcc_lo, 12"); e(f"s_cbranch_scc0 {L}")
        vpoll(12)
        e.label(L)
        e(f"s_sub_u32 s{sT0}, s{sKV}, {8192 + 4096}"); e(f"s_sub_u32 s{sT1}, s{sKV}, {8192 - 1024}")
        e(f"v_and_b32 v{vFL}, 0x2ff, v{vL16}")
        for h in range(2): e(f"buffer_load_dwordx4 {vr(KP+4*h,4)}, v{vL16}, {srd(SWS)}, s{sT0} offen offset:{h*1024} sc1")
        e(f"s_mov_b64 exec, {sr(sEX)}")
        for h in range(2): e(f"buffer_load_dwordx4 {vr(VP+4*h,4)}, v{vFL}, {srd(SWS)}, s{sT1} offen offset:{h*256} sc1")
        e("s_mov_b64 exec, -1")
        e("s_branch L_A_nh")
    e.cond(f"s_cmp_eq_u32 s{sTT}, 0", halo)
    for h in range(2): e(f"ds_read_b128 {vr(KP+4*h,4)}, v{vKA} offset:{6*8192 + h*1024}")
    e(f"s_mov_b64 exec, {sr(sEX)}")
    for h in range(2): e(f"ds_read_b128 {vr(VP+4*h,4)}, v{vVA} offset:{6*8192 + 1024 + h*256}")
    e("s_mov_b64 exec, -1")
    e.label("L_A_nh")
    e(f"s_mov_b64 exec, {sr(sEX)}")
    for h in range(2):
        for kb in range(2): e(f"ds_read_b128 {vr(vV+8*h+4*kb,4)}, v{vVA} offset:{7*8192 + kb*1024 + h*256}")
    e("s_mov_b64 exec, -1"); e("s_nop 0")
    if O.afast:
        qscale(0); e("s_nop 1"); mfma(vS, vK+4, vQ2, vML)
        qscale(1); e("s_waitcnt lgkmcnt(0)"); e("s_nop 0"); mfma(vS+16, vK, vQ2+4, vML)
    else:
        qscale(0); qscale(1)
        e("s_waitcnt lgkmcnt(0)")
    def a_body(slow):
        def exs(s_, rs, h):
            for r in rs:
                if slow: e(f"v_sub_f32 v{s_+r}, v{s_+r}, v{vFL+h}")
                e(f"v_exp_f32 v{s_+r}, v{s_+r}")
        lab = "L_A_s2" if slow else "L_A_f2"
        for h in range(2): mfma(vS+16*h, vK+4-4*h, vQ2+4*h, vML)
        e("s_nop 10")
        for h in range(2):
            exs(vS+16*h, range(16), h); cvt8(vP+8*h, vS+16*h, 8); e("s_nop 1")
            mfma(vO+16*h, vV+8*h, vP+8*h, "0"); mfma(vO+16*h, vV+8*h+4, vP+8*h+4, vO+16*h)
        e("s_waitcnt vmcnt(0)")
        e(f"s_cmp_eq_u32 s{sT}, 0"); e(f"s_cbranch_scc1 {lab}")
        e.stamp(13)
        for h in range(2): mfma(vS+16*h, KP+4*h, vQ2+4*h, vMF)
        e("s_nop 10")
        for h in range(2):
            exs(vS+16*h, range(8, 16), h); cvt8(vP+8*h+4, vS+16*h+8); e("s_nop 1")
            mfma(vO+16*h, VP+4*h, vP+8*h+4, vO+16*h)
        e.label(lab)
        e("s_nop 11")
        for h in range(2): norm(vO+16*h, vP+4*h)
    if not O.afast: a_body(False)
    else:
        S2 = 184
        def exr(s_, rs):
            for r in rs: e(f"v_exp_f32 v{s_+r}, v{s_+r}")
        exr(vS, range(16)); cvt8(vP, vS, 8)
        e.cond(f"s_cmp_eq_u32 s{sTT}, 0", lambda: e("s_waitcnt vmcnt(0)"))
        e.stamp(13)
        for h in range(2): mfma(S2+16*h, KP+4*h, vQ2+4*h, vMF)
        exr(vS+16, range(4)); mfma(vO, vV, vP, "0")
        exr(vS+16, range(4, 8)); mfma(vO, vV+4, vP+4, vO)
        exr(vS+16, range(8, 16)); cvt8(vP+8, vS+16, 8)
        e(f"s_cmp_eq_u32 s{sT}, 0"); e("s_cbranch_scc1 L_A_first")
        exr(S2, range(8, 12)); mfma(vO+16, vV+8, vP+8, "0")
        exr(S2, range(12, 16)); mfma(vO+16, vV+12, vP+12, vO+16)
        cvt8(S2, S2+8)
        exr(S2+16, range(8, 12)); mfma(vO, VP, S2, vO)
        exr(S2+16, range(12, 16)); cvt8(S2+16, S2+24); e("s_nop 1")
        mfma(vO+16, VP+4, S2+16, vO+16)
        e("s_nop 0")
        e.label("L_A_norm"); e.stub()
        norm(vO, vP); norm(vO+16, vP+4)
        e.ool.append(("L_A_first", lambda: (mfma(vO+16, vV+8, vP+8, "0"), mfma(vO+16, vV+12, vP+12, vO+16), e("s_branch L_A_norm"), e.label("L_A_firstr"))))
    check([vO, vO+16], "L_A_slow")
    e.label("L_A_ok")
    e("s_setprio 2")
    e(f"buffer_store_dwordx4 {vr(vP,4)}, v{vL16}, {srd(SWS)}, s{sOA} offen sc1")
    e(f"buffer_store_dwordx4 {vr(vP+4,4)}, v{vL16}, {srd(SWS)}, s{sOA} offen offset:1024 sc1")
    e.stamp(7)
    e("s_setprio 0")
    wo_addr()
    for i in range(8): wo_piece(i, L_KV)
    e(f"s_cmp_lt_u32 s{sW}, 4"); e("s_cbranch_scc0 L_youngA")
    e(f"s_and_b32 s{sHM}, s{sJ}, 3")
    f3_groups()
    e(f"s_mov_b32 s{sT3}, {L_KV}")
    e.label("L_p3all")
    e("s_waitcnt vmcnt(8)"); e.stamp(8); e("s_barrier")
    p3_setup(); p3_setup2()
    e("s_waitcnt vmcnt(0)")
    e("s_barrier"); e.stamp(10)
    if O.ltouch: o_touch(0xffffffff, 0)
    for k in range(O.ad): o_ld(k, sG0 + k//8)
    return a_body, KP

vA, vB, vO0, vO1, vF = 2, 3, 7, 5, 10
sO3, sF3, sOUT3, sHM = sIG, sIF, sOA, sPEND
A0, A1 = 40, 56
vTW, vTR = 18, 17
WB = 72
def OFR(k): return 136 + 4*k if k < 30 else 24 + 4*(k-30)
sG0 = sVMK; sHB = sVMK+4
vW = ((0, 4), (6, 16))
def f3_addr():
    e(f"s_lshl_b32 s{sT0}, s{sBR}, 6"); e(f"s_add_u32 s{sT0}, s{sT0}, s{sT3P}")
    e(f"s_lshl_b32 s{sO3}, s{sT0}, 15"); e(f"s_add_u32 s{sO3}, s{sO3}, {WS_O}")
    e(f"s_lshl_b32 s{sF3}, s{sT0}, 12"); e(f"s_add_u32 s{sF3}, s{sF3}, {WS_F2}")
    e(f"v_lshlrev_b32 v{vF}, 7, v{vL}")
def group(dst):
    e(f"s_brev_b32 s{sHB}, s{sHM}"); e(f"s_lshr_b32 s{sHB}, s{sHB}, 20")
    e(f"s_add_u32 s{dst}, s{sHB}, s{sO3}")
    e(f"s_add_u32 s{sHM}, s{sHM}, 1"); e(f"s_and_b32 s{sHM}, s{sHM}, 3")
def wbase(buf, src):
    e(f"s_and_b32 s{sT0}, s{src}, 0xc00"); e(f"s_lshl_b32 s{sT0}, s{sT0}, 1")
    e(f"v_add_u32 v{vW[buf][0]}, s{sT0}, v{vA}"); e(f"v_add_u32 v{vW[buf][1]}, s{sT0}, v{vB}")
ORDER = [(st, a) for st in range(16 - O.nl) for a in range(2)] + [(st, a) for a in range(2) for st in range(16 - O.nl, 16)]
vOL = 5
def o_ld(k, base=None, s_=None):
    st, a = ORDER[k]; base = sG0 + st//4
    same = k > 0 and ORDER[k-1][0] == st
    if st % 4 and not same: e(f"s_add_u32 s{sLB}, s{base}, {(st % 4)*8192}")
    e(f"buffer_load_dwordx4 {vr(OFR(k),4)}, v{vOL}, {srd(SWS)}, s{sLB if st % 4 else base} offen offset:{256*a} sc1")
sLB = sVMK + 5
sNR = sVMK + 7
def poll3(need, look):
    L = e.newlab("L_poll"); D = L + "d"
    e(f"s_mov_b32 s{sCNT}, 0"); e("s_mov_b32 exec_hi, 0")
    e.label(L)
    e(f"s_and_b32 s{sT0}, s{sNR}, {need:#x}"); e(f"s_cbranch_scc0 {D}")
    e(f"s_and_b32 exec_lo, s{sNR}, {look:#x}")
    e(f"buffer_load_dwordx2 {vr(vFL,2)}, v{vF}, {srd(SWS)}, s{sF3} offen sc1")
    e(f"s_add_u32 s{sCNT}, s{sCNT}, 1")
    e("s_waitcnt vmcnt(0)")
    e(f"v_cmp_eq_u64 vcc, {sr(sNON)}, {vr(vFL,2)}")
    e(f"s_andn2_b32 s{sNR}, s{sNR}, vcc_lo")
    if O.sleep: e(f"s_sleep {O.sleep}")
    e(f"s_cmp_gt_u32 s{sCNT}, {O.pollmax}"); e(f"s_cbranch_scc0 {L}")
    e.label(D)
    e("s_mov_b64 exec, -1")
SLD = SDUM
def f3_groups():
    f3_addr()
    for q in range(4): group(sG0+q)
    e(f"v_and_b32 v{vOL}, 0xf0, v{vL16}"); e(f"v_bfe_u32 v{vU0}, v{vL}, 4, 1"); e(f"v_lshl_add_u32 v{vOL}, v{vU0}, 9, v{vOL}")
    e(f"v_lshrrev_b32 v{vU0}, 5, v{vL}"); e(f"v_lshl_add_u32 v{vOL}, v{vU0}, 12, v{vOL}")
def o_touch(mask, dst):
    e(f"s_and_b32 s{sT0}, s{sJ}, 7"); e(f"s_lshl_b32 s{sT0}, s{sT0}, 12"); e(f"s_add_u32 s{sT0}, s{sT0}, s{sO3}")
    e(f"s_mov_b32 exec_lo, {mask:#x}"); e("s_mov_b32 exec_hi, 0")
    e(f"buffer_load_dword v{vFL+3}, v{vF}, {srd(SWS)}, s{sT0} offen sc1")
    e("s_mov_b64 exec, -1")
def p3_setup():
    e(f"v_bfe_u32 v{vU0}, v{vL}, 2, 2"); e(f"v_lshlrev_b32 v{vA}, 6, v{vU0}")
    e(f"v_and_b32 v{vU0}, 3, v{vL}"); e(f"v_lshl_add_u32 v{vA}, v{vU0}, 3, v{vA}")
    e(f"v_bfe_u32 v{vU0}, v{vL}, 4, 1"); e(f"v_mul_u32_u24 v{vU0}, 288, v{vU0}"); e(f"v_add_u32 v{vA}, v{vA}, v{vU0}")
    e(f"v_lshrrev_b32 v{vU0}, 5, v{vL}"); e(f"v_lshl_add_u32 v{vA}, v{vU0}, 13, v{vA}")
    e(f"v_add_u32 v{vA}, s{sT3}, v{vA}")
    e(f"v_xor_b32 v{vB}, 32, v{vA}")
    wbase(0, sG0); wbase(1, sG0+1)
def p3_setup2():
    e(f"s_lshl_b32 s{sT0}, s{sW}, 12"); e(f"s_add_u32 s{sT0}, s{sT0}, {L_WK}")
    e(f"v_lshrrev_b32 v{vU0}, 5, v{vL}"); e(f"v_and_b32 v{vU1}, 7, v{vL}"); e(f"v_xor_b32 v{vU0}, v{vU0}, v{vU1}")
    e(f"v_and_b32 v{vTW}, 15, v{vL}"); e(f"v_lshlrev_b32 v{vTW}, 7, v{vTW}"); e(f"v_lshl_add_u32 v{vTW}, v{vU0}, 4, v{vTW}")
    e(f"v_bfe_u32 v{vU0}, v{vL}, 4, 1"); e(f"v_lshl_add_u32 v{vTW}, v{vU0}, 3, v{vTW}"); e(f"v_add_u32 v{vTW}, s{sT0}, v{vTW}")
    for i in range(1, 4): e(f"v_xor_b32 v{vTW+i}, {32*i}, v{vTW}")
    e(f"v_lshrrev_b32 v{vU0}, 3, v{vL}"); e(f"v_xor_b32 v{vTR}, v{vU0}, v{vU1}"); e(f"v_lshlrev_b32 v{vTR}, 4, v{vTR}")
    e(f"v_lshl_add_u32 v{vTR}, v{vU0}, 7, v{vTR}"); e(f"v_add_u32 v{vTR}, s{sT0}, v{vTR}")
    e(f"v_lshlrev_b32 v{vO0}, 11, v{vU0}"); e(f"v_lshl_add_u32 v{vO0}, v{vU1}, 4, v{vO0}")
    e(f"s_lshl_b32 s{sOUT3}, s{sT3P}, 16"); e(f"s_lshl_b32 s{sT1}, s{sBR}, 10"); e(f"s_add_u32 s{sOUT3}, s{sOUT3}, s{sT1}")
    e(f"s_and_b32 s{sT1}, s{sJ}, 7"); e(f"s_lshl_b32 s{sT1}, s{sT1}, 7"); e(f"s_add_u32 s{sOUT3}, s{sOUT3}, s{sT1}")

def lds_wait(off, val):
    L = e.newlab("L_lw"); D = L + "d"
    e(f"s_mov_b32 s{sCNT}, 0")
    e.label(L)
    e(f"ds_read_b32 v{vFL}, v{vFL+3} offset:{off}")
    e(f"s_add_u32 s{sCNT}, s{sCNT}, 1"); e(f"s_cmp_gt_u32 s{sCNT}, {O.pollmax*8}")
    e("s_waitcnt lgkmcnt(0)")
    e(f"v_cmp_ne_u32 vcc, {val}, v{vFL}")
    e(f"s_cbranch_scc1 {D}")
    e(f"s_cbranch_vccz {D}"); e("s_sleep 1"); e(f"s_branch {L}")
    e.label(D)

def p3():
    e.c("---- P3 (waves 0..3)")
    def wrd(st, n):
        c, sec = divmod(n, 2)
        d = WB + 16*(st % 4) + 4*c + 2*sec
        e.ds(f"ds_read_b64_tr_b16 {vr(d,2)}, v{vW[(st//4) % 2][c & 1]} offset:{(st % 4)*16384 + sec*1024 + (c >> 1)*512}", f"W{st}")
    fl = ["", " sc1", " nt", " sc1 nt", " sc0 sc1", " sc0 sc1 nt", " sc0 nt"][O.outsc]
    PK = OFR(0); RD = OFR(4)
    def out_ops(a):
        ops = []
        for c in range(4):
            ops += [lambda c=c: cvt(PK+8*a+2*c, A0+16*a+4*c, 0), lambda c=c: cvt(PK+8*a+2*c, A0+16*a+4*c, 1),
                    lambda c=c: e.ds(f"ds_write_b64 v{vTW+c}, {vr(PK+8*a+2*c,2)} offset:{2048*a}", "ow")]
        for i in (2*a, 2*a+1): ops.append(lambda i=i: e.ds(f"ds_read_b128 {vr(RD+4*i,4)}, v{vTR} offset:{i*1024}", f"or{i}"))
        return ops
    def store(i):
        e.wait_ds(f"or{i}")
        e(f"buffer_store_dwordx4 {vr(RD+4*i,4)}, v{vO0}, {srd(SOUT)}, s{sOUT3} offen{fl}")
        if i < 3: e(f"s_add_u32 s{sOUT3}, s{sOUT3}, 0x4000")
    e.label("L_p3go")
    e.lq = []
    for st in range(2):
        for n in range(8): wrd(st, n)
    e.stamp(9); e.stamp(13, 7)
    rq = [(st, n) for st in range(2, 16) for n in range(8)]
    first_out = 32 - O.nl
    oq = []
    for k in range(32):
        st, a = ORDER[k]
        if k == O.b2:
            e(f"s_cmp_eq_u32 s{sBR}, 0"); e("s_cbranch_scc1 L_p3b")
            p3_setup2()
            e.stamp(5, 7)
            e("s_barrier"); e.stamp(10); e.stamp(7, 7)
            e.label("L_p3b")
            e.stamp(8, 7)
        n0 = len(e.L); e.wait_ds(f"W{st}")
        lg = e.L.pop().split()[-1] if len(e.L) > n0 else ""
        if O.w1 and k < 32 - 2*O.nl:
            if a == 0: e(f"s_waitcnt vmcnt({min(O.ad-2, 30-k)}) {lg}")
            else: assert not lg
        else: e(f"s_waitcnt vmcnt({min(O.ad-1, 31-k)}) {lg}")
        for c in range(4):
            d = A0 + 16*a + 4*c
            e(f"v_mfma_f32_16x16x32_bf16 {vr(d,4)}, {vr(WB + 16*(st % 4) + 4*c,4)}, {vr(OFR(k),4)}, {vr(d,4) if st else 0}")
            if rq: wrd(*rq.pop(0))
            if c == 1 and k + O.ad < 32: o_ld(k+O.ad)
            if k == first_out and c == 3: oq = out_ops(0)
            for _ in range(3):
                if oq: oq.pop(0)()
        if k in (3, 11): wbase(k//8, sG0 + k//8 + 2)
    e.stamp(9, 7)
    for f in oq: f()
    oq = out_ops(1)
    e("s_nop 1")
    for f in oq[:6]: f()
    store(0); store(1)
    for f in oq[6:]: f()
    store(2); store(3)
    if O.stamps:
        e.stamp(10, 7); e("s_waitcnt vmcnt(0)"); e.stamp(11); e.stamp(11, 7)
        e.label("L_stamps")
        e(f"s_memrealtime {sr(sVM)}"); e("s_waitcnt lgkmcnt(0)")
        e(f"s_lshl_b32 s{sT0}, s2, 3"); e(f"s_add_u32 s{sT0}, s{sT0}, s{sW}"); e(f"s_lshl_b32 s{sT0}, s{sT0}, 6"); e(f"s_add_u32 s{sT0}, s{sT0}, {WS_ST}")
        e("s_mov_b64 exec, 1")
        for i in range(1, 14):
            e(f"s_sub_u32 s{sT1}, s{ST0+2*i}, s{ST0}"); e(f"v_mov_b32 v{vU1}, s{sT1}")
            e(f"buffer_store_dword v{vU1}, off, {srd(SWS)}, s{sT0} offset:{4*i}")
        e(f"v_mov_b32 v{vU1}, s100"); e(f"buffer_store_dword v{vU1}, off, {srd(SWS)}, s{sT0} offset:56")
        e(f"v_mov_b32 v{vU1}, s{sVM}"); e(f"buffer_store_dword v{vU1}, off, {srd(SWS)}, s{sT0} offset:60")
    if O.probe:
        if O.probe == 11: e("s_waitcnt vmcnt(0)"); e("s_memrealtime s[76:77]")
        e("s_waitcnt lgkmcnt(0)")
        e(f"s_cmp_lg_u32 s{sBR}, {O.pbr}"); e("s_cbranch_scc1 L_end")
        e("s_sub_u32 s76, s76, s72"); e("s_lshl_b32 s76, s76, 1"); e("s_add_u32 s76, s76, 3000")
        e.label("L_spin"); e("s_memrealtime s[74:75]"); e("s_waitcnt lgkmcnt(0)"); e("s_sub_u32 s74, s74, s72")
        e(f"s_cmp_lt_u32 s74, s76"); e("s_cbranch_scc1 L_spin")
    if O.spin:
        e.label("L_spin"); e("s_memrealtime s[74:75]"); e("s_waitcnt lgkmcnt(0)"); e("s_sub_u32 s74, s74, s72")
        e(f"s_cmp_lt_u32 s74, {O.spin}"); e("s_cbranch_scc1 L_spin")
    e.label("L_end")
    e("s_endpgm")
    e.stub(); e("s_endpgm")
    e.flush()

def xmax(reg):
    e(f"v_mov_b32 v{vFL+2}, v{reg}"); e("s_nop 1")
    e(f"v_permlane32_swap_b32 v{vFL+2}, v{reg}"); e("s_nop 1")
    e(f"v_max_f32 v{reg}, v{reg}, v{vFL+2}")

def slow_paths(a_body, KP):
    e.c("---- rare path: the stand-in max was unsafe, redo the unit with the true row max")
    def shift(op):
        for r_, d_ in ((vKA, 0x400), (vKA8, 0x400), (vVA, 0x100), (vVA8, 0x100)): e(f"{op} v{r_}, {d_:#x}, v{r_}")
    for u in range(2):
        e.label(f"L_B_slow{u}")
        e(f"s_mov_b32 s{sU}, {u}")
        for i in range(4): e(f"v_mov_b32 v{vQ+i}, v{vQ2+4*u+i}")
        if u == 0: e("s_branch L_B_slow")
        else: shift("v_add_u32")
    e.label("L_B_slow")
    e("s_waitcnt vmcnt(0)")
    prefill(range(vV, vV+8))
    e(f"v_mov_b32 v{vFL}, {NEG}")
    for ps in range(2):
        for i in range(9):
            if i > 0: e(f"s_cmp_gt_u32 {i}, s{sT}"); e(f"s_cbranch_scc1 L_B_s{ps}")
            rdK(i, 0, vK)
            if ps: rdV(i, 0, vV, dyn=False)
            e("s_waitcnt lgkmcnt(0)")
            mfma(vS, vK, vQ, vML if i == 0 else (vMF if i == 8 else "0"))
            e("s_nop 11")
            if ps == 0:
                for r in range(0, 16, 2): e(f"v_max3_f32 v{vFL}, v{vFL}, v{vS+r}, v{vS+r+1}")
            else:
                for r in range(16): e(f"v_sub_f32 v{vS+r}, v{vS+r}, v{vFL}")
                for r in range(16): e(f"v_exp_f32 v{vS+r}, v{vS+r}")
                cvt8(PB, vS, 8); e("s_nop 1")
                mfma(vO, vV, PB, vO if i > 0 else "0"); mfma(vO, vV+4, PB+4, vO)
                e("s_nop 7")
        e.label(f"L_B_s{ps}")
        if ps == 0: xmax(vFL)
    e("s_nop 11")
    norm(vO, vP+4)
    e(f"s_cmp_eq_u32 s{sU}, 0"); e("s_cbranch_scc1 L_B_fin0")
    shift("v_subrev_u32")
    e("s_branch L_B_ok1")
    e.label("L_B_fin0")
    e(f"buffer_store_dwordx4 {vr(vP+4,4)}, v{vL16}, {srd(SWS)}, s{sOA} offen sc1")
    e("s_waitcnt vmcnt(0)"); flag_store(sF2)
    e("s_branch L_B_ok0")
    e.label("L_A_slow")
    e("s_waitcnt vmcnt(0)")
    for h in range(2):
        e(f"v_mov_b32 v{vFL+h}, {NEG}")
        mfma(vS, vK+4-4*h, vQ2+4*h, vML); e("s_nop 11")
        for r in range(0, 16, 2): e(f"v_max3_f32 v{vFL+h}, v{vFL+h}, v{vS+r}, v{vS+r+1}")
        e(f"s_cmp_eq_u32 s{sT}, 0"); e(f"s_cbranch_scc1 L_A_m{h}")
        mfma(vS, KP+4*h, vQ2+4*h, vMF); e("s_nop 11")
        for r in range(8, 16, 2): e(f"v_max3_f32 v{vFL+h}, v{vFL+h}, v{vS+r}, v{vS+r+1}")
        e.label(f"L_A_m{h}")
        xmax(vFL+h)
    a_body(True)
    e("s_branch L_A_ok")

prologue(); p1(); p1_done(); ab = attention(); p3(); slow_paths(*ab)
e("s_endpgm")

hdr = open("cdna_kernels/" + NAME + ".s.ref").read().split("; Override launch geometry")[0]
out = hdr + f"; @launch grid=(256,1,1) block=(512,1,1) lds={LDS_BYTES}\n"
out += """; ---------------------------------------------------------------------------------------------------------------
; ---------------------------------------------------------------------------------------------------------------
"""
out += f""".amdgcn_target "amdgcn-amd-amdhsa--gfx950"
.text
.globl {NAME}_kernel
{'.p2align 12' if O.al12 else ''}
.p2align 8
.type {NAME}_kernel,@function
{NAME}_kernel:
""" + "\n".join(e.L) + f"""
.section .rodata,"a"
.p2align 6
.amdhsa_kernel {NAME}_kernel
  .amdhsa_next_free_vgpr 256
  .amdhsa_next_free_sgpr {102 if O.stamps else (80 if (O.spin or O.probe) else 72)}
  .amdhsa_accum_offset 256
  .amdhsa_group_segment_fixed_size 0
  .amdhsa_kernarg_size 72
  .amdhsa_user_sgpr_count 2
  .amdhsa_user_sgpr_kernarg_segment_ptr 1
  .amdhsa_system_sgpr_workgroup_id_x 1
.end_amdhsa_kernel
"""
open(sys.argv[1], "w").write(out)
```
